```python
import torch

def _softmax(x, axis=-1):
    return torch.softmax(x, dim=axis)
def _gelu(x):
    return torch.nn.functional.gelu(x, approximate="tanh")
def _silu(x):
    return torch.nn.functional.silu(x)
def _sigmoid(x):
    return torch.sigmoid(x)
def _layernorm(x, axis=-1, eps=1e-5):
    m = x.mean(dim=axis, keepdim=True)
    v = x.var(dim=axis, keepdim=True, unbiased=False)
    return (x - m) / torch.sqrt(v + eps)
def _scatter_add(tgt, idx, src, axis=0):
    return tgt.clone().index_add_(axis, idx, src)
def _segment_sum(src, seg, n):
    out = torch.zeros((n,) + src.shape[1:], dtype=src.dtype)
    return out.index_add_(0, seg, src)
def _pad(x, pw):
    flat = tuple(v for pair in reversed(pw) for v in pair)
    return torch.nn.functional.pad(x, flat)

kernel_name = 'gated_mix__sliding_block__softmax_full_mha__prompt'

def setup_inputs():

    _w = (lambda a: (lambda t: t.to(torch.bfloat16) if t.is_floating_point() else t)(torch.as_tensor(a)))
    def _A_setup():
        B, S, D = 1, 2048, 512
        return {
            "x": _w((lambda *s: torch.randn(*s, dtype=torch.bfloat16) * 0.05)(B, S, D)),
            "wqkv": _w((lambda *s: torch.randn(*s, dtype=torch.bfloat16) * 1.6)(D, 3 * D)),
            "wo": _w((lambda *s: torch.randn(*s, dtype=torch.bfloat16) * 0.05)(D, D)),
        }
    _A_in = _A_setup()

    def _B_setup():
        B, S, D = 1, 2048, 512
        return {
            "x": _w((lambda *s: torch.randn(*s, dtype=torch.bfloat16) * 0.05)(B, S, D)),
            "wqkv": _w((lambda *s: torch.randn(*s, dtype=torch.bfloat16) * 1.6)(D, 3 * D)),
            "wo": _w((lambda *s: torch.randn(*s, dtype=torch.bfloat16) * 0.1)(D, D)),
        }
    _B_in = _B_setup()

    return {
        "A_x": _A_in["x"],
        "A_wqkv": _A_in["wqkv"],
        "A_wo": _A_in["wo"],
        "B_x": _B_in["x"],
        "B_wqkv": _B_in["wqkv"],
        "B_wo": _B_in["wo"],
        "gate_w": _w((lambda *s: torch.randn(*s, dtype=torch.bfloat16) * 0.05)(512) * 16.0),
    }

def reference(A_x, A_wqkv, A_wo, B_x, B_wqkv, B_wo, gate_w):
    def _A_ref(x, wqkv, wo):
        B, S, D = x.shape
        H = 32; Dh = D // H; W = 256
        qkv = (lambda x, *d: x.permute(*d))((x @ wqkv).reshape(B, S, 3, H, Dh), 2, 0, 3, 1, 4)
        q, k, v = qkv[0], qkv[1], qkv[2]
        scores = torch.einsum("bhqd,bhkd->bhqk", q, k) * (Dh ** -0.5)
        idx = torch.arange(S)
        mask = (idx[:, None] - idx[None, :] >= 0) & (idx[:, None] - idx[None, :] < W)
        scores = torch.where(mask[None, None], scores, -1e9)
        p = _softmax(scores, axis=-1)
        o = torch.einsum("bhqk,bhkd->bhqd", p, v)
        return (lambda x, *d: x.permute(*d))(o, 0, 2, 1, 3).reshape(B, S, D) @ wo

    def _B_ref(x, wqkv, wo):
        B, S, D = x.shape
        H = 32; Dh = D // H
        qkv = (lambda x, *d: x.permute(*d))((x @ wqkv).reshape(B, S, 3, H, Dh), 2, 0, 3, 1, 4)
        q, k, v = qkv[0], qkv[1], qkv[2]
        scale = Dh ** -0.5
        scores = torch.einsum("bhqd,bhkd->bhqk", q, k) * scale
        p = _softmax(scores, axis=-1)
        o = torch.einsum("bhqk,bhkd->bhqd", p, v)
        return (lambda x, *d: x.permute(*d))(o, 0, 2, 1, 3).reshape(B, S, D) @ wo

    x = A_x
    g = _sigmoid((x * gate_w).sum(-1, keepdims=True))
    a = _A_ref(x, A_wqkv, A_wo)
    b = _B_ref(x, B_wqkv, B_wo)
    return g * a + (1 - g) * b
```

```python
import struct, sys

NAME = "gated_mix__sliding_block__softmax_full_mha__prompt"
WS_KV  = 0
WS_Q   = 8 << 20
WS_O   = 12 << 20
WS_WOT = 16 << 20
WS_G   = 17 << 20
WS_SIZE = 18 << 20
NEG_INF = 0xff800000
def f2u(x): return struct.unpack("<I", struct.pack("<f", x))[0]
QSCALE = f2u(0.25 * 1.4426950408889634)
LOG2E = f2u(1.4426950408889634)

class A:
    def __init__(s): s.L = []
    def __call__(s, t): s.L.append("    " + t)
    def lab(s, n): s.L.append(n + ":")
    def c(s, t): s.L.append("    ; " + t)
    def raw(s, t): s.L.append(t)
    def text(s): return "\n".join(s.L) + "\n"

def vr(b, n=1): return f"v{b}" if n == 1 else f"v[{b}:{b+n-1}]"
def ar(b, n=1): return f"a{b}" if n == 1 else f"a[{b}:{b+n-1}]"
def sr(b, n=1): return f"s{b}" if n == 1 else f"s[{b}:{b+n-1}]"

def head(a, name):
    a.raw(".text"); a.raw(f".globl {name}"); a.raw(".p2align 8"); a.raw(f".type {name},@function"); a.lab(name)

def desc(name, nv, ns, acc):
    return f""".section .rodata,"a"
.p2align 6
.amdhsa_kernel {name}
  .amdhsa_next_free_vgpr {nv}
  .amdhsa_next_free_sgpr {ns}
  .amdhsa_accum_offset {acc}
  .amdhsa_group_segment_fixed_size 0
  .amdhsa_kernarg_size 80
  .amdhsa_user_sgpr_count 2
  .amdhsa_user_sgpr_kernarg_segment_ptr 1
  .amdhsa_system_sgpr_workgroup_id_x 1
.end_amdhsa_kernel
"""

def srd(a, d, lo, hi, size):
    a(f"s_mov_b32 s{d}, s{lo}")
    a(f"s_and_b32 s{d+1}, s{hi}, 0xffff")
    a(f"s_mov_b32 s{d+2}, {size:#x}")
    a(f"s_mov_b32 s{d+3}, 0x20000")

def k1():
    a = A(); n = "qkv_kernel"; head(a, n)
    a("s_cmp_ge_u32 s2, 256"); a("s_cbranch_scc1 K1_end")
    a("s_load_dwordx2 s[4:5], s[0:1], 0")
    a("s_load_dwordx4 s[8:11], s[0:1], 8")
    a("s_load_dwordx4 s[12:15], s[0:1], 32")
    a("s_load_dwordx2 s[6:7], s[0:1], 48")
    a("s_load_dwordx2 s[16:17], s[0:1], 72")
    a("v_lshrrev_b32 v2, 6, v0")
    a("v_and_b32 v1, 63, v0")
    a("s_and_b32 s18, s2, 7")
    a("v_readfirstlane_b32 s21, v2")
    a("s_bfe_u32 s19, s2, 0x40003")
    a("s_lshr_b32 s20, s2, 7")
    a("s_waitcnt lgkmcnt(0)")
    a("s_cmp_eq_u32 s20, 0")
    a("s_cselect_b32 s8, s8, s12"); a("s_cselect_b32 s9, s9, s13")
    a("s_cselect_b32 s10, s10, s14"); a("s_cselect_b32 s11, s11, s15")
    srd(a, 24, 4, 5, 2048*512*2)
    srd(a, 28, 8, 9, 512*1536*2)
    srd(a, 32, 16, 17, WS_SIZE)
    srd(a, 36, 10, 11, 512*512*2)
    srd(a, 40, 6, 7, 512*2)
    a("s_cmp_lt_u32 s21, 4"); a("s_cbranch_scc1 K1_compute")
    a("s_sub_u32 s22, s21, 4")
    a("v_lshrrev_b32 v2, 3, v1")
    a("v_and_b32 v3, 7, v1")
    a("v_lshrrev_b32 v4, 4, v1")
    a("v_xor_b32 v5, v3, v4")
    a("v_lshlrev_b32 v5, 4, v5")
    a("v_lshl_add_u32 v6, v2, 10, v5")
    a("v_xor_b32 v7, 64, v6")
    a("v_and_b32 v5, 1, v4")
    a("v_lshlrev_b32 v5, 2, v5")
    a("v_xor_b32 v5, v3, v5")
    a("v_lshlrev_b32 v5, 4, v5")
    a("v_mul_u32_u24 v8, 3072, v2")
    a("v_add_u32 v8, v8, v5")
    a("s_lshl_b32 s44, s19, 17")
    a("s_lshl_b32 s23, s22, 15")
    a("s_add_u32 s44, s44, s23")
    for il in range(1, 4): a(f"s_add_u32 s{44+il}, s44, {8192*il}")
    a("s_mul_i32 s23, s22, 6")
    for jl in range(6):
        a(f"s_add_u32 s54, s23, {jl}")
        a("s_and_b32 s55, s54, 7")
        a("s_mul_i32 s55, s55, 24576")
        a("s_lshr_b32 s54, s54, 3")
        a("s_lshl_b32 s54, s54, 10")
        a("s_add_u32 s55, s55, s54")
        a("s_lshl_b32 s54, s18, 7")
        a(f"s_add_u32 s{48+jl}, s55, s54")
    a("s_lshl_b32 s56, s22, 12")
    a("s_mul_i32 s57, s22, 6144")
    a("s_add_u32 s57, s57, 65536")
    def issue(c):
        slot = c & 3
        for il in range(4):
            a(f"s_add_u32 m0, s56, {slot*16384 + il*1024}")
            a("s_nop 0")
            a(f"buffer_load_dwordx4 v{6+(il&1)}, s[24:27], s{44+il} offen lds")
            a(f"s_add_u32 s{44+il}, s{44+il}, 128")
        for jl in range(6):
            a(f"s_add_u32 m0, s57, {slot*24576 + jl*1024}")
            a("s_nop 0")
            a(f"buffer_load_dwordx4 v8, s[28:31], s{48+jl} offen lds")
            a(f"s_add_u32 s{48+jl}, s{48+jl}, {64*3072}")
    for c in range(4): issue(c)
    a("s_waitcnt vmcnt(30)"); a("s_barrier")
    a("s_waitcnt vmcnt(20)"); a("s_barrier")
    for c in range(4, 8):
        issue(c)
        a("s_waitcnt vmcnt(20)"); a("s_barrier")
    a("s_waitcnt vmcnt(10)"); a("s_barrier")
    a("s_waitcnt vmcnt(0)"); a("s_barrier")
    a("s_endpgm")
    a.lab("K1_compute")
    a("s_lshl_b32 s22, s20, 3"); a("s_add_u32 s22, s22, s18")
    a("s_lshl_b32 s22, s22, 3"); a("s_lshl_b32 s23, s19, 7"); a("s_add_u32 s22, s22, s23")
    a("s_lshl_b32 s23, s22, 10")
    a("v_lshlrev_b32 v2, 5, v0")
    a("v_and_b32 v3, 0x3e0, v2")
    a("buffer_load_dwordx4 v[64:67], v2, s[24:27], s23 offen")
    a("buffer_load_dwordx4 v[68:71], v2, s[24:27], s23 offen offset:16")
    a("buffer_load_dwordx4 v[72:75], v3, s[40:43], 0 offen")
    a("buffer_load_dwordx4 v[76:79], v3, s[40:43], 0 offen offset:16")
    a("s_lshl_b32 s44, s2, 2"); a("s_add_u32 s44, s44, s21")
    a("s_bfe_u32 s45, s44, 0x50004")
    a("s_and_b32 s46, s44, 15")
    a("s_lshl_b32 s45, s45, 14")
    a("s_lshl_b32 s46, s46, 6")
    a("s_add_u32 s45, s45, s46")
    a("s_add_u32 s46, s45, 8192")
    a("v_lshrrev_b32 v4, 5, v1")
    a("v_and_b32 v5, 31, v1")
    a("v_lshlrev_b32 v6, 1, v5")
    a("v_lshl_add_u32 v6, v4, 12, v6")
    for i in range(8):
        a(f"buffer_load_ushort v{80+i}, v6, s[36:39], s{45+(i>>2)} offen offset:{(i&3)*1024}")
    a("s_lshr_b32 s47, s21, 1")
    a("s_and_b32 s48, s21, 1")
    a("v_lshrrev_b32 v7, 1, v5"); a("v_and_b32 v7, 7, v7")
    a("s_lshl_b32 s49, s47, 13")
    a("v_lshlrev_b32 v8, 7, v5")
    a("v_add_u32 v8, s49, v8")
    for t in range(4):
        a(f"v_add_u32 v9, {2*t}, v4")
        a("v_xor_b32 v9, v9, v7")
        a(f"v_lshl_add_u32 v{10+t}, v9, 4, v8")
    a("v_bfe_u32 v7, v1, 2, 2")
    a("v_lshl_add_u32 v8, v4, 3, v7")
    a("v_lshlrev_b32 v8, 7, v8")
    a("v_bfe_u32 v9, v1, 4, 1")
    a("v_lshlrev_b32 v9, 1, v9")
    a("v_bfe_u32 v16, v1, 1, 1")
    a("v_add_u32 v9, v9, v16")
    a("s_lshl_b32 s49, s48, 2")
    a("v_add_u32 v9, s49, v9")
    a("v_bfe_u32 v16, v1, 3, 1")
    a("v_lshlrev_b32 v16, 2, v16")
    a("v_xor_b32 v9, v9, v16")
    a("v_lshl_add_u32 v8, v9, 4, v8")
    a("v_and_b32 v9, 1, v1")
    a("v_lshl_add_u32 v8, v9, 3, v8")
    a("v_add_u32 v14, 65536, v8")
    a(f"v_add_u32 v15, {65536+2*24576}, v8")
    a("s_waitcnt vmcnt(8)")
    a("v_mov_b32 v88, 0")
    for i in range(8): a(f"v_dot2_f32_bf16 v88, v{64+i}, v{72+i}, v88")
    a("s_nop 3")
    for dpp in ("quad_perm:[1,0,3,2]", "quad_perm:[2,3,0,1]", "row_half_mirror", "row_mirror"):
        a(f"v_add_f32_dpp v88, v88, v88 {dpp} row_mask:0xf bank_mask:0xf")
        a("s_nop 1")
    a("v_add_f32_dpp v88, v88, v88 row_bcast:15 row_mask:0xa bank_mask:0xf")
    a(f"v_mul_f32 v88, {f2u(-1.4426950408889634):#x}, v88")
    a("v_exp_f32 v88, v88")
    a("s_nop 0")
    a("v_add_f32 v88, 1.0, v88")
    a("v_rcp_f32 v88, v88")
    a("v_lshrrev_b32 v89, 5, v0")
    a("v_lshlrev_b32 v89, 2, v89")
    a("s_lshl_b32 s23, s22, 2"); a(f"s_add_u32 s23, s23, {WS_G:#x}")
    a("s_mov_b32 s50, 0x80000000"); a("s_mov_b32 s51, 0x80000000")
    a("s_mov_b64 exec, s[50:51]")
    a("buffer_store_dword v88, v89, s[32:35], s23 offen")
    a("s_mov_b64 exec, -1")
    a("s_waitcnt vmcnt(1)")
    for i in range(4): a(f"v_lshl_or_b32 v{92+i}, v{81+2*i}, 16, v{80+2*i}")
    a("v_lshlrev_b32 v9, 4, v1")
    a("s_lshl_b32 s44, s44, 10"); a(f"s_add_u32 s44, s44, {WS_WOT:#x}")
    a("buffer_store_dwordx4 v[92:95], v9, s[32:35], s44 offen")
    XF = [[16, 20], [24, 28]]
    WF = [[32, 36, 40], [44, 48, 52]]
    ACC = lambda seg, aa: 64 + (seg*2+aa)*16
    def reads(n):
        c, t, b = n >> 2, n & 3, n & 1
        slot = c & 3
        L = []
        for aa in range(2):
            L.append(f"ds_read_b128 {vr(XF[b][aa],4)}, v{10+t} offset:{slot*16384 + aa*4096}")
        for seg in range(3):
            for u in range(2):
                L.append(f"ds_read_b64_tr_b16 {vr(WF[b][seg]+2*u,2)}, v{14+(slot>>1)} offset:{(slot&1)*24576 + seg*8192 + (16*t+4*u)*128}")
        return L
    def mfmas(n):
        b = n & 1; L = []
        for seg in range(3):
            for aa in range(2):
                d = vr(ACC(seg, aa), 16); cc = "0" if n == 0 else d
                w, x = vr(WF[b][seg], 4), vr(XF[b][aa], 4)
                if seg < 2: L.append(f"v_mfma_f32_32x32x16_bf16 {d}, {w}, {x}, {cc}")
                else:       L.append(f"v_mfma_f32_32x32x16_bf16 {d}, {x}, {w}, {cc}")
        return L
    a("s_barrier")
    for r in reads(0): a(r)
    for n in range(32):
        a("s_waitcnt lgkmcnt(0)")
        m = mfmas(n)
        r = reads(n+1) if n < 31 else []
        if n & 3 == 3 and n < 31:
            a(m[0]); a("s_barrier"); m = m[1:]
            for i in range(4):
                a(r[2*i]); a(r[2*i+1]); a(m[i])
            a(m[4])
        else:
            for i in range(6):
                a(m[i])
                if r and i < 4: a(r[2*i]); a(r[2*i+1])
    a("s_lshl_b32 s50, s20, 5"); a("s_lshl_b32 s51, s18, 2"); a("s_add_u32 s50, s50, s51")
    a("s_lshl_b32 s51, s48, 1"); a("s_add_u32 s50, s50, s51")
    a("s_lshl_b32 s50, s50, 6")
    a("s_lshl_b32 s51, s19, 2"); a("s_add_u32 s50, s50, s51")
    a("s_lshl_b32 s51, s47, 1"); a("s_add_u32 s50, s50, s51")
    a("s_lshl_b32 s52, s50, 10"); a(f"s_add_u32 s52, s52, {WS_Q:#x}"); a("s_add_u32 s53, s52, 65536")
    a("s_lshl_b32 s54, s50, 11"); a("s_add_u32 s55, s54, 131072")
    a("v_and_b32 v2, 0x33, v1")
    a("v_bfe_u32 v3, v1, 2, 1"); a("v_lshl_or_b32 v2, v3, 3, v2")
    a("v_bfe_u32 v3, v1, 3, 1"); a("v_lshl_or_b32 v2, v3, 2, v2")
    a("v_lshlrev_b32 v2, 4, v2")
    a("v_and_b32 v3, 15, v1"); a("v_lshlrev_b32 v3, 4, v3")
    a("v_lshl_add_u32 v3, v4, 8, v3")
    a("v_bfe_u32 v5, v1, 4, 1"); a("v_lshl_add_u32 v3, v5, 17, v3")
    a("v_add_u32 v3, 1024, v3")
    a(f"s_mov_b32 s56, {QSCALE:#x}")
    pk = 160
    for seg in range(3):
        for aa in range(2):
            base = ACC(seg, aa)
            if seg == 0:
                for r in range(16): a(f"v_mul_f32 v{base+r}, s56, v{base+r}")
            for p in range(2):
                for i in range(4):
                    a(f"v_cvt_pk_bf16_f32 v{pk+i}, v{base+8*p+2*i}, v{base+8*p+2*i+1}")
                if seg == 0:   a(f"buffer_store_dwordx4 {vr(pk,4)}, v9, s[32:35], s{52+p} offen offset:{aa*1024}")
                elif seg == 1: a(f"buffer_store_dwordx4 {vr(pk,4)}, v2, s[32:35], s{54+p} offen offset:{aa*2048}")
                else:          a(f"buffer_store_dwordx4 {vr(pk,4)}, v3, s[32:35], s54 offen offset:{aa*2048+p*512}")
                pk += 4
    a.lab("K1_end")
    a("s_endpgm")
    return a.text(), desc(n if False else "qkv_kernel", 208, 64, 208)

QA, QB = 8, 12
KB = [16, 20]
VB = [[24, 28], [32, 36]]
SB = [48, 64]
OA = 80
CM, CF = 96, 112
vIDX, vKa, vVa, vKb, vVb, vG, vT, vM, vMF, vL16, vT2 = 2, 3, 4, 5, 6, 7, 40, 41, 42, 43, 44
def k2():
    a = A(); n = "attn_kernel"; head(a, n)
    a("s_cmp_ge_u32 s2, 256"); a("s_cbranch_scc1 K2_end")
    a("s_load_dwordx2 s[4:5], s[0:1], 72")
    a("v_lshrrev_b32 v2, 6, v0")
    a("v_and_b32 v1, 63, v0")
    a("s_and_b32 s6, s2, 7"); a("s_lshl_b32 s6, s6, 2")
    a("v_readfirstlane_b32 s21, v2")
    a("s_bfe_u32 s7, s2, 0x20003"); a("s_add_u32 s6, s6, s7")
    a("s_lshr_b32 s7, s2, 5")
    a(f"v_lshlrev_b32 v{vL16}, 4, v1")
    a("s_lshl_b32 s12, s7, 3"); a("s_add_u32 s12, s12, s21")
    a("s_lshl_b32 s13, s6, 6"); a("s_add_u32 s13, s13, s12")
    a("s_lshl_b32 s13, s13, 10"); a(f"s_add_u32 s13, s13, {WS_Q:#x}")
    a(f"s_add_u32 s14, s13, {32*64*1024:#x}")
    a("s_lshl_b32 s15, s12, 7"); a(f"s_add_u32 s15, s15, {WS_G:#x}")
    a("v_and_b32 v45, 31, v1")
    a("v_lshlrev_b32 v46, 2, v45")
    a("s_lshl_b32 s16, s6, 17"); a("s_lshl_b32 s17, s7, 14"); a("s_add_u32 s16, s16, s17")
    a("s_lshl_b32 s18, s21, 12")
    a("s_add_u32 s17, s17, s18")
    a("s_add_u32 s16, s16, s18")
    a("s_cmp_lt_u32 s17, 16384")
    a("s_cselect_b32 s17, 0, 16384")
    a("s_sub_u32 s16, s16, s17")
    a("s_lshl_b32 s19, s6, 17"); a("s_add_u32 s19, s19, s18"); a(f"s_add_u32 s19, s19, {32*131072:#x}")
    a("s_waitcnt lgkmcnt(0)")
    srd(a, 8, 4, 5, WS_SIZE)
    a(f"buffer_load_dwordx4 {vr(QA,4)}, v{vL16}, s[8:11], s13 offen")
    a("s_add_u32 m0, s18, 131072")
    a("s_nop 0")
    for i in range(4): a(f"buffer_load_dwordx4 v{vL16}, s[8:11], s16 offen offset:{i*1024} lds")
    a(f"buffer_load_dwordx4 {vr(QB,4)}, v{vL16}, s[8:11], s14 offen")
    a(f"buffer_load_dword v{vG}, v46, s[8:11], s15 offen")
    for g in range(4):
        a(f"s_add_u32 m0, s18, {g*32768}")
        a("s_nop 0")
        for i in range(4): a(f"buffer_load_dwordx4 v{vL16}, s[8:11], s19 offen offset:{i*1024} lds")
        a("s_add_u32 s19, s19, 32768")
    a(f"v_mov_b32 v{vIDX}, 0xdddddddd")
    a("s_mov_b32 s22, 0x0000ffff"); a("s_mov_b32 s23, 0x0000ffff")
    a("v_lshrrev_b32 v47, 5, v1")
    a(f"v_and_b32 v{vVb}, 15, v1"); a(f"v_lshlrev_b32 v{vVb}, 4, v{vVb}")
    a(f"v_lshl_add_u32 v{vVb}, v47, 8, v{vVb}"); a(f"v_add_u32 v{vVb}, 1024, v{vVb}")
    a("s_lshl_b32 s24, s21, 11"); a("s_add_u32 s24, s24, 131072")
    a(f"v_add_u32 v{vKa}, s24, v{vL16}")
    a(f"v_add_u32 v{vVa}, s24, v{vVb}")
    a("v_lshlrev_b32 v47, 3, v47"); a("v_sub_u32 v47, v45, v47")
    for b in range(2):
        for j in range(2):
            for i in range(4): a(f"v_mov_b32 v{VB[b][j]+i}, 0x3f803f80")
    a(f"s_mov_b32 s25, {NEG_INF:#x}")
    a("s_cmp_eq_u32 s7, 0"); a("s_cselect_b32 s26, s25, 0")
    a("s_cselect_b32 s27, s21, 64")
    a(f"v_mov_b32 v{vMF}, s25")
    a("s_mov_b32 s28, 0")
    a("s_mov_b32 s29, 1")

    def rdK(buf, addr, off): a(f"ds_read_b128 {vr(KB[buf],4)}, v{addr} offset:{off}")
    def rdV(buf, addr, off):
        a("s_mov_b64 exec, s[22:23]")
        a(f"ds_read_b128 {vr(VB[buf][0],4)}, v{addr} offset:{off}")
        a(f"ds_read_b128 {vr(VB[buf][1],4)}, v{addr} offset:{off+512}")
        a("s_mov_b64 exec, -1")
    def mfma(dst, kbuf, q, c): a(f"v_mfma_f32_32x32x16_bf16 {vr(dst,16)}, {vr(KB[kbuf],4)}, {vr(q,4)}, {c}")
    def smf(vreg, sreg): a(f"v_smfmac_f32_32x32x32_bf16 {vr(OA,16)}, {vr(vreg,4)}, {vr(sreg,8)}, v{vIDX}")
    def ex(s, i): a(f"v_exp_f32 v{s+i}, v{s+i}")
    def rowmax(s):
        a(f"v_max3_f32 v{vM}, v{s}, v{s+1}, v{vMF}")
        for i in range(2, 16, 2): a(f"v_max3_f32 v{vM}, v{s+i}, v{s+i+1}, v{vM}")
        a(f"v_mov_b32 v{vT}, v{vM}")
        a("s_nop 1")
        a(f"v_permlane32_swap_b32 v{vM}, v{vT}")
        a(f"v_max_f32 v{vM}, v{vM}, v{vT}")
    def tile(t, first, do_mfma, q, c, kread, vread, pre_mfma=None):
        cur, prev = SB[t & 1], SB[(t+1) & 1]
        ex(cur, 0); ex(cur, 1)
        if not first: smf(VB[(t-1) & 1][1], prev+8)
        a("s_waitcnt lgkmcnt(0)")
        if kread is not None: rdK(t & 1, *kread)
        if vread is not None: rdV((t+1) & 1, *vread)
        ex(cur, 2); ex(cur, 3); ex(cur, 4)
        if do_mfma:
            if pre_mfma: pre_mfma()
            mfma(prev, (t+1) & 1, q, c)
        for i in range(5, 10): ex(cur, i)
        smf(VB[t & 1][0], cur)
        for i in range(10, 16): ex(cur, i)
    def finish(tlast, fb_label, done_label, branch):
        a("s_nop 1")
        smf(VB[tlast & 1][1], SB[tlast & 1]+8)
        a("s_nop 15")
        a(f"v_add_f32 v{vT}, abs(v{OA}), v{OA+8}")
        for i in range(1, 8): a(f"v_add_f32 v{vT}, abs(v{OA+i}), v{vT}")
        a(f"v_rcp_f32 v{vT2}, v{OA+8}")
        a(f"v_cmp_gt_f32 vcc, 0x71800000, v{vT}")
        a("s_cmp_lg_u32 s28, 0"); a(f"s_cbranch_scc1 {done_label}")
        a("s_cmp_eq_u64 vcc, -1"); a(f"s_cbranch_scc0 {fb_label}")
        a.lab(done_label)
        if branch == 0: a(f"v_mul_f32 v{vT2}, v{vG}, v{vT2}")
        else:
            a(f"v_sub_f32 v{vT}, 1.0, v{vG}"); a(f"v_mul_f32 v{vT2}, v{vT}, v{vT2}")
        for i in range(8): a(f"v_mul_f32 v{OA+i}, v{vT2}, v{OA+i}")
        for i in range(4): a(f"v_cvt_pk_bf16_f32 v{128+4*branch+i}, v{OA+2*i}, v{OA+2*i+1}")
        a("s_lshl_b32 s30, s12, 6"); a("s_add_u32 s30, s30, s6"); a("s_lshl_b32 s30, s30, 10")
        a(f"s_add_u32 s30, s30, {WS_O + branch*32*1024:#x}")
        a(f"buffer_store_dwordx4 {vr(128+4*branch,4)}, v{vL16}, s[8:11], s30 offen")

    a.lab("K2_A_start")
    a(f"v_mov_b32 v{vT}, s25"); a(f"v_mov_b32 v{vT2}, s26")
    for r in range(16):
        a(f"v_cmp_le_i32 vcc, {(r & 7) + 16*(r >> 3)}, v47")
        a(f"v_mov_b32 v{OA+r}, 0")
        a("s_nop 0")
        a(f"v_cndmask_b32 v{SB[1]+r}, v{vT}, v{OA+r}, vcc")
        a(f"v_cndmask_b32 v{CF+r}, v{vT2}, v{vT}, vcc")
    a("s_cmp_eq_u32 s29, 0"); a("s_cbranch_scc1 K2_A_nobar")
    a("s_waitcnt vmcnt(18)"); a("s_barrier")
    a.lab("K2_A_nobar")
    rdK(0, vKa, 8*2048); rdK(1, vKa, 7*2048); rdV(0, vVa, 8*2048)
    a("s_waitcnt lgkmcnt(3)")
    mfma(SB[0], 0, QA, vr(SB[1], 16))
    a("s_nop 15")
    rowmax(SB[0])
    for r in range(16): a(f"v_sub_f32 v{SB[0]+r}, v{SB[0]+r}, v{vM}")
    for r in range(16): a(f"v_sub_f32 v{CM+r}, 0, v{vM}")
    for r in range(16): a(f"v_sub_f32 v{CF+r}, v{CF+r}, v{vM}")
    for t in range(9):
        def pm(t=t):
            if t < 7:
                a(f"s_cmp_lg_u32 s27, {t}"); a(f"s_cbranch_scc1 K2_A_mid{t}")
                a("s_nop 7")
                for r in range(16): a(f"v_mov_b32 v{CM+r}, s25")
                a("s_nop 1")
                a.lab(f"K2_A_mid{t}")
        tile(t, t == 0, t < 8, QA, vr(CM if t < 7 else CF, 16),
             (vKa, (8-(t+2))*2048) if t+2 <= 8 else None,
             (vVa, (8-(t+1))*2048) if t+1 <= 8 else None, pm)
    a("s_waitcnt vmcnt(8)")
    finish(8, "K2_A_fb", "K2_A_done", 0)
    a("s_barrier")
    a("s_mov_b32 s28, 0"); a("s_mov_b32 s29, 1")
    a(f"v_mov_b32 v{vMF}, s25")
    a.lab("K2_B_start")
    a(f"v_mov_b32 v{vKb}, v{vL16}")
    a(f"v_and_b32 v{vVb}, 0x7ff, v{vVb}")
    rdK(0, vKb, 0); rdK(1, vKb, 2048); rdV(0, vVb, 0); rdV(1, vVb, 0)
    for r in range(16): a(f"v_mov_b32 v{OA+r}, 0")
    for r in range(8, 16): a(f"v_mov_b32 v{SB[1]+r}, 0")
    a("s_waitcnt lgkmcnt(5)")
    mfma(SB[0], 0, QB, "0")
    a("s_nop 15")
    rowmax(SB[0])
    for r in range(16): a(f"v_sub_f32 v{SB[0]+r}, v{SB[0]+r}, v{vM}")
    for r in range(16): a(f"v_sub_f32 v{CM+r}, 0, v{vM}")
    a("s_waitcnt lgkmcnt(0)")
    a("s_mov_b32 s31, 0")
    a.raw(".p2align 6")
    a.lab("K2_B_loop")
    a("s_cmp_lg_u32 s31, 3"); a("s_cbranch_scc1 K2_B_nobar")
    a("s_cmp_eq_u32 s29, 0"); a("s_cbranch_scc1 K2_B_nobar")
    a("s_waitcnt vmcnt(0)"); a("s_barrier")
    a.lab("K2_B_nobar")
    for t in range(8):
        tile(t, False, True, QB, vr(CM, 16), (vKb, (t+2)*2048), (vVb, (t+1)*2048))
    a(f"v_add_u32 v{vKb}, 16384, v{vKb}")
    a(f"v_add_u32 v{vVb}, 16384, v{vVb}")
    a("s_add_u32 s31, s31, 1"); a("s_cmp_lt_u32 s31, 8"); a("s_cbranch_scc1 K2_B_loop")
    finish(7, "K2_B_fb", "K2_B_done", 1)
    a.lab("K2_end")
    a("s_endpgm")
    a.lab("K2_A_fb")
    a("s_waitcnt lgkmcnt(0)")
    a("s_mov_b32 s28, 1"); a("s_mov_b32 s29, 0")
    a("s_sub_u32 s31, 8, s21"); a("s_cmp_eq_u32 s7, 0"); a("s_cselect_b32 s31, s31, 0")
    a.lab("K2_A_fb_loop")
    a("s_lshl_b32 s30, s31, 11")
    a(f"v_add_u32 v{vT}, s30, v{vKa}")
    rdK(0, vT, 0)
    a("s_sub_u32 s30, 8, s31"); a("s_lshl_b32 s30, s30, 5")
    a(f"v_add_u32 v{vT2}, s30, v47")
    a(f"v_mov_b32 v{vM}, s25")
    a("s_movk_i32 s30, 256")
    a("s_waitcnt lgkmcnt(0)")
    mfma(SB[0], 0, QA, "0")
    a("s_nop 15")
    for r in range(16):
        a(f"v_subrev_u32 v{vT}, {(r & 7) + 16*(r >> 3)}, v{vT2}")
        a(f"v_cmp_gt_u32 vcc, s30, v{vT}")
        a("s_nop 1")
        a(f"v_cndmask_b32 v{vT}, v{vM}, v{SB[0]+r}, vcc")
        a(f"v_max_f32 v{vMF}, v{vMF}, v{vT}")
    a("s_add_u32 s31, s31, 1"); a("s_cmp_lt_u32 s31, 9"); a("s_cbranch_scc1 K2_A_fb_loop")
    a("s_branch K2_A_start")
    a.lab("K2_B_fb")
    a("s_waitcnt lgkmcnt(0)")
    a("s_mov_b32 s28, 1"); a("s_mov_b32 s29, 0")
    a("s_mov_b32 s31, 0")
    a(f"v_mov_b32 v{vT}, v{vL16}")
    a.lab("K2_B_fb_loop")
    rdK(0, vT, 0)
    a(f"v_add_u32 v{vT}, 2048, v{vT}")
    a("s_waitcnt lgkmcnt(0)")
    mfma(SB[0], 0, QB, "0")
    a("s_nop 15")
    for i in range(0, 16, 2): a(f"v_max3_f32 v{vMF}, v{SB[0]+i}, v{SB[0]+i+1}, v{vMF}")
    a("s_add_u32 s31, s31, 1"); a("s_cmp_lt_u32 s31, 64"); a("s_cbranch_scc1 K2_B_fb_loop")
    a("s_branch K2_B_start")
    return a.text(), desc("attn_kernel", 136, 48, 136)

def k3():
    a = A(); n = "proj_kernel"; head(a, n)
    a("s_cmp_ge_u32 s2, 256"); a("s_cbranch_scc1 K3_end")
    a("s_load_dwordx2 s[4:5], s[0:1], 72")
    a("s_load_dwordx2 s[6:7], s[0:1], 56")
    a("v_lshrrev_b32 v2, 6, v0")
    a("v_and_b32 v1, 63, v0")
    a("s_and_b32 s16, s2, 7"); a("s_lshl_b32 s16, s16, 2")
    a("v_readfirstlane_b32 s21, v2")
    a("s_bfe_u32 s17, s2, 0x20003"); a("s_add_u32 s16, s16, s17")
    a("s_lshr_b32 s17, s2, 5")
    a("v_lshlrev_b32 v3, 4, v1")
    a("s_lshl_b32 s18, s16, 17"); a("s_lshl_b32 s19, s21, 14"); a("s_add_u32 s18, s18, s19")
    a(f"s_add_u32 s18, s18, {WS_O:#x}")
    a("s_add_u32 s19, s18, 65536")
    a("s_lshl_b32 s20, s21, 18"); a("s_lshl_b32 s22, s17, 11"); a("s_add_u32 s20, s20, s22")
    a(f"s_add_u32 s20, s20, {WS_WOT:#x}")
    a("s_waitcnt lgkmcnt(0)")
    srd(a, 8, 4, 5, WS_SIZE)
    srd(a, 12, 6, 7, 2048*512*2)
    def loads(ks):
        b = ks*16
        a(f"buffer_load_dwordx4 {ar(b,4)}, v3, s[8:11], s18 offen offset:{(ks&3)*1024}")
        a(f"buffer_load_dwordx4 {ar(b+4,4)}, v3, s[8:11], s19 offen offset:{(ks&3)*1024}")
        a(f"buffer_load_dwordx4 {ar(b+8,4)}, v3, s[8:11], s20 offen")
        a(f"buffer_load_dwordx4 {ar(b+12,4)}, v3, s[8:11], s20 offen offset:1024")
        a("s_add_u32 s20, s20, 16384")
        if ks & 3 == 3:
            a("s_add_u32 s18, s18, 4096"); a("s_add_u32 s19, s19, 4096")
    for ks in range(15): loads(ks)
    for ks in range(16):
        a(f"s_waitcnt vmcnt({56 if ks == 0 else 4*(15-ks)})")
        b = ks*16
        for aa in range(2):
            for c in range(2):
                d = vr(16 + (2*aa+c)*16, 16)
                a(f"v_mfma_f32_32x32x16_bf16 {d}, {ar(b+8+4*c,4)}, {ar(b+4*aa,4)}, {'0' if ks == 0 else d}")
        if ks == 0: loads(15)
    PW = 16*1088
    a(f"s_mul_i32 s22, s21, {PW}")
    a("v_add_u32 v4, s22, v3")
    a("v_and_b32 v5, 7, v0"); a("v_lshrrev_b32 v6, 3, v0")
    a("v_mul_u32_u24 v7, 1088, v5"); a("v_lshl_add_u32 v7, v6, 4, v7")
    a("v_lshlrev_b32 v8, 10, v6"); a("v_lshl_add_u32 v8, v5, 4, v8")
    a("s_lshl_b32 s22, s16, 16"); a("s_lshl_b32 s23, s17, 7"); a("s_add_u32 s22, s22, s23")
    a("s_add_u32 s23, s22, 32768")
    a("s_nop 7")
    for tt in range(4):
        for g in range(4):
            a(f"ds_write_b128 v4, {vr(16+tt*16+4*g,4)} offset:{(tt*4+g)*1088}")
    a("s_waitcnt lgkmcnt(0)"); a("s_barrier")
    a(f"v_add_u32 v9, {2*PW}, v7")
    for aa in range(2):
        for w in range(4):
            for h in range(2):
                a(f"ds_read_b128 {vr(16+aa*32+w*8+h*4,4)}, v{7 if w < 2 else 9} offset:{(w&1)*PW + aa*8*1088 + h*512}")
    for aa in range(2):
        a(f"s_waitcnt lgkmcnt({8 if aa == 0 else 0})")
        b = 16+aa*32
        for i in range(8): a(f"v_add_f32 v{b+i}, v{b+i}, v{b+8+i}")
        for i in range(8): a(f"v_add_f32 v{b+16+i}, v{b+16+i}, v{b+24+i}")
        for i in range(8): a(f"v_add_f32 v{b+i}, v{b+i}, v{b+16+i}")
        for i in range(4): a(f"v_cvt_pk_bf16_f32 v{80+4*aa+i}, v{b+2*i}, v{b+2*i+1}")
        a(f"buffer_store_dwordx4 {vr(80+4*aa,4)}, v8, s[12:15], s{22+aa} offen")
    a.lab("K3_end")
    a("s_endpgm")
    return a.text(), desc("proj_kernel", 88+256, 32, 88), 4*PW

def main(out):
    t1, d1 = k1(); t2, d2 = k2(); t3, d3, lds3 = k3()
    hdr = f"""; gated_mix(sliding-window MHA, full MHA): QKV projection -> attention -> output projection
; @launch kernel=qkv_kernel grid=(256,1,1) block=(512,1,1) lds=163840
; @launch kernel=attn_kernel grid=(256,1,1) block=(512,1,1) lds=163840
; @launch kernel=proj_kernel grid=(256,1,1) block=(256,1,1) lds={lds3}
.amdgcn_target "amdgcn-amd-amdhsa--gfx950"
"""
    open(out, "w").write(hdr + t1 + t2 + t3 + d1 + d2 + d3)

if __name__ == "__main__":
    main(sys.argv[1] if len(sys.argv) > 1 else f"cdna_kernels/{NAME}.s")
```

```python
import struct, sys

NAME = "gated_mix__sliding_block__softmax_full_mha__prompt"
WS_KV  = 0
WS_Q   = 8 << 20
WS_O   = 12 << 20
WS_WOT = 16 << 20
WS_G   = 17 << 20
WS_SIZE = 64 << 20
NEG_INF = 0xff800000
def f2u(x): return struct.unpack("<I", struct.pack("<f", x))[0]
QSCALE = f2u(0.25 * 1.4426950408889634)
LOG2E = f2u(1.4426950408889634)

STAMP = False
WS_ST = 32 << 20
class A:
    def __init__(s): s.L = []
    def __call__(s, t): s.L.append("    " + t)
    def lab(s, n): s.L.append(n + ":")
    def c(s, t): s.L.append("    ; " + t)
    def raw(s, t): s.L.append(t)
    def text(s): return "\n".join(s.L) + "\n"

def vr(b, n=1): return f"v{b}" if n == 1 else f"v[{b}:{b+n-1}]"
def ar(b, n=1): return f"a{b}" if n == 1 else f"a[{b}:{b+n-1}]"
def sr(b, n=1): return f"s{b}" if n == 1 else f"s[{b}:{b+n-1}]"

def head(a, name):
    a.raw(".text"); a.raw(f".globl {name}"); a.raw(".p2align 8"); a.raw(f".type {name},@function"); a.lab(name)

def desc(name, nv, ns, acc):
    return f""".section .rodata,"a"
.p2align 6
.amdhsa_kernel {name}
  .amdhsa_next_free_vgpr {nv}
  .amdhsa_next_free_sgpr {96 if STAMP else ns}
  .amdhsa_accum_offset {acc}
  .amdhsa_group_segment_fixed_size 0
  .amdhsa_kernarg_size 80
  .amdhsa_user_sgpr_count 2
  .amdhsa_user_sgpr_kernarg_segment_ptr 1
  .amdhsa_system_sgpr_workgroup_id_x 1
.end_amdhsa_kernel
"""

def stamp(a, i):
    if STAMP:
        a(f"s_memtime s[{70+2*i}:{71+2*i}]")
        if i == 0: a("s_memrealtime s[90:91]")
        a("s_waitcnt lgkmcnt(0)") if i == 0 else None
def stamp_out(a, kid, n, srdb, wavereg, nw):
    if STAMP:
        a("s_memrealtime s[92:93]")
        a("s_waitcnt lgkmcnt(0)")
        a(f"s_mul_i32 s94, s2, {nw}"); a(f"s_add_u32 s94, s94, s{wavereg}"); a("s_lshl_b32 s94, s94, 6")
        a(f"s_add_u32 s94, s94, {WS_ST + kid*(1<<20):#x}")
        a("s_mov_b64 exec, 1")
        a("v_mov_b32 v0, 0")
        for i in range(n):
            a(f"v_mov_b32 v1, s{70+2*i}")
            a(f"buffer_store_dword v1, v0, s[{srdb}:{srdb+3}], s94 offen offset:{4*i}")
            a("s_nop 1")
        a("v_mov_b32 v1, s90"); a(f"buffer_store_dword v1, v0, s[{srdb}:{srdb+3}], s94 offen offset:56"); a("s_nop 1")
        a("v_mov_b32 v1, s92"); a(f"buffer_store_dword v1, v0, s[{srdb}:{srdb+3}], s94 offen offset:60")

def srd(a, d, lo, hi, size):
    a(f"s_mov_b32 s{d}, s{lo}")
    a(f"s_and_b32 s{d+1}, s{hi}, 0xffff")
    a(f"s_mov_b32 s{d+2}, {size:#x}")
    a(f"s_mov_b32 s{d+3}, 0x20000")

def k1():
    a = A(); n = "qkv_kernel"; head(a, n)
    a("s_cmp_ge_u32 s2, 256"); a("s_cbranch_scc1 K1_end")
    stamp(a, 0)
    a("s_load_dwordx2 s[4:5], s[0:1], 0")
    a("s_load_dwordx4 s[8:11], s[0:1], 8")
    a("s_load_dwordx4 s[12:15], s[0:1], 32")
    a("s_load_dwordx2 s[6:7], s[0:1], 48")
    a("s_load_dwordx2 s[16:17], s[0:1], 72")
    a("v_lshrrev_b32 v2, 6, v0")
    a("v_and_b32 v1, 63, v0")
    a("s_and_b32 s18, s2, 7")
    a("v_readfirstlane_b32 s21, v2")
    a("s_bfe_u32 s19, s2, 0x40003")
    a("s_lshr_b32 s20, s2, 7")
    a("s_waitcnt lgkmcnt(0)")
    a("s_cmp_eq_u32 s20, 0")
    a("s_cselect_b32 s8, s8, s12"); a("s_cselect_b32 s9, s9, s13")
    a("s_cselect_b32 s10, s10, s14"); a("s_cselect_b32 s11, s11, s15")
    srd(a, 24, 4, 5, 2048*512*2)
    srd(a, 28, 8, 9, 512*1536*2)
    srd(a, 32, 16, 17, WS_SIZE)
    srd(a, 36, 10, 11, 512*512*2)
    srd(a, 40, 6, 7, 512*2)
    a("s_cmp_lt_u32 s21, 4"); a("s_cbranch_scc1 K1_compute")
    a("s_sub_u32 s22, s21, 4")
    a("v_lshrrev_b32 v2, 3, v1")
    a("v_and_b32 v3, 7, v1")
    a("v_lshrrev_b32 v4, 4, v1")
    a("v_xor_b32 v5, v3, v4")
    a("v_lshlrev_b32 v5, 4, v5")
    a("v_lshl_add_u32 v6, v2, 10, v5")
    a("v_xor_b32 v7, 64, v6")
    a("v_and_b32 v5, 1, v4")
    a("v_lshlrev_b32 v5, 2, v5")
    a("v_xor_b32 v5, v3, v5")
    a("v_lshlrev_b32 v5, 4, v5")
    a("v_mul_u32_u24 v8, 3072, v2")
    a("v_add_u32 v8, v8, v5")
    a("s_lshl_b32 s44, s19, 17")
    a("s_lshl_b32 s23, s22, 15")
    a("s_add_u32 s44, s44, s23")
    for il in range(1, 4): a(f"s_add_u32 s{44+il}, s44, {8192*il}")
    a("s_mul_i32 s23, s22, 6")
    for jl in range(6):
        a(f"s_add_u32 s54, s23, {jl}")
        a("s_and_b32 s55, s54, 7")
        a("s_mul_i32 s55, s55, 24576")
        a("s_lshr_b32 s54, s54, 3")
        a("s_lshl_b32 s54, s54, 10")
        a("s_add_u32 s55, s55, s54")
        a("s_lshl_b32 s54, s18, 7")
        a(f"s_add_u32 s{48+jl}, s55, s54")
    a("s_lshl_b32 s56, s22, 12")
    a("s_mul_i32 s57, s22, 6144")
    a("s_add_u32 s57, s57, 65536")
    def issue(c):
        slot = c & 3
        for il in range(4):
            a(f"s_add_u32 m0, s56, {slot*16384 + il*1024}")
            a("s_nop 0")
            a(f"buffer_load_dwordx4 v{6+(il&1)}, s[24:27], s{44+il} offen lds")
            a(f"s_add_u32 s{44+il}, s{44+il}, 128")
        for jl in range(6):
            a(f"s_add_u32 m0, s57, {slot*24576 + jl*1024}")
            a("s_nop 0")
            a(f"buffer_load_dwordx4 v8, s[28:31], s{48+jl} offen lds")
            a(f"s_add_u32 s{48+jl}, s{48+jl}, {64*3072}")
    for c in range(4): issue(c)
    a("s_waitcnt vmcnt(30)"); a("s_barrier")
    a("s_waitcnt vmcnt(20)"); a("s_barrier")
    for c in range(4, 8):
        issue(c)
        a("s_waitcnt vmcnt(20)"); a("s_barrier")
    a("s_waitcnt vmcnt(10)"); a("s_barrier")
    a("s_waitcnt vmcnt(0)"); a("s_barrier")
    a("s_endpgm")
    a.lab("K1_compute")
    a("s_lshl_b32 s22, s20, 3"); a("s_add_u32 s22, s22, s18")
    a("s_lshl_b32 s22, s22, 3"); a("s_lshl_b32 s23, s19, 7"); a("s_add_u32 s22, s22, s23")
    a("s_lshl_b32 s23, s22, 10")
    a("v_lshlrev_b32 v2, 5, v0")
    a("v_and_b32 v3, 0x3e0, v2")
    a("buffer_load_dwordx4 v[64:67], v2, s[24:27], s23 offen")
    a("buffer_load_dwordx4 v[68:71], v2, s[24:27], s23 offen offset:16")
    a("buffer_load_dwordx4 v[72:75], v3, s[40:43], 0 offen")
    a("buffer_load_dwordx4 v[76:79], v3, s[40:43], 0 offen offset:16")
    a("s_lshl_b32 s44, s2, 2"); a("s_add_u32 s44, s44, s21")
    a("s_bfe_u32 s45, s44, 0x50004")
    a("s_and_b32 s46, s44, 15")
    a("s_lshl_b32 s45, s45, 14")
    a("s_lshl_b32 s46, s46, 6")
    a("s_add_u32 s45, s45, s46")
    a("s_add_u32 s46, s45, 8192")
    a("v_lshrrev_b32 v4, 5, v1")
    a("v_and_b32 v5, 31, v1")
    a("v_lshlrev_b32 v6, 1, v5")
    a("v_lshl_add_u32 v6, v4, 12, v6")
    for i in range(8):
        a(f"buffer_load_ushort v{80+i}, v6, s[36:39], s{45+(i>>2)} offen offset:{(i&3)*1024}")
    a("s_lshr_b32 s47, s21, 1")
    a("s_and_b32 s48, s21, 1")
    a("v_lshrrev_b32 v7, 1, v5"); a("v_and_b32 v7, 7, v7")
    a("s_lshl_b32 s49, s47, 13")
    a("v_lshlrev_b32 v8, 7, v5")
    a("v_add_u32 v8, s49, v8")
    for t in range(4):
        a(f"v_add_u32 v9, {2*t}, v4")
        a("v_xor_b32 v9, v9, v7")
        a(f"v_lshl_add_u32 v{10+t}, v9, 4, v8")
    a("v_bfe_u32 v7, v1, 2, 2")
    a("v_lshl_add_u32 v8, v4, 3, v7")
    a("v_lshlrev_b32 v8, 7, v8")
    a("v_bfe_u32 v9, v1, 4, 1")
    a("v_lshlrev_b32 v9, 1, v9")
    a("v_bfe_u32 v16, v1, 1, 1")
    a("v_add_u32 v9, v9, v16")
    a("s_lshl_b32 s49, s48, 2")
    a("v_add_u32 v9, s49, v9")
    a("v_bfe_u32 v16, v1, 3, 1")
    a("v_lshlrev_b32 v16, 2, v16")
    a("v_xor_b32 v9, v9, v16")
    a("v_lshl_add_u32 v8, v9, 4, v8")
    a("v_and_b32 v9, 1, v1")
    a("v_lshl_add_u32 v8, v9, 3, v8")
    a("v_add_u32 v14, 65536, v8")
    a(f"v_add_u32 v15, {65536+2*24576}, v8")
    a("s_waitcnt vmcnt(8)")
    a("v_mov_b32 v88, 0")
    for i in range(8): a(f"v_dot2_f32_bf16 v88, v{64+i}, v{72+i}, v88")
    a("s_nop 3")
    for dpp in ("quad_perm:[1,0,3,2]", "quad_perm:[2,3,0,1]", "row_half_mirror", "row_mirror"):
        a(f"v_add_f32_dpp v88, v88, v88 {dpp} row_mask:0xf bank_mask:0xf")
        a("s_nop 1")
    a("v_add_f32_dpp v88, v88, v88 row_bcast:15 row_mask:0xa bank_mask:0xf")
    a(f"v_mul_f32 v88, {f2u(-1.4426950408889634):#x}, v88")
    a("v_exp_f32 v88, v88")
    a("s_nop 0")
    a("v_add_f32 v88, 1.0, v88")
    a("v_rcp_f32 v88, v88")
    a("v_lshrrev_b32 v89, 5, v0")
    a("v_lshlrev_b32 v89, 2, v89")
    a("s_lshl_b32 s23, s22, 2"); a(f"s_add_u32 s23, s23, {WS_G:#x}")
    a("s_mov_b32 s50, 0x80000000"); a("s_mov_b32 s51, 0x80000000")
    a("s_mov_b64 exec, s[50:51]")
    a("buffer_store_dword v88, v89, s[32:35], s23 offen")
    a("s_mov_b64 exec, -1")
    a("s_waitcnt vmcnt(1)")
    for i in range(4): a(f"v_lshl_or_b32 v{92+i}, v{81+2*i}, 16, v{80+2*i}")
    a("v_lshlrev_b32 v9, 4, v1")
    a("s_lshl_b32 s44, s44, 10"); a(f"s_add_u32 s44, s44, {WS_WOT:#x}")
    a("buffer_store_dwordx4 v[92:95], v9, s[32:35], s44 offen")
    XF = [[16, 20], [24, 28]]
    WF = [[32, 36, 40], [44, 48, 52]]
    ACC = lambda seg, aa: 64 + (seg*2+aa)*16
    def reads(n):
        c, t, b = n >> 2, n & 3, n & 1
        slot = c & 3
        L = []
        for aa in range(2):
            L.append(f"ds_read_b128 {vr(XF[b][aa],4)}, v{10+t} offset:{slot*16384 + aa*4096}")
        for seg in range(3):
            for u in range(2):
                L.append(f"ds_read_b64_tr_b16 {vr(WF[b][seg]+2*u,2)}, v{14+(slot>>1)} offset:{(slot&1)*24576 + seg*8192 + (16*t+4*u)*128}")
        return L
    def mfmas(n):
        b = n & 1; L = []
        for seg in range(3):
            for aa in range(2):
                d = vr(ACC(seg, aa), 16); cc = "0" if n == 0 else d
                w, x = vr(WF[b][seg], 4), vr(XF[b][aa], 4)
                if seg < 2: L.append(f"v_mfma_f32_32x32x16_bf16 {d}, {w}, {x}, {cc}")
                else:       L.append(f"v_mfma_f32_32x32x16_bf16 {d}, {x}, {w}, {cc}")
        return L
    stamp(a, 1)
    a("s_barrier")
    stamp(a, 2)
    if STAMP: a("s_waitcnt lgkmcnt(0)")
    for r in reads(0): a(r)
    for n in range(32):
        a("s_waitcnt lgkmcnt(0)")
        m = mfmas(n)
        r = reads(n+1) if n < 31 else []
        if n & 3 == 3 and n < 31:
            a(m[0]); a("s_barrier"); m = m[1:]
            for i in range(4):
                a(r[2*i]); a(r[2*i+1]); a(m[i])
            a(m[4])
        else:
            for i in range(6):
                a(m[i])
                if r and i < 4: a(r[2*i]); a(r[2*i+1])
    stamp(a, 3)
    a("s_lshl_b32 s50, s20, 5"); a("s_lshl_b32 s51, s18, 2"); a("s_add_u32 s50, s50, s51")
    a("s_lshl_b32 s51, s48, 1"); a("s_add_u32 s50, s50, s51")
    a("s_lshl_b32 s50, s50, 6")
    a("s_lshl_b32 s51, s19, 2"); a("s_add_u32 s50, s50, s51")
    a("s_lshl_b32 s51, s47, 1"); a("s_add_u32 s50, s50, s51")
    a("s_lshl_b32 s52, s50, 10"); a(f"s_add_u32 s52, s52, {WS_Q:#x}"); a("s_add_u32 s53, s52, 65536")
    a("s_lshl_b32 s54, s50, 11"); a("s_add_u32 s55, s54, 131072")
    a("v_and_b32 v2, 0x33, v1")
    a("v_bfe_u32 v3, v1, 2, 1"); a("v_lshl_or_b32 v2, v3, 3, v2")
    a("v_bfe_u32 v3, v1, 3, 1"); a("v_lshl_or_b32 v2, v3, 2, v2")
    a("v_lshlrev_b32 v2, 4, v2")
    a("v_and_b32 v3, 15, v1"); a("v_lshlrev_b32 v3, 4, v3")
    a("v_lshl_add_u32 v3, v4, 8, v3")
    a("v_bfe_u32 v5, v1, 4, 1"); a("v_lshl_add_u32 v3, v5, 17, v3")
    a("v_add_u32 v3, 1024, v3")
    a(f"s_mov_b32 s56, {QSCALE:#x}")
    pk = 160
    for seg in range(3):
        for aa in range(2):
            base = ACC(seg, aa)
            if seg == 0:
                for r in range(16): a(f"v_mul_f32 v{base+r}, s56, v{base+r}")
            for p in range(2):
                for i in range(4):
                    a(f"v_cvt_pk_bf16_f32 v{pk+i}, v{base+8*p+2*i}, v{base+8*p+2*i+1}")
                if seg == 0:   a(f"buffer_store_dwordx4 {vr(pk,4)}, v9, s[32:35], s{52+p} offen offset:{aa*1024}")
                elif seg == 1: a(f"buffer_store_dwordx4 {vr(pk,4)}, v2, s[32:35], s{54+p} offen offset:{aa*2048}")
                else:          a(f"buffer_store_dwordx4 {vr(pk,4)}, v3, s[32:35], s54 offen offset:{aa*2048+p*512}")
                pk += 4
    stamp(a, 4)
    if STAMP: a("s_waitcnt vmcnt(0)")
    stamp(a, 5)
    stamp_out(a, 0, 6, 32, 21, 8)
    a.lab("K1_end")
    a("s_endpgm")
    return a.text(), desc(n if False else "qkv_kernel", 208, 64, 208)

QA, QB = 8, 12
KB = [16, 20]
VB = [[24, 28], [32, 36]]
SB = [48, 64]
OA = 80
CM, CF = 96, 112
vIDX, vKa, vVa, vKb, vVb, vG, vT, vM, vMF, vL16, vT2 = 2, 3, 4, 5, 6, 7, 40, 41, 42, 43, 44
def k2():
    a = A(); n = "attn_kernel"; head(a, n)
    a("s_cmp_ge_u32 s2, 256"); a("s_cbranch_scc1 K2_end")
    stamp(a, 0)
    a("s_load_dwordx2 s[4:5], s[0:1], 72")
    a("v_lshrrev_b32 v2, 6, v0")
    a("v_and_b32 v1, 63, v0")
    a("s_and_b32 s6, s2, 7"); a("s_lshl_b32 s6, s6, 2")
    a("v_readfirstlane_b32 s21, v2")
    a("s_bfe_u32 s7, s2, 0x20003"); a("s_add_u32 s6, s6, s7")
    a("s_lshr_b32 s7, s2, 5")
    a(f"v_lshlrev_b32 v{vL16}, 4, v1")
    a("s_lshl_b32 s12, s7, 3"); a("s_add_u32 s12, s12, s21")
    a("s_lshl_b32 s13, s6, 6"); a("s_add_u32 s13, s13, s12")
    a("s_lshl_b32 s13, s13, 10"); a(f"s_add_u32 s13, s13, {WS_Q:#x}")
    a(f"s_add_u32 s14, s13, {32*64*1024:#x}")
    a("s_lshl_b32 s15, s12, 7"); a(f"s_add_u32 s15, s15, {WS_G:#x}")
    a("v_and_b32 v45, 31, v1")
    a("v_lshlrev_b32 v46, 2, v45")
    a("s_lshl_b32 s16, s6, 17"); a("s_lshl_b32 s17, s7, 14"); a("s_add_u32 s16, s16, s17")
    a("s_lshl_b32 s18, s21, 12")
    a("s_add_u32 s17, s17, s18")
    a("s_add_u32 s16, s16, s18")
    a("s_cmp_lt_u32 s17, 16384")
    a("s_cselect_b32 s17, 0, 16384")
    a("s_sub_u32 s16, s16, s17")
    a("s_lshl_b32 s19, s6, 17"); a("s_add_u32 s19, s19, s18"); a(f"s_add_u32 s19, s19, {32*131072:#x}")
    a("s_waitcnt lgkmcnt(0)")
    srd(a, 8, 4, 5, WS_SIZE)
    a(f"buffer_load_dwordx4 {vr(QA,4)}, v{vL16}, s[8:11], s13 offen")
    a("s_add_u32 m0, s18, 131072")
    a("s_nop 0")
    for i in range(4): a(f"buffer_load_dwordx4 v{vL16}, s[8:11], s16 offen offset:{i*1024} lds")
    a(f"buffer_load_dwordx4 {vr(QB,4)}, v{vL16}, s[8:11], s14 offen")
    a(f"buffer_load_dword v{vG}, v46, s[8:11], s15 offen")
    for g in range(4):
        a(f"s_add_u32 m0, s18, {g*32768}")
        a("s_nop 0")
        for i in range(4): a(f"buffer_load_dwordx4 v{vL16}, s[8:11], s19 offen offset:{i*1024} lds")
        a("s_add_u32 s19, s19, 32768")
    a(f"v_mov_b32 v{vIDX}, 0xdddddddd")
    a("s_mov_b32 s22, 0x0000ffff"); a("s_mov_b32 s23, 0x0000ffff")
    a("v_lshrrev_b32 v47, 5, v1")
    a(f"v_and_b32 v{vVb}, 15, v1"); a(f"v_lshlrev_b32 v{vVb}, 4, v{vVb}")
    a(f"v_lshl_add_u32 v{vVb}, v47, 8, v{vVb}"); a(f"v_add_u32 v{vVb}, 1024, v{vVb}")
    a("s_lshl_b32 s24, s21, 11"); a("s_add_u32 s24, s24, 131072")
    a(f"v_add_u32 v{vKa}, s24, v{vL16}")
    a(f"v_add_u32 v{vVa}, s24, v{vVb}")
    a("v_lshlrev_b32 v47, 3, v47"); a("v_sub_u32 v47, v45, v47")
    for b in range(2):
        for j in range(2):
            for i in range(4): a(f"v_mov_b32 v{VB[b][j]+i}, 0x3f803f80")
    a(f"s_mov_b32 s25, {NEG_INF:#x}")
    a("s_cmp_eq_u32 s7, 0"); a("s_cselect_b32 s26, s25, 0")
    a("s_cselect_b32 s27, s21, 64")
    a(f"v_mov_b32 v{vMF}, s25")
    a("s_mov_b32 s28, 0")
    a("s_mov_b32 s29, 1")

    def rdK(buf, addr, off): a(f"ds_read_b128 {vr(KB[buf],4)}, v{addr} offset:{off}")
    def rdV(buf, addr, off):
        a("s_mov_b64 exec, s[22:23]")
        a(f"ds_read_b128 {vr(VB[buf][0],4)}, v{addr} offset:{off}")
        a(f"ds_read_b128 {vr(VB[buf][1],4)}, v{addr} offset:{off+512}")
        a("s_mov_b64 exec, -1")
    def mfma(dst, kbuf, q, c): a(f"v_mfma_f32_32x32x16_bf16 {vr(dst,16)}, {vr(KB[kbuf],4)}, {vr(q,4)}, {c}")
    def smf(vreg, sreg): a(f"v_smfmac_f32_32x32x32_bf16 {vr(OA,16)}, {vr(vreg,4)}, {vr(sreg,8)}, v{vIDX}")
    def ex(s, i): a(f"v_exp_f32 v{s+i}, v{s+i}")
    def rowmax(s):
        a(f"v_max3_f32 v{vM}, v{s}, v{s+1}, v{vMF}")
        for i in range(2, 16, 2): a(f"v_max3_f32 v{vM}, v{s+i}, v{s+i+1}, v{vM}")
        a(f"v_mov_b32 v{vT}, v{vM}")
        a("s_nop 1")
        a(f"v_permlane32_swap_b32 v{vM}, v{vT}")
        a(f"v_max_f32 v{vM}, v{vM}, v{vT}")
    def tile(t, first, do_mfma, q, c, kread, vread, pre_mfma=None):
        cur, prev = SB[t & 1], SB[(t+1) & 1]
        ex(cur, 0); ex(cur, 1)
        if not first: smf(VB[(t-1) & 1][1], prev+8)
        a("s_waitcnt lgkmcnt(0)")
        if kread is not None: rdK(t & 1, *kread)
        if vread is not None: rdV((t+1) & 1, *vread)
        ex(cur, 2); ex(cur, 3); ex(cur, 4)
        if do_mfma:
            if pre_mfma: pre_mfma()
            mfma(prev, (t+1) & 1, q, c)
        for i in range(5, 10): ex(cur, i)
        smf(VB[t & 1][0], cur)
        for i in range(10, 16): ex(cur, i)
    def finish(tlast, fb_label, done_label, branch):
        a("s_nop 1")
        smf(VB[tlast & 1][1], SB[tlast & 1]+8)
        a("s_nop 15")
        a(f"v_add_f32 v{vT}, abs(v{OA}), v{OA+8}")
        for i in range(1, 8): a(f"v_add_f32 v{vT}, abs(v{OA+i}), v{vT}")
        a(f"v_rcp_f32 v{vT2}, v{OA+8}")
        a(f"v_cmp_gt_f32 vcc, 0x71800000, v{vT}")
        a("s_cmp_lg_u32 s28, 0"); a(f"s_cbranch_scc1 {done_label}")
        a("s_cmp_eq_u64 vcc, -1"); a(f"s_cbranch_scc0 {fb_label}")
        a.lab(done_label)
        if branch == 0: a(f"v_mul_f32 v{vT2}, v{vG}, v{vT2}")
        else:
            a(f"v_sub_f32 v{vT}, 1.0, v{vG}"); a(f"v_mul_f32 v{vT2}, v{vT}, v{vT2}")
        for i in range(8): a(f"v_mul_f32 v{OA+i}, v{vT2}, v{OA+i}")
        for i in range(4): a(f"v_cvt_pk_bf16_f32 v{128+4*branch+i}, v{OA+2*i}, v{OA+2*i+1}")
        a("s_lshl_b32 s30, s12, 6"); a("s_add_u32 s30, s30, s6"); a("s_lshl_b32 s30, s30, 10")
        a(f"s_add_u32 s30, s30, {WS_O + branch*32*1024:#x}")
        a(f"buffer_store_dwordx4 {vr(128+4*branch,4)}, v{vL16}, s[8:11], s30 offen")

    a.lab("K2_A_start")
    a(f"v_mov_b32 v{vT}, s25"); a(f"v_mov_b32 v{vT2}, s26")
    for r in range(16):
        a(f"v_cmp_le_i32 vcc, {(r & 7) + 16*(r >> 3)}, v47")
        a(f"v_mov_b32 v{OA+r}, 0")
        a("s_nop 0")
        a(f"v_cndmask_b32 v{SB[1]+r}, v{vT}, v{OA+r}, vcc")
        a(f"v_cndmask_b32 v{CF+r}, v{vT2}, v{vT}, vcc")
    a("s_cmp_eq_u32 s29, 0"); a("s_cbranch_scc1 K2_A_nobar")
    stamp(a, 1)
    a("s_waitcnt vmcnt(18)"); a("s_barrier")
    stamp(a, 2)
    if STAMP: a("s_waitcnt lgkmcnt(0)")
    a.lab("K2_A_nobar")
    rdK(0, vKa, 8*2048); rdK(1, vKa, 7*2048); rdV(0, vVa, 8*2048)
    a("s_waitcnt lgkmcnt(3)")
    mfma(SB[0], 0, QA, vr(SB[1], 16))
    a("s_nop 15")
    rowmax(SB[0])
    for r in range(16): a(f"v_sub_f32 v{SB[0]+r}, v{SB[0]+r}, v{vM}")
    for r in range(16): a(f"v_sub_f32 v{CM+r}, 0, v{vM}")
    for r in range(16): a(f"v_sub_f32 v{CF+r}, v{CF+r}, v{vM}")
    for t in range(9):
        def pm(t=t):
            if t < 7:
                a(f"s_cmp_lg_u32 s27, {t}"); a(f"s_cbranch_scc1 K2_A_mid{t}")
                a("s_nop 7")
                for r in range(16): a(f"v_mov_b32 v{CM+r}, s25")
                a("s_nop 1")
                a.lab(f"K2_A_mid{t}")
        tile(t, t == 0, t < 8, QA, vr(CM if t < 7 else CF, 16),
             (vKa, (8-(t+2))*2048) if t+2 <= 8 else None,
             (vVa, (8-(t+1))*2048) if t+1 <= 8 else None, pm)
    stamp(a, 3)
    a("s_waitcnt vmcnt(8)")
    finish(8, "K2_A_fb", "K2_A_done", 0)
    a("s_barrier")
    a("s_mov_b32 s28, 0"); a("s_mov_b32 s29, 1")
    a(f"v_mov_b32 v{vMF}, s25")
    a.lab("K2_B_start")
    a(f"v_mov_b32 v{vKb}, v{vL16}")
    a(f"v_and_b32 v{vVb}, 0x7ff, v{vVb}")
    rdK(0, vKb, 0); rdK(1, vKb, 2048); rdV(0, vVb, 0); rdV(1, vVb, 0)
    for r in range(16): a(f"v_mov_b32 v{OA+r}, 0")
    for r in range(8, 16): a(f"v_mov_b32 v{SB[1]+r}, 0")
    a("s_waitcnt lgkmcnt(5)")
    mfma(SB[0], 0, QB, "0")
    a("s_nop 15")
    rowmax(SB[0])
    for r in range(16): a(f"v_sub_f32 v{SB[0]+r}, v{SB[0]+r}, v{vM}")
    for r in range(16): a(f"v_sub_f32 v{CM+r}, 0, v{vM}")
    a("s_waitcnt lgkmcnt(0)")
    stamp(a, 4)
    if STAMP: a("s_waitcnt lgkmcnt(0)")
    a("s_mov_b32 s31, 0")
    a.raw(".p2align 6")
    a.lab("K2_B_loop")
    a("s_cmp_lg_u32 s31, 3"); a("s_cbranch_scc1 K2_B_nobar")
    a("s_cmp_eq_u32 s29, 0"); a("s_cbranch_scc1 K2_B_nobar")
    a("s_waitcnt vmcnt(0)"); a("s_barrier")
    a.lab("K2_B_nobar")
    for t in range(8):
        tile(t, False, True, QB, vr(CM, 16), (vKb, (t+2)*2048), (vVb, (t+1)*2048))
    a(f"v_add_u32 v{vKb}, 16384, v{vKb}")
    a(f"v_add_u32 v{vVb}, 16384, v{vVb}")
    a("s_add_u32 s31, s31, 1"); a("s_cmp_lt_u32 s31, 8"); a("s_cbranch_scc1 K2_B_loop")
    stamp(a, 5)
    finish(7, "K2_B_fb", "K2_B_done", 1)
    if STAMP: a("s_waitcnt vmcnt(0)")
    stamp(a, 6)
    stamp_out(a, 1, 7, 8, 21, 8)
    a.lab("K2_end")
    a("s_endpgm")
    a.lab("K2_A_fb")
    a("s_waitcnt lgkmcnt(0)")
    a("s_mov_b32 s28, 1"); a("s_mov_b32 s29, 0")
    a("s_sub_u32 s31, 8, s21"); a("s_cmp_eq_u32 s7, 0"); a("s_cselect_b32 s31, s31, 0")
    a.lab("K2_A_fb_loop")
    a("s_lshl_b32 s30, s31, 11")
    a(f"v_add_u32 v{vT}, s30, v{vKa}")
    rdK(0, vT, 0)
    a("s_sub_u32 s30, 8, s31"); a("s_lshl_b32 s30, s30, 5")
    a(f"v_add_u32 v{vT2}, s30, v47")
    a(f"v_mov_b32 v{vM}, s25")
    a("s_movk_i32 s30, 256")
    a("s_waitcnt lgkmcnt(0)")
    mfma(SB[0], 0, QA, "0")
    a("s_nop 15")
    for r in range(16):
        a(f"v_subrev_u32 v{vT}, {(r & 7) + 16*(r >> 3)}, v{vT2}")
        a(f"v_cmp_gt_u32 vcc, s30, v{vT}")
        a("s_nop 1")
        a(f"v_cndmask_b32 v{vT}, v{vM}, v{SB[0]+r}, vcc")
        a(f"v_max_f32 v{vMF}, v{vMF}, v{vT}")
    a("s_add_u32 s31, s31, 1"); a("s_cmp_lt_u32 s31, 9"); a("s_cbranch_scc1 K2_A_fb_loop")
    a("s_branch K2_A_start")
    a.lab("K2_B_fb")
    a("s_waitcnt lgkmcnt(0)")
    a("s_mov_b32 s28, 1"); a("s_mov_b32 s29, 0")
    a("s_mov_b32 s31, 0")
    a(f"v_mov_b32 v{vT}, v{vL16}")
    a.lab("K2_B_fb_loop")
    rdK(0, vT, 0)
    a(f"v_add_u32 v{vT}, 2048, v{vT}")
    a("s_waitcnt lgkmcnt(0)")
    mfma(SB[0], 0, QB, "0")
    a("s_nop 15")
    for i in range(0, 16, 2): a(f"v_max3_f32 v{vMF}, v{SB[0]+i}, v{SB[0]+i+1}, v{vMF}")
    a("s_add_u32 s31, s31, 1"); a("s_cmp_lt_u32 s31, 64"); a("s_cbranch_scc1 K2_B_fb_loop")
    a("s_branch K2_B_start")
    return a.text(), desc("attn_kernel", 136, 48, 136)

def k3():
    a = A(); n = "proj_kernel"; head(a, n)
    a("s_cmp_ge_u32 s2, 256"); a("s_cbranch_scc1 K3_end")
    stamp(a, 0)
    a("s_load_dwordx2 s[4:5], s[0:1], 72")
    a("s_load_dwordx2 s[6:7], s[0:1], 56")
    a("v_lshrrev_b32 v2, 6, v0")
    a("v_and_b32 v1, 63, v0")
    a("s_and_b32 s16, s2, 7"); a("s_lshl_b32 s16, s16, 2")
    a("v_readfirstlane_b32 s21, v2")
    a("s_bfe_u32 s17, s2, 0x20003"); a("s_add_u32 s16, s16, s17")
    a("s_lshr_b32 s17, s2, 5")
    a("v_lshlrev_b32 v3, 4, v1")
    a("s_lshl_b32 s18, s16, 17"); a("s_lshl_b32 s19, s21, 14"); a("s_add_u32 s18, s18, s19")
    a(f"s_add_u32 s18, s18, {WS_O:#x}")
    a("s_add_u32 s19, s18, 65536")
    a("s_lshl_b32 s20, s21, 18"); a("s_lshl_b32 s22, s17, 11"); a("s_add_u32 s20, s20, s22")
    a(f"s_add_u32 s20, s20, {WS_WOT:#x}")
    a("s_waitcnt lgkmcnt(0)")
    srd(a, 8, 4, 5, WS_SIZE)
    srd(a, 12, 6, 7, 2048*512*2)
    def loads(ks):
        b = ks*16
        a(f"buffer_load_dwordx4 {ar(b,4)}, v3, s[8:11], s18 offen offset:{(ks&3)*1024}")
        a(f"buffer_load_dwordx4 {ar(b+4,4)}, v3, s[8:11], s19 offen offset:{(ks&3)*1024}")
        a(f"buffer_load_dwordx4 {ar(b+8,4)}, v3, s[8:11], s20 offen")
        a(f"buffer_load_dwordx4 {ar(b+12,4)}, v3, s[8:11], s20 offen offset:1024")
        a("s_add_u32 s20, s20, 16384")
        if ks & 3 == 3:
            a("s_add_u32 s18, s18, 4096"); a("s_add_u32 s19, s19, 4096")
    for ks in range(15): loads(ks)
    stamp(a, 1)
    for ks in range(16):
        if ks == 1: stamp(a, 2)
        a(f"s_waitcnt vmcnt({56 if ks == 0 else 4*(15-ks)})")
        b = ks*16
        for aa in range(2):
            for c in range(2):
                d = vr(16 + (2*aa+c)*16, 16)
                a(f"v_mfma_f32_32x32x16_bf16 {d}, {ar(b+8+4*c,4)}, {ar(b+4*aa,4)}, {'0' if ks == 0 else d}")
        if ks == 0: loads(15)
    PW = 16*1088
    stamp(a, 3)
    if STAMP: a("s_waitcnt lgkmcnt(0)")
    a(f"s_mul_i32 s22, s21, {PW}")
    a("v_add_u32 v4, s22, v3")
    a("v_and_b32 v5, 7, v0"); a("v_lshrrev_b32 v6, 3, v0")
    a("v_mul_u32_u24 v7, 1088, v5"); a("v_lshl_add_u32 v7, v6, 4, v7")
    a("v_lshlrev_b32 v8, 10, v6"); a("v_lshl_add_u32 v8, v5, 4, v8")
    a("s_lshl_b32 s22, s16, 16"); a("s_lshl_b32 s23, s17, 7"); a("s_add_u32 s22, s22, s23")
    a("s_add_u32 s23, s22, 32768")
    a("s_nop 7")
    for tt in range(4):
        for g in range(4):
            a(f"ds_write_b128 v4, {vr(16+tt*16+4*g,4)} offset:{(tt*4+g)*1088}")
    a("s_waitcnt lgkmcnt(0)"); a("s_barrier")
    a(f"v_add_u32 v9, {2*PW}, v7")
    for aa in range(2):
        for w in range(4):
            for h in range(2):
                a(f"ds_read_b128 {vr(16+aa*32+w*8+h*4,4)}, v{7 if w < 2 else 9} offset:{(w&1)*PW + aa*8*1088 + h*512}")
    for aa in range(2):
        a(f"s_waitcnt lgkmcnt({8 if aa == 0 else 0})")
        b = 16+aa*32
        for i in range(8): a(f"v_add_f32 v{b+i}, v{b+i}, v{b+8+i}")
        for i in range(8): a(f"v_add_f32 v{b+16+i}, v{b+16+i}, v{b+24+i}")
        for i in range(8): a(f"v_add_f32 v{b+i}, v{b+i}, v{b+16+i}")
        for i in range(4): a(f"v_cvt_pk_bf16_f32 v{80+4*aa+i}, v{b+2*i}, v{b+2*i+1}")
        a(f"buffer_store_dwordx4 {vr(80+4*aa,4)}, v8, s[12:15], s{22+aa} offen")
    stamp(a, 4)
    if STAMP: a("s_waitcnt vmcnt(0)")
    stamp(a, 5)
    stamp_out(a, 2, 6, 8, 21, 4)
    a.lab("K3_end")
    a("s_endpgm")
    return a.text(), desc("proj_kernel", 88+256, 32, 88), 4*PW

def main(out):
    t1, d1 = k1(); t2, d2 = k2(); t3, d3, lds3 = k3()
    hdr = f"""; gated_mix(sliding-window MHA, full MHA): QKV projection -> attention -> output projection
; @launch kernel=qkv_kernel grid=(256,1,1) block=(512,1,1) lds=163840
; @launch kernel=attn_kernel grid=(256,1,1) block=(512,1,1) lds=163840
; @launch kernel=proj_kernel grid=(256,1,1) block=(256,1,1) lds={lds3}
.amdgcn_target "amdgcn-amd-amdhsa--gfx950"
"""
    open(out, "w").write(hdr + t1 + t2 + t3 + d1 + d2 + d3)

if __name__ == "__main__":
    if "--stamp" in sys.argv:
        sys.argv.remove("--stamp"); STAMP = True
    main(sys.argv[1] if len(sys.argv) > 1 else f"cdna_kernels/{NAME}.s")
```

```python
import struct, sys
NAME = "gated_mix__sliding_block__softmax_full_mha__prompt"
WS_KV  = 0
WS_Q   = 8 << 20
WS_O   = 12 << 20
WS_WOT = 16 << 20
WS_G   = 17 << 20
WS_ST  = 32 << 20
NEG_INF = 0xff800000
def f2u(x): return struct.unpack("<I", struct.pack("<f", x))[0]
QSCALE = f2u(0.25 * 1.4426950408889634)

class Cfg:
    stamp = False
    opts = {}
def opt(k, d=None): return Cfg.opts.get(k, d)
def ws_size(): return (64 << 20) if Cfg.stamp else (18 << 20)

class A:
    def __init__(s): s.L = []
    def __call__(s, t): s.L.append("    " + t)
    def lab(s, n): s.L.append(n + ":")
    def c(s, t): s.L.append("    ; " + t)
    def raw(s, t): s.L.append(t)
    def text(s): return "\n".join(s.L) + "\n"

def vr(b, n=1): return f"v{b}" if n == 1 else f"v[{b}:{b+n-1}]"
def ar(b, n=1): return f"a{b}" if n == 1 else f"a[{b}:{b+n-1}]"

def head(a, name):
    a.raw(".text"); a.raw(f".globl {name}"); a.raw(".p2align 8"); a.raw(f".type {name},@function"); a.lab(name)

def desc(name, nv, ns, acc):
    return f""".section .rodata,"a"
.p2align 6
.amdhsa_kernel {name}
  .amdhsa_next_free_vgpr {nv}
  .amdhsa_next_free_sgpr {96 if Cfg.stamp else ns}
  .amdhsa_accum_offset {acc}
  .amdhsa_group_segment_fixed_size 0
  .amdhsa_kernarg_size 80
  .amdhsa_user_sgpr_count 2
  .amdhsa_user_sgpr_kernarg_segment_ptr 1
  .amdhsa_system_sgpr_workgroup_id_x 1
.end_amdhsa_kernel
"""

def stamp(a, i, wait=False, mode=0):
    if Cfg.stamp and (i == 0 or mode == opt("smode", 0)):
        a(f"s_mem{'real' if opt('rt') else ''}time s[{70+2*i}:{71+2*i}]")
        if i == 0: a("s_memrealtime s[90:91]")
        if i == 0 or wait: a("s_waitcnt lgkmcnt(0)")
def stamp_out(a, kid, n, srdb, wavereg, nw):
    if Cfg.stamp:
        a("s_memrealtime s[92:93]")
        a("s_waitcnt lgkmcnt(0)")
        a(f"s_mul_i32 s94, s2, {nw}"); a(f"s_add_u32 s94, s94, s{wavereg}"); a("s_lshl_b32 s94, s94, 6")
        a(f"s_add_u32 s94, s94, {WS_ST + kid*(1<<20):#x}")
        a("s_mov_b64 exec, 1")
        a("v_mov_b32 v0, 0")
        for i in range(n):
            a(f"v_mov_b32 v1, s{70+2*i}")
            a(f"buffer_store_dword v1, v0, s[{srdb}:{srdb+3}], s94 offen offset:{4*i}")
            a("s_nop 1")
        a("v_mov_b32 v1, s90"); a(f"buffer_store_dword v1, v0, s[{srdb}:{srdb+3}], s94 offen offset:56"); a("s_nop 1")
        a("v_mov_b32 v1, s92"); a(f"buffer_store_dword v1, v0, s[{srdb}:{srdb+3}], s94 offen offset:60")

def srd(a, d, lo, hi, size):
    a(f"s_mov_b32 s{d}, s{lo}")
    a(f"s_and_b32 s{d+1}, s{hi}, 0xffff")
    a(f"s_mov_b32 s{d+2}, {size:#x}")
    a(f"s_mov_b32 s{d+3}, 0x20000")

def parse_args():
    out = None
    for x in sys.argv[1:]:
        if x == "--stamp": Cfg.stamp = True
        elif "=" in x:
            k, v = x.split("=", 1)
            try: v = int(v, 0)
            except ValueError: pass
            Cfg.opts[k] = v
        else: out = x
    return out or f"cdna_kernels/{NAME}.s"
```

```python
from common import *

WS_FL = 16 << 20
SC = "sc1"
STK = "sc1"
SPIN = 1 << 17

sX, sWB, sWA, sWS, sWO, sOUT, sDBG, sGT = 24, 28, 32, 36, 40, 44, 48, 52
sW, sRB, sJ, sHD, sB, sQT = 56, 57, 58, 59, 60, 61
S = lambda b: f"s[{b}:{b+3}]"
vXA = 2
vWA = 10
vGA, vL16, vKs, vVs = 12, 13, 14, 15
WF = [16, 40]
ACC = [64, 80, 96]
GF = [112, 120]
XR = 128
vG, vGacc, QB, QA = 112, 113, 116, 120
CF, CD = 128, 144
VB = [[160, 164], [168, 172]]
OA = 176
vIDX, vKa, vVa, vKb, vVb, vT, vM, vMF, vT2, vQH, vPoll, vFA, vWo = range(192, 205)
KB = [16, 20]
SB = [32, 48]
CM = 64
PK = [80, 84]
OF = [208, 16]
PACC = [[48, 64], [80, 96]]
PW_ = [[128, 132], [136, 140]]
vPW0, vPW1, vF2 = 240, 241, 242

def gen():
    LD = opt("ld", "sc1")
    if LD == "none": LD = ""
    INV = opt("inv", 0)
    a = A(); K = NAME + "_kernel"; head(a, K)
    a("s_cmp_ge_u32 s2, 256"); a("s_cbranch_scc1 L_end")
    stamp(a, 0)
    a("s_load_dwordx2 s[4:5], s[0:1], 0")
    a("s_load_dwordx4 s[8:11], s[0:1], 8")
    a("s_load_dwordx4 s[12:15], s[0:1], 32")
    a("s_load_dwordx2 s[6:7], s[0:1], 48")
    a("s_load_dwordx4 s[16:19], s[0:1], 56")
    a("s_load_dwordx2 s[20:21], s[0:1], 72")
    a("v_lshrrev_b32 v2, 6, v0")
    a("v_and_b32 v1, 63, v0")
    a("s_and_b32 s62, s2, 7")
    a(f"v_readfirstlane_b32 s{sW}, v2")
    a("s_lshr_b32 s63, s2, 3")
    a("s_and_b32 s64, s62, 3"); a("s_lshl_b32 s64, s64, 3"); a("s_and_b32 s65, s63, 7"); a(f"s_add_u32 s{sRB}, s64, s65")
    a("s_lshr_b32 s64, s62, 2"); a("s_lshl_b32 s64, s64, 2"); a("s_lshr_b32 s65, s63, 3"); a(f"s_add_u32 s{sJ}, s64, s65")
    a("s_lshl_b32 s64, s62, 2"); a("s_and_b32 s65, s63, 3"); a(f"s_add_u32 s{sHD}, s64, s65")
    a(f"s_lshr_b32 s{sB}, s63, 2")
    a(f"s_lshl_b32 s{sQT}, s{sB}, 3"); a(f"s_add_u32 s{sQT}, s{sQT}, s{sW}")
    a(f"v_lshlrev_b32 v{vL16}, 4, v1")
    a(f"s_cmp_lt_u32 s{sW}, 4"); a("s_cbranch_scc1 L_compute")

    def common_srds():
        srd(a, sWS, 20, 21, ws_size())
        srd(a, sOUT, 16, 17, 2048*512*2)
        srd(a, sDBG, 18, 19, 256)

    def attn_setup():
        L = []; e = L.append
        e(f"v_mov_b32 v{vIDX}, 0xdddddddd")
        e("s_mov_b32 s22, 0x0000ffff"); e("s_mov_b32 s23, 0x0000ffff")
        e(f"v_lshrrev_b32 v{vQH}, 5, v1")
        e(f"v_and_b32 v{vVb}, 15, v1"); e(f"v_lshlrev_b32 v{vVb}, 4, v{vVb}")
        e(f"v_lshl_add_u32 v{vVb}, v{vQH}, 8, v{vVb}"); e(f"v_add_u32 v{vVb}, 1024, v{vVb}")
        e(f"s_lshl_b32 s4, s{sW}, 11"); e("s_add_u32 s4, s4, 131072")
        e(f"v_add_u32 v{vKa}, s4, v{vL16}")
        e(f"v_add_u32 v{vVa}, s4, v{vVb}")
        e(f"v_and_b32 v{vM}, 31, v1")
        e(f"v_lshlrev_b32 v{vQH}, 3, v{vQH}"); e(f"v_sub_u32 v{vQH}, v{vM}, v{vQH}")
        e(f"v_lshrrev_b32 v{vT}, 3, v{vM}"); e(f"v_and_b32 v{vFA}, 7, v1")
        e(f"v_lshl_add_u32 v{vFA}, v{vFA}, 3, v{vT}"); e(f"v_lshlrev_b32 v{vFA}, 8, v{vFA}")
        e(f"v_and_b32 v{vT}, 0x1b, v{vM}")
        e(f"v_cmp_eq_u32 vcc, 16, v{vT}")
        e(f"v_mov_b32 v{vT2}, 0x3f803f80")
        e(f"v_mov_b32 v{vT}, 0")
        for b in range(2):
            for j in range(2):
                for i in range(4): e(f"v_cndmask_b32 v{VB[b][j]+i}, v{vT}, v{vT2}, vcc")
        e(f"s_mov_b32 s5, {NEG_INF:#x}")
        e(f"s_cmp_eq_u32 s{sB}, 0\n    s_cselect_b32 s6, s5, 0\n    s_cselect_b32 s7, s{sW}, 64")
        e(f"v_mov_b32 v{vMF}, s5")
        e("s_mov_b32 s8, 0")
        e("s_mov_b32 s9, 0x1a")
        e("s_bfe_u32 s10, s2, 0x10002"); e("s_lshl_b32 s10, s10, 10")
        e("s_and_b32 s16, s2, 3"); e("s_lshl_b32 s16, s16, 14"); e("s_add_u32 s10, s10, s16")
        e(f"s_add_u32 s10, s10, {WS_FL:#x}")
        e(f"s_lshl_b32 s11, s{sHD}, 6"); e(f"s_add_u32 s11, s11, s{sQT}"); e("s_lshl_b32 s11, s11, 10")
        e(f"s_add_u32 s11, s11, {WS_Q:#x}")
        e(f"s_add_u32 s12, s11, {32*64*1024:#x}")
        e(f"s_lshl_b32 s13, s{sHD}, 17")
        e(f"s_add_u32 s14, s13, {32*131072:#x}")
        e(f"s_lshl_b32 s15, s{sQT}, 6"); e(f"s_add_u32 s15, s15, s{sHD}"); e("s_lshl_b32 s15, s15, 10")
        e(f"s_add_u32 s15, s15, {WS_O:#x}")
        L += masks()
        return L
    def masks():
        L = []; e = L.append
        e(f"v_mov_b32 v{vT}, s5"); e(f"v_mov_b32 v{vT2}, s6")
        for r in range(16):
            e(f"v_cmp_le_i32 vcc, {(r & 7) + 16*(r >> 3)}, v{vQH}")
            e(f"v_mov_b32 v{OA+r}, 0")
            e("s_nop 0")
            e(f"v_cndmask_b32 v{CD+r}, v{vT}, v{OA+r}, vcc")
            e(f"v_cndmask_b32 v{CF+r}, v{vT2}, v{vT}, vcc")
        return L
    uid = [0]
    def spin(load, stage, cnt="s62", first_issued=False, cmp="v_cmp_le_u32", landed=False):
        uid[0] += 1; n = uid[0]
        a(f"s_mov_b32 {cnt}, {SPIN}")
        if first_issued: a(f"s_branch L_chk{n}")
        a.lab(f"L_spin{n}")
        a(load)
        if not landed: a.lab(f"L_chk{n}")
        a("s_waitcnt vmcnt(0)")
        if landed: a.lab(f"L_chk{n}")
        a(f"{cmp} vcc, {stage}, v{vPoll}")
        a(f"s_sub_u32 {cnt}, {cnt}, 1"); a(f"s_cbranch_scc1 L_ok{n}")
        a("s_cmp_eq_u64 vcc, -1"); a(f"s_cbranch_scc0 L_spin{n}")
        a.lab(f"L_ok{n}")
        if INV: a("buffer_inv sc1")
    pollF1 = f"buffer_load_dword v{vPoll}, v{vFA}, {S(sWS)}, s10 offen {SC}"

    a(f"s_sub_u32 s66, s{sW}, 4")
    a("v_lshrrev_b32 v2, 3, v1")
    a("v_and_b32 v3, 7, v1")
    a("v_lshrrev_b32 v4, 4, v1")
    a("v_xor_b32 v5, v3, v4")
    a("v_lshlrev_b32 v5, 4, v5")
    a("v_lshl_add_u32 v6, v2, 10, v5")
    a(f"s_lshl_b32 s62, s{sRB}, 16"); a("s_lshl_b32 s63, s66, 14"); a("s_add_u32 s62, s62, s63")
    a("v_add_u32 v16, s62, v6")
    a("v_xor_b32 v17, 64, v16"); a("v_add_u32 v17, 8192, v17")
    a("v_and_b32 v5, 1, v4")
    a("v_lshlrev_b32 v5, 2, v5")
    a("v_xor_b32 v5, v3, v5")
    a("v_lshlrev_b32 v5, 4, v5")
    a("v_mul_u32_u24 v8, 3072, v2")
    a("s_mul_i32 s63, s66, 49152"); a(f"s_lshl_b32 s64, s{sJ}, 7"); a("s_add_u32 s63, s63, s64")
    a("v_add3_u32 v18, v8, v5, s63")
    a("v_add_u32 v19, 24576, v18")
    a("s_lshl_b32 s67, s66, 11"); a("s_add_u32 s67, s67, 32768")
    a(f"s_lshl_b32 s3, s{sJ}, 1"); a(f"s_add_u32 s3, s3, s{sRB}"); a("s_and_b32 s3, s3, 7")
    R = opt("rot", 8)
    if R == 0: a("s_mov_b32 s3, 0")
    if R == 4: a(f"s_add_u32 s3, s{sJ}, s{sRB}"); a("s_and_b32 s3, s3, 3"); a("s_lshl_b32 s3, s3, 1")
    if R == 2: a(f"s_add_u32 s3, s{sJ}, s{sRB}"); a("s_and_b32 s3, s3, 1"); a("s_lshl_b32 s3, s3, 2")
    a("s_lshl_b32 s69, s66, 8")
    a("s_lshl_b32 s62, s3, 7"); a("s_add_u32 s62, s62, s69")
    a("v_lshlrev_b32 v24, 2, v1"); a("v_add_u32 v24, s62, v24"); a("v_and_b32 v24, 0x3ff, v24")
    for d, sz in ((sX, 2048*512*2), (sWB, 512*1536*2), (sGT, 1024)):
        a(f"s_mov_b32 s{d+2}, {sz:#x}"); a(f"s_mov_b32 s{d+3}, 0x20000")
    a("s_waitcnt lgkmcnt(0)")
    for d, lo in ((sX, 4), (sWB, 12)):
        a(f"s_mov_b32 s{d}, s{lo}"); a(f"s_and_b32 s{d+1}, s{lo+1}, 0xffff")
    def issue(c):
        slot = c & 3
        a(f"s_mul_i32 s63, s3, {64*3072}")
        if c < 8:
            a("s_lshl_b32 s62, s3, 7")
            for il in range(2):
                a(f"s_add_u32 m0, s67, {slot*32768 + il*1024}")
                a("s_nop 0")
                a(f"buffer_load_dwordx4 v{16+il}, {S(sX)}, s62 offen lds")
        for seg in range(3):
            for e in range(2):
                a(f"s_add_u32 m0, s67, {slot*32768 + 8192 + seg*7168 + e*1024}")
                a("s_nop 0")
                a(f"buffer_load_dwordx4 v{18+e}, {S(sWB if c < 8 or opt('x_wb2') else sWA)}, s63 offen offset:{seg*1024} lds")
        a("s_add_u32 s3, s3, 1"); a("s_and_b32 s3, s3, 7")
    cnt = lambda c: 0 if c > 15 else (8 if c < 8 else 6)
    if opt("x_ls") == 3: stamp(a, 1)
    issue(0)
    a(f"s_mov_b32 s{sGT}, s6"); a(f"s_and_b32 s{sGT+1}, s7, 0xffff")
    a("s_add_u32 m0, s69, 28672"); a("s_nop 0")
    a(f"buffer_load_dword v24, {S(sGT)}, 0 offen lds")
    if opt("x_ls") == 3: stamp(a, 2)
    issue(1)
    if opt("x_ls") == 3: stamp(a, 3)
    srd(a, sWA, 8, 9, 512*1536*2)
    srd(a, sWO, 14, 15, 512*512*2)
    common_srds()
    a(f"v_lshl_add_u32 v{vWo}, v2, 10, v5")
    RAMP = opt("ramp", 0)
    issued = 2
    for c in range(2, opt("up", 3)):
        issue(c); issued += 1
    lsetup = attn_setup()
    for c in range(0, 15):
        a(f"s_waitcnt vmcnt({sum(cnt(i) for i in range(c+1, issued))})")
        if opt("x_ls") == 3 and c == 0: stamp(a, 4)
        a("s_barrier")
        if opt("x_ls") == 2 and c < 4: stamp(a, c+1)
        if opt("x_ls") == 1 and c in (2, 7, 9, 14): stamp(a, {2:1, 7:2, 9:3, 14:4}[c])
        tgt = min(16, c + (4 if c >= RAMP else 3))
        while issued < tgt:
            issue(issued); issued += 1
        if c == 12:
            for x in lsetup[:70]: a(x)
        if c == 13:
            a(f"s_and_b32 s62, s{sW}, 1"); a("s_lshl_b32 s62, s62, 7"); a("s_add_u32 s62, s62, 29696")
            a("v_and_b32 v2, 31, v1"); a("v_lshl_add_u32 v2, v2, 2, s62")
            a(f"ds_read_b32 v{vG}, v2")
            for x in lsetup[70:]: a(x)
            a("s_waitcnt lgkmcnt(0)")
    if not opt("x_ls"): stamp(a, 1)
    spin(pollF1, 1)
    if not opt("x_ls"): stamp(a, 2)
    a("s_lshl_b32 s62, s66, 13")
    for g in range(2):
        a(f"s_add_u32 m0, s62, {g*4096}"); a(f"s_add_u32 s63, s62, s14")
        if g: a("s_add_u32 s63, s63, 4096")
        for i in range(4): a(f"buffer_load_dwordx4 v{vL16}, {S(sWS)}, s63 offen offset:{i*1024} {LD} lds")
    a("s_barrier")
    a(f"buffer_load_dwordx4 {vr(QB,4)}, v{vL16}, {S(sWS)}, s12 offen {LD}")
    a("s_waitcnt vmcnt(1)"); a("s_barrier")
    if not opt("x_ls"): stamp(a, 3)
    a("s_lshl_b32 s62, s66, 12"); a("s_add_u32 s62, s62, 32768")
    a.lab("L_ldkv")
    a("s_mov_b32 m0, s62"); a("s_add_u32 s63, s62, s14")
    a("s_add_u32 s62, s62, 16384")
    for i in range(4): a(f"buffer_load_dwordx4 v{vL16}, {S(sWS)}, s63 offen offset:{i*1024} {LD} lds")
    a("s_cmp_lt_u32 s62, 131072"); a("s_cbranch_scc1 L_ldkv")
    a("s_waitcnt vmcnt(24)")
    a("s_branch L_attn")

    a.lab("L_compute")
    a("v_lshrrev_b32 v16, 5, v1")
    a("v_and_b32 v17, 31, v1")
    a(f"s_and_b32 s66, s{sW}, 1")
    a(f"s_lshr_b32 s67, s{sW}, 1")
    a("v_lshrrev_b32 v18, 1, v17"); a("v_and_b32 v18, 7, v18")
    a("s_lshl_b32 s62, s66, 12"); a("s_add_u32 s62, s62, 32768")
    a("v_lshlrev_b32 v19, 7, v17"); a("v_add_u32 v19, s62, v19")
    for t in range(4):
        a(f"v_add_u32 v20, {2*t}, v16"); a("v_xor_b32 v20, v20, v18")
        a(f"v_lshl_add_u32 v{vXA+t}, v20, 4, v19")
        a(f"v_add_u32 v{vXA+4+t}, 0x10000, v{vXA+t}")
    a("v_bfe_u32 v18, v1, 2, 2")
    a("v_lshl_add_u32 v19, v16, 3, v18"); a("v_lshlrev_b32 v19, 7, v19")
    a("v_bfe_u32 v20, v1, 4, 1"); a("v_lshlrev_b32 v20, 1, v20")
    a("v_bfe_u32 v21, v1, 1, 1"); a("v_add_u32 v20, v20, v21")
    a("s_lshl_b32 s62, s67, 2"); a("v_add_u32 v20, s62, v20")
    a("v_bfe_u32 v21, v1, 3, 1"); a("v_lshlrev_b32 v21, 2, v21"); a("v_xor_b32 v20, v20, v21")
    a("v_lshl_add_u32 v19, v20, 4, v19")
    a("v_and_b32 v20, 1, v1"); a("v_lshl_add_u32 v19, v20, 3, v19")
    a(f"v_add_u32 v{vWA}, {32768+8192}, v19")
    a(f"v_add_u32 v{vWA+1}, {32768+8192+65536}, v19")
    a(f"v_lshlrev_b32 v{vGA}, 4, v16"); a(f"v_add_u32 v{vGA}, 28672, v{vGA}")
    a(f"v_and_b32 v{vKs}, 0x33, v1")
    a(f"v_bfe_u32 v20, v1, 2, 1"); a(f"v_lshl_or_b32 v{vKs}, v20, 3, v{vKs}")
    a(f"v_bfe_u32 v20, v1, 3, 1"); a(f"v_lshl_or_b32 v{vKs}, v20, 2, v{vKs}")
    a(f"v_lshlrev_b32 v{vKs}, 4, v{vKs}")
    a(f"v_and_b32 v{vVs}, 15, v1"); a(f"v_lshlrev_b32 v{vVs}, 4, v{vVs}")
    a(f"v_lshl_add_u32 v{vVs}, v16, 8, v{vVs}")
    a(f"v_bfe_u32 v20, v1, 4, 1"); a(f"v_lshl_add_u32 v{vVs}, v20, 17, v{vVs}")
    a(f"v_add_u32 v{vVs}, 1024, v{vVs}")
    a(f"s_lshl_b32 s62, s{sJ}, 2"); a("s_lshl_b32 s63, s67, 1"); a("s_add_u32 s62, s62, s63"); a("s_lshl_b32 s62, s62, 6")
    a(f"s_lshl_b32 s63, s{sRB}, 1"); a("s_add_u32 s62, s62, s63"); a("s_add_u32 s62, s62, s66")
    a("s_lshl_b32 s24, s62, 10"); a(f"s_add_u32 s24, s24, {WS_Q:#x}"); a("s_add_u32 s25, s24, 65536")
    a("s_lshl_b32 s26, s62, 11"); a("s_add_u32 s27, s26, 131072")
    a(f"s_add_u32 s28, s24, {32*65536:#x}"); a(f"s_add_u32 s29, s25, {32*65536:#x}")
    a(f"s_add_u32 s30, s26, {32*131072:#x}"); a(f"s_add_u32 s31, s27, {32*131072:#x}")
    a(f"s_mov_b32 s32, {QSCALE:#x}")
    a("v_mov_b32 v0, 0")
    a("s_waitcnt lgkmcnt(0)")
    srd(a, sWO, 10, 11, 512*512*2)
    common_srds()
    for i in range(4): a(f"v_mov_b32 v{20+i}, 0")
    a("v_mov_b32 v24, 1")
    a(f"s_lshl_b32 s62, s{sW}, 8"); a("s_add_u32 s62, s62, s2"); a("s_sub_u32 s62, s62, 768")
    a("s_cmp_lt_u32 s62, 8"); a("s_cbranch_scc0 L_noinit")
    a("s_lshl_b32 s62, s2, 13"); a(f"s_add_u32 s62, s62, {WS_FL:#x}"); a("s_add_u32 s63, s62, 4096")
    for i in range(8): a(f"buffer_store_dwordx4 v[20:23], v{vL16}, {S(sWS)}, s{62+(i>>2)} offen offset:{(i&3)*1024} {SC}")
    a("s_lshl_b32 s62, s2, 5")
    a("s_waitcnt vmcnt(0)")
    a("s_mov_b64 exec, 1")
    a(f"buffer_store_dword v24, v20, {S(sDBG)}, s62 offen {SC}")
    a("s_mov_b64 exec, -1")
    a.lab("L_noinit")
    if opt("pf", 0):
        a("v_lshlrev_b32 v20, 7, v1")
        a(f"s_mov_b32 s54, {512*3072:#x}"); a("s_movk_i32 s62, 6144"); a("s_movk_i32 s63, 255")
        a(f"s_cmp_eq_u32 s{sW}, 0"); a("s_cselect_b32 s52, s4, s12"); a("s_cselect_b32 s53, s5, s13")
        a(f"s_cselect_b32 s54, {2048*1024:#x}, s54"); a("s_cselect_b32 s62, 8192, s62")
        a(f"s_cmp_eq_u32 s{sW}, 2"); a("s_cselect_b32 s52, s8, s52"); a("s_cselect_b32 s53, s9, s53")
        a("s_bitcmp1_b32 s2, 7"); a("s_cselect_b32 s64, s14, s10"); a("s_cselect_b32 s65, s15, s11")
        a(f"s_cmp_eq_u32 s{sW}, 3"); a("s_cselect_b32 s52, s64, s52"); a("s_cselect_b32 s53, s65, s53")
        a(f"s_cselect_b32 s54, {512*1024:#x}, s54"); a("s_cselect_b32 s62, 4096, s62"); a("s_cselect_b32 s63, 127, s63")
        a("s_and_b32 s53, s53, 0xffff"); a("s_mov_b32 s55, 0x20000")
        a("s_and_b32 s63, s63, s2"); a("s_mul_i32 s63, s63, s62")
        a("v_cmp_gt_u32 vcc, s62, v20")
        if opt("pf") == 2:
            a(f"s_cmp_ge_u32 s{sW}, 2"); a("s_cbranch_scc0 L_pfgo"); a("s_sleep 24"); a.lab("L_pfgo")
        a("s_mov_b64 exec, vcc")
        a("buffer_load_dword v252, v20, s[52:55], s63 offen")
        a("s_mov_b64 exec, -1")

    def reads(m):
        c, hh, b = m >> 1, m & 1, m & 1
        slot = c & 3; L = []
        for kk in range(2):
            t = 2*hh + kk
            if m < 16:
                L.append(f"ds_read_b128 {vr(XR + 4*(2*m+kk), 4)}, v{vXA + 4*(slot>>1) + t} offset:{(slot&1)*32768}")
            for seg in range(3):
                for u in range(2):
                    L.append(f"ds_read_b64_tr_b16 {vr(WF[b]+12*kk+4*seg+2*u,2)}, v{vWA+(slot>>1)} offset:{(slot&1)*32768 + seg*8192 + (16*t+4*u)*128}")
            if m < 16:
                L.append(f"ds_read_b128 {vr(GF[b]+4*kk,4)}, v{vGA} offset:{(2*m+kk)*32}")
        return L
    def mfmas(m):
        b = m & 1; L = []
        for kk in range(2):
            x = vr(XR + 4*((2*m+kk) & 31), 4)
            for seg in range(3):
                d = vr(ACC[seg], 16); cc = "0" if (m & 15) == 0 and kk == 0 else d
                w = vr(WF[b]+12*kk+4*seg, 4)
                L.append(f"v_mfma_f32_32x32x16_bf16 {d}, {w}, {x}, {cc}" if seg < 2 else f"v_mfma_f32_32x32x16_bf16 {d}, {x}, {w}, {cc}")
        return L
    def epilogue(br, pk):
        sq, sk = (28, 30) if br else (24, 26)
        a("s_nop 9")
        for seg in range(3):
            base = ACC[seg]
            if seg == 0:
                for r in range(16): a(f"v_mul_f32 v{base+r}, s32, v{base+r}")
            for p in range(2):
                for i in range(4): a(f"v_cvt_pk_bf16_f32 v{pk+i}, v{base+8*p+2*i}, v{base+8*p+2*i+1}")
                if seg == 0:   a(f"buffer_store_dwordx4 {vr(pk,4)}, v{vL16}, {S(sWS)}, s{sq+p} offen {opt('st', 'sc1')}")
                elif seg == 1: a(f"buffer_store_dwordx4 {vr(pk,4)}, v{vKs}, {S(sWS)}, s{sk+p} offen {opt('st', 'sc1')}")
                else:          a(f"buffer_store_dwordx4 {vr(pk,4)}, v{vVs}, {S(sWS)}, s{sk} offen offset:{p*512} {opt('st', 'sc1')}")
                pk += 4
        a("s_nop 1")
    def publishF1(stage, t0, t1):
        a(f"v_mov_b32 v{t0}, 0"); a(f"v_mov_b32 v{t1}, {stage}")
        a("s_lshl_b32 s62, s2, 8"); a(f"s_add_u32 s62, s62, {WS_FL:#x}")
        a("s_mov_b64 exec, 1")
        a(f"buffer_store_dword v{t1}, v{t0}, {S(sWS)}, s62 offen {SC}")
        a("s_mov_b64 exec, -1")
    PUB = opt("pub", 21)
    setup = attn_setup()
    setup = [f"v_lshrrev_b32 v{vT}, 3, v1", f"v_bfe_u32 v{vT2}, v1, 4, 1", f"v_lshlrev_b32 v{vT2}, 2, v{vT2}",
             f"v_and_b32 v{vWo}, 7, v1", f"v_xor_b32 v{vWo}, v{vWo}, v{vT2}", f"v_lshlrev_b32 v{vWo}, 4, v{vWo}",
             f"v_lshl_add_u32 v{vWo}, v{vT}, 10, v{vWo}"] + setup
    per = (len(setup) + 17) // 18
    stamp(a, 1)
    a("s_barrier")
    stamp(a, 2, True)
    for r in reads(0): a(r)
    for m in range(32):
        a("s_waitcnt lgkmcnt(0)" if m != 12 else "s_waitcnt vmcnt(0) lgkmcnt(0)")
        mm = mfmas(m)
        r = reads(m+1) if m < 31 else []
        if opt("x_noread"): r = []
        if opt("x_nomfma"): mm = ["s_nop 0"]*6
        fill = [[] for _ in range(6)]
        if m < 16:
            for kk in range(2):
                for i in range(4):
                    fill[3*kk + (i >> 1)].append(f"v_dot2_f32_bf16 v0, v{XR+4*(2*m+kk)+i}, v{GF[m&1]+4*kk+i}, v0")
        if 27 <= m <= 29:
            for g in range(6):
                fill[g] += setup[:per]; setup = setup[per:]
        nr = (len(r) + 3) // 4
        for i in range(6):
            a(mm[i])
            if i == 0 and m & 1:
                if m == PUB and not opt("x_nopubw"): a("s_waitcnt vmcnt(0)")
                a("s_barrier")
                if m == PUB:
                    a(f"s_cmp_lg_u32 s{sW}, 0"); a("s_cbranch_scc1 L_nopub1")
                    uid[0] += 1; n = uid[0]
                    a(f"s_mov_b32 s65, {SPIN}")
                    a(f"s_branch L_chk{n}")
                    a.lab(f"L_spin{n}")
                    a(f"buffer_load_dword v114, v115, {S(sDBG)}, 0 offen {SC}")
                    a("s_waitcnt vmcnt(0)")
                    a.lab(f"L_chk{n}")
                    a("v_cmp_eq_u32 vcc, 1, v114")
                    a(f"s_sub_u32 s65, s65, 1"); a(f"s_cbranch_scc1 L_ok{n}")
                    a("s_cmp_eq_u64 vcc, -1"); a(f"s_cbranch_scc0 L_spin{n}")
                    a.lab(f"L_ok{n}")
                    publishF1(1, 114, 115)
                    a.lab("L_nopub1")
                if m == 29: a(f"buffer_load_dwordx4 {vr(QB,4)}, v{vL16}, {S(sWS)}, s12 offen {LD}")
            if i < 4:
                for x in r[i*nr:(i+1)*nr]: a(x)
            for x in fill[i]: a(x)
        if m == 15:
            stamp(a, 3)
            epilogue(1, WF[1])
            a(f"v_mov_b32 v{vGacc}, v0")
            a("s_nop 1")
            a(f"v_permlane32_swap_b32 v0, v{vGacc}")
            a(f"v_add_f32 v{vG}, v0, v{vGacc}")
            a(f"v_mul_f32 v{vG}, {f2u(-1.4426950408889634):#x}, v{vG}")
            a(f"v_exp_f32 v{vG}, v{vG}")
            a("v_and_b32 v114, 31, v1")
            a(f"v_add_f32 v{vG}, 1.0, v{vG}")
            a(f"v_rcp_f32 v{vG}, v{vG}")
            a("s_lshl_b32 s62, s66, 7"); a("s_add_u32 s62, s62, 29696")
            a("v_lshlrev_b32 v114, 2, v114"); a("v_add_u32 v114, s62, v114")
            a(f"ds_write_b32 v114, v{vG}")
            a("v_and_b32 v115, 7, v1"); a("v_lshlrev_b32 v115, 5, v115")
            a(f"s_cmp_lg_u32 s{sW}, 0"); a("s_cbranch_scc1 L_noip")
            a(f"buffer_load_dword v114, v115, {S(sDBG)}, 0 offen {SC}")
            a.lab("L_noip")
    assert not setup
    stamp(a, 4)
    epilogue(0, WF[1])
    a("s_waitcnt vmcnt(6)")

    a.lab("L_attn")
    def rdK(buf, addr, off): a(f"ds_read_b128 {vr(KB[buf],4)}, v{addr} offset:{off}")
    def rdV(buf, addr, off):
        a("s_mov_b64 exec, s[22:23]")
        a(f"ds_read_b128 {vr(VB[buf][0],4)}, v{addr} offset:{off}")
        a(f"ds_read_b128 {vr(VB[buf][1],4)}, v{addr} offset:{off+512}")
        a("s_mov_b64 exec, -1")
    def mfma(dst, kbuf, q, c): a(f"v_mfma_f32_32x32x16_bf16 {vr(dst,16)}, {vr(KB[kbuf],4)}, {vr(q,4)}, {c}")
    def smf(vreg, sreg): a(f"v_smfmac_f32_32x32x32_bf16 {vr(OA,16)}, {vr(vreg,4)}, {vr(sreg,8)}, v{vIDX}")
    def ex(s, i): a(f"v_exp_f32 v{s+i}, v{s+i}")
    def rowmax(s):
        a(f"v_max3_f32 v{vM}, v{s}, v{s+1}, v{vMF}")
        for i in range(2, 16, 2): a(f"v_max3_f32 v{vM}, v{s+i}, v{s+i+1}, v{vM}")
        a(f"v_mov_b32 v{vT}, v{vM}")
        a("s_nop 1")
        a(f"v_permlane32_swap_b32 v{vM}, v{vT}")
        a(f"v_max_f32 v{vM}, v{vM}, v{vT}")
    def tile(t, first, do_mfma, q, c, kread, vread, pre_mfma=None, extra=None):
        cur, prev = SB[t & 1], SB[(t+1) & 1]
        a("s_setprio 1")
        ex(cur, 0); ex(cur, 1)
        if not first: smf(VB[(t-1) & 1][1], prev+8)
        a("s_waitcnt lgkmcnt(0)")
        if kread is not None: rdK(t & 1, *kread)
        if vread is not None: rdV((t+1) & 1, *vread)
        ex(cur, 2); ex(cur, 3); ex(cur, 4)
        if do_mfma:
            if pre_mfma: pre_mfma()
            mfma(prev, (t+1) & 1, q, c)
        for i in range(5, 10): ex(cur, i)
        smf(VB[t & 1][0], cur)
        for i in range(10, 14): ex(cur, i)
        a("s_setprio 0")
        if extra: extra()
        ex(cur, 14); ex(cur, 15)
    def finish(tlast, fb_label, done_label, br, mid=None):
        a("s_nop 1")
        smf(VB[tlast & 1][1], SB[tlast & 1]+8)
        a("s_nop 15")
        a(f"v_add_f32 v{vT}, abs(v{OA}), v{OA+8}")
        for i in range(1, 8): a(f"v_add_f32 v{vT}, abs(v{OA+i}), v{vT}")
        a(f"v_rcp_f32 v{vT2}, v{OA+8}")
        a(f"v_cmp_gt_f32 vcc, 0x71800000, v{vT}")
        a("s_cmp_lg_u32 s8, 0"); a(f"s_cbranch_scc1 {done_label}")
        a("s_cmp_eq_u64 vcc, -1"); a(f"s_cbranch_scc0 {fb_label}")
        a.lab(done_label)
        for i in range(8): a(f"v_mul_f32 v{OA+i}, v{vT2}, v{OA+i}")
        for i in range(4): a(f"v_cvt_pk_bf16_f32 v{PK[br]+i}, v{OA+2*i}, v{OA+2*i+1}")
        if mid: mid()
        a(f"s_add_u32 s62, s15, {br*32*1024}")
        a(f"buffer_store_dwordx4 {vr(PK[br],4)}, v{vL16}, {S(sWS)}, s62 offen {SC}")
    def publishF2(stage):
        a(f"v_mov_b32 v{vT}, {stage}")
        a("s_mov_b64 exec, 1")
        a(f"buffer_store_dword v{vT}, v{vF2}, {S(sWS)}, s16 offen {SC}")
        a("s_mov_b64 exec, -1")

    stamp(a, 5, True)
    a.lab("L_B_start")
    rdK(0, vL16, 0); rdK(1, vL16, 2048); rdV(0, vVb, 0); rdV(1, vVb, 0)
    a(f"v_mov_b32 v{vKb}, v{vL16}")
    for r in range(8, 16): a(f"v_mov_b32 v{SB[1]+r}, 0")
    a("s_waitcnt lgkmcnt(5)")
    mfma(SB[0], 0, QB, "0")
    a("s_nop 15")
    rowmax(SB[0])
    for r in range(16): a(f"v_sub_f32 v{CM+r}, 0, v{vM}")
    a("s_nop 1")
    mfma(SB[0], 0, QB, vr(CM, 16))
    a("s_waitcnt lgkmcnt(0)")
    a("s_mov_b32 s17, 0")
    a("s_nop 8")
    a.raw(".p2align 6")
    a.lab("L_B_loop")
    a("s_bitcmp1_b32 s9, s17"); a("s_cbranch_scc1 L_B_stub")
    a.lab("L_B_body")
    for t in range(8):
        tile(t, False, True, QB, vr(CM, 16), (vKb, (t+2)*2048), (vVb, (t+1)*2048))
    a(f"v_add_u32 v{vKb}, 16384, v{vKb}")
    a(f"v_add_u32 v{vVb}, 16384, v{vVb}")
    a("s_add_u32 s17, s17, 1"); a("s_cmp_lt_u32 s17, 8"); a("s_cbranch_scc1 L_B_loop")
    stamp(a, 6)
    finish(7, "L_B_fb", "L_B_done", 1)
    a(f"v_mov_b32 v{vF2}, 0")
    a("s_lshl_b32 s16, s2, 8"); a(f"s_lshl_b32 s62, s{sW}, 2"); a("s_add_u32 s16, s16, s62"); a(f"s_add_u32 s16, s16, {WS_FL+128:#x}")
    a(f"s_and_b32 s18, s{sW}, 3"); a("s_lshl_b32 s18, s18, 17"); a(f"s_lshl_b32 s62, s{sJ}, 7"); a("s_add_u32 s18, s18, s62")
    a(f"s_lshl_b32 s19, s{sW}, 14")
    a(f"v_bfe_u32 v{vT}, v1, 2, 1"); a(f"v_and_b32 v{vFA}, 3, v1"); a(f"v_lshl_add_u32 v{vFA}, v{vFA}, 3, v{vT}"); a(f"v_lshlrev_b32 v{vFA}, 8, v{vFA}")
    a(f"s_lshr_b32 s10, s{sW}, 1"); a("s_lshl_b32 s10, s10, 9")
    a(f"s_lshr_b32 s62, s{sRB}, 2"); a("s_lshl_b32 s62, s62, 13"); a("s_add_u32 s10, s10, s62")
    a(f"s_and_b32 s62, s{sRB}, 3"); a("s_lshl_b32 s62, s62, 3"); a("s_add_u32 s10, s10, s62")
    a(f"s_and_b32 s62, s{sW}, 1"); a("s_lshl_b32 s62, s62, 2"); a("s_add_u32 s10, s10, s62")
    a(f"s_add_u32 s10, s10, {WS_FL+128:#x}")
    a(f"s_lshl_b32 s20, s{sRB}, 17"); a(f"s_and_b32 s62, s{sW}, 1"); a("s_lshl_b32 s62, s62, 16"); a("s_add_u32 s20, s20, s62")
    a(f"s_lshr_b32 s62, s{sW}, 1"); a("s_lshl_b32 s62, s62, 13"); a("s_add_u32 s20, s20, s62"); a(f"s_add_u32 s20, s20, {WS_O:#x}")
    a("s_mov_b32 s8, 0")
    a(f"v_mov_b32 v{vMF}, s5")
    for r in range(16): a(f"v_mov_b32 v{OA+r}, 0")
    a("s_waitcnt vmcnt(1) lgkmcnt(0)"); a("s_barrier")
    stamp(a, 7, True)
    a.lab("L_A_start")
    rdK(0, vKa, 8*2048); rdK(1, vKa, 7*2048); rdV(0, vVa, 8*2048)
    a("s_waitcnt lgkmcnt(3)")
    mfma(SB[0], 0, QA, vr(CD, 16))
    a("s_nop 15")
    rowmax(SB[0])
    for r in range(16): a(f"v_sub_f32 v{SB[0]+r}, v{SB[0]+r}, v{vM}")
    for r in range(16): a(f"v_sub_f32 v{CM+r}, 0, v{vM}")
    for r in range(16): a(f"v_sub_f32 v{CF+r}, v{CF+r}, v{vM}")
    pollF2 = f"buffer_load_dword v{vPoll}, v{vFA}, {S(sWS)}, s10 offen {SC}"
    for t in range(9):
        def pm(t=t):
            if t < 7:
                a(f"s_cmp_lg_u32 s7, {t}"); a(f"s_cbranch_scc1 L_A_mid{t}")
                a("s_nop 7")
                for r in range(16): a(f"v_mov_b32 v{CM+r}, s5")
                a("s_nop 1")
                a.lab(f"L_A_mid{t}")
        def extra(t=t):
            a("s_cmp_lg_u32 s8, 0"); a(f"s_cbranch_scc1 L_A_x{t}")
            if t == 2:
                a("s_waitcnt vmcnt(4)"); publishF2(1)
            if t < 8:
                for i in range(2):
                    a("s_mov_b32 m0, s19"); a("s_add_u32 s19, s19, 1024")
                    a(f"buffer_load_dwordx4 v{vWo}, {S(sWO)}, s18 offen lds")
                    a("s_add_u32 s18, s18, 8192")
            else: a(pollF2)
            a.lab(f"L_A_x{t}")
        tile(t, t == 0, t < 8, QA, vr(CM if t < 7 else CF, 16),
             (vKa, (8-(t+2))*2048) if t+2 <= 8 else None,
             (vVa, (8-(t+1))*2048) if t+1 <= 8 else None, pm, extra)
    finish(8, "L_A_fb", "L_A_done", 0)
    stamp(a, 8)
    def oloads(br):
        a(f"s_add_u32 s62, s20, {br*32768}"); a("s_add_u32 s63, s62, 4096")
        for i in range(8):
            a(f"buffer_load_dwordx4 {vr(OF[1-br]+4*i,4)}, v{vL16}, {S(sWS)}, s{62+(i>>2)} offen offset:{(i&3)*1024} {LD}")
    a("s_waitcnt vmcnt(0)")
    publishF2(2)
    spin(pollF2, 1, cnt="s64", first_issued=True, landed=True)
    oloads(1)
    a(f"v_lshrrev_b32 v{vT}, 5, v1"); a(f"v_bfe_u32 v{vT2}, v1, 2, 2")
    a(f"v_lshl_add_u32 v{vPW0}, v{vT}, 2, v{vT2}"); a(f"v_lshlrev_b32 v{vPW0}, 7, v{vPW0}")
    a(f"v_bfe_u32 v{vT}, v1, 4, 1"); a(f"v_lshlrev_b32 v{vT}, 1, v{vT}")
    a(f"v_bfe_u32 v{vT2}, v1, 1, 1"); a(f"v_add_u32 v{vT}, v{vT}, v{vT2}")
    a(f"v_bfe_u32 v{vT2}, v1, 3, 1"); a(f"v_lshl_or_b32 v{vT}, v{vT2}, 2, v{vT}")
    a(f"v_lshl_add_u32 v{vPW0}, v{vT}, 4, v{vPW0}")
    a(f"v_and_b32 v{vT}, 1, v1"); a(f"v_lshl_add_u32 v{vPW0}, v{vT}, 3, v{vPW0}")
    a(f"s_lshr_b32 s62, s{sW}, 1"); a("s_lshl_b32 s62, s62, 14"); a("s_add_u32 s62, s62, 65536")
    a(f"v_add_u32 v{vPW0}, s62, v{vPW0}")
    a(f"v_xor_b32 v{vPW1}, 64, v{vPW0}")
    a("s_barrier")
    def wreads(i):
        for c in range(2):
            for u in range(2):
                a(f"ds_read_b64_tr_b16 {vr(PW_[i&1][c]+2*u,2)}, v{vPW0+c} offset:{i*2048+u*1024}")
    def half(br, extra_vm):
        wreads(0)
        for i in range(8):
            if i < 7: wreads(i+1)
            a(f"s_waitcnt vmcnt({7-i+extra_vm}) lgkmcnt({4 if i < 7 else 0})")
            for c in range(2):
                d = vr(PACC[br][c], 16)
                a(f"v_mfma_f32_32x32x16_bf16 {d}, {vr(PW_[i&1][c],4)}, {vr(OF[1-br]+4*i,4)}, {'0' if i == 0 else d}")
    a(pollF2)
    half(1, 1)
    a(f"v_subrev_u32 v{vPW0}, 0x10000, v{vPW0}"); a(f"v_subrev_u32 v{vPW1}, 0x10000, v{vPW1}")
    stamp(a, 9)
    spin(pollF2, 2, cnt="s64", first_issued=True)
    oloads(0)
    a("s_barrier")
    a(f"v_sub_f32 v{vT}, 1.0, v{vG}")
    for c in range(2):
        for r in range(16): a(f"v_mul_f32 v{PACC[1][c]+r}, v{vT}, v{PACC[1][c]+r}")
    PW = 16*1088
    a(f"s_lshr_b32 s62, s{sW}, 1"); a(f"s_mul_i32 s62, s62, {PW}"); a(f"s_and_b32 s63, s{sW}, 1"); a(f"s_mul_i32 s63, s63, {8*1088}")
    a("s_add_u32 s62, s62, s63"); a("s_add_u32 s62, s62, 65536")
    a(f"v_add_u32 v2, s62, v{vL16}")
    a("v_and_b32 v5, 7, v1"); a("v_lshrrev_b32 v6, 3, v1")
    a(f"s_and_b32 s62, s{sW}, 3"); a("s_lshl_b32 s62, s62, 3"); a("v_add_u32 v6, s62, v6")
    a("v_mul_u32_u24 v7, 1088, v5"); a("v_lshl_add_u32 v7, v6, 4, v7")
    a(f"s_lshr_b32 s62, s{sW}, 2"); a(f"s_mul_i32 s63, s62, {8*1088}"); a("s_add_u32 s63, s63, 65536")
    a("v_add_u32 v7, s63, v7")
    a("v_lshlrev_b32 v8, 10, v6"); a("v_lshl_add_u32 v8, v5, 4, v8")
    a("s_lshl_b32 s62, s62, 15"); a(f"s_lshl_b32 s63, s{sRB}, 16"); a("s_add_u32 s62, s62, s63")
    a(f"s_lshl_b32 s63, s{sJ}, 7"); a("s_add_u32 s21, s62, s63")
    half(0, 0)
    a("s_nop 11")
    for c in range(2):
        for g in range(4):
            for r in range(4*g, 4*g+4): a(f"v_fmac_f32 v{PACC[1][c]+r}, v{vG}, v{PACC[0][c]+r}")
            a(f"ds_write_b128 v2, {vr(PACC[1][c]+4*g,4)} offset:{(c*4+g)*1088}")
    a("s_waitcnt lgkmcnt(0)"); a("s_barrier")
    for kq in range(4):
        for h in range(2):
            a(f"ds_read_b128 {vr(16+kq*8+h*4,4)}, v7 offset:{kq*PW + h*512}")
    a("s_waitcnt lgkmcnt(4)")
    for i in range(8): a(f"v_add_f32 v{16+i}, v{16+i}, v{24+i}")
    a("s_waitcnt lgkmcnt(0)")
    for i in range(8): a(f"v_add_f32 v{32+i}, v{32+i}, v{40+i}")
    for i in range(8): a(f"v_add_f32 v{16+i}, v{16+i}, v{32+i}")
    for i in range(4): a(f"v_cvt_pk_bf16_f32 v{48+i}, v{16+2*i}, v{16+2*i+1}")
    a(f"buffer_store_dwordx4 v[48:51], v8, {S(sOUT)}, s21 offen")
    if Cfg.stamp:
        a("s_waitcnt vmcnt(0)")
        a("s_memtime s[96:97]"); a("s_waitcnt lgkmcnt(0)")
        stamp_out(a, 0, 10, sWS, sW, 8)
        a("s_nop 1"); a("v_mov_b32 v1, s96"); a(f"buffer_store_dword v1, v0, {S(sWS)}, s94 offen offset:40")
        a("s_getreg_b32 s96, hwreg(HW_REG_XCC_ID)"); a("s_nop 1"); a("v_mov_b32 v1, s96"); a(f"buffer_store_dword v1, v0, {S(sWS)}, s94 offen offset:44")
        a("s_getreg_b32 s96, hwreg(HW_REG_HW_ID)"); a("s_nop 1"); a("v_mov_b32 v1, s96"); a(f"buffer_store_dword v1, v0, {S(sWS)}, s94 offen offset:48")
    a.lab("L_end")
    a("s_endpgm")

    a.lab("L_B_stub")
    a("s_cmp_eq_u32 s17, 3"); a("s_cbranch_scc1 L_B_stub3")
    a("s_cmp_eq_u32 s17, 4"); a("s_cbranch_scc1 L_B_stub4")
    a("s_waitcnt vmcnt(0)"); a("s_barrier")
    a(f"s_cmp_lg_u32 s{sW}, 0"); a("s_cbranch_scc1 L_B_body")
    publishF1(2, vT, vT2)
    a("s_branch L_B_body")
    a.lab("L_B_stub3")
    a(pollF1)
    a("s_branch L_B_body")
    a.lab("L_B_stub4")
    spin(pollF1, 2, first_issued=True)
    a(f"s_lshl_b32 s62, s{sW}, 12"); a(f"s_lshl_b32 s63, s{sB}, 14"); a("s_add_u32 s63, s63, s62")
    a("s_add_u32 m0, s62, 131072")
    a("s_cmp_lt_u32 s63, 16384"); a("s_cselect_b32 s62, 0, 16384")
    a("s_add_u32 s63, s63, s13"); a("s_sub_u32 s63, s63, s62")
    for i in range(4): a(f"buffer_load_dwordx4 v{vL16}, {S(sWS)}, s63 offen offset:{i*1024} {LD} lds")
    a(f"buffer_load_dwordx4 {vr(QA,4)}, v{vL16}, {S(sWS)}, s11 offen {LD}")
    a("s_branch L_B_body")
    a.lab("L_A_fb")
    a("s_waitcnt lgkmcnt(0)")
    a("s_mov_b32 s8, 1")
    a(f"s_sub_u32 s17, 8, s{sW}"); a(f"s_cmp_eq_u32 s{sB}, 0"); a("s_cselect_b32 s17, s17, 0")
    a.lab("L_A_fb_loop")
    a("s_lshl_b32 s62, s17, 11")
    a(f"v_add_u32 v{vT}, s62, v{vKa}")
    rdK(0, vT, 0)
    a("s_sub_u32 s62, 8, s17"); a("s_lshl_b32 s62, s62, 5")
    a(f"v_add_u32 v{vT2}, s62, v{vQH}")
    a(f"v_mov_b32 v{vM}, s5")
    a("s_movk_i32 s62, 256")
    a("s_waitcnt lgkmcnt(0)")
    mfma(SB[0], 0, QA, "0")
    a("s_nop 15")
    for r in range(16):
        a(f"v_subrev_u32 v{vT}, {(r & 7) + 16*(r >> 3)}, v{vT2}")
        a(f"v_cmp_gt_u32 vcc, s62, v{vT}")
        a("s_nop 1")
        a(f"v_cndmask_b32 v{vT}, v{vM}, v{SB[0]+r}, vcc")
        a(f"v_max_f32 v{vMF}, v{vMF}, v{vT}")
    a("s_add_u32 s17, s17, 1"); a("s_cmp_lt_u32 s17, 9"); a("s_cbranch_scc1 L_A_fb_loop")
    for x in masks(): a(x)
    a("s_branch L_A_start")
    a.lab("L_B_fb")
    a("s_waitcnt lgkmcnt(0)")
    a("s_mov_b32 s8, 1"); a("s_mov_b32 s9, 0")
    a("s_mov_b32 s17, 0")
    a(f"v_mov_b32 v{vT}, v{vL16}")
    a.lab("L_B_fb_loop")
    rdK(0, vT, 0)
    a(f"v_add_u32 v{vT}, 2048, v{vT}")
    a("s_waitcnt lgkmcnt(0)")
    mfma(SB[0], 0, QB, "0")
    a("s_nop 15")
    for i in range(0, 16, 2): a(f"v_max3_f32 v{vMF}, v{SB[0]+i}, v{SB[0]+i+1}, v{vMF}")
    a("s_add_u32 s17, s17, 1"); a("s_cmp_lt_u32 s17, 64"); a("s_cbranch_scc1 L_B_fb_loop")
    a(f"v_and_b32 v{vVb}, 0x7ff, v{vVb}")
    for r in range(16): a(f"v_mov_b32 v{OA+r}, 0")
    a("s_branch L_B_start")
    d = desc(K, 256, 72, 256)
    if Cfg.stamp: d = d.replace("next_free_sgpr 96", "next_free_sgpr 100")
    return a.text(), d

def main(out):
    t, d = gen()
    hdr = f"""; gated_mix(sliding-window MHA, full MHA), one fused launch:
; @launch grid=(256,1,1) block=(512,1,1) lds=163840
.amdgcn_target "amdgcn-amd-amdhsa--gfx950"
"""
    open(out, "w").write(hdr + t + d)

if __name__ == "__main__":
    main(parse_args())
```

```python
from common import *

WS_FL = 16 << 20
WS_F2 = WS_FL + 8192
SC = "sc1"
STK = "sc1"
SPIN = 1 << 17

sX, sWB, sWA, sWS, sWO, sOUT, sDBG, sGT = 24, 28, 32, 36, 40, 44, 48, 52
sW, sRB, sJ, sHD, sB, sQT = 56, 57, 58, 59, 60, 61
S = lambda b: f"s[{b}:{b+3}]"
vXA = 2
vWA = 10
vGA, vL16, vKs, vVs = 12, 13, 14, 15
WF = [16, 40]
ACC = [64, 80, 96]
GF = [112, 120]
XR = 128
vG, vGacc, QB, QA = 112, 113, 116, 120
CF, CD = 128, 144
VB = [[160, 164], [168, 172]]
OA = 176
vIDX, vKa, vVa, vKb, vVb, vT, vM, vMF, vT2, vQH, vFA, vWo = range(192, 204)
vPoll = 206
KB = [16, 20]
SB = [32, 48]
CM = 64
PK = [244, 248]
OF = [208, 16]
PACC = [[48, 64], [80, 96]]
PW_ = [[128, 132], [136, 140]]
vPW0, vPW1, vF2 = 240, 241, 242

PW = 16*1088
def gen():
    LD = opt("ld", "sc1")
    if LD == "none": LD = ""
    a = A(); K = NAME + "_kernel"; head(a, K)
    a("s_cmp_ge_u32 s2, 256"); a("s_cbranch_scc1 L_end")
    stamp(a, 0)
    a("s_load_dwordx2 s[4:5], s[0:1], 0")
    a("s_load_dwordx4 s[8:11], s[0:1], 8")
    a("s_load_dwordx4 s[12:15], s[0:1], 32")
    a("s_load_dwordx2 s[6:7], s[0:1], 48")
    a("s_load_dwordx4 s[16:19], s[0:1], 56")
    a("s_load_dwordx2 s[20:21], s[0:1], 72")
    a("v_lshrrev_b32 v2, 6, v0")
    a("v_and_b32 v1, 63, v0")
    a("s_and_b32 s62, s2, 7")
    a(f"v_readfirstlane_b32 s{sW}, v2")
    a("s_lshr_b32 s63, s2, 3")
    a("s_and_b32 s64, s62, 3"); a("s_lshl_b32 s64, s64, 3"); a("s_and_b32 s65, s63, 7"); a(f"s_add_u32 s{sRB}, s64, s65")
    a("s_lshr_b32 s64, s62, 2"); a("s_lshl_b32 s64, s64, 2"); a("s_lshr_b32 s65, s63, 3"); a(f"s_add_u32 s{sJ}, s64, s65")
    a("s_lshl_b32 s64, s62, 2"); a("s_and_b32 s65, s63, 3"); a(f"s_add_u32 s{sHD}, s64, s65")
    a(f"s_lshr_b32 s{sB}, s63, 2")
    a(f"s_lshl_b32 s{sQT}, s{sB}, 3"); a(f"s_add_u32 s{sQT}, s{sQT}, s{sW}")
    a(f"v_lshlrev_b32 v{vL16}, 4, v1")
    a(f"s_cmp_lt_u32 s{sW}, 4"); a("s_cbranch_scc1 L_compute")

    def common_srds():
        if opt("wsoff", 0):
            a(f"s_add_u32 s20, s20, {opt('wsoff') << 20:#x}"); a("s_addc_u32 s21, s21, 0")
        srd(a, sWS, 20, 21, ws_size())
        srd(a, sOUT, 16, 17, 2048*512*2)
        srd(a, sDBG, 18, 19, 256)

    def attn_setup():
        L = []; e = L.append
        e(f"v_mov_b32 v{vIDX}, 0xdddddddd")
        e("s_mov_b32 s22, 0x0000ffff"); e("s_mov_b32 s23, 0x0000ffff")
        e(f"v_lshrrev_b32 v{vQH}, 5, v1")
        e(f"v_and_b32 v{vVb}, 15, v1"); e(f"v_lshlrev_b32 v{vVb}, 4, v{vVb}")
        e(f"v_lshl_add_u32 v{vVb}, v{vQH}, 8, v{vVb}"); e(f"v_add_u32 v{vVb}, 1024, v{vVb}")
        e(f"s_lshl_b32 s4, s{sW}, 11"); e("s_add_u32 s4, s4, 131072")
        e(f"v_add_u32 v{vKa}, s4, v{vL16}")
        e(f"v_add_u32 v{vVa}, s4, v{vVb}")
        e(f"v_and_b32 v{vM}, 31, v1")
        e(f"v_lshlrev_b32 v{vQH}, 3, v{vQH}"); e(f"v_sub_u32 v{vQH}, v{vM}, v{vQH}")
        e(f"v_lshrrev_b32 v{vT}, 5, v1"); e(f"v_lshlrev_b32 v{vT}, 3, v{vT}")
        e(f"v_lshl_add_u32 v{vFA}, v{vM}, 7, v{vT}")
        e(f"v_and_b32 v{vT}, 0x1b, v{vM}")
        e(f"v_cmp_eq_u32 vcc, 16, v{vT}")
        e(f"v_mov_b32 v{vT2}, 0x3f803f80")
        e(f"v_mov_b32 v{vT}, 0")
        for b in range(2):
            for j in range(2):
                for i in range(4): e(f"v_cndmask_b32 v{VB[b][j]+i}, v{vT}, v{vT2}, vcc")
        e(f"s_mov_b32 s5, {NEG_INF:#x}")
        e(f"s_cmp_eq_u32 s{sB}, 0\n    s_cselect_b32 s6, s5, 0\n    s_cselect_b32 s7, s{sW}, 64")
        e(f"v_mov_b32 v{vMF}, s5")
        e("s_mov_b32 s8, 0")
        e("s_movk_i32 s9, 0x7e")
        e("s_bfe_u32 s10, s2, 0x10002"); e("s_lshl_b32 s10, s10, 12")
        e(f"s_add_u32 s10, s10, {WS_FL:#x}")
        e(f"s_lshl_b32 s11, s{sHD}, 6"); e(f"s_add_u32 s11, s11, s{sQT}"); e("s_lshl_b32 s11, s11, 10")
        e(f"s_add_u32 s11, s11, {WS_Q:#x}")
        e(f"s_add_u32 s12, s11, {32*64*1024:#x}")
        e(f"s_lshl_b32 s13, s{sHD}, 17")
        e(f"s_add_u32 s14, s13, {32*131072:#x}")
        e(f"s_lshl_b32 s15, s{sQT}, 6"); e(f"s_add_u32 s15, s15, s{sHD}"); e("s_lshl_b32 s15, s15, 10")
        e(f"s_add_u32 s15, s15, {WS_O:#x}")
        L += masks()
        return L
    def masks():
        L = []; e = L.append
        e(f"v_mov_b32 v{vT}, s5"); e(f"v_mov_b32 v{vT2}, s6")
        for r in range(16):
            e(f"v_cmp_le_i32 vcc, {(r & 7) + 16*(r >> 3)}, v{vQH}")
            e(f"v_mov_b32 v{OA+r}, 0")
            e("s_nop 0")
            e(f"v_cndmask_b32 v{CD+r}, v{vT}, v{OA+r}, vcc")
            e(f"v_cndmask_b32 v{CF+r}, v{vT2}, v{vT}, vcc")
        return L
    uid = [0]
    def spin(load, stage, cnt="s62", first_issued=False, cmp="v_cmp_le_u32", landed=False):
        uid[0] += 1; n = uid[0]
        a(f"s_mov_b32 {cnt}, {SPIN}")
        if first_issued: a(f"s_branch L_chk{n}")
        a.lab(f"L_spin{n}")
        if opt("sleep", 4): a(f"s_sleep {opt('sleep', 4)}")
        a(load)
        if not landed: a.lab(f"L_chk{n}")
        a("s_waitcnt vmcnt(0)")
        if landed: a.lab(f"L_chk{n}")
        if "x2" in load: a(f"v_min_u32 v{vPoll}, v{vPoll}, v{vPoll+1}")
        a(f"{cmp} vcc, {stage}, v{vPoll}")
        a(f"s_sub_u32 {cnt}, {cnt}, 1"); a(f"s_cbranch_scc1 L_ok{n}")
        a("s_cmp_eq_u64 vcc, -1"); a(f"s_cbranch_scc0 L_spin{n}")
        a.lab(f"L_ok{n}")
    def kv32(q):
        a(f"s_and_b32 s62, s{sW}, 3"); a("s_lshl_b32 s62, s62, 13")
        if q: a(f"s_add_u32 s62, s62, {q*32768}")
        for g in range(2):
            a(f"s_add_u32 m0, s62, {g*4096}"); a("s_add_u32 s63, s62, s14")
            if g: a("s_add_u32 s63, s63, 4096")
            for i in range(4): a(f"buffer_load_dwordx4 v{vL16}, {S(sWS)}, s63 offen offset:{i*1024} {LD} lds")
    pollF1 = f"buffer_load_dwordx2 {vr(vPoll,2)}, v{vFA}, {S(sWS)}, s10 offen {SC}"

    a(f"s_sub_u32 s66, s{sW}, 4")
    a("v_lshrrev_b32 v2, 3, v1")
    a("v_and_b32 v3, 7, v1")
    a("v_lshrrev_b32 v4, 4, v1")
    a("v_xor_b32 v5, v3, v4")
    a("v_lshlrev_b32 v5, 4, v5")
    a("v_lshl_add_u32 v6, v2, 10, v5")
    a(f"s_lshl_b32 s62, s{sRB}, 16"); a("s_lshl_b32 s63, s66, 14"); a("s_add_u32 s62, s62, s63")
    a("v_add_u32 v16, s62, v6")
    a("v_xor_b32 v17, 64, v16"); a("v_add_u32 v17, 8192, v17")
    a("v_and_b32 v5, 1, v4")
    a("v_lshlrev_b32 v5, 2, v5")
    a("v_xor_b32 v5, v3, v5")
    a("v_lshlrev_b32 v5, 4, v5")
    a("v_mul_u32_u24 v8, 3072, v2")
    a("s_mul_i32 s63, s66, 49152"); a(f"s_lshl_b32 s64, s{sJ}, 7"); a("s_add_u32 s63, s63, s64")
    a("v_add3_u32 v18, v8, v5, s63")
    a("v_add_u32 v19, 24576, v18")
    MIX = opt("mix", 1)
    for seg in (1, 2):
        for e in range(2): a(f"v_xor_b32 v{18+2*seg+e}, {128*seg*MIX}, v{18+e}")
    a("s_lshl_b32 s67, s66, 11"); a("s_add_u32 s67, s67, 32768")
    a(f"s_lshl_b32 s3, s{sJ}, 1"); a(f"s_add_u32 s3, s3, s{sRB}"); a("s_and_b32 s3, s3, 7")
    R = opt("rot", 8)
    if R == 0: a("s_mov_b32 s3, 0")
    if R == 4: a(f"s_add_u32 s3, s{sJ}, s{sRB}"); a("s_and_b32 s3, s3, 3"); a("s_lshl_b32 s3, s3, 1")
    if R == 2: a(f"s_add_u32 s3, s{sJ}, s{sRB}"); a("s_and_b32 s3, s3, 1"); a("s_lshl_b32 s3, s3, 2")
    a("s_lshl_b32 s69, s66, 8")
    a("s_lshl_b32 s62, s3, 7"); a("s_add_u32 s62, s62, s69")
    a("v_lshlrev_b32 v24, 2, v1"); a("v_add_u32 v24, s62, v24"); a("v_and_b32 v24, 0x3ff, v24")
    for d, sz in ((sX, 2048*512*2), (sWB, 512*1536*2), (sGT, 1024)):
        a(f"s_mov_b32 s{d+2}, {sz:#x}"); a(f"s_mov_b32 s{d+3}, 0x20000")
    a("s_waitcnt lgkmcnt(0)")
    for d, lo in ((sX, 4), (sWB, 12)):
        a(f"s_mov_b32 s{d}, s{lo}"); a(f"s_and_b32 s{d+1}, s{lo+1}, 0xffff")
    def issue(c):
        slot = c & 3
        a(f"s_mul_i32 s63, s3, {64*3072}")
        if c < 8:
            a("s_lshl_b32 s62, s3, 7")
            for il in range(2):
                a(f"s_add_u32 m0, s67, {slot*32768 + il*1024}")
                a("s_nop 0")
                a(f"buffer_load_dwordx4 v{16+il}, {S(sX)}, s62 offen lds")
        for seg in range(3):
            for e in range(2):
                a(f"s_add_u32 m0, s67, {slot*32768 + 8192 + seg*7168 + e*1024}")
                a("s_nop 0")
                a(f"buffer_load_dwordx4 v{18+2*seg+e}, {S(sWB if c < 8 else sWA)}, s63 offen offset:{seg*1024} lds")
        a("s_add_u32 s3, s3, 1"); a("s_and_b32 s3, s3, 7")
    cnt = lambda c: 0 if c > 15 else (8 if c < 8 else 6)
    issue(0)
    a(f"s_mov_b32 s{sGT}, s6"); a(f"s_and_b32 s{sGT+1}, s7, 0xffff")
    a("s_add_u32 m0, s69, 28672"); a("s_nop 0")
    a(f"buffer_load_dword v24, {S(sGT)}, 0 offen lds")
    issue(1)
    srd(a, sWA, 8, 9, 512*1536*2)
    srd(a, sWO, 14, 15, 512*512*2)
    common_srds()
    a(f"v_lshl_add_u32 v{vWo}, v2, 10, v5")
    RAMP = opt("ramp", 0)
    issued = 2
    for c in range(2, opt("up", 2)):
        issue(c); issued += 1
    lsetup = attn_setup()
    for c in range(0, 15):
        a(f"s_waitcnt vmcnt({sum(cnt(i) for i in range(c+1, issued))})")
        a("s_barrier")
        tgt = min(16, c + (4 if c >= RAMP else 3))
        while issued < tgt:
            issue(issued); issued += 1
        if c == 12:
            for x in lsetup[:70]: a(x)
        if c == 13:
            a(f"s_and_b32 s62, s{sW}, 1"); a("s_lshl_b32 s62, s62, 7"); a("s_add_u32 s62, s62, 29696")
            a("v_and_b32 v2, 31, v1"); a("v_lshl_add_u32 v2, v2, 2, s62")
            a(f"ds_read_b32 v{vG}, v2")
            for x in lsetup[70:]: a(x)
            a("s_waitcnt lgkmcnt(0)")
    stamp(a, 1)
    a(pollF1)
    spin(pollF1, 1, first_issued=True)
    stamp(a, 2)
    kv32(0)
    a("s_barrier")
    a(f"buffer_load_dwordx4 {vr(QB,4)}, v{vL16}, {S(sWS)}, s12 offen {LD}")
    a("s_waitcnt vmcnt(1)"); a("s_barrier")
    stamp(a, 3)
    kv32(1)
    a("s_waitcnt vmcnt(8)")
    a("s_branch L_attn")

    a.lab("L_compute")
    a("v_lshrrev_b32 v16, 5, v1")
    a("v_and_b32 v17, 31, v1")
    a(f"s_and_b32 s66, s{sW}, 1")
    a(f"s_lshr_b32 s67, s{sW}, 1")
    a("v_lshrrev_b32 v18, 1, v17"); a("v_and_b32 v18, 7, v18")
    a("s_lshl_b32 s62, s66, 12"); a("s_add_u32 s62, s62, 32768")
    a("v_lshlrev_b32 v19, 7, v17"); a("v_add_u32 v19, s62, v19")
    for t in range(4):
        a(f"v_add_u32 v20, {2*t}, v16"); a("v_xor_b32 v20, v20, v18")
        a(f"v_lshl_add_u32 v{vXA+t}, v20, 4, v19")
        a(f"v_add_u32 v{vXA+4+t}, 0x10000, v{vXA+t}")
    a("v_bfe_u32 v18, v1, 2, 2")
    a("v_lshl_add_u32 v19, v16, 3, v18"); a("v_lshlrev_b32 v19, 7, v19")
    a("v_bfe_u32 v20, v1, 4, 1"); a("v_lshlrev_b32 v20, 1, v20")
    a("v_bfe_u32 v21, v1, 1, 1"); a("v_add_u32 v20, v20, v21")
    a("s_lshl_b32 s62, s67, 2"); a("v_add_u32 v20, s62, v20")
    a("v_bfe_u32 v21, v1, 3, 1"); a("v_lshlrev_b32 v21, 2, v21"); a("v_xor_b32 v20, v20, v21")
    a("v_lshl_add_u32 v19, v20, 4, v19")
    a("v_and_b32 v20, 1, v1"); a("v_lshl_add_u32 v19, v20, 3, v19")
    a(f"v_add_u32 v{vWA}, {32768+8192}, v19")
    a(f"v_add_u32 v{vWA+1}, {32768+8192+65536}, v19")
    a(f"v_lshlrev_b32 v{vGA}, 4, v16"); a(f"v_add_u32 v{vGA}, 28672, v{vGA}")
    a(f"v_and_b32 v{vKs}, 0x33, v1")
    a(f"v_bfe_u32 v20, v1, 2, 1"); a(f"v_lshl_or_b32 v{vKs}, v20, 3, v{vKs}")
    a(f"v_bfe_u32 v20, v1, 3, 1"); a(f"v_lshl_or_b32 v{vKs}, v20, 2, v{vKs}")
    a(f"v_lshlrev_b32 v{vKs}, 4, v{vKs}")
    a(f"v_and_b32 v{vVs}, 15, v1"); a(f"v_lshlrev_b32 v{vVs}, 4, v{vVs}")
    a(f"v_lshl_add_u32 v{vVs}, v16, 8, v{vVs}")
    a(f"v_bfe_u32 v20, v1, 4, 1"); a(f"v_lshl_add_u32 v{vVs}, v20, 17, v{vVs}")
    a(f"v_add_u32 v{vVs}, 1024, v{vVs}")
    a(f"s_lshl_b32 s62, s{sJ}, 2"); a("s_lshl_b32 s63, s67, 1"); a("s_add_u32 s62, s62, s63"); a("s_lshl_b32 s62, s62, 6")
    a(f"s_lshl_b32 s63, s{sRB}, 1"); a("s_add_u32 s62, s62, s63"); a("s_add_u32 s62, s62, s66")
    a("s_lshl_b32 s24, s62, 10"); a(f"s_add_u32 s24, s24, {WS_Q:#x}"); a("s_add_u32 s25, s24, 65536")
    a(f"s_xor_b32 s63, s62, {256*MIX}"); a("s_lshl_b32 s26, s63, 11"); a("s_add_u32 s27, s26, 131072")
    a(f"s_xor_b32 s63, s62, {512*MIX}"); a("s_lshl_b32 s33, s63, 11"); a(f"s_add_u32 s34, s33, {32*131072:#x}")
    a(f"s_add_u32 s28, s24, {32*65536:#x}"); a(f"s_add_u32 s29, s25, {32*65536:#x}")
    a(f"s_add_u32 s30, s26, {32*131072:#x}"); a(f"s_add_u32 s31, s27, {32*131072:#x}")
    a(f"s_mov_b32 s32, {QSCALE:#x}")
    a("v_mov_b32 v0, 0")
    a("s_waitcnt lgkmcnt(0)")
    srd(a, sWO, 10, 11, 512*512*2)
    common_srds()
    for i in range(4): a(f"v_mov_b32 v{20+i}, 0")
    a("v_mov_b32 v24, 1")
    a(f"s_lshl_b32 s62, s{sW}, 8"); a("s_add_u32 s62, s62, s2"); a("s_sub_u32 s62, s62, 768")
    a("s_cmp_lt_u32 s62, 8"); a("s_cbranch_scc0 L_noinit")
    a("s_mul_i32 s62, s2, 5120"); a(f"s_add_u32 s62, s62, {WS_FL:#x}"); a("s_add_u32 s63, s62, 4096")
    for i in range(5): a(f"buffer_store_dwordx4 v[20:23], v{vL16}, {S(sWS)}, s{62+(i>>2)} offen offset:{(i&3)*1024} {SC}")
    a("s_lshl_b32 s62, s2, 5")
    a("s_waitcnt vmcnt(0)")
    a("s_mov_b64 exec, 1")
    a(f"buffer_store_dword v24, v20, {S(sDBG)}, s62 offen {SC}")
    a("s_mov_b64 exec, -1")
    a.lab("L_noinit")
    if opt("codepf", 0):
        a(f"s_cmp_lg_u32 s{sW}, 2"); a("s_cbranch_scc1 L_nocpf")
        a("s_getpc_b64 s[62:63]")
        a.lab("L_pc")
        a("s_lshr_b32 s64, s2, 3"); a("s_lshl_b32 s64, s64, 10")
        a("v_and_b32 v20, 7, v1"); a("v_lshlrev_b32 v20, 7, v20"); a("v_add_u32 v20, s64, v20")
        a("v_min_u32 v20, L_code_end-L_pc-4, v20")
        a("v_mov_b32 v21, s63")
        a("v_add_co_u32 v20, vcc, s62, v20")
        a("s_nop 1")
        a("v_addc_co_u32 v21, vcc, 0, v21, vcc")
        a("global_load_dword v252, v[20:21], off")
        a.lab("L_nocpf")

    def reads(m):
        c, hh, b = m >> 1, m & 1, m & 1
        slot = c & 3; L = []
        for kk in range(2):
            t = 2*hh + kk
            if m < 16:
                L.append(f"ds_read_b128 {vr(XR + 4*(2*m+kk), 4)}, v{vXA + 4*(slot>>1) + t} offset:{(slot&1)*32768}")
            for seg in range(3):
                for u in range(2):
                    L.append(f"ds_read_b64_tr_b16 {vr(WF[b]+12*kk+4*seg+2*u,2)}, v{vWA+(slot>>1)} offset:{(slot&1)*32768 + seg*8192 + (16*t+4*u)*128}")
            if m < 16:
                L.append(f"ds_read_b128 {vr(GF[b]+4*kk,4)}, v{vGA} offset:{(2*m+kk)*32}")
        return L
    def mfmas(m):
        b = m & 1; L = []
        for kk in range(2):
            x = vr(XR + 4*((2*m+kk) & 31), 4)
            for seg in range(3):
                d = vr(ACC[seg], 16); cc = "0" if (m & 15) == 0 and kk == 0 else d
                w = vr(WF[b]+12*kk+4*seg, 4)
                L.append(f"v_mfma_f32_32x32x16_bf16 {d}, {w}, {x}, {cc}" if seg < 2 else f"v_mfma_f32_32x32x16_bf16 {d}, {x}, {w}, {cc}")
        return L
    def epilogue(br, pk):
        sq, sk = (28, 30) if br else (24, 26)
        a("s_nop 9")
        for seg in range(3):
            base = ACC[seg]
            if seg == 0:
                for r in range(16): a(f"v_mul_f32 v{base+r}, s32, v{base+r}")
            for p in range(2):
                for i in range(4): a(f"v_cvt_pk_bf16_f32 v{pk+i}, v{base+8*p+2*i}, v{base+8*p+2*i+1}")
                if seg == 0:   a(f"buffer_store_dwordx4 {vr(pk,4)}, v{vL16}, {S(sWS)}, s{sq+p} offen {opt('st', 'sc1')}")
                elif seg == 1: a(f"buffer_store_dwordx4 {vr(pk,4)}, v{vKs}, {S(sWS)}, s{sk+p} offen {opt('st', 'sc1')}")
                else:          a(f"buffer_store_dwordx4 {vr(pk,4)}, v{vVs}, {S(sWS)}, s{33+br} offen offset:{p*512} {opt('st', 'sc1')}")
                pk += 4
        a("s_nop 1")
    def publishF1(stage, t0, t1):
        a(f"v_mov_b32 v{t1}, {stage}")
        a(f"s_lshr_b32 s62, s{sJ}, 2"); a("s_lshl_b32 s62, s62, 5"); a(f"s_add_u32 s62, s62, s{sRB}"); a("s_lshl_b32 s62, s62, 7")
        a(f"s_and_b32 s63, s{sJ}, 3"); a("s_lshl_b32 s63, s63, 2"); a("s_add_u32 s62, s62, s63"); a(f"s_add_u32 s62, s62, {WS_FL:#x}")
        a("s_mov_b64 exec, 1")
        a(f"buffer_store_dword v{t1}, v{vL16}, {S(sWS)}, s62 offen {SC}")
        a("s_mov_b64 exec, -1")
    PUB = opt("pub", 19)
    setup = attn_setup()
    setup = [f"v_lshrrev_b32 v{vT}, 3, v1", f"v_bfe_u32 v{vT2}, v1, 4, 1", f"v_lshlrev_b32 v{vT2}, 2, v{vT2}",
             f"v_and_b32 v{vWo}, 7, v1", f"v_xor_b32 v{vWo}, v{vWo}, v{vT2}", f"v_lshlrev_b32 v{vWo}, 4, v{vWo}",
             f"v_lshl_add_u32 v{vWo}, v{vT}, 10, v{vWo}"] + setup
    per = (len(setup) + 17) // 18
    stamp(a, 1)
    a("s_barrier")
    stamp(a, 2, True)
    for r in reads(0): a(r)
    for m in range(32):
        a("s_waitcnt lgkmcnt(0)" if m != 12 else "s_waitcnt vmcnt(0) lgkmcnt(0)")
        mm = mfmas(m)
        r = reads(m+1) if m < 31 else []
        fill = [[] for _ in range(6)]
        if m < 16:
            for kk in range(2):
                for i in range(4):
                    fill[3*kk + (i >> 1)].append(f"v_dot2_f32_bf16 v0, v{XR+4*(2*m+kk)+i}, v{GF[m&1]+4*kk+i}, v0")
        if 27 <= m <= 29:
            for g in range(6):
                fill[g] += setup[:per]; setup = setup[per:]
        nr = (len(r) + 3) // 4
        for i in range(6):
            a(mm[i])
            if i == 0 and m & 1:
                if m == PUB:
                    stamp(a, 3, mode=3); a("s_waitcnt vmcnt(0)"); stamp(a, 4, mode=3)
                a("s_barrier")
                if m in (17, 19, 21, 23, 25): stamp(a, {17:5, 19:6, 21:7, 23:8, 25:9}[m], mode=3)
                if m == PUB:
                    a(f"s_cmp_lg_u32 s{sW}, 0"); a("s_cbranch_scc1 L_nopub1")
                    uid[0] += 1; n = uid[0]
                    a(f"s_mov_b32 s65, {SPIN}")
                    a(f"s_branch L_chk{n}")
                    a.lab(f"L_spin{n}")
                    a(f"buffer_load_dword v114, v115, {S(sDBG)}, 0 offen {SC}")
                    a("s_waitcnt vmcnt(0)")
                    a.lab(f"L_chk{n}")
                    a("v_cmp_eq_u32 vcc, 1, v114")
                    a(f"s_sub_u32 s65, s65, 1"); a(f"s_cbranch_scc1 L_ok{n}")
                    a("s_cmp_eq_u64 vcc, -1"); a(f"s_cbranch_scc0 L_spin{n}")
                    a.lab(f"L_ok{n}")
                    publishF1(1, 114, 115)
                    a.lab("L_nopub1")
                if m == 29: a(f"buffer_load_dwordx4 {vr(QB,4)}, v{vL16}, {S(sWS)}, s12 offen {LD}")
            if i < 4:
                for x in r[i*nr:(i+1)*nr]: a(x)
            for x in fill[i]: a(x)
        if m == 15:
            stamp(a, 3)
            stamp(a, 1, mode=3)
            epilogue(1, WF[1])
            stamp(a, 2, mode=3)
            a(f"v_mov_b32 v{vGacc}, v0")
            a("s_nop 1")
            a(f"v_permlane32_swap_b32 v0, v{vGacc}")
            a(f"v_add_f32 v{vG}, v0, v{vGacc}")
            a(f"v_mul_f32 v{vG}, {f2u(-1.4426950408889634):#x}, v{vG}")
            a(f"v_exp_f32 v{vG}, v{vG}")
            a("v_and_b32 v114, 31, v1")
            a(f"v_add_f32 v{vG}, 1.0, v{vG}")
            a(f"v_rcp_f32 v{vG}, v{vG}")
            a("s_lshl_b32 s62, s66, 7"); a("s_add_u32 s62, s62, 29696")
            a("v_lshlrev_b32 v114, 2, v114"); a("v_add_u32 v114, s62, v114")
            a(f"ds_write_b32 v114, v{vG}")
            a("v_and_b32 v115, 7, v1"); a("v_lshlrev_b32 v115, 5, v115")
            a(f"s_cmp_lg_u32 s{sW}, 0"); a("s_cbranch_scc1 L_noip")
            a(f"buffer_load_dword v114, v115, {S(sDBG)}, 0 offen {SC}")
            a.lab("L_noip")
    assert not setup
    stamp(a, 4)
    epilogue(0, WF[1])
    a("s_waitcnt vmcnt(6)")

    a.lab("L_attn")
    def rdK(buf, addr, off): a(f"ds_read_b128 {vr(KB[buf],4)}, v{addr} offset:{off}")
    def rdV(buf, addr, off):
        a("s_mov_b64 exec, s[22:23]")
        a(f"ds_read_b128 {vr(VB[buf][0],4)}, v{addr} offset:{off}")
        a(f"ds_read_b128 {vr(VB[buf][1],4)}, v{addr} offset:{off+512}")
        a("s_mov_b64 exec, -1")
    def mfma(dst, kbuf, q, c): a(f"v_mfma_f32_32x32x16_bf16 {vr(dst,16)}, {vr(KB[kbuf],4)}, {vr(q,4)}, {c}")
    def smf(vreg, sreg): a(f"v_smfmac_f32_32x32x32_bf16 {vr(OA,16)}, {vr(vreg,4)}, {vr(sreg,8)}, v{vIDX}")
    def ex(s, i): a(f"v_exp_f32 v{s+i}, v{s+i}")
    def rowmax(s):
        a(f"v_max3_f32 v{vM}, v{s}, v{s+1}, v{vMF}")
        for i in range(2, 16, 2): a(f"v_max3_f32 v{vM}, v{s+i}, v{s+i+1}, v{vM}")
        a(f"v_mov_b32 v{vT}, v{vM}")
        a("s_nop 1")
        a(f"v_permlane32_swap_b32 v{vM}, v{vT}")
        a(f"v_max_f32 v{vM}, v{vM}, v{vT}")
    def tile(t, first, do_mfma, q, c, kread, vread, pre_mfma=None, extra=None):
        cur, prev = SB[t & 1], SB[(t+1) & 1]
        a("s_setprio 1")
        ex(cur, 0); ex(cur, 1)
        if not first: smf(VB[(t-1) & 1][1], prev+8)
        a("s_waitcnt lgkmcnt(0)")
        if kread is not None: rdK(t & 1, *kread)
        if vread is not None: rdV((t+1) & 1, *vread)
        ex(cur, 2); ex(cur, 3); ex(cur, 4)
        if do_mfma:
            if pre_mfma: pre_mfma()
            mfma(prev, (t+1) & 1, q, c)
        for i in range(5, 10): ex(cur, i)
        smf(VB[t & 1][0], cur)
        for i in range(10, 14): ex(cur, i)
        a("s_setprio 0")
        if extra: extra()
        ex(cur, 14); ex(cur, 15)
    def a_first():
        rdK(0, vKa, 8*2048); rdK(1, vKa, 7*2048); rdV(0, vVa, 8*2048)
        a("s_waitcnt lgkmcnt(3)")
        mfma(SB[0], 0, QA, vr(CD, 16))
    def finish(tlast, fb_label, done_label, br, mid=None):
        a("s_nop 1")
        smf(VB[tlast & 1][1], SB[tlast & 1]+8)
        if br: a_first(); a("s_nop 4")
        else: a("s_nop 11")
        a(f"v_add_f32 v{vT}, abs(v{OA}), v{OA+8}")
        for i in range(1, 8): a(f"v_add_f32 v{vT}, abs(v{OA+i}), v{vT}")
        a(f"v_rcp_f32 v{vT2}, v{OA+8}")
        a(f"v_cmp_gt_f32 vcc, 0x71800000, v{vT}")
        a("s_cmp_lg_u32 s8, 0"); a(f"s_cbranch_scc1 {done_label}")
        a("s_cmp_eq_u64 vcc, -1"); a(f"s_cbranch_scc0 {fb_label}")
        a.lab(done_label)
        for i in range(8): a(f"v_mul_f32 v{OA+i}, v{vT2}, v{OA+i}")
        for i in range(4): a(f"v_cvt_pk_bf16_f32 v{PK[br]+i}, v{OA+2*i}, v{OA+2*i+1}")
        if mid: mid()
        a(f"s_add_u32 s62, s15, {br*32*1024}")
        a(f"buffer_store_dwordx4 {vr(PK[br],4)}, v{vL16}, {S(sWS)}, s62 offen {SC}")
    def publishF2(stage):
        a(f"v_mov_b32 v{vT}, {stage}")
        a("s_mov_b64 exec, 1")
        a(f"buffer_store_dword v{vT}, v{vL16}, {S(sWS)}, s16 offen {SC}")
        a("s_mov_b64 exec, -1")

    stamp(a, 5, True)
    a.lab("L_B_start")
    rdK(0, vL16, 0); rdK(1, vL16, 2048); rdV(0, vVb, 0); rdV(1, vVb, 0)
    a(f"v_mov_b32 v{vKb}, v{vL16}")
    for r in range(8, 16): a(f"v_mov_b32 v{SB[1]+r}, 0")
    a("s_waitcnt lgkmcnt(5)")
    mfma(SB[0], 0, QB, "0")
    a("s_nop 15")
    rowmax(SB[0])
    for r in range(16): a(f"v_sub_f32 v{CM+r}, 0, v{vM}")
    a("s_nop 1")
    mfma(SB[0], 0, QB, vr(CM, 16))
    a("s_waitcnt lgkmcnt(0)")
    stamp(a, 1, True, mode=1)
    a("s_mov_b32 s17, 0")
    a("s_nop 8")
    a.raw(".p2align 6")
    a.lab("L_B_loop")
    a("s_bitcmp1_b32 s9, s17"); a("s_cbranch_scc1 L_B_stub")
    a.lab("L_B_body")
    for t in range(8):
        tile(t, False, True, QB, vr(CM, 16), (vKb, (t+2)*2048), (vVb, (t+1)*2048))
    a(f"v_add_u32 v{vKb}, 16384, v{vKb}")
    a(f"v_add_u32 v{vVb}, 16384, v{vVb}")
    a("s_add_u32 s17, s17, 1"); a("s_cmp_lt_u32 s17, 8"); a("s_cbranch_scc1 L_B_loop")
    stamp(a, 6)
    stamp(a, 9, mode=1)
    finish(7, "L_B_fb", "L_B_done", 1)
    a("s_mov_b32 s8, 0")
    a(f"v_mov_b32 v{vMF}, s5")
    for r in range(16): a(f"v_mov_b32 v{OA+r}, 0")
    stamp(a, 7)
    a.lab("L_A_max")
    rowmax(SB[0])
    for r in range(16): a(f"v_sub_f32 v{SB[0]+r}, v{SB[0]+r}, v{vM}")
    for r in range(16): a(f"v_sub_f32 v{CM+r}, 0, v{vM}")
    for r in range(16): a(f"v_sub_f32 v{CF+r}, v{CF+r}, v{vM}")
    def oloads(br):
        a(f"s_add_u32 s62, s20, {br*32768}"); a("s_add_u32 s63, s62, 4096")
        for i in range(8):
            a(f"buffer_load_dwordx4 {vr(OF[1-br]+4*i,4)}, v{vL16}, {S(sWS)}, s{62+(i>>2)} offen offset:{(i&3)*1024} {LD}")
    pollF2 = f"buffer_load_dword v{vPoll}, v{vFA}, {S(sWS)}, s10 offen {SC}"
    for t in range(9):
        def pm(t=t):
            if t < 7:
                a(f"s_cmp_lg_u32 s7, {t}"); a(f"s_cbranch_scc1 L_A_mid{t}")
                a("s_nop 7")
                for r in range(16): a(f"v_mov_b32 v{CM+r}, s5")
                a("s_nop 1")
                a.lab(f"L_A_mid{t}")
        def extra(t=t):
            if t == 7: return
            a("s_cmp_lg_u32 s8, 0"); a(f"s_cbranch_scc1 L_A_x{t}")
            if t == 0: a("s_barrier")
            if t == 2:
                a("s_waitcnt vmcnt(6)"); publishF2(1)
            if t < 6:
                for i in range(3 if t < 5 else 1):
                    a("s_mov_b32 m0, s19"); a("s_add_u32 s19, s19, 1024")
                    a(f"buffer_load_dwordx4 v{vWo}, {S(sWO)}, s18 offen lds")
                    a("s_add_u32 s18, s18, 8192")
            if t == 6: a(pollF2)
            if t == 8:
                spin(pollF2, 1, cnt="s64", first_issued=True)
                oloads(1)
            a.lab(f"L_A_x{t}")
        tile(t, t == 0, t < 8, QA, vr(CM if t < 7 else CF, 16),
             (vKa, (8-(t+2))*2048) if t+2 <= 8 else None,
             (vVa, (8-(t+1))*2048) if t+1 <= 8 else None, pm, extra)
    finish(8, "L_A_fb", "L_A_done", 0)
    stamp(a, 8)
    stamp(a, 1, mode=2)
    a("s_barrier")
    stamp(a, 2, True, mode=2)
    WR = lambda i, c: 128 + 8*i + 4*c
    def wreads(i):
        for c in range(2):
            for u in range(2):
                a(f"ds_read_b64_tr_b16 {vr(WR(i,c)+2*u,2)}, v{vPW0+c} offset:{i*2048+u*1024}")
    def pm(br, i):
        for c in range(2):
            d = vr(PACC[br][c], 16)
            a(f"v_mfma_f32_32x32x16_bf16 {d}, {vr(WR(i,c),4)}, {vr(OF[1-br]+4*i,4)}, {'0' if i == 0 else d}")
    wreads(0); wreads(1)
    for i in range(8):
        if i < 6: wreads(i+2)
        a(f"s_waitcnt vmcnt({max(7-i+1, 0) if i < 4 else 2}) lgkmcnt({8 if i < 6 else 4*(7-i)})")
        pm(1, i)
        if i == 3:
            a("s_waitcnt vmcnt(0)")
            stamp(a, 3, mode=2)
            publishF2(2)
            a(pollF2)
    a(f"v_subrev_u32 v{vPW0}, 0x10000, v{vPW0}"); a(f"v_subrev_u32 v{vPW1}, 0x10000, v{vPW1}")
    stamp(a, 9)
    stamp(a, 4, mode=2)
    a("s_barrier")
    for i in range(8): wreads(i)
    a(f"v_sub_f32 v{vT}, 1.0, v{vG}")
    for c in range(2):
        for r in range(16): a(f"v_mul_f32 v{PACC[1][c]+r}, v{vT}, v{PACC[1][c]+r}")
    stamp(a, 5, mode=2)
    spin(pollF2, 2, cnt="s64", first_issued=True)
    stamp(a, 6, mode=2)
    oloads(0)
    for i in range(8):
        a(f"s_waitcnt vmcnt({7-i}) lgkmcnt(0)")
        if i == 0: stamp(a, 7, mode=2)
        pm(0, i)
    stamp(a, 8, mode=2)
    a("s_nop 10")
    for c in range(2):
        for g in range(4):
            for r in range(4*g, 4*g+4): a(f"v_fmac_f32 v{PACC[1][c]+r}, v{vG}, v{PACC[0][c]+r}")
            a(f"ds_write_b128 v2, {vr(PACC[1][c]+4*g,4)} offset:{(c*4+g)*1088}")
    a("s_waitcnt lgkmcnt(0)"); a("s_barrier")
    stamp(a, 9, True, mode=2)
    for kq in range(4):
        for h in range(2):
            a(f"ds_read_b128 {vr(16+kq*8+h*4,4)}, v7 offset:{kq*PW + h*512}")
    a("s_waitcnt lgkmcnt(4)")
    for i in range(8): a(f"v_add_f32 v{16+i}, v{16+i}, v{24+i}")
    a("s_waitcnt lgkmcnt(0)")
    for i in range(8): a(f"v_add_f32 v{32+i}, v{32+i}, v{40+i}")
    for i in range(8): a(f"v_add_f32 v{16+i}, v{16+i}, v{32+i}")
    for i in range(4): a(f"v_cvt_pk_bf16_f32 v{48+i}, v{16+2*i}, v{16+2*i+1}")
    a(f"buffer_store_dwordx4 v[48:51], v8, {S(sOUT)}, s21 offen")
    if Cfg.stamp:
        a("s_waitcnt vmcnt(0)")
        a("s_memtime s[96:97]"); a("s_waitcnt lgkmcnt(0)")
        stamp_out(a, 0, 10, sWS, sW, 8)
        a("s_nop 1"); a("v_mov_b32 v1, s96"); a(f"buffer_store_dword v1, v0, {S(sWS)}, s94 offen offset:40")
        a("s_getreg_b32 s96, hwreg(HW_REG_XCC_ID)"); a("s_nop 1"); a("v_mov_b32 v1, s96"); a(f"buffer_store_dword v1, v0, {S(sWS)}, s94 offen offset:44")
        a("s_getreg_b32 s96, hwreg(HW_REG_HW_ID)"); a("s_nop 1"); a("v_mov_b32 v1, s96"); a(f"buffer_store_dword v1, v0, {S(sWS)}, s94 offen offset:48")
    a.lab("L_end")
    a("s_endpgm")

    a.lab("L_B_stub")
    for i in range(2, 7):
        a(f"s_cmp_eq_u32 s17, {i}"); a(f"s_cbranch_scc1 L_B_stub{i}")
    stamp(a, 2, mode=1)
    a("s_waitcnt vmcnt(0)"); a("s_barrier")
    stamp(a, 3, mode=1)
    a(f"s_cmp_ge_u32 s{sW}, 4"); a("s_cbranch_scc1 L_B_body")
    kv32(2)
    a(f"s_cmp_lg_u32 s{sW}, 0"); a("s_cbranch_scc1 L_B_body")
    publishF1(2, vT, vT2)
    a("s_branch L_B_body")
    a.lab("L_B_stub2")
    stamp(a, 4, mode=1)
    a(f"s_cmp_lt_u32 s{sW}, 4"); a("s_cbranch_scc1 L_B_body")
    kv32(3)
    a("s_branch L_B_body")
    a.lab("L_B_stub3")
    stamp(a, 5, mode=1)
    a("s_waitcnt vmcnt(0)"); a("s_barrier")
    a(pollF1)
    a("s_branch L_B_body")
    a.lab("L_B_stub4")
    stamp(a, 6, mode=1)
    spin(pollF1, 2, first_issued=True)
    a(f"s_lshl_b32 s62, s{sW}, 12"); a(f"s_lshl_b32 s63, s{sB}, 14"); a("s_add_u32 s63, s63, s62")
    a("s_add_u32 m0, s62, 131072")
    a("s_cmp_lt_u32 s63, 16384"); a("s_cselect_b32 s62, 0, 16384")
    a("s_add_u32 s63, s63, s13"); a("s_sub_u32 s63, s63, s62")
    for i in range(4): a(f"buffer_load_dwordx4 v{vL16}, {S(sWS)}, s63 offen offset:{i*1024} {LD} lds")
    a(f"buffer_load_dwordx4 {vr(QA,4)}, v{vL16}, {S(sWS)}, s11 offen {LD}")
    a("s_branch L_B_body")
    a.lab("L_B_stub5")
    stamp(a, 7, mode=1)
    a("s_lshl_b32 s16, s2, 7"); a(f"s_lshl_b32 s62, s{sW}, 2"); a("s_add_u32 s16, s16, s62"); a(f"s_add_u32 s16, s16, {WS_F2:#x}")
    a(f"s_and_b32 s18, s{sW}, 3"); a("s_lshl_b32 s18, s18, 17"); a(f"s_lshl_b32 s62, s{sJ}, 7"); a("s_add_u32 s18, s18, s62")
    a(f"s_lshl_b32 s19, s{sW}, 14")
    a(f"v_bfe_u32 v{vT}, v1, 2, 1"); a(f"v_and_b32 v{vFA}, 3, v1"); a(f"v_lshl_add_u32 v{vFA}, v{vFA}, 3, v{vT}"); a(f"v_lshlrev_b32 v{vFA}, 7, v{vFA}")
    a(f"s_lshr_b32 s10, s{sW}, 1"); a("s_lshl_b32 s10, s10, 8")
    a(f"s_lshr_b32 s62, s{sRB}, 2"); a("s_lshl_b32 s62, s62, 12"); a("s_add_u32 s10, s10, s62")
    a(f"s_and_b32 s62, s{sRB}, 3"); a("s_lshl_b32 s62, s62, 3"); a("s_add_u32 s10, s10, s62")
    a(f"s_and_b32 s62, s{sW}, 1"); a("s_lshl_b32 s62, s62, 2"); a("s_add_u32 s10, s10, s62")
    a(f"s_add_u32 s10, s10, {WS_F2:#x}")
    a(f"s_lshl_b32 s20, s{sRB}, 17"); a(f"s_and_b32 s62, s{sW}, 1"); a("s_lshl_b32 s62, s62, 16"); a("s_add_u32 s20, s20, s62")
    a(f"s_lshr_b32 s62, s{sW}, 1"); a("s_lshl_b32 s62, s62, 13"); a("s_add_u32 s20, s20, s62"); a(f"s_add_u32 s20, s20, {WS_O:#x}")
    a(f"v_lshrrev_b32 v{vT}, 5, v1"); a(f"v_bfe_u32 v{vT2}, v1, 2, 2")
    a(f"v_lshl_add_u32 v{vPW0}, v{vT}, 2, v{vT2}"); a(f"v_lshlrev_b32 v{vPW0}, 7, v{vPW0}")
    a(f"v_bfe_u32 v{vT}, v1, 4, 1"); a(f"v_lshlrev_b32 v{vT}, 1, v{vT}")
    a(f"v_bfe_u32 v{vT2}, v1, 1, 1"); a(f"v_add_u32 v{vT}, v{vT}, v{vT2}")
    a(f"v_bfe_u32 v{vT2}, v1, 3, 1"); a(f"v_lshl_or_b32 v{vT}, v{vT2}, 2, v{vT}")
    a(f"v_lshl_add_u32 v{vPW0}, v{vT}, 4, v{vPW0}")
    a(f"v_and_b32 v{vT}, 1, v1"); a(f"v_lshl_add_u32 v{vPW0}, v{vT}, 3, v{vPW0}")
    a(f"s_lshr_b32 s62, s{sW}, 1"); a("s_lshl_b32 s62, s62, 14"); a("s_add_u32 s62, s62, 65536")
    a(f"v_add_u32 v{vPW0}, s62, v{vPW0}")
    a(f"v_xor_b32 v{vPW1}, 64, v{vPW0}")
    a(f"s_lshr_b32 s62, s{sW}, 1"); a(f"s_mul_i32 s62, s62, {PW}"); a(f"s_and_b32 s63, s{sW}, 1"); a(f"s_mul_i32 s63, s63, {8*1088}")
    a("s_add_u32 s62, s62, s63"); a("s_add_u32 s62, s62, 65536")
    a(f"v_add_u32 v2, s62, v{vL16}")
    a("v_and_b32 v5, 7, v1"); a("v_lshrrev_b32 v6, 3, v1")
    a(f"s_and_b32 s62, s{sW}, 3"); a("s_lshl_b32 s62, s62, 3"); a("v_add_u32 v6, s62, v6")
    a("v_mul_u32_u24 v7, 1088, v5"); a("v_lshl_add_u32 v7, v6, 4, v7")
    a(f"s_lshr_b32 s62, s{sW}, 2"); a(f"s_mul_i32 s63, s62, {8*1088}"); a("s_add_u32 s63, s63, 65536")
    a("v_add_u32 v7, s63, v7")
    a("v_lshlrev_b32 v8, 10, v6"); a("v_lshl_add_u32 v8, v5, 4, v8")
    a("s_lshl_b32 s62, s62, 15"); a(f"s_lshl_b32 s63, s{sRB}, 16"); a("s_add_u32 s62, s62, s63")
    a(f"s_lshl_b32 s63, s{sJ}, 7"); a("s_add_u32 s21, s62, s63")
    a("s_branch L_B_body")
    a.lab("L_B_stub6")
    stamp(a, 8, mode=1)
    a("s_waitcnt vmcnt(0)"); a("s_barrier")
    a(f"s_and_b32 s62, s{sW}, 3"); a("s_cbranch_scc1 L_B_body")
    a(f"v_lshlrev_b32 v{vT}, 10, v1")
    a(f"s_and_b32 s62, s{sRB}, 7"); a("s_lshl_b32 s62, s62, 16"); a(f"s_lshl_b32 s63, s{sJ}, 7"); a("s_add_u32 s62, s62, s63")
    a(f"buffer_load_dword v243, v{vT}, {S(sWO)}, s62 offen")
    a("s_branch L_B_body")
    a.lab("L_A_fb")
    a("s_waitcnt lgkmcnt(0)")
    a("s_mov_b32 s8, 1")
    a(f"s_sub_u32 s17, 8, s{sW}"); a(f"s_cmp_eq_u32 s{sB}, 0"); a("s_cselect_b32 s17, s17, 0")
    a.lab("L_A_fb_loop")
    a("s_lshl_b32 s62, s17, 11")
    a(f"v_add_u32 v{vT}, s62, v{vKa}")
    rdK(0, vT, 0)
    a("s_sub_u32 s62, 8, s17"); a("s_lshl_b32 s62, s62, 5")
    a(f"v_add_u32 v{vT2}, s62, v{vQH}")
    a(f"v_mov_b32 v{vM}, s5")
    a("s_movk_i32 s62, 256")
    a("s_waitcnt lgkmcnt(0)")
    mfma(SB[0], 0, QA, "0")
    a("s_nop 15")
    for r in range(16):
        a(f"v_subrev_u32 v{vT}, {(r & 7) + 16*(r >> 3)}, v{vT2}")
        a(f"v_cmp_gt_u32 vcc, s62, v{vT}")
        a("s_nop 1")
        a(f"v_cndmask_b32 v{vT}, v{vM}, v{SB[0]+r}, vcc")
        a(f"v_max_f32 v{vMF}, v{vMF}, v{vT}")
    a("s_add_u32 s17, s17, 1"); a("s_cmp_lt_u32 s17, 9"); a("s_cbranch_scc1 L_A_fb_loop")
    for x in masks(): a(x)
    a_first()
    a("s_nop 15")
    a("s_branch L_A_max")
    a.lab("L_B_fb")
    a("s_waitcnt lgkmcnt(0)")
    a("s_mov_b32 s8, 1"); a("s_mov_b32 s9, 0")
    a("s_mov_b32 s17, 0")
    a(f"v_mov_b32 v{vT}, v{vL16}")
    a.lab("L_B_fb_loop")
    rdK(0, vT, 0)
    a(f"v_add_u32 v{vT}, 2048, v{vT}")
    a("s_waitcnt lgkmcnt(0)")
    mfma(SB[0], 0, QB, "0")
    a("s_nop 15")
    for i in range(0, 16, 2): a(f"v_max3_f32 v{vMF}, v{SB[0]+i}, v{SB[0]+i+1}, v{vMF}")
    a("s_add_u32 s17, s17, 1"); a("s_cmp_lt_u32 s17, 64"); a("s_cbranch_scc1 L_B_fb_loop")
    a(f"v_and_b32 v{vVb}, 0x7ff, v{vVb}")
    for r in range(16): a(f"v_mov_b32 v{OA+r}, 0")
    a("s_branch L_B_start")
    a.lab("L_code_end")
    d = desc(K, 256, 72, 256)
    if Cfg.stamp: d = d.replace("next_free_sgpr 96", "next_free_sgpr 100")
    return a.text(), d

def main(out):
    t, d = gen()
    hdr = f"""; gated_mix(sliding-window MHA, full MHA), one fused launch:
; @launch grid=(256,1,1) block=(512,1,1) lds=163840
.amdgcn_target "amdgcn-amd-amdhsa--gfx950"
"""
    open(out, "w").write(hdr + t + d)

if __name__ == "__main__":
    main(parse_args())
```

```python
from common import *

WS_FL = 16 << 20
WS_F2 = WS_FL + 32768
SC = "sc1"
SPIN = 1 << 17
PW = 16*1088

sX, sWB, sWA, sWS, sWOA, sOUT, sDBG, sWOB = 24, 28, 32, 36, 40, 44, 48, 52
sW, sRB, sJ, sHD, sB, sQT, sR16, sI = 56, 57, 58, 59, 60, 61, 68, 69
S = lambda b: f"s[{b}:{b+3}]"
vXA = 2
vWA = 10
vL16, vGA = 14, 15
WF = [16, 48]
ACC = [80, 96]
GF = 112
XR = 128
vG, QB, QA = 112, 116, 120
CF, CD = 128, 144
VB = [[160, 164], [168, 172]]
OA = 176
vIDX, vKa, vVa, vKb, vVb, vT, vM, vMF, vT2, vQH, vFA, vWo = range(192, 204)
vFA2 = 204
vPoll = 206
KB = [16, 20]
SB = [32, 48]
CM = 64
PK = [244, 248]
OF = [208, 16]
PACC = [[48, 64], [80, 96]]
vPW0, vPW1 = 240, 241
QSTG = 152*1024

def gen():
    LD = "sc1"
    EARLY = opt("early", 1)
    def wpos(c, sb):
        if EARLY and c == 8: return (2+sb)*32768 + 24576
        if EARLY and c == 12: return sb*32768 + 24576
        return (c & 3)*32768 + sb*8192
    a = A(); K = NAME + "_kernel"; head(a, K)
    a("s_cmp_ge_u32 s2, 256"); a("s_cbranch_scc1 L_end")
    stamp(a, 0)
    a("s_load_dwordx2 s[4:5], s[0:1], 0")
    a("s_load_dwordx4 s[12:15], s[0:1], 32")
    a("s_load_dwordx4 s[8:11], s[0:1], 8")
    a("s_load_dwordx2 s[6:7], s[0:1], 48")
    a("s_load_dwordx4 s[16:19], s[0:1], 56")
    a("s_load_dwordx2 s[20:21], s[0:1], 72")
    a("v_lshrrev_b32 v2, 6, v0")
    a("v_and_b32 v1, 63, v0")
    a("s_bfe_u32 s62, s2, 0x20003")
    a(f"v_readfirstlane_b32 s{sW}, v2")
    a("s_and_b32 s63, s2, 3"); a("s_lshl_b32 s63, s63, 2"); a(f"s_add_u32 s{sR16}, s63, s62")
    a(f"s_lshr_b32 s{sI}, s2, 5")
    a(f"v_lshlrev_b32 v{vL16}, 4, v1")
    a(f"s_cmp_lt_u32 s{sW}, 4"); a("s_cbranch_scc1 L_compute")

    def ids():
        a(f"s_lshl_b32 s{sRB}, s{sR16}, 1"); a(f"s_and_b32 s62, s{sI}, 1"); a(f"s_add_u32 s{sRB}, s{sRB}, s62")
        a(f"s_and_b32 s{sJ}, s2, 4"); a(f"s_lshr_b32 s62, s{sI}, 1"); a(f"s_add_u32 s{sJ}, s{sJ}, s62")
        a(f"s_and_b32 s{sHD}, s2, 7"); a(f"s_lshl_b32 s{sHD}, s{sHD}, 2"); a("s_bfe_u32 s62, s2, 0x20003"); a(f"s_add_u32 s{sHD}, s{sHD}, s62")
        a(f"s_mov_b32 s{sB}, s{sI}")
        a(f"s_lshl_b32 s{sQT}, s{sB}, 3"); a(f"s_add_u32 s{sQT}, s{sQT}, s{sW}")
    def common_srds():
        srd(a, sWS, 20, 21, ws_size())
        srd(a, sOUT, 16, 17, 2048*512*2)
        srd(a, sDBG, 18, 19, 256)
        srd(a, sWOA, 10, 11, 512*512*2)
        srd(a, sWOB, 14, 15, 512*512*2)

    def attn_setup():
        L = []; e = L.append
        e(f"s_lshl_b32 s11, s{sHD}, 6"); e(f"s_add_u32 s11, s11, s{sQT}"); e("s_lshl_b32 s11, s11, 10")
        e(f"s_add_u32 s11, s11, {WS_Q:#x}")
        e(f"s_lshl_b32 s13, s{sHD}, 17")
        e(f"s_add_u32 s14, s13, {32*131072:#x}")
        e("s_and_b32 s10, s2, 4"); e("s_lshl_b32 s10, s10, 7"); e(f"s_add_u32 s10, s10, {WS_FL:#x}")
        e("s_and_b32 s4, s2, 3"); e("s_add_u32 s5, s4, 3"); e("s_and_b32 s5, s5, 3"); e("s_xor_b32 s6, s4, 2")
        e("s_mul_i32 s7, s4, 0x1011"); e("s_lshl_b32 s9, s5, 8"); e("s_add_u32 s7, s7, s9"); e("s_add_u32 s7, s7, 0x440")
        e("s_mul_i32 s5, s5, 0x1001"); e("s_mul_i32 s6, s6, 0x110"); e("s_add_u32 s5, s5, s6"); e("s_add_u32 s5, s5, 0x400")
        e(f"v_bfe_u32 v{vT}, v1, 2, 2"); e(f"v_and_b32 v{vT2}, 3, v1"); e(f"v_lshl_add_u32 v{vT}, v{vT2}, 3, v{vT}")
        e(f"v_lshlrev_b32 v{vT}, 7, v{vT}")
        e(f"v_lshrrev_b32 v{vT2}, 4, v1"); e(f"v_lshlrev_b32 v{vT2}, 2, v{vT2}")
        e(f"v_bfe_u32 v{vFA}, s7, v{vT2}, 4"); e(f"v_lshl_add_u32 v{vFA}, v{vFA}, 12, v{vT}")
        e(f"v_bfe_u32 v{vFA2}, s5, v{vT2}, 4"); e(f"v_lshl_add_u32 v{vFA2}, v{vFA2}, 12, v{vT}")
        e(f"v_lshrrev_b32 v{vT}, 3, v1"); e(f"v_bfe_u32 v{vT2}, v1, 4, 1"); e(f"v_lshlrev_b32 v{vT2}, 2, v{vT2}")
        e(f"v_and_b32 v{vWo}, 7, v1"); e(f"v_xor_b32 v{vWo}, v{vWo}, v{vT2}"); e(f"v_lshlrev_b32 v{vWo}, 4, v{vWo}")
        e(f"v_lshl_add_u32 v{vWo}, v{vT}, 10, v{vWo}")
        e(f"v_mov_b32 v{vIDX}, 0xdddddddd")
        e("s_mov_b32 s22, 0x0000ffff"); e("s_mov_b32 s23, 0x0000ffff")
        e(f"v_lshrrev_b32 v{vQH}, 5, v1")
        e(f"v_and_b32 v{vVb}, 15, v1"); e(f"v_lshlrev_b32 v{vVb}, 4, v{vVb}")
        e(f"v_lshl_add_u32 v{vVb}, v{vQH}, 8, v{vVb}"); e(f"v_add_u32 v{vVb}, 1024, v{vVb}")
        e(f"s_lshl_b32 s4, s{sW}, 11"); e("s_add_u32 s4, s4, 131072")
        e(f"v_add_u32 v{vKa}, s4, v{vL16}")
        e(f"v_add_u32 v{vVa}, s4, v{vVb}")
        e(f"s_lshl_b32 s4, s{sW}, 10"); e(f"s_add_u32 s4, s4, {QSTG}")
        e(f"v_add_u32 v{vKb}, s4, v{vL16}")
        e(f"v_and_b32 v{vM}, 31, v1")
        e(f"v_lshlrev_b32 v{vQH}, 3, v{vQH}"); e(f"v_sub_u32 v{vQH}, v{vM}, v{vQH}")
        e(f"v_and_b32 v{vT}, 0x1b, v{vM}")
        e(f"v_cmp_eq_u32 vcc, 16, v{vT}")
        e(f"v_mov_b32 v{vT2}, 0x3f803f80")
        e(f"v_mov_b32 v{vT}, 0")
        for b in range(2):
            for j in range(2):
                for i in range(4): e(f"v_cndmask_b32 v{VB[b][j]+i}, v{vT}, v{vT2}, vcc")
        e(f"s_mov_b32 s5, {NEG_INF:#x}")
        e(f"s_cmp_eq_u32 s{sB}, 0\n    s_cselect_b32 s6, s5, 0\n    s_cselect_b32 s7, s{sW}, 64")
        e(f"v_mov_b32 v{vMF}, s5")
        e("s_mov_b32 s8, 0")
        e(f"s_lshl_b32 s15, s{sQT}, 6"); e(f"s_add_u32 s15, s15, s{sHD}"); e("s_lshl_b32 s15, s15, 10")
        e(f"s_add_u32 s15, s15, {WS_O:#x}")
        L += masks()
        return L
    def masks():
        L = []; e = L.append
        e(f"v_mov_b32 v{vT}, s5"); e(f"v_mov_b32 v{vT2}, s6")
        for r in range(16):
            e(f"v_cmp_le_i32 vcc, {(r & 7) + 16*(r >> 3)}, v{vQH}")
            e(f"v_mov_b32 v{OA+r}, 0")
            e("s_nop 0")
            e(f"v_cndmask_b32 v{CD+r}, v{vT}, v{OA+r}, vcc")
            e(f"v_cndmask_b32 v{CF+r}, v{vT2}, v{vT}, vcc")
        return L
    def gread(t):
        a(f"s_and_b32 s62, s{sI}, 1"); a("s_lshl_b32 s62, s62, 1"); a(f"s_and_b32 s63, s{sW}, 1"); a("s_add_u32 s62, s62, s63")
        a("s_lshl_b32 s62, s62, 7"); a("s_add_u32 s62, s62, 29696")
        a(f"v_and_b32 v{t}, 31, v1"); a(f"v_lshl_add_u32 v{t}, v{t}, 2, s62")
        a(f"ds_read_b32 v{vG}, v{t}")
    uid = [0]
    def spin(load, stage, cnt="s62", reg=vPoll, cmp="v_cmp_le_u32"):
        uid[0] += 1; n = uid[0]
        a(f"s_mov_b32 {cnt}, {SPIN}")
        a(f"s_branch L_chk{n}")
        a.lab(f"L_spin{n}")
        if opt("sleep", 4): a(f"s_sleep {opt('sleep', 4)}")
        a(load)
        a.lab(f"L_chk{n}")
        a("s_waitcnt vmcnt(0)")
        if "x2" in load: a(f"v_min_u32 v{reg}, v{reg}, v{reg+1}")
        a(f"{cmp} vcc, {stage}, v{reg}")
        a(f"s_sub_u32 {cnt}, {cnt}, 1"); a(f"s_cbranch_scc1 L_ok{n}")
        a("s_cmp_eq_u64 vcc, -1"); a(f"s_cbranch_scc0 L_spin{n}")
        a.lab(f"L_ok{n}")
    def kv32(q):
        a(f"s_and_b32 s62, s{sW}, 3"); a("s_lshl_b32 s62, s62, 13")
        if q: a(f"s_add_u32 s62, s62, {q*32768}")
        for g in range(2):
            a(f"s_add_u32 m0, s62, {g*4096}"); a("s_add_u32 s63, s62, s14")
            if g: a("s_add_u32 s63, s63, 4096")
            for i in range(4): a(f"buffer_load_dwordx4 v{vL16}, {S(sWS)}, s63 offen offset:{i*1024} {LD} lds")
    pollF1 = f"buffer_load_dword v{vPoll}, v{vFA}, {S(sWS)}, s10 offen {SC}"
    pollF1A = f"buffer_load_dword v{vPoll}, v{vFA2}, {S(sWS)}, s10 offen {SC}"

    a(f"s_sub_u32 s66, s{sW}, 4")
    a("v_lshrrev_b32 v2, 3, v1")
    a("v_and_b32 v3, 7, v1")
    a("v_lshrrev_b32 v4, 4, v1")
    a("v_xor_b32 v5, v3, v4")
    a("v_lshlrev_b32 v5, 4, v5")
    a("v_lshl_add_u32 v6, v2, 10, v5")
    a(f"s_lshl_b32 s63, s{sR16}, 17"); a("s_lshl_b32 s64, s66, 15"); a("s_add_u32 s63, s63, s64")
    a("v_add_u32 v16, s63, v6")
    a("v_xor_b32 v17, 64, v16"); a("v_add_u32 v17, 8192, v17")
    a("v_add_u32 v18, 16384, v16"); a("v_add_u32 v19, 16384, v17")
    a("v_and_b32 v5, 1, v4")
    a("v_lshlrev_b32 v5, 2, v5")
    a("v_xor_b32 v5, v3, v5")
    a("v_lshlrev_b32 v5, 4, v5")
    a("v_mul_u32_u24 v8, 3072, v2")
    a("s_mul_i32 s63, s66, 49152")
    a("v_add3_u32 v20, v8, v5, s63")
    a("v_add_u32 v21, 24576, v20")
    a("s_lshl_b32 s3, s62, 1"); a(f"s_add_u32 s3, s3, s{sI}"); a("s_and_b32 s3, s3, 7")
    R = opt("rot", 8)
    if R == 0: a("s_mov_b32 s3, 0")
    if R == 4: a(f"s_add_u32 s3, s62, s{sI}"); a("s_and_b32 s3, s3, 3"); a("s_lshl_b32 s3, s3, 1")
    a(f"s_and_b32 s65, s{sI}, 3"); a("s_and_b32 s64, s2, 4"); a("s_add_u32 s65, s65, s64"); a("s_lshl_b32 s65, s65, 7")
    a(f"s_cmp_lt_u32 s{sI}, 4"); a("s_cselect_b32 s64, 1024, 0"); a("s_add_u32 s22, s65, s64")
    a("s_lshl_b32 s67, s66, 12"); a("s_add_u32 s67, s67, 32768")
    a("s_lshl_b32 s23, s66, 11"); a("s_add_u32 s23, s23, 32768")
    for d, sz in ((sX, 2048*512*2), (sWB, 512*1536*2)):
        a(f"s_mov_b32 s{d+2}, {sz:#x}"); a(f"s_mov_b32 s{d+3}, 0x20000")
    a("s_waitcnt lgkmcnt(0)")
    for d, lo in ((sX, 4), (sWB, 12)):
        a(f"s_mov_b32 s{d}, s{lo}"); a(f"s_and_b32 s{d+1}, s{lo+1}, 0xffff")
    def wblock(srdw, col, ldsoff):
        a(f"s_mul_i32 s63, s3, {64*3072}"); a(f"s_add_u32 s63, s63, {col}")
        for e in range(2):
            a(f"s_add_u32 m0, s23, {ldsoff + e*1024}")
            a("s_nop 0")
            a(f"buffer_load_dwordx4 v{20+e}, {S(srdw)}, s63 offen lds")
        a("s_add_u32 s3, s3, 1"); a("s_and_b32 s3, s3, 7")
    def issue(c):
        slot = c & 3
        if c < 8:
            a("s_lshl_b32 s62, s3, 7")
            for il in range(4):
                a(f"s_add_u32 m0, s67, {slot*32768 + il*1024}")
                a("s_nop 0")
                a(f"buffer_load_dwordx4 v{16+il}, {S(sX)}, s62 offen lds")
            wblock(sWB, "s22", slot*32768 + 16384)
        else:
            for sb in range(2): wblock(sX if c < 12 else sWA, "s64" if c < 12 else "s65", wpos(c, sb))
            if EARLY and c == 8: a("s_add_u32 s3, s3, 6"); a("s_and_b32 s3, s3, 7")
            if EARLY and c == 11: a("s_add_u32 s3, s3, 2"); a("s_and_b32 s3, s3, 7")
    cnt = lambda c: 0 if c > 15 else (6 if c < 8 else 4)
    a("s_lshl_b32 s64, s66, 8"); a("s_lshl_b32 s65, s3, 7"); a("s_add_u32 s65, s65, s64")
    issue(0)
    a("v_lshlrev_b32 v24, 2, v1"); a("v_add_u32 v24, s65, v24"); a("v_and_b32 v24, 0x3ff, v24")
    srd(a, sWOB, 6, 7, 1024)
    a("s_add_u32 m0, s64, 28672"); a("s_nop 0")
    a(f"buffer_load_dword v24, {S(sWOB)}, 0 offen lds")
    issue(1)
    order = list(range(8)) + ([8, 12, 9, 10, 11, 13, 14, 15] if EARLY else list(range(8, 16)))
    issued = 2
    for c in range(2, opt("up", 3)):
        issue(c); issued += 1
    srd(a, sWA, 8, 9, 512*1536*2)
    common_srds()
    ids()
    a(f"s_add_u32 s64, s{sI}, 1"); a("s_and_b32 s64, s64, 3"); a("s_and_b32 s62, s2, 4"); a("s_add_u32 s64, s64, s62")
    a("s_lshl_b32 s64, s64, 7"); a("s_add_u32 s64, s64, 2048")
    a("s_xor_b32 s65, s22, 1280")
    lsetup = attn_setup()
    for c in range(0, 16):
        a(f"s_waitcnt vmcnt({sum(cnt(i) for i in order[order.index(c)+1:issued])})")
        a("s_barrier")
        if c in (0, 3, 7, 11): stamp(a, {0:1, 3:2, 7:3, 11:4}[c], mode=4)
        while issued < 16 and (order[issued] <= c + 3 or (EARLY and order[issued] in (8, 12))):
            if issued == 8:
                a(f"s_cmp_lt_u32 s{sI}, 4")
                a(f"s_cselect_b32 s{sX}, s{sWA}, s{sWB}"); a(f"s_cselect_b32 s{sX+1}, s{sWA+1}, s{sWB+1}")
                a(f"s_mov_b32 s{sX+2}, {512*1536*2:#x}")
            issue(order[issued]); issued += 1
        if c == 12:
            gread(2)
            for x in lsetup[:85]: a(x)
            a("s_waitcnt lgkmcnt(0)")
        if c == 13:
            for x in lsetup[85:]: a(x)
    stamp(a, 1)
    a(pollF1)
    spin(pollF1, 1)
    stamp(a, 2)
    a("s_lshl_b32 s62, s66, 11"); a(f"s_add_u32 m0, s62, {QSTG}")
    a(f"s_lshl_b32 s63, s{sW}, 10"); a("s_sub_u32 s63, s11, s63"); a("s_add_u32 s63, s63, s62"); a(f"s_add_u32 s63, s63, {32*64*1024:#x}")
    for i in range(2): a(f"buffer_load_dwordx4 v{vL16}, {S(sWS)}, s63 offen offset:{i*1024} {LD} lds")
    kv32(0)
    a("s_waitcnt vmcnt(0)"); a("s_barrier")
    stamp(a, 3)
    kv32(1)
    a("s_branch L_attn")

    a.lab("L_compute")
    a("v_lshrrev_b32 v16, 5, v1")
    a("v_and_b32 v17, 31, v1")
    a("v_lshrrev_b32 v18, 1, v17"); a("v_and_b32 v18, 7, v18")
    a(f"s_lshl_b32 s62, s{sW}, 12"); a("s_add_u32 s62, s62, 32768")
    a("v_lshlrev_b32 v19, 7, v17"); a("v_add_u32 v19, s62, v19")
    for t in range(4):
        a(f"v_add_u32 v20, {2*t}, v16"); a("v_xor_b32 v20, v20, v18")
        a(f"v_lshl_add_u32 v{vXA+t}, v20, 4, v19")
        a(f"v_add_u32 v{vXA+4+t}, 0x10000, v{vXA+t}")
    a("v_bfe_u32 v18, v1, 2, 2")
    a("v_lshl_add_u32 v19, v16, 3, v18"); a("v_lshlrev_b32 v19, 7, v19")
    a("v_bfe_u32 v20, v1, 4, 1"); a("v_lshlrev_b32 v20, 1, v20")
    a("v_bfe_u32 v21, v1, 1, 1"); a("v_add_u32 v20, v20, v21")
    a("v_bfe_u32 v21, v1, 3, 1"); a("v_lshl_or_b32 v20, v21, 2, v20")
    a("v_lshl_add_u32 v19, v20, 4, v19")
    a("v_and_b32 v20, 1, v1"); a("v_lshl_add_u32 v19, v20, 3, v19")
    a(f"v_add_u32 v{vWA}, 32768, v19"); a(f"v_xor_b32 v{vWA+1}, 64, v{vWA}")
    a(f"v_add_u32 v{vWA+2}, 0x10000, v{vWA}"); a(f"v_add_u32 v{vWA+3}, 0x10000, v{vWA+1}")
    a(f"v_lshlrev_b32 v{vGA}, 4, v16"); a(f"v_add_u32 v{vGA}, 28672, v{vGA}")
    ids()
    a(f"s_lshl_b32 s66, s{sR16}, 2"); a(f"s_add_u32 s66, s66, s{sW}")
    a(f"s_and_b32 s62, s{sI}, 3"); a("s_and_b32 s63, s2, 4"); a("s_add_u32 s62, s62, s63"); a("s_lshl_b32 s62, s62, 8")
    a("s_add_u32 s62, s62, s66")
    a("s_xor_b32 s64, s62, 512")
    a("s_add_u32 s62, s62, 2048")
    a("s_lshl_b32 s24, s62, 11"); a("s_lshl_b32 s25, s62, 10"); a(f"s_add_u32 s25, s25, {WS_Q:#x}")
    a("s_lshl_b32 s26, s64, 11"); a("s_lshl_b32 s27, s64, 10"); a(f"s_add_u32 s27, s27, {WS_Q:#x}")
    a("s_mov_b32 s28, 0x10000"); a("s_mov_b32 s29, 0x20000")
    a(f"s_cmp_lt_u32 s{sI}, 4")
    a("s_cselect_b32 s24, s24, s25"); a("s_cselect_b32 s25, s29, s28")
    a("s_cselect_b32 s26, s27, s26"); a("s_cselect_b32 s27, s28, s29")
    a("s_cselect_b32 s64, 0, 2048")
    a(f"s_add_u32 s62, s{sI}, 1"); a("s_and_b32 s62, s62, 3"); a("s_add_u32 s62, s62, s63"); a("s_lshl_b32 s62, s62, 8")
    a("s_add_u32 s62, s62, s66"); a("s_add_u32 s62, s62, s64"); a("s_lshl_b32 s28, s62, 11"); a("s_add_u32 s29, s28, 0x40000")
    a(f"s_mov_b32 s32, {QSCALE:#x}")
    a("v_mov_b32 v0, 0")
    a("s_waitcnt lgkmcnt(0)")
    common_srds()
    for i in range(4): a(f"v_mov_b32 v{20+i}, 0")
    a("v_mov_b32 v24, 1")
    a(f"s_lshl_b32 s62, s{sW}, 8"); a("s_add_u32 s62, s62, s2"); a("s_sub_u32 s62, s62, 768")
    a("s_cmp_lt_u32 s62, 8"); a("s_cbranch_scc0 L_noinit")
    a("s_lshl_b32 s62, s2, 13"); a(f"s_add_u32 s62, s62, {WS_FL:#x}"); a("s_add_u32 s63, s62, 4096")
    for i in range(8): a(f"buffer_store_dwordx4 v[20:23], v{vL16}, {S(sWS)}, s{62+(i>>2)} offen offset:{(i&3)*1024} {SC}")
    a("s_lshl_b32 s62, s2, 5")
    a("s_waitcnt vmcnt(0)")
    a("s_mov_b64 exec, 1")
    a(f"buffer_store_dword v24, v20, {S(sDBG)}, s62 offen {SC}")
    a("s_mov_b64 exec, -1")
    a.lab("L_noinit")

    def chunk_of(m): return m if m < 8 else 8 + ((m - 8) >> 1)
    def reads(m):
        c = chunk_of(m); slot = c & 3; b = m & 1; L = []
        wp = slot*32768 + 16384 if m < 8 else wpos(c, (m - 8) & 1)
        for t in range(4):
            if m < 8:
                L.append(f"ds_read_b128 {vr(XR + 4*(4*m+t), 4)}, v{vXA + 4*(slot>>1) + t} offset:{(slot&1)*32768}")
            for cc in range(2):
                for u in range(2):
                    L.append(f"ds_read_b64_tr_b16 {vr(WF[b]+8*t+4*cc+2*u,2)}, v{vWA+2*(wp>>16)+cc} offset:{(wp & 0xffff) + (16*t+4*u)*128}")
        return L
    def greads(m): return [f"ds_read_b128 {vr(GF+4*t,4)}, v{vGA} offset:{(4*m+t)*32}" for t in range(4)]
    def dots(m): return [f"v_dot2_f32_bf16 v0, v{XR+16*m+i}, v{GF+i}, v0" for i in range(16)]
    def mfmas(m):
        b = m & 1; L = []
        for t in range(4):
            x = vr(XR + 4*(4*(m & 7)+t), 4)
            for cc in range(2):
                d = vr(ACC[cc], 16); c0 = "0" if (m & 7) == 0 and t == 0 else d
                w = vr(WF[b]+8*t+4*cc, 4)
                L.append(f"v_mfma_f32_32x32x16_bf16 {d}, {x}, {w}, {c0}" if 8 <= m < 16 else f"v_mfma_f32_32x32x16_bf16 {d}, {w}, {x}, {c0}")
        return L
    ST = opt("st", "sc1")
    DEFER = opt("defer", 1)
    def stores3():
        for i in range(4):
            a(f"buffer_store_dwordx4 {vr(208+4*i,4)}, v5, {S(sWS)}, s26 offen {ST}")
            a("s_add_u32 s26, s26, s27")
    def epilogue(ph, pk):
        if ph == 0:
            a("v_and_b32 v2, 0x33, v1")
            a("v_bfe_u32 v3, v1, 2, 1"); a("v_lshl_or_b32 v2, v3, 3, v2")
            a("v_bfe_u32 v3, v1, 3, 1"); a("v_lshl_or_b32 v2, v3, 2, v2")
            a("v_lshlrev_b32 v2, 4, v2")
            a(f"v_cmp_gt_u32 vcc, 4, v6")
            a("v_and_b32 v3, 15, v1"); a("v_lshlrev_b32 v3, 4, v3")
            a(f"v_cndmask_b32 v4, v{vL16}, v2, vcc"); a(f"v_cndmask_b32 v5, v2, v{vL16}, vcc")
            a("v_lshrrev_b32 v2, 5, v1"); a("v_lshl_add_u32 v3, v2, 8, v3")
            a("v_bfe_u32 v2, v1, 4, 1"); a("v_lshl_add_u32 v3, v2, 17, v3")
            a("v_add_u32 v3, 1024, v3")
        else: a("s_nop 10")
        if ph != 1:
            a(f"s_cmp_lt_u32 s{sI}, 4"); a(f"s_cbranch_scc{1 if ph == 0 else 0} L_noscale{ph}")
            for r in range(32): a(f"v_mul_f32 v{ACC[0]+r}, s32, v{ACC[0]+r}")
            a.lab(f"L_noscale{ph}")
        sb = 24 + ph
        for cc in range(2):
            for p in range(2):
                for i in range(4): a(f"v_cvt_pk_bf16_f32 v{pk+i}, v{ACC[cc]+8*p+2*i}, v{ACC[cc]+8*p+2*i+1}")
                if ph == 1: a(f"buffer_store_dwordx4 {vr(pk,4)}, v3, {S(sWS)}, s{28+cc} offen offset:{p*512} {ST}")
                elif ph == 0 or not DEFER:
                    a(f"buffer_store_dwordx4 {vr(pk,4)}, v{4+(ph>>1)}, {S(sWS)}, s{sb} offen {ST}")
                    a(f"s_add_u32 s{sb}, s{sb}, s{sb+1}")
                pk += 4
        a("s_nop 1")
    def publishF1(stage, t1):
        a(f"v_mov_b32 v{t1}, {stage}")
        a("s_lshl_b32 s62, s2, 7"); a(f"s_add_u32 s62, s62, {WS_FL:#x}")
        a("s_mov_b64 exec, 1")
        a(f"buffer_store_dword v{t1}, v{vL16}, {S(sWS)}, s62 offen {SC}")
        a("s_mov_b64 exec, -1")
    PUB = opt("pub", 19)
    setup = attn_setup()
    per = (len(setup) + 23) // 24
    pollI = f"buffer_load_dword v114, v115, {S(sDBG)}, 0 offen {SC}"
    stamp(a, 1)
    a("s_barrier")
    stamp(a, 2, True)
    for r in reads(0) + greads(0): a(r)
    for m in range(24):
        if m >= 8 and m % 2 == 0: stamp(a, 2 + (m-8)//2, mode=3)
        if m == 7: stamp(a, 1, mode=3)
        a("s_waitcnt lgkmcnt(0)")
        mm = mfmas(m)
        r = reads(m+1) if m < 23 else []
        fill = [[] for _ in range(8)]
        if m < 8:
            d = dots(m)
            for g in range(4): fill[g] += d[4*g:4*g+4]
            if m < 7: fill[4] += greads(m+1)
            else: fill[4].append(f"v_mov_b32 v6, s{sI}")
        if m >= 21:
            for g in range(8):
                fill[g] += setup[:per]; setup = setup[per:]
        bar = m < 7 or (m & 1 and m < 23)
        nr = (len(r) + 4) // 5
        for i in range(8):
            a(mm[i])
            if i == 0 and bar:
                if m == PUB: a("s_waitcnt vmcnt(0)")
                a("s_barrier")
                if m == PUB:
                    a(f"s_cmp_lg_u32 s{sW}, 0"); a("s_cbranch_scc1 L_nopub1")
                    spin(pollI, 1, cnt="s65", reg=114, cmp="v_cmp_eq_u32")
                    publishF1(1, 114)
                    a.lab("L_nopub1")
                if m == 11: gread(7)
            if i < 5:
                for x in r[i*nr:(i+1)*nr]: a(x)
            for x in fill[i]: a(x)
        if m == 7:
            stamp(a, 3)
            epilogue(0, WF[1])
            a("v_mov_b32 v113, v0")
            a("s_nop 1")
            a("v_permlane32_swap_b32 v0, v113")
            a("v_add_f32 v113, v0, v113")
            a(f"v_mul_f32 v113, {f2u(-1.4426950408889634):#x}, v113")
            a("v_exp_f32 v113, v113")
            a("v_and_b32 v114, 31, v1")
            a("v_add_f32 v113, 1.0, v113")
            a("v_rcp_f32 v113, v113")
            a(f"s_lshl_b32 s62, s{sW}, 7"); a("s_add_u32 s62, s62, 29696")
            a("v_lshl_add_u32 v114, v114, 2, s62")
            a("ds_write_b32 v114, v113")
            a("v_and_b32 v115, 7, v1"); a("v_lshlrev_b32 v115, 5, v115")
        if m == 15:
            stamp(a, 1, mode=4)
            epilogue(1, WF[1])
            a(f"s_cmp_lg_u32 s{sW}, 0"); a("s_cbranch_scc1 L_noip")
            a(pollI)
            a.lab("L_noip")
    assert not setup
    stamp(a, 4)
    epilogue(2, 208)
    a("s_barrier")

    a.lab("L_attn")
    def rdK(buf, addr, off): a(f"ds_read_b128 {vr(KB[buf],4)}, v{addr} offset:{off}")
    def rdV(buf, addr, off):
        a("s_mov_b64 exec, s[22:23]")
        a(f"ds_read_b128 {vr(VB[buf][0],4)}, v{addr} offset:{off}")
        a(f"ds_read_b128 {vr(VB[buf][1],4)}, v{addr} offset:{off+512}")
        a("s_mov_b64 exec, -1")
    def mfma(dst, kbuf, q, c): a(f"v_mfma_f32_32x32x16_bf16 {vr(dst,16)}, {vr(KB[kbuf],4)}, {vr(q,4)}, {c}")
    def smf(vreg, sreg): a(f"v_smfmac_f32_32x32x32_bf16 {vr(OA,16)}, {vr(vreg,4)}, {vr(sreg,8)}, v{vIDX}")
    def ex(s, i): a(f"v_exp_f32 v{s+i}, v{s+i}")
    def halves_max():
        a(f"v_mov_b32 v{vT}, v{vM}")
        a("s_nop 1")
        a(f"v_permlane32_swap_b32 v{vM}, v{vT}")
        a(f"v_max_f32 v{vM}, v{vM}, v{vT}")
    def rowmax(s):
        a(f"v_max3_f32 v{vM}, v{s}, v{s+1}, v{vMF}")
        for i in range(2, 16, 2): a(f"v_max3_f32 v{vM}, v{s+i}, v{s+i+1}, v{vM}")
        halves_max()
    def tile(t, first, do_mfma, q, c, kread, vread, pre_mfma=None, extra=None):
        cur, prev = SB[t & 1], SB[(t+1) & 1]
        a("s_setprio 1")
        ex(cur, 0); ex(cur, 1)
        if not first: smf(VB[(t-1) & 1][1], prev+8)
        a("s_waitcnt lgkmcnt(0)")
        if kread is not None: rdK(t & 1, *kread)
        if vread is not None: rdV((t+1) & 1, *vread)
        ex(cur, 2); ex(cur, 3); ex(cur, 4)
        if do_mfma:
            if pre_mfma: pre_mfma()
            mfma(prev, (t+1) & 1, q, c)
        for i in range(5, 10): ex(cur, i)
        smf(VB[t & 1][0], cur)
        for i in range(10, 14): ex(cur, i)
        a("s_setprio 0")
        if extra: extra()
        ex(cur, 14); ex(cur, 15)
    def a_first():
        rdK(0, vKa, 8*2048); rdK(1, vKa, 7*2048); rdV(0, vVa, 8*2048)
        a("s_waitcnt lgkmcnt(3)")
        mfma(SB[0], 0, QA, vr(CD, 16))
    def finish(tlast, fb_label, done_label, br):
        a("s_nop 1")
        smf(VB[tlast & 1][1], SB[tlast & 1]+8)
        if br:
            a.lab("L_B_fin"); a_first(); a("s_nop 4")
        else: a("s_nop 11")
        a(f"v_add_f32 v{vT}, abs(v{OA}), v{OA+8}")
        for i in range(1, 8): a(f"v_add_f32 v{vT}, abs(v{OA+i}), v{vT}")
        a(f"v_rcp_f32 v{vT2}, v{OA+8}")
        a(f"v_cmp_gt_f32 vcc, 0x71800000, v{vT}")
        a("s_cmp_lg_u32 s8, 0"); a(f"s_cbranch_scc1 {done_label}")
        a("s_cmp_eq_u64 vcc, -1"); a(f"s_cbranch_scc0 {fb_label}")
        a.lab(done_label)
        for i in range(8): a(f"v_mul_f32 v{OA+i}, v{vT2}, v{OA+i}")
        for i in range(4): a(f"v_cvt_pk_bf16_f32 v{PK[br]+i}, v{OA+2*i}, v{OA+2*i+1}")
        if br:
            a(f"buffer_store_dwordx4 {vr(PK[0],4)}, v{vL16}, {S(sWS)}, s15 offen {SC}")
        else:
            for i in range(4): a(f"v_min_u32 v{PK[0]+i}, -2, v{PK[0]+i}")
        a(f"s_add_u32 s62, s15, {br*32*1024}")
        a(f"buffer_store_dwordx4 {vr(PK[br],4)}, v{vL16}, {S(sWS)}, s62 offen {SC}")
    def publishF2(stage):
        a(f"v_mov_b32 v{vT}, {stage}")
        a("s_mov_b64 exec, 1")
        a(f"buffer_store_dword v{vT}, v{vL16}, {S(sWS)}, s16 offen {SC}")
        a("s_mov_b64 exec, -1")
    def wo_blocks(srdw, n):
        for i in range(n):
            a("s_mov_b32 m0, s19"); a("s_add_u32 s19, s19, 1024")
            a(f"buffer_load_dwordx4 v{vWo}, {S(srdw)}, s18 offen lds")
            a("s_add_u32 s18, s18, 8192")
    def wo_at(nreg):
        a(f"s_lshl_b32 s19, {nreg}, 10"); a(f"s_and_b32 s18, {nreg}, 63"); a("s_lshl_b32 s18, s18, 13")
        a(f"s_lshl_b32 s63, s{sJ}, 7"); a("s_add_u32 s18, s18, s63")

    stamp(a, 5, True)
    a(f"ds_read_b128 {vr(QB,4)}, v{vKb}")
    rdK(0, vL16, 0); rdK(1, vL16, 2048); rdV(0, vVb, 0); rdV(1, vVb, 0)
    a(f"v_mov_b32 v{vKb}, v{vL16}")
    for r in range(8, 16): a(f"v_mov_b32 v{SB[1]+r}, 0")
    a("s_waitcnt lgkmcnt(5)")
    mfma(SB[0], 0, QB, "0")
    a("s_nop 11")
    rowmax(SB[0])
    for r in range(16): a(f"v_sub_f32 v{CM+r}, 0, v{vM}")
    a("s_nop 1")
    mfma(SB[0], 0, QB, vr(CM, 16))
    a("s_waitcnt lgkmcnt(0)")
    stamp(a, 1, True, mode=1)
    a("s_mov_b32 s17, 0")
    a("s_nop 8")
    a.raw(".p2align 6")
    a.lab("L_B_body")
    for t in range(8):
        tile(t, False, True, QB, vr(CM, 16), (vKb, (t+2)*2048), (vVb, (t+1)*2048))
    a(f"v_add_u32 v{vKb}, 16384, v{vKb}")
    a(f"v_add_u32 v{vVb}, 16384, v{vVb}")
    a("s_add_u32 s17, s17, 1"); a("s_cmp_lt_u32 s17, 8"); a("s_cbranch_scc1 L_B_stub")
    stamp(a, 6)
    stamp(a, 9, mode=1)
    finish(7, "L_B_fb", "L_B_done", 1)
    a("s_mov_b32 s8, 0")
    for r in range(16): a(f"v_mov_b32 v{OA+r}, 0")
    stamp(a, 7)
    a.lab("L_A_max")
    rowmax(SB[0])
    for r in range(16): a(f"v_sub_f32 v{SB[0]+r}, v{SB[0]+r}, v{vM}")
    for r in range(16): a(f"v_sub_f32 v{CM+r}, 0, v{vM}")
    for r in range(16): a(f"v_sub_f32 v{CF+r}, v{CF+r}, v{vM}")
    def oloads(br):
        a(f"s_add_u32 s62, s20, {br*32768}"); a("s_add_u32 s63, s62, 4096")
        for i in range(8):
            a(f"buffer_load_dwordx4 {vr(OF[1-br]+4*i,4)}, v{vL16}, {S(sWS)}, s{62+(i>>2)} offen offset:{(i&3)*1024} {LD}")
    pollF2 = f"buffer_load_dword v{vPoll}, v{vFA}, {S(sWS)}, s10 offen {SC}"
    for t in range(9):
        def pm(t=t):
            if t < 7:
                a(f"s_cmp_lg_u32 s7, {t}"); a(f"s_cbranch_scc1 L_A_mid{t}")
                a("s_nop 7")
                for r in range(16): a(f"v_mov_b32 v{CM+r}, s5")
                a("s_nop 1")
                a.lab(f"L_A_mid{t}")
        def extra(t=t):
            if t not in (0, 1, 3, 6, 8): return
            a("s_cmp_lg_u32 s8, 0"); a(f"s_cbranch_scc1 L_A_x{t}")
            if t == 0:
                a("s_barrier")
                a(f"s_lshl_b32 s62, s{sW}, 2"); a("s_add_u32 s62, s62, 96"); wo_at("s62")
            if t < 2: wo_blocks(sWOB, 2)
            if t == 3:
                a("s_waitcnt vmcnt(4)"); a("s_barrier")
                a(f"s_cmp_lg_u32 s{sW}, 0"); a(f"s_cbranch_scc1 L_A_x{t}")
                publishF2(1)
            if t == 6: a(pollF2)
            if t == 8:
                spin(pollF2, 1, cnt="s64")
                oloads(1)
            a.lab(f"L_A_x{t}")
        tile(t, t == 0, t < 8, QA, vr(CM if t < 7 else CF, 16),
             (vKa, (8-(t+2))*2048) if t+2 <= 8 else None,
             (vVa, (8-(t+1))*2048) if t+1 <= 8 else None, pm, extra)
    finish(8, "L_A_fb", "L_A_done", 0)
    stamp(a, 8)
    stamp(a, 1, mode=2)
    a("s_barrier")
    stamp(a, 2, True, mode=2)
    WR = lambda i, c: 128 + 8*i + 4*c
    def wreads(i):
        for c in range(2):
            for u in range(2):
                a(f"ds_read_b64_tr_b16 {vr(WR(i,c)+2*u,2)}, v{vPW0+c} offset:{i*2048+u*1024}")
    def pm(br, i):
        for c in range(2):
            d = vr(PACC[br][c], 16)
            a(f"v_mfma_f32_32x32x16_bf16 {d}, {vr(WR(i,c),4)}, {vr(OF[1-br]+4*i,4)}, {'0' if i == 0 else d}")
    pollO = f"buffer_load_dword v{vPoll}, v{vFA2}, {S(sWS)}, s20 offen {SC}"
    wreads(0); wreads(1)
    for i in range(8):
        if i < 6: wreads(i+2)
        a(f"s_waitcnt vmcnt({8-i}) lgkmcnt({8 if i < 6 else 4*(7-i)})")
        pm(1, i)
    a(pollO)
    a(f"v_subrev_u32 v{vPW0}, 0x10000, v{vPW0}"); a(f"v_subrev_u32 v{vPW1}, 0x10000, v{vPW1}")
    stamp(a, 9)
    stamp(a, 4, mode=2)
    a("s_barrier")
    for i in range(8): wreads(i)
    a(f"v_sub_f32 v{vT}, 1.0, v{vG}")
    for c in range(2):
        for r in range(16): a(f"v_mul_f32 v{PACC[1][c]+r}, v{vT}, v{PACC[1][c]+r}")
    stamp(a, 5, mode=2)
    spin(pollO, -1, cnt="s64", cmp="v_cmp_ne_u32")
    stamp(a, 6, mode=2)
    a(f"s_mov_b32 s64, {SPIN}")
    a.lab("L_O_retry")
    oloads(0)
    for i in range(8):
        a(f"s_waitcnt vmcnt({7-i}) lgkmcnt(0)")
        if i == 0: stamp(a, 7, mode=2)
        pm(0, i)
        b = OF[1]+4*i
        a(f"v_max3_u32 v{vT}, v{b}, v{b+1}, {0 if i == 0 else 'v%d' % vT}")
        a(f"v_max3_u32 v{vT}, v{b+2}, v{b+3}, v{vT}")
    a(f"v_cmp_ne_u32 vcc, -1, v{vT}")
    a("s_sub_u32 s64, s64, 1"); a("s_cbranch_scc1 L_O_ok")
    a("s_cmp_eq_u64 vcc, -1"); a("s_cbranch_scc0 L_O_retry")
    a.lab("L_O_ok")
    stamp(a, 8, mode=2)
    a("s_nop 6")
    for c in range(2):
        for g in range(4):
            for r in range(4*g, 4*g+4): a(f"v_fmac_f32 v{PACC[1][c]+r}, v{vG}, v{PACC[0][c]+r}")
            a(f"ds_write_b128 v2, {vr(PACC[1][c]+4*g,4)} offset:{(c*4+g)*1088}")
    a("s_waitcnt lgkmcnt(0)"); a("s_barrier")
    stamp(a, 9, True, mode=2)
    for kq in range(4):
        for h in range(2):
            a(f"ds_read_b128 {vr(16+kq*8+h*4,4)}, v7 offset:{kq*PW + h*512}")
    a("s_waitcnt lgkmcnt(4)")
    for i in range(8): a(f"v_add_f32 v{16+i}, v{16+i}, v{24+i}")
    a("s_waitcnt lgkmcnt(0)")
    for i in range(8): a(f"v_add_f32 v{32+i}, v{32+i}, v{40+i}")
    for i in range(8): a(f"v_add_f32 v{16+i}, v{16+i}, v{32+i}")
    for i in range(4): a(f"v_cvt_pk_bf16_f32 v{48+i}, v{16+2*i}, v{16+2*i+1}")
    a(f"buffer_store_dwordx4 v[48:51], v8, {S(sOUT)}, s21 offen")
    if Cfg.stamp:
        a("s_waitcnt vmcnt(0)")
        a("s_memtime s[96:97]"); a("s_waitcnt lgkmcnt(0)")
        stamp_out(a, 0, 10, sWS, sW, 8)
        a("s_nop 1"); a("v_mov_b32 v1, s96"); a(f"buffer_store_dword v1, v0, {S(sWS)}, s94 offen offset:40")
    a.lab("L_end")
    a("s_endpgm")

    a.lab("L_B_stub")
    for i in range(2, 8):
        a(f"s_cmp_eq_u32 s17, {i}"); a(f"s_cbranch_scc1 L_B_stub{i}")
    stamp(a, 2, mode=1)
    a("s_waitcnt vmcnt(0)"); a("s_barrier")
    a(f"s_cmp_ge_u32 s{sW}, 4"); a("s_cbranch_scc1 L_B_body")
    kv32(2)
    if DEFER: stores3()
    a("s_branch L_B_body")
    a.lab("L_B_stub2")
    stamp(a, 3, mode=1)
    a(f"s_cmp_lt_u32 s{sW}, 4"); a("s_cbranch_scc1 L_B_body")
    kv32(3)
    a("s_branch L_B_body")
    a.lab("L_B_stub3")
    stamp(a, 4, mode=1)
    a("s_waitcnt vmcnt(0)"); a("s_barrier")
    a(f"s_and_b32 s62, s{sW}, 3"); a("s_cbranch_scc1 L_B_body")
    a(f"s_cmp_eq_u32 s{sW}, 0"); a("s_cbranch_scc0 L_B_stub3b")
    publishF1(2, vT)
    a.lab("L_B_stub3b")
    a(f"v_lshlrev_b32 v{vT2}, 10, v1")
    a(f"s_and_b32 s62, s{sRB}, 7"); a("s_lshl_b32 s62, s62, 16"); a(f"s_lshl_b32 s63, s{sJ}, 7"); a("s_add_u32 s62, s62, s63")
    a(f"s_cmp_eq_u32 s{sW}, 0"); a("s_cbranch_scc0 L_B_stub3c")
    a(f"buffer_load_dword v243, v{vT2}, {S(sWOA)}, s62 offen")
    a("s_branch L_B_body")
    a.lab("L_B_stub3c")
    a(f"buffer_load_dword v243, v{vT2}, {S(sWOB)}, s62 offen")
    a("s_branch L_B_body")
    a.lab("L_B_stub4")
    stamp(a, 5, mode=1)
    a(pollF1A)
    a("s_branch L_B_body")
    a.lab("L_B_stub5")
    stamp(a, 6, mode=1)
    spin(pollF1A, 2)
    a(f"s_lshl_b32 s62, s{sW}, 12"); a(f"s_lshl_b32 s63, s{sB}, 14"); a("s_add_u32 s63, s63, s62")
    a("s_add_u32 m0, s62, 131072")
    a("s_cmp_lt_u32 s63, 16384"); a("s_cselect_b32 s62, 0, 16384")
    a("s_add_u32 s63, s63, s13"); a("s_sub_u32 s63, s63, s62")
    for i in range(4): a(f"buffer_load_dwordx4 v{vL16}, {S(sWS)}, s63 offen offset:{i*1024} {LD} lds")
    a(f"buffer_load_dwordx4 {vr(QA,4)}, v{vL16}, {S(sWS)}, s11 offen {LD}")
    a("s_lshl_b32 s16, s2, 7"); a(f"s_add_u32 s16, s16, {WS_F2:#x}")
    a(f"v_and_b32 v{vFA2}, 7, v1"); a(f"v_lshlrev_b32 v{vFA2}, 10, v{vFA2}")
    for i in range(4): a(f"v_mov_b32 v{PK[0]+i}, -1")
    a(f"v_bfe_u32 v{vT}, v1, 2, 1"); a(f"v_and_b32 v{vFA}, 3, v1"); a(f"v_lshl_add_u32 v{vFA}, v{vFA}, 3, v{vT}"); a(f"v_lshlrev_b32 v{vFA}, 7, v{vFA}")
    a(f"s_lshr_b32 s10, s{sW}, 1"); a("s_lshl_b32 s10, s10, 8")
    a(f"s_lshr_b32 s62, s{sRB}, 2"); a("s_lshl_b32 s62, s62, 12"); a("s_add_u32 s10, s10, s62")
    a(f"s_add_u32 s10, s10, {WS_F2:#x}")
    a(f"s_lshl_b32 s20, s{sRB}, 17"); a(f"s_and_b32 s62, s{sW}, 1"); a("s_lshl_b32 s62, s62, 16"); a("s_add_u32 s20, s20, s62")
    a(f"s_lshr_b32 s62, s{sW}, 1"); a("s_lshl_b32 s62, s62, 13"); a("s_add_u32 s20, s20, s62"); a(f"s_add_u32 s20, s20, {WS_O:#x}")
    a(f"v_lshrrev_b32 v{vT}, 5, v1"); a(f"v_bfe_u32 v{vT2}, v1, 2, 2")
    a(f"v_lshl_add_u32 v{vPW0}, v{vT}, 2, v{vT2}"); a(f"v_lshlrev_b32 v{vPW0}, 7, v{vPW0}")
    a(f"v_bfe_u32 v{vT}, v1, 4, 1"); a(f"v_lshlrev_b32 v{vT}, 1, v{vT}")
    a(f"v_bfe_u32 v{vT2}, v1, 1, 1"); a(f"v_add_u32 v{vT}, v{vT}, v{vT2}")
    a(f"v_bfe_u32 v{vT2}, v1, 3, 1"); a(f"v_lshl_or_b32 v{vT}, v{vT2}, 2, v{vT}")
    a(f"v_lshl_add_u32 v{vPW0}, v{vT}, 4, v{vPW0}")
    a(f"v_and_b32 v{vT}, 1, v1"); a(f"v_lshl_add_u32 v{vPW0}, v{vT}, 3, v{vPW0}")
    a(f"s_lshr_b32 s62, s{sW}, 1"); a("s_lshl_b32 s62, s62, 14"); a("s_add_u32 s62, s62, 65536")
    a(f"v_add_u32 v{vPW0}, s62, v{vPW0}")
    a(f"v_xor_b32 v{vPW1}, 64, v{vPW0}")
    a(f"s_lshr_b32 s62, s{sW}, 1"); a(f"s_mul_i32 s62, s62, {PW}"); a(f"s_and_b32 s63, s{sW}, 1"); a(f"s_mul_i32 s63, s63, {8*1088}")
    a("s_add_u32 s62, s62, s63"); a("s_add_u32 s62, s62, 65536")
    a(f"v_add_u32 v2, s62, v{vL16}")
    a("v_and_b32 v5, 7, v1"); a("v_lshrrev_b32 v6, 3, v1")
    a(f"s_and_b32 s62, s{sW}, 3"); a("s_lshl_b32 s62, s62, 3"); a("v_add_u32 v6, s62, v6")
    a("v_mul_u32_u24 v7, 1088, v5"); a("v_lshl_add_u32 v7, v6, 4, v7")
    a(f"s_lshr_b32 s62, s{sW}, 2"); a(f"s_mul_i32 s63, s62, {8*1088}"); a("s_add_u32 s63, s63, 65536")
    a("v_add_u32 v7, s63, v7")
    a("v_lshlrev_b32 v8, 10, v6"); a("v_lshl_add_u32 v8, v5, 4, v8")
    a("s_lshl_b32 s62, s62, 15"); a(f"s_lshl_b32 s63, s{sRB}, 16"); a("s_add_u32 s62, s62, s63")
    a(f"s_lshl_b32 s63, s{sJ}, 7"); a("s_add_u32 s21, s62, s63")
    a("s_branch L_B_body")
    a.lab("L_B_stub6")
    stamp(a, 7, mode=1)
    a("s_waitcnt vmcnt(0)"); a("s_barrier")
    a(f"s_cmp_ge_u32 s{sW}, 4"); a("s_cbranch_scc1 L_B_body")
    a(f"s_mul_i32 s62, s{sW}, 12"); wo_at("s62")
    wo_blocks(sWOA, 12)
    a("s_branch L_B_body")
    a.lab("L_B_stub7")
    stamp(a, 8, mode=1)
    a(f"s_cmp_lt_u32 s{sW}, 4"); a("s_cbranch_scc1 L_B_body")
    a(f"s_lshl_b32 s62, s{sW}, 2"); a("s_add_u32 s62, s62, 32"); wo_at("s62")
    wo_blocks(sWOA, 4)
    a(f"s_lshl_b32 s62, s{sW}, 3"); a("s_add_u32 s62, s62, 32"); wo_at("s62")
    wo_blocks(sWOB, 8)
    a("s_branch L_B_body")
    a.lab("L_A_fb")
    a("s_waitcnt lgkmcnt(0)")
    a("s_mov_b32 s8, 1")
    a(f"s_sub_u32 s17, 8, s{sW}"); a(f"s_cmp_eq_u32 s{sB}, 0"); a("s_cselect_b32 s17, s17, 0")
    a.lab("L_A_fb_loop")
    a("s_lshl_b32 s62, s17, 11")
    a(f"v_add_u32 v{vT}, s62, v{vKa}")
    rdK(0, vT, 0)
    a("s_sub_u32 s62, 8, s17"); a("s_lshl_b32 s62, s62, 5")
    a(f"v_add_u32 v{vT2}, s62, v{vQH}")
    a(f"v_mov_b32 v{vM}, s5")
    a("s_movk_i32 s62, 256")
    a("s_waitcnt lgkmcnt(0)")
    mfma(SB[0], 0, QA, "0")
    a("s_nop 15")
    for r in range(16):
        a(f"v_subrev_u32 v{vT}, {(r & 7) + 16*(r >> 3)}, v{vT2}")
        a(f"v_cmp_gt_u32 vcc, s62, v{vT}")
        a("s_nop 1")
        a(f"v_cndmask_b32 v{vT}, v{vM}, v{SB[0]+r}, vcc")
        a(f"v_max_f32 v{vMF}, v{vMF}, v{vT}")
    a("s_add_u32 s17, s17, 1"); a("s_cmp_lt_u32 s17, 9"); a("s_cbranch_scc1 L_A_fb_loop")
    for x in masks(): a(x)
    a_first()
    a("s_nop 15")
    a("s_branch L_A_max")
    a.lab("L_B_fb")
    a("s_waitcnt lgkmcnt(0)")
    a("s_mov_b32 s8, 1")
    a("s_mov_b32 s17, s14"); a("s_add_u32 s62, s14, 131072")
    a(f"v_mov_b32 v{vM}, s5")
    a(f"v_and_b32 v{vVb}, 0x7ff, v{vVb}")
    a.lab("L_B_fb_max")
    a(f"buffer_load_dwordx4 {vr(KB[0],4)}, v{vL16}, {S(sWS)}, s17 offen {LD}")
    a("s_add_u32 s17, s17, 2048")
    a("s_waitcnt vmcnt(0)")
    mfma(SB[0], 0, QB, "0")
    a("s_nop 15")
    for i in range(0, 16, 2): a(f"v_max3_f32 v{vM}, v{SB[0]+i}, v{SB[0]+i+1}, v{vM}")
    a("s_cmp_lt_u32 s17, s62"); a("s_cbranch_scc1 L_B_fb_max")
    halves_max()
    for r in range(16): a(f"v_sub_f32 v{CM+r}, 0, v{vM}")
    for r in range(16): a(f"v_mov_b32 v{OA+r}, 0")
    a("s_mov_b32 s17, s14")
    a.lab("L_B_fb_acc")
    a(f"buffer_load_dwordx4 {vr(KB[0],4)}, v{vL16}, {S(sWS)}, s17 offen {LD}")
    a("s_mov_b64 exec, s[22:23]")
    a(f"buffer_load_dwordx4 {vr(VB[0][0],4)}, v{vVb}, {S(sWS)}, s17 offen {LD}")
    a(f"buffer_load_dwordx4 {vr(VB[0][1],4)}, v{vVb}, {S(sWS)}, s17 offen offset:512 {LD}")
    a("s_mov_b64 exec, -1")
    a("s_add_u32 s17, s17, 2048")
    a("s_waitcnt vmcnt(0)")
    mfma(SB[0], 0, QB, vr(CM, 16))
    a("s_nop 15")
    for i in range(16): ex(SB[0], i)
    a("s_nop 1")
    smf(VB[0][0], SB[0]); smf(VB[0][1], SB[0]+8)
    a("s_cmp_lt_u32 s17, s62"); a("s_cbranch_scc1 L_B_fb_acc")
    a("s_branch L_B_fin")
    d = desc(K, 256, 72, 256)
    if Cfg.stamp: d = d.replace("next_free_sgpr 96", "next_free_sgpr 100")
    return a.text(), d

def main(out):
    t, d = gen()
    hdr = f"""; gated_mix(sliding-window MHA, full MHA), one fused launch:
; @launch grid=(256,1,1) block=(512,1,1) lds=163840
.amdgcn_target "amdgcn-amd-amdhsa--gfx950"
"""
    open(out, "w").write(hdr + t + d)

if __name__ == "__main__":
    main(parse_args())
```

```python
from common import *

WS_FL = 16 << 20
WS_F2 = WS_FL + 32768
SC = "sc1"
SPIN = 1 << 17
PW = 16*1088

sX, sWB, sWA, sWS, sWOA, sOUT, sDBG, sWOB = 24, 28, 32, 36, 40, 44, 48, 52
sW, sRB, sJ, sHD, sB, sQT, sR16, sI = 56, 57, 58, 59, 60, 61, 68, 69
S = lambda b: f"s[{b}:{b+3}]"
vXA = 2
vWA = 10
vL16, vGA = 14, 15
WF = [16, 48]
ACC = [80, 96]
GF = 112
XR = 128
vG, QB, QA = 112, 116, 120
CF, CD = 128, 144
VB = [[160, 164], [168, 172]]
OA = 176
vIDX, vKa, vVa, vKb, vVb, vT, vM, vMF, vT2, vQH, vFA, vWo = range(192, 204)
vFA2 = 204
vPoll = 206
KB = [16, 20]
SB = [32, 48]
CM = 64
PK = [244, 248]
OF = [208, 16]
PACC = [[48, 64], [80, 96]]
vPW0, vPW1 = 240, 241
QSTG = 152*1024

def gen():
    LD = "sc1"
    EARLY = opt("early", 1)
    def wpos(c, sb):
        if EARLY and c == 8: return (2+sb)*32768 + 24576
        if EARLY and c == 12: return sb*32768 + 24576
        return (c & 3)*32768 + sb*8192
    a = A(); K = NAME + "_kernel"; head(a, K)
    a("s_cmp_ge_u32 s2, 256"); a("s_cbranch_scc1 L_end")
    stamp(a, 0)
    a("s_load_dwordx2 s[4:5], s[0:1], 0")
    a("s_load_dwordx4 s[12:15], s[0:1], 32")
    a("s_load_dwordx4 s[8:11], s[0:1], 8")
    a("s_load_dwordx2 s[6:7], s[0:1], 48")
    a("s_load_dwordx4 s[16:19], s[0:1], 56")
    a("s_load_dwordx2 s[20:21], s[0:1], 72")
    a("v_lshrrev_b32 v2, 6, v0")
    a("v_and_b32 v1, 63, v0")
    a("s_bfe_u32 s62, s2, 0x20003")
    a(f"v_readfirstlane_b32 s{sW}, v2")
    a("s_and_b32 s63, s2, 3"); a("s_lshl_b32 s63, s63, 2"); a(f"s_add_u32 s{sR16}, s63, s62")
    a(f"s_lshr_b32 s{sI}, s2, 5")
    a(f"v_lshlrev_b32 v{vL16}, 4, v1")
    a(f"s_cmp_lt_u32 s{sW}, 4"); a("s_cbranch_scc1 L_compute")

    def ids():
        a(f"s_lshl_b32 s{sRB}, s{sR16}, 1"); a(f"s_and_b32 s62, s{sI}, 1"); a(f"s_add_u32 s{sRB}, s{sRB}, s62")
        a(f"s_and_b32 s{sJ}, s2, 4"); a(f"s_lshr_b32 s62, s{sI}, 1"); a(f"s_add_u32 s{sJ}, s{sJ}, s62")
        a(f"s_and_b32 s{sHD}, s2, 7"); a(f"s_lshl_b32 s{sHD}, s{sHD}, 2"); a("s_bfe_u32 s62, s2, 0x20003"); a(f"s_add_u32 s{sHD}, s{sHD}, s62")
        a(f"s_mov_b32 s{sB}, s{sI}")
        a(f"s_lshl_b32 s{sQT}, s{sB}, 3"); a(f"s_add_u32 s{sQT}, s{sQT}, s{sW}")
    def common_srds():
        srd(a, sWS, 20, 21, ws_size())
        srd(a, sOUT, 16, 17, 2048*512*2)
        srd(a, sDBG, 18, 19, 256)
        srd(a, sWOA, 10, 11, 512*512*2)
        srd(a, sWOB, 14, 15, 512*512*2)

    def attn_setup():
        L = []; e = L.append
        e(f"s_lshl_b32 s11, s{sHD}, 6"); e(f"s_add_u32 s11, s11, s{sQT}"); e("s_lshl_b32 s11, s11, 10")
        e(f"s_add_u32 s11, s11, {WS_Q:#x}")
        e(f"s_lshl_b32 s13, s{sHD}, 17")
        e(f"s_add_u32 s14, s13, {32*131072:#x}")
        e("s_and_b32 s10, s2, 4"); e("s_lshl_b32 s10, s10, 7"); e(f"s_add_u32 s10, s10, {WS_FL:#x}")
        e("s_and_b32 s4, s2, 3"); e("s_add_u32 s5, s4, 3"); e("s_and_b32 s5, s5, 3"); e("s_xor_b32 s6, s4, 2")
        e("s_mul_i32 s7, s4, 0x1011"); e("s_lshl_b32 s9, s5, 8"); e("s_add_u32 s7, s7, s9"); e("s_add_u32 s7, s7, 0x440")
        e("s_mul_i32 s5, s5, 0x1001"); e("s_mul_i32 s6, s6, 0x110"); e("s_add_u32 s5, s5, s6"); e("s_add_u32 s5, s5, 0x400")
        e(f"v_bfe_u32 v{vT}, v1, 2, 2"); e(f"v_and_b32 v{vT2}, 3, v1"); e(f"v_lshl_add_u32 v{vT}, v{vT2}, 3, v{vT}")
        e(f"v_lshlrev_b32 v{vT}, 7, v{vT}")
        e(f"v_lshrrev_b32 v{vT2}, 4, v1"); e(f"v_lshlrev_b32 v{vT2}, 2, v{vT2}")
        e(f"v_bfe_u32 v{vFA}, s7, v{vT2}, 4"); e(f"v_lshl_add_u32 v{vFA}, v{vFA}, 12, v{vT}")
        e(f"v_bfe_u32 v{vFA2}, s5, v{vT2}, 4"); e(f"v_lshl_add_u32 v{vFA2}, v{vFA2}, 12, v{vT}")
        e(f"v_lshrrev_b32 v{vT}, 3, v1"); e(f"v_bfe_u32 v{vT2}, v1, 4, 1"); e(f"v_lshlrev_b32 v{vT2}, 2, v{vT2}")
        e(f"v_and_b32 v{vWo}, 7, v1"); e(f"v_xor_b32 v{vWo}, v{vWo}, v{vT2}"); e(f"v_lshlrev_b32 v{vWo}, 4, v{vWo}")
        e(f"v_lshl_add_u32 v{vWo}, v{vT}, 10, v{vWo}")
        e(f"v_mov_b32 v{vIDX}, 0xdddddddd")
        e("s_mov_b32 s22, 0x0000ffff"); e("s_mov_b32 s23, 0x0000ffff")
        e(f"v_lshrrev_b32 v{vQH}, 5, v1")
        e(f"v_and_b32 v{vVb}, 15, v1"); e(f"v_lshlrev_b32 v{vVb}, 4, v{vVb}")
        e(f"v_lshl_add_u32 v{vVb}, v{vQH}, 8, v{vVb}"); e(f"v_add_u32 v{vVb}, 1024, v{vVb}")
        e(f"s_lshl_b32 s4, s{sW}, 11"); e("s_add_u32 s4, s4, 131072")
        e(f"v_add_u32 v{vKa}, s4, v{vL16}")
        e(f"v_add_u32 v{vVa}, s4, v{vVb}")
        e(f"s_lshl_b32 s4, s{sW}, 10"); e(f"s_add_u32 s4, s4, {QSTG}")
        e(f"v_add_u32 v{vKb}, s4, v{vL16}")
        e(f"v_and_b32 v{vM}, 31, v1")
        e(f"v_lshlrev_b32 v{vQH}, 3, v{vQH}"); e(f"v_sub_u32 v{vQH}, v{vM}, v{vQH}")
        e(f"v_and_b32 v{vT}, 0x1b, v{vM}")
        e(f"v_cmp_eq_u32 vcc, 16, v{vT}")
        e(f"v_mov_b32 v{vT2}, 0x3f803f80")
        e(f"v_mov_b32 v{vT}, 0")
        for b in range(2):
            for j in range(2):
                for i in range(4): e(f"v_cndmask_b32 v{VB[b][j]+i}, v{vT}, v{vT2}, vcc")
        e(f"s_mov_b32 s5, {NEG_INF:#x}")
        e(f"s_cmp_eq_u32 s{sB}, 0\n    s_cselect_b32 s6, s5, 0\n    s_cselect_b32 s7, s{sW}, 64")
        e(f"v_mov_b32 v{vMF}, s5")
        e("s_mov_b32 s8, 0")
        e(f"s_lshl_b32 s15, s{sQT}, 6"); e(f"s_add_u32 s15, s15, s{sHD}"); e("s_lshl_b32 s15, s15, 10")
        e(f"s_add_u32 s15, s15, {WS_O:#x}")
        L += masks()
        return L
    def masks():
        L = []; e = L.append
        e(f"v_mov_b32 v{vT}, s5"); e(f"v_mov_b32 v{vT2}, s6")
        for r in range(16):
            e(f"v_cmp_le_i32 vcc, {(r & 7) + 16*(r >> 3)}, v{vQH}")
            e(f"v_mov_b32 v{OA+r}, 0")
            e("s_nop 0")
            e(f"v_cndmask_b32 v{CD+r}, v{vT}, v{OA+r}, vcc")
            e(f"v_cndmask_b32 v{CF+r}, v{vT2}, v{vT}, vcc")
        return L
    def gread(t):
        a(f"s_and_b32 s62, s{sI}, 1"); a("s_lshl_b32 s62, s62, 1"); a(f"s_and_b32 s63, s{sW}, 1"); a("s_add_u32 s62, s62, s63")
        a("s_lshl_b32 s62, s62, 7"); a("s_add_u32 s62, s62, 29696")
        a(f"v_and_b32 v{t}, 31, v1"); a(f"v_lshl_add_u32 v{t}, v{t}, 2, s62")
        a(f"ds_read_b32 v{vG}, v{t}")
    uid = [0]
    def spin(load, stage, cnt="s62", reg=vPoll, cmp="v_cmp_le_u32"):
        uid[0] += 1; n = uid[0]
        a(f"s_mov_b32 {cnt}, {SPIN}")
        a(f"s_branch L_chk{n}")
        a.lab(f"L_spin{n}")
        if opt("sleep", 4): a(f"s_sleep {opt('sleep', 4)}")
        a(load)
        a.lab(f"L_chk{n}")
        a("s_waitcnt vmcnt(0)")
        if "x2" in load: a(f"v_min_u32 v{reg}, v{reg}, v{reg+1}")
        a(f"{cmp} vcc, {stage}, v{reg}")
        a(f"s_sub_u32 {cnt}, {cnt}, 1"); a(f"s_cbranch_scc1 L_ok{n}")
        a("s_cmp_eq_u64 vcc, -1"); a(f"s_cbranch_scc0 L_spin{n}")
        a.lab(f"L_ok{n}")
    def kv32(q):
        a(f"s_and_b32 s62, s{sW}, 3"); a("s_lshl_b32 s62, s62, 13")
        if q: a(f"s_add_u32 s62, s62, {q*32768}")
        for g in range(2):
            a(f"s_add_u32 m0, s62, {g*4096}"); a("s_add_u32 s63, s62, s14")
            if g: a("s_add_u32 s63, s63, 4096")
            for i in range(4): a(f"buffer_load_dwordx4 v{vL16}, {S(sWS)}, s63 offen offset:{i*1024} {LD} lds")
    pollF1 = f"buffer_load_dword v{vPoll}, v{vFA}, {S(sWS)}, s10 offen {SC}"
    pollF1A = f"buffer_load_dword v{vPoll}, v{vFA2}, {S(sWS)}, s10 offen {SC}"

    a(f"s_sub_u32 s66, s{sW}, 4")
    a("v_lshrrev_b32 v2, 3, v1")
    a("v_and_b32 v3, 7, v1")
    a("v_lshrrev_b32 v4, 4, v1")
    a("v_xor_b32 v5, v3, v4")
    a("v_lshlrev_b32 v5, 4, v5")
    a("v_lshl_add_u32 v6, v2, 10, v5")
    a(f"s_lshl_b32 s63, s{sR16}, 17"); a("s_lshl_b32 s64, s66, 15"); a("s_add_u32 s63, s63, s64")
    a("v_add_u32 v16, s63, v6")
    a("v_xor_b32 v17, 64, v16"); a("v_add_u32 v17, 8192, v17")
    a("v_add_u32 v18, 16384, v16"); a("v_add_u32 v19, 16384, v17")
    a("v_and_b32 v5, 1, v4")
    a("v_lshlrev_b32 v5, 2, v5")
    a("v_xor_b32 v5, v3, v5")
    a("v_lshlrev_b32 v5, 4, v5")
    a("v_mul_u32_u24 v8, 3072, v2")
    a("s_mul_i32 s63, s66, 49152")
    a("v_add3_u32 v20, v8, v5, s63")
    a("v_add_u32 v21, 24576, v20")
    a("s_lshl_b32 s3, s62, 1"); a(f"s_add_u32 s3, s3, s{sI}"); a("s_and_b32 s3, s3, 7")
    R = opt("rot", 8)
    if R == 0: a("s_mov_b32 s3, 0")
    if R == 4: a(f"s_add_u32 s3, s62, s{sI}"); a("s_and_b32 s3, s3, 3"); a("s_lshl_b32 s3, s3, 1")
    a(f"s_and_b32 s65, s{sI}, 3"); a("s_and_b32 s64, s2, 4"); a("s_add_u32 s65, s65, s64"); a("s_lshl_b32 s65, s65, 7")
    a(f"s_cmp_lt_u32 s{sI}, 4"); a("s_cselect_b32 s64, 1024, 0"); a("s_add_u32 s22, s65, s64")
    a("s_lshl_b32 s67, s66, 12"); a("s_add_u32 s67, s67, 32768")
    a("s_lshl_b32 s23, s66, 11"); a("s_add_u32 s23, s23, 32768")
    for d, sz in ((sX, 2048*512*2), (sWB, 512*1536*2)):
        a(f"s_mov_b32 s{d+2}, {sz:#x}"); a(f"s_mov_b32 s{d+3}, 0x20000")
    a("s_waitcnt lgkmcnt(0)")
    for d, lo in ((sX, 4), (sWB, 12)):
        a(f"s_mov_b32 s{d}, s{lo}"); a(f"s_and_b32 s{d+1}, s{lo+1}, 0xffff")
    def wblock(srdw, col, ldsoff):
        a(f"s_mul_i32 s63, s3, {64*3072}"); a(f"s_add_u32 s63, s63, {col}")
        for e in range(2):
            a(f"s_add_u32 m0, s23, {ldsoff + e*1024}")
            a("s_nop 0")
            a(f"buffer_load_dwordx4 v{20+e}, {S(srdw)}, s63 offen lds")
        a("s_add_u32 s3, s3, 1"); a("s_and_b32 s3, s3, 7")
    def issue(c):
        slot = c & 3
        if c < 8:
            a("s_lshl_b32 s62, s3, 7")
            for il in range(4):
                a(f"s_add_u32 m0, s67, {slot*32768 + il*1024}")
                a("s_nop 0")
                a(f"buffer_load_dwordx4 v{16+il}, {S(sX)}, s62 offen lds")
            wblock(sWB, "s22", slot*32768 + 16384)
        else:
            for sb in range(2): wblock(sX if c < 12 else sWA, "s64" if c < 12 else "s65", wpos(c, sb))
            if EARLY and c == 8: a("s_add_u32 s3, s3, 6"); a("s_and_b32 s3, s3, 7")
            if EARLY and c == 11: a("s_add_u32 s3, s3, 2"); a("s_and_b32 s3, s3, 7")
    cnt = lambda c: 0 if c > 15 else (6 if c < 8 else 4)
    a("s_lshl_b32 s64, s66, 8"); a("s_lshl_b32 s65, s3, 7"); a("s_add_u32 s65, s65, s64")
    issue(0)
    a("v_lshlrev_b32 v24, 2, v1"); a("v_add_u32 v24, s65, v24"); a("v_and_b32 v24, 0x3ff, v24")
    srd(a, sWOB, 6, 7, 1024)
    a("s_add_u32 m0, s64, 28672"); a("s_nop 0")
    a(f"buffer_load_dword v24, {S(sWOB)}, 0 offen lds")
    issue(1)
    order = list(range(8)) + ([8, 12, 9, 10, 11, 13, 14, 15] if EARLY else list(range(8, 16)))
    issued = 2
    for c in range(2, opt("up", 3)):
        issue(c); issued += 1
    srd(a, sWA, 8, 9, 512*1536*2)
    common_srds()
    ids()
    a(f"s_add_u32 s64, s{sI}, 1"); a("s_and_b32 s64, s64, 3"); a("s_and_b32 s62, s2, 4"); a("s_add_u32 s64, s64, s62")
    a("s_lshl_b32 s64, s64, 7"); a("s_add_u32 s64, s64, 2048")
    a("s_xor_b32 s65, s22, 1280")
    lsetup = attn_setup()
    for c in range(0, 16):
        a(f"s_waitcnt vmcnt({sum(cnt(i) for i in order[order.index(c)+1:issued])})")
        a("s_barrier")
        if c in (0, 3, 7, 11): stamp(a, {0:1, 3:2, 7:3, 11:4}[c], mode=4)
        while issued < 16 and (order[issued] <= c + 3 or (EARLY and order[issued] in (8, 12))):
            if issued == 8:
                a(f"s_cmp_lt_u32 s{sI}, 4")
                a(f"s_cselect_b32 s{sX}, s{sWA}, s{sWB}"); a(f"s_cselect_b32 s{sX+1}, s{sWA+1}, s{sWB+1}")
                a(f"s_mov_b32 s{sX+2}, {512*1536*2:#x}")
            issue(order[issued]); issued += 1
        if c == 12:
            gread(2)
            for x in lsetup[:85]: a(x)
            a("s_waitcnt lgkmcnt(0)")
        if c == 13:
            for x in lsetup[85:]: a(x)
    stamp(a, 1)
    a(pollF1)
    spin(pollF1, 1)
    stamp(a, 2)
    a("s_lshl_b32 s62, s66, 11"); a(f"s_add_u32 m0, s62, {QSTG}")
    a(f"s_lshl_b32 s63, s{sW}, 10"); a("s_sub_u32 s63, s11, s63"); a("s_add_u32 s63, s63, s62"); a(f"s_add_u32 s63, s63, {32*64*1024:#x}")
    for i in range(2): a(f"buffer_load_dwordx4 v{vL16}, {S(sWS)}, s63 offen offset:{i*1024} {LD} lds")
    kv32(0)
    a("s_waitcnt vmcnt(0)"); a("s_barrier")
    stamp(a, 3)
    kv32(1)
    a("s_branch L_attn")

    a.lab("L_compute")
    CPF = opt("codepf", 0)
    if CPF:
        a("s_getpc_b64 s[62:63]")
        a.lab("L_pc")
        if CPF == 1:
            a("s_lshr_b32 s64, s2, 3"); a("s_cmp_eq_u32 s64, 1"); a("s_cbranch_scc0 L_nocpf")
            a("v_lshlrev_b32 v20, 7, v0")
        else:
            a(f"s_cmp_eq_u32 s{sW}, 2"); a("s_cbranch_scc0 L_nocpf")
            a("s_lshr_b32 s64, s2, 3"); a("s_lshl_b32 s64, s64, 10")
            a("v_and_b32 v20, 7, v1"); a("v_lshlrev_b32 v20, 7, v20"); a("v_add_u32 v20, s64, v20")
        a("v_min_u32 v20, L_code_end-L_pc-4, v20")
        a("v_mov_b32 v21, s63")
        a("v_add_co_u32 v20, vcc, s62, v20")
        a("s_nop 1")
        a("v_addc_co_u32 v21, vcc, 0, v21, vcc")
        a("global_load_dword v255, v[20:21], off")
        a.lab("L_nocpf")
    a("v_lshrrev_b32 v16, 5, v1")
    a("v_and_b32 v17, 31, v1")
    a("v_lshrrev_b32 v18, 1, v17"); a("v_and_b32 v18, 7, v18")
    a(f"s_lshl_b32 s62, s{sW}, 12"); a("s_add_u32 s62, s62, 32768")
    a("v_lshlrev_b32 v19, 7, v17"); a("v_add_u32 v19, s62, v19")
    for t in range(4):
        a(f"v_add_u32 v20, {2*t}, v16"); a("v_xor_b32 v20, v20, v18")
        a(f"v_lshl_add_u32 v{vXA+t}, v20, 4, v19")
        a(f"v_add_u32 v{vXA+4+t}, 0x10000, v{vXA+t}")
    a("v_bfe_u32 v18, v1, 2, 2")
    a("v_lshl_add_u32 v19, v16, 3, v18"); a("v_lshlrev_b32 v19, 7, v19")
    a("v_bfe_u32 v20, v1, 4, 1"); a("v_lshlrev_b32 v20, 1, v20")
    a("v_bfe_u32 v21, v1, 1, 1"); a("v_add_u32 v20, v20, v21")
    a("v_bfe_u32 v21, v1, 3, 1"); a("v_lshl_or_b32 v20, v21, 2, v20")
    a("v_lshl_add_u32 v19, v20, 4, v19")
    a("v_and_b32 v20, 1, v1"); a("v_lshl_add_u32 v19, v20, 3, v19")
    a(f"v_add_u32 v{vWA}, 32768, v19"); a(f"v_xor_b32 v{vWA+1}, 64, v{vWA}")
    a(f"v_add_u32 v{vWA+2}, 0x10000, v{vWA}"); a(f"v_add_u32 v{vWA+3}, 0x10000, v{vWA+1}")
    a(f"v_lshlrev_b32 v{vGA}, 4, v16"); a(f"v_add_u32 v{vGA}, 28672, v{vGA}")
    ids()
    a(f"s_lshl_b32 s66, s{sR16}, 2"); a(f"s_add_u32 s66, s66, s{sW}")
    a(f"s_and_b32 s62, s{sI}, 3"); a("s_and_b32 s63, s2, 4"); a("s_add_u32 s62, s62, s63"); a("s_lshl_b32 s62, s62, 8")
    a("s_add_u32 s62, s62, s66")
    a("s_xor_b32 s64, s62, 512")
    a("s_add_u32 s62, s62, 2048")
    a("s_lshl_b32 s24, s62, 11"); a("s_lshl_b32 s25, s62, 10"); a(f"s_add_u32 s25, s25, {WS_Q:#x}")
    a("s_lshl_b32 s26, s64, 11"); a("s_lshl_b32 s27, s64, 10"); a(f"s_add_u32 s27, s27, {WS_Q:#x}")
    a("s_mov_b32 s28, 0x10000"); a("s_mov_b32 s29, 0x20000")
    a(f"s_cmp_lt_u32 s{sI}, 4")
    a("s_cselect_b32 s24, s24, s25"); a("s_cselect_b32 s25, s29, s28")
    a("s_cselect_b32 s26, s27, s26"); a("s_cselect_b32 s27, s28, s29")
    a("s_cselect_b32 s64, 0, 2048")
    a(f"s_add_u32 s62, s{sI}, 1"); a("s_and_b32 s62, s62, 3"); a("s_add_u32 s62, s62, s63"); a("s_lshl_b32 s62, s62, 8")
    a("s_add_u32 s62, s62, s66"); a("s_add_u32 s62, s62, s64"); a("s_lshl_b32 s28, s62, 11"); a("s_add_u32 s29, s28, 0x40000")
    a(f"s_mov_b32 s32, {QSCALE:#x}")
    a("v_mov_b32 v0, 0")
    a("s_waitcnt lgkmcnt(0)")
    common_srds()
    for i in range(4): a(f"v_mov_b32 v{20+i}, 0")
    a("v_mov_b32 v24, 1")
    a(f"s_lshl_b32 s62, s{sW}, 8"); a("s_add_u32 s62, s62, s2"); a("s_sub_u32 s62, s62, 768")
    a("s_cmp_lt_u32 s62, 8"); a("s_cbranch_scc0 L_noinit")
    a("s_lshl_b32 s62, s2, 13"); a(f"s_add_u32 s62, s62, {WS_FL:#x}"); a("s_add_u32 s63, s62, 4096")
    for i in range(8): a(f"buffer_store_dwordx4 v[20:23], v{vL16}, {S(sWS)}, s{62+(i>>2)} offen offset:{(i&3)*1024} {SC}")
    a("s_lshl_b32 s62, s2, 5")
    a("s_waitcnt vmcnt(0)")
    a("s_mov_b64 exec, 1")
    a(f"buffer_store_dword v24, v20, {S(sDBG)}, s62 offen {SC}")
    a("s_mov_b64 exec, -1")
    a.lab("L_noinit")

    def chunk_of(m): return m if m < 8 else 8 + ((m - 8) >> 1)
    def reads(m):
        c = chunk_of(m); slot = c & 3; b = m & 1; L = []
        wp = slot*32768 + 16384 if m < 8 else wpos(c, (m - 8) & 1)
        for t in range(4):
            if m < 8:
                L.append(f"ds_read_b128 {vr(XR + 4*(4*m+t), 4)}, v{vXA + 4*(slot>>1) + t} offset:{(slot&1)*32768}")
            for cc in range(2):
                for u in range(2):
                    L.append(f"ds_read_b64_tr_b16 {vr(WF[b]+8*t+4*cc+2*u,2)}, v{vWA+2*(wp>>16)+cc} offset:{(wp & 0xffff) + (16*t+4*u)*128}")
        return L
    def greads(m): return [f"ds_read_b128 {vr(GF+4*t,4)}, v{vGA} offset:{(4*m+t)*32}" for t in range(4)]
    def dots(m): return [f"v_dot2_f32_bf16 v0, v{XR+16*m+i}, v{GF+i}, v0" for i in range(16)]
    def mfmas(m):
        b = m & 1; L = []
        for t in range(4):
            x = vr(XR + 4*(4*(m & 7)+t), 4)
            for cc in range(2):
                d = vr(ACC[cc], 16); c0 = "0" if (m & 7) == 0 and t == 0 else d
                w = vr(WF[b]+8*t+4*cc, 4)
                L.append(f"v_mfma_f32_32x32x16_bf16 {d}, {x}, {w}, {c0}" if 8 <= m < 16 else f"v_mfma_f32_32x32x16_bf16 {d}, {w}, {x}, {c0}")
        return L
    ST = opt("st", "sc1")
    DEFER = opt("defer", 1)
    def stores3():
        for i in range(4):
            a(f"buffer_store_dwordx4 {vr(208+4*i,4)}, v5, {S(sWS)}, s26 offen {ST}")
            a("s_add_u32 s26, s26, s27")
    def epilogue(ph, pk):
        if ph == 0:
            a("v_and_b32 v2, 0x33, v1")
            a("v_bfe_u32 v3, v1, 2, 1"); a("v_lshl_or_b32 v2, v3, 3, v2")
            a("v_bfe_u32 v3, v1, 3, 1"); a("v_lshl_or_b32 v2, v3, 2, v2")
            a("v_lshlrev_b32 v2, 4, v2")
            a(f"v_cmp_gt_u32 vcc, 4, v6")
            a("v_and_b32 v3, 15, v1"); a("v_lshlrev_b32 v3, 4, v3")
            a(f"v_cndmask_b32 v4, v{vL16}, v2, vcc"); a(f"v_cndmask_b32 v5, v2, v{vL16}, vcc")
            a("v_lshrrev_b32 v2, 5, v1"); a("v_lshl_add_u32 v3, v2, 8, v3")
            a("v_bfe_u32 v2, v1, 4, 1"); a("v_lshl_add_u32 v3, v2, 17, v3")
            a("v_add_u32 v3, 1024, v3")
        else: a("s_nop 10")
        if ph != 1:
            a(f"s_cmp_lt_u32 s{sI}, 4"); a(f"s_cbranch_scc{1 if ph == 0 else 0} L_noscale{ph}")
            for r in range(32): a(f"v_mul_f32 v{ACC[0]+r}, s32, v{ACC[0]+r}")
            a.lab(f"L_noscale{ph}")
        sb = 24 + ph
        for cc in range(2):
            for p in range(2):
                for i in range(4): a(f"v_cvt_pk_bf16_f32 v{pk+i}, v{ACC[cc]+8*p+2*i}, v{ACC[cc]+8*p+2*i+1}")
                if ph == 1: a(f"buffer_store_dwordx4 {vr(pk,4)}, v3, {S(sWS)}, s{28+cc} offen offset:{p*512} {ST}")
                elif ph == 0 or not DEFER:
                    a(f"buffer_store_dwordx4 {vr(pk,4)}, v{4+(ph>>1)}, {S(sWS)}, s{sb} offen {ST}")
                    a(f"s_add_u32 s{sb}, s{sb}, s{sb+1}")
                pk += 4
        a("s_nop 1")
    def publishF1(stage, t1):
        a(f"v_mov_b32 v{t1}, {stage}")
        a("s_lshl_b32 s62, s2, 7"); a(f"s_add_u32 s62, s62, {WS_FL:#x}")
        a("s_mov_b64 exec, 1")
        a(f"buffer_store_dword v{t1}, v{vL16}, {S(sWS)}, s62 offen {SC}")
        a("s_mov_b64 exec, -1")
    PUB = opt("pub", 19)
    setup = attn_setup()
    per = (len(setup) + 23) // 24
    pollI = f"buffer_load_dword v114, v115, {S(sDBG)}, 0 offen {SC}"
    stamp(a, 1)
    a("s_barrier")
    stamp(a, 2, True)
    for r in reads(0) + greads(0): a(r)
    for m in range(24):
        if m >= 8 and m % 2 == 0: stamp(a, 2 + (m-8)//2, mode=3)
        if m == 7: stamp(a, 1, mode=3)
        a("s_waitcnt lgkmcnt(0)" if m != 5 else "s_waitcnt vmcnt(0) lgkmcnt(0)")
        mm = mfmas(m)
        r = reads(m+1) if m < 23 else []
        fill = [[] for _ in range(8)]
        if m < 8:
            d = dots(m)
            for g in range(4): fill[g] += d[4*g:4*g+4]
            if m < 7: fill[4] += greads(m+1)
            else: fill[4].append(f"v_mov_b32 v6, s{sI}")
        if m >= 21:
            for g in range(8):
                fill[g] += setup[:per]; setup = setup[per:]
        bar = m < 7 or (m & 1 and m < 23)
        nr = (len(r) + 4) // 5
        for i in range(8):
            a(mm[i])
            if i == 0 and bar:
                if m == PUB: a("s_waitcnt vmcnt(0)")
                a("s_barrier")
                if m == PUB:
                    a(f"s_cmp_lg_u32 s{sW}, 0"); a("s_cbranch_scc1 L_nopub1")
                    spin(pollI, 1, cnt="s65", reg=114, cmp="v_cmp_eq_u32")
                    publishF1(1, 114)
                    a.lab("L_nopub1")
                if m == 11: gread(7)
            if i < 5:
                for x in r[i*nr:(i+1)*nr]: a(x)
            for x in fill[i]: a(x)
        if m == 7:
            stamp(a, 3)
            epilogue(0, WF[1])
            a("v_mov_b32 v113, v0")
            a("s_nop 1")
            a("v_permlane32_swap_b32 v0, v113")
            a("v_add_f32 v113, v0, v113")
            a(f"v_mul_f32 v113, {f2u(-1.4426950408889634):#x}, v113")
            a("v_exp_f32 v113, v113")
            a("v_and_b32 v114, 31, v1")
            a("v_add_f32 v113, 1.0, v113")
            a("v_rcp_f32 v113, v113")
            a(f"s_lshl_b32 s62, s{sW}, 7"); a("s_add_u32 s62, s62, 29696")
            a("v_lshl_add_u32 v114, v114, 2, s62")
            a("ds_write_b32 v114, v113")
            a("v_and_b32 v115, 7, v1"); a("v_lshlrev_b32 v115, 5, v115")
        if m == 15:
            stamp(a, 1, mode=4)
            epilogue(1, WF[1])
            a(f"s_cmp_lg_u32 s{sW}, 0"); a("s_cbranch_scc1 L_noip")
            a(pollI)
            a.lab("L_noip")
    assert not setup
    stamp(a, 4)
    epilogue(2, 208)
    a("s_barrier")

    a.lab("L_attn")
    def rdK(buf, addr, off): a(f"ds_read_b128 {vr(KB[buf],4)}, v{addr} offset:{off}")
    def rdV(buf, addr, off):
        a("s_mov_b64 exec, s[22:23]")
        a(f"ds_read_b128 {vr(VB[buf][0],4)}, v{addr} offset:{off}")
        a(f"ds_read_b128 {vr(VB[buf][1],4)}, v{addr} offset:{off+512}")
        a("s_mov_b64 exec, -1")
    def mfma(dst, kbuf, q, c): a(f"v_mfma_f32_32x32x16_bf16 {vr(dst,16)}, {vr(KB[kbuf],4)}, {vr(q,4)}, {c}")
    def smf(vreg, sreg): a(f"v_smfmac_f32_32x32x32_bf16 {vr(OA,16)}, {vr(vreg,4)}, {vr(sreg,8)}, v{vIDX}")
    def ex(s, i): a(f"v_exp_f32 v{s+i}, v{s+i}")
    def halves_max():
        a(f"v_mov_b32 v{vT}, v{vM}")
        a("s_nop 1")
        a(f"v_permlane32_swap_b32 v{vM}, v{vT}")
        a(f"v_max_f32 v{vM}, v{vM}, v{vT}")
    def rowmax(s):
        a(f"v_max3_f32 v{vM}, v{s}, v{s+1}, v{vMF}")
        for i in range(2, 16, 2): a(f"v_max3_f32 v{vM}, v{s+i}, v{s+i+1}, v{vM}")
        halves_max()
    def tile(t, first, do_mfma, q, c, kread, vread, pre_mfma=None, extra=None):
        cur, prev = SB[t & 1], SB[(t+1) & 1]
        a("s_setprio 1")
        ex(cur, 0); ex(cur, 1)
        if not first: smf(VB[(t-1) & 1][1], prev+8)
        a("s_waitcnt lgkmcnt(0)")
        if kread is not None: rdK(t & 1, *kread)
        if vread is not None: rdV((t+1) & 1, *vread)
        ex(cur, 2); ex(cur, 3); ex(cur, 4)
        if do_mfma:
            if pre_mfma: pre_mfma()
            mfma(prev, (t+1) & 1, q, c)
        for i in range(5, 10): ex(cur, i)
        smf(VB[t & 1][0], cur)
        for i in range(10, 14): ex(cur, i)
        a("s_setprio 0")
        if extra: extra()
        ex(cur, 14); ex(cur, 15)
    def a_first():
        rdK(0, vKa, 8*2048); rdK(1, vKa, 7*2048); rdV(0, vVa, 8*2048)
        a("s_waitcnt lgkmcnt(3)")
        mfma(SB[0], 0, QA, vr(CD, 16))
    def finish(tlast, fb_label, done_label, br):
        a("s_nop 1")
        smf(VB[tlast & 1][1], SB[tlast & 1]+8)
        if br:
            a.lab("L_B_fin"); a_first(); a("s_nop 4")
        else: a("s_nop 11")
        a(f"v_add_f32 v{vT}, abs(v{OA}), v{OA+8}")
        for i in range(1, 8): a(f"v_add_f32 v{vT}, abs(v{OA+i}), v{vT}")
        a(f"v_rcp_f32 v{vT2}, v{OA+8}")
        a(f"v_cmp_gt_f32 vcc, 0x71800000, v{vT}")
        a("s_cmp_lg_u32 s8, 0"); a(f"s_cbranch_scc1 {done_label}")
        a("s_cmp_eq_u64 vcc, -1"); a(f"s_cbranch_scc0 {fb_label}")
        a.lab(done_label)
        for i in range(8): a(f"v_mul_f32 v{OA+i}, v{vT2}, v{OA+i}")
        for i in range(4): a(f"v_cvt_pk_bf16_f32 v{PK[br]+i}, v{OA+2*i}, v{OA+2*i+1}")
        if br:
            a(f"buffer_store_dwordx4 {vr(PK[0],4)}, v{vL16}, {S(sWS)}, s15 offen {SC}")
        else:
            for i in range(4): a(f"v_min_u32 v{PK[0]+i}, -2, v{PK[0]+i}")
        a(f"s_add_u32 s62, s15, {br*32*1024}")
        a(f"buffer_store_dwordx4 {vr(PK[br],4)}, v{vL16}, {S(sWS)}, s62 offen {SC}")
    def publishF2(stage):
        a(f"v_mov_b32 v{vT}, {stage}")
        a("s_mov_b64 exec, 1")
        a(f"buffer_store_dword v{vT}, v{vL16}, {S(sWS)}, s16 offen {SC}")
        a("s_mov_b64 exec, -1")
    def wo_blocks(srdw, n):
        for i in range(n):
            a("s_mov_b32 m0, s19"); a("s_add_u32 s19, s19, 1024")
            a(f"buffer_load_dwordx4 v{vWo}, {S(srdw)}, s18 offen lds")
            a("s_add_u32 s18, s18, 8192")
    def wo_at(nreg):
        a(f"s_lshl_b32 s19, {nreg}, 10"); a(f"s_and_b32 s18, {nreg}, 63"); a("s_lshl_b32 s18, s18, 13")
        a(f"s_lshl_b32 s63, s{sJ}, 7"); a("s_add_u32 s18, s18, s63")

    stamp(a, 5, True)
    a(f"ds_read_b128 {vr(QB,4)}, v{vKb}")
    rdK(0, vL16, 0); rdK(1, vL16, 2048); rdV(0, vVb, 0); rdV(1, vVb, 0)
    a(f"v_mov_b32 v{vKb}, v{vL16}")
    for r in range(8, 16): a(f"v_mov_b32 v{SB[1]+r}, 0")
    a("s_waitcnt lgkmcnt(5)")
    mfma(SB[0], 0, QB, "0")
    a("s_nop 11")
    rowmax(SB[0])
    for r in range(16): a(f"v_sub_f32 v{CM+r}, 0, v{vM}")
    a("s_nop 1")
    mfma(SB[0], 0, QB, vr(CM, 16))
    a("s_waitcnt lgkmcnt(0)")
    stamp(a, 1, True, mode=1)
    a("s_mov_b32 s17, 0")
    a("s_nop 8")
    a.raw(".p2align 6")
    a.lab("L_B_body")
    for t in range(8):
        tile(t, False, True, QB, vr(CM, 16), (vKb, (t+2)*2048), (vVb, (t+1)*2048))
    a(f"v_add_u32 v{vKb}, 16384, v{vKb}")
    a(f"v_add_u32 v{vVb}, 16384, v{vVb}")
    a("s_add_u32 s17, s17, 1"); a("s_cmp_lt_u32 s17, 8"); a("s_cbranch_scc1 L_B_stub")
    stamp(a, 6)
    stamp(a, 9, mode=1)
    finish(7, "L_B_fb", "L_B_done", 1)
    a("s_mov_b32 s8, 0")
    for r in range(16): a(f"v_mov_b32 v{OA+r}, 0")
    stamp(a, 7)
    a.lab("L_A_max")
    rowmax(SB[0])
    for r in range(16): a(f"v_sub_f32 v{SB[0]+r}, v{SB[0]+r}, v{vM}")
    for r in range(16): a(f"v_sub_f32 v{CM+r}, 0, v{vM}")
    for r in range(16): a(f"v_sub_f32 v{CF+r}, v{CF+r}, v{vM}")
    def oloads(br):
        a(f"s_add_u32 s62, s20, {br*32768}"); a("s_add_u32 s63, s62, 4096")
        for i in range(8):
            a(f"buffer_load_dwordx4 {vr(OF[1-br]+4*i,4)}, v{vL16}, {S(sWS)}, s{62+(i>>2)} offen offset:{(i&3)*1024} {LD}")
    pollF2 = f"buffer_load_dword v{vPoll}, v{vFA}, {S(sWS)}, s10 offen {SC}"
    for t in range(9):
        def pm(t=t):
            if t < 7:
                a(f"s_cmp_lg_u32 s7, {t}"); a(f"s_cbranch_scc1 L_A_mid{t}")
                a("s_nop 7")
                for r in range(16): a(f"v_mov_b32 v{CM+r}, s5")
                a("s_nop 1")
                a.lab(f"L_A_mid{t}")
        def extra(t=t):
            if t not in (0, 1, 3, 6, 8): return
            a("s_cmp_lg_u32 s8, 0"); a(f"s_cbranch_scc1 L_A_x{t}")
            if t == 0:
                a("s_barrier")
                a(f"s_lshl_b32 s62, s{sW}, 2"); a("s_add_u32 s62, s62, 96"); wo_at("s62")
            if t < 2: wo_blocks(sWOB, 2)
            if t == 3:
                a("s_waitcnt vmcnt(4)"); a("s_barrier")
                a(f"s_cmp_lg_u32 s{sW}, 0"); a(f"s_cbranch_scc1 L_A_x{t}")
                publishF2(1)
            if t == 6: a(pollF2)
            if t == 8:
                spin(pollF2, 1, cnt="s64")
                oloads(1)
            a.lab(f"L_A_x{t}")
        tile(t, t == 0, t < 8, QA, vr(CM if t < 7 else CF, 16),
             (vKa, (8-(t+2))*2048) if t+2 <= 8 else None,
             (vVa, (8-(t+1))*2048) if t+1 <= 8 else None, pm, extra)
    finish(8, "L_A_fb", "L_A_done", 0)
    stamp(a, 8)
    stamp(a, 1, mode=2)
    a("s_barrier")
    stamp(a, 2, True, mode=2)
    WR = lambda i, c: 128 + 8*i + 4*c
    def wreads(i):
        for c in range(2):
            for u in range(2):
                a(f"ds_read_b64_tr_b16 {vr(WR(i,c)+2*u,2)}, v{vPW0+c} offset:{i*2048+u*1024}")
    def pm(br, i):
        for c in range(2):
            d = vr(PACC[br][c], 16)
            a(f"v_mfma_f32_32x32x16_bf16 {d}, {vr(WR(i,c),4)}, {vr(OF[1-br]+4*i,4)}, {'0' if i == 0 else d}")
    pollO = f"buffer_load_dword v{vPoll}, v{vFA2}, {S(sWS)}, s20 offen {SC}"
    wreads(0); wreads(1)
    for i in range(8):
        if i < 6: wreads(i+2)
        a(f"s_waitcnt vmcnt({8-i}) lgkmcnt({8 if i < 6 else 4*(7-i)})")
        pm(1, i)
    a(pollO)
    a(f"v_subrev_u32 v{vPW0}, 0x10000, v{vPW0}"); a(f"v_subrev_u32 v{vPW1}, 0x10000, v{vPW1}")
    stamp(a, 9)
    stamp(a, 4, mode=2)
    a("s_barrier")
    for i in range(8): wreads(i)
    a(f"v_sub_f32 v{vT}, 1.0, v{vG}")
    for c in range(2):
        for r in range(16): a(f"v_mul_f32 v{PACC[1][c]+r}, v{vT}, v{PACC[1][c]+r}")
    stamp(a, 5, mode=2)
    spin(pollO, -1, cnt="s64", cmp="v_cmp_ne_u32")
    stamp(a, 6, mode=2)
    a(f"s_mov_b32 s64, {SPIN}")
    a.lab("L_O_retry")
    oloads(0)
    for i in range(8):
        a(f"s_waitcnt vmcnt({7-i}) lgkmcnt(0)")
        if i == 0: stamp(a, 7, mode=2)
        pm(0, i)
        b = OF[1]+4*i
        a(f"v_max3_u32 v{vT}, v{b}, v{b+1}, {0 if i == 0 else 'v%d' % vT}")
        a(f"v_max3_u32 v{vT}, v{b+2}, v{b+3}, v{vT}")
    a(f"v_cmp_ne_u32 vcc, -1, v{vT}")
    a("s_sub_u32 s64, s64, 1"); a("s_cbranch_scc1 L_O_ok")
    a("s_cmp_eq_u64 vcc, -1"); a("s_cbranch_scc0 L_O_retry")
    a.lab("L_O_ok")
    stamp(a, 8, mode=2)
    a("s_nop 6")
    for c in range(2):
        for g in range(4):
            for r in range(4*g, 4*g+4): a(f"v_fmac_f32 v{PACC[1][c]+r}, v{vG}, v{PACC[0][c]+r}")
            a(f"ds_write_b128 v2, {vr(PACC[1][c]+4*g,4)} offset:{(c*4+g)*1088}")
    a("s_waitcnt lgkmcnt(0)"); a("s_barrier")
    stamp(a, 9, True, mode=2)
    for kq in range(4):
        for h in range(2):
            a(f"ds_read_b128 {vr(16+kq*8+h*4,4)}, v7 offset:{kq*PW + h*512}")
    a("s_waitcnt lgkmcnt(4)")
    for i in range(8): a(f"v_add_f32 v{16+i}, v{16+i}, v{24+i}")
    a("s_waitcnt lgkmcnt(0)")
    for i in range(8): a(f"v_add_f32 v{32+i}, v{32+i}, v{40+i}")
    for i in range(8): a(f"v_add_f32 v{16+i}, v{16+i}, v{32+i}")
    for i in range(4): a(f"v_cvt_pk_bf16_f32 v{48+i}, v{16+2*i}, v{16+2*i+1}")
    a(f"buffer_store_dwordx4 v[48:51], v8, {S(sOUT)}, s21 offen")
    if Cfg.stamp:
        a("s_waitcnt vmcnt(0)")
        a("s_memtime s[96:97]"); a("s_waitcnt lgkmcnt(0)")
        stamp_out(a, 0, 10, sWS, sW, 8)
        a("s_nop 1"); a("v_mov_b32 v1, s96"); a(f"buffer_store_dword v1, v0, {S(sWS)}, s94 offen offset:40")
    a.lab("L_end")
    a("s_endpgm")

    a.lab("L_B_stub")
    for i in range(2, 8):
        a(f"s_cmp_eq_u32 s17, {i}"); a(f"s_cbranch_scc1 L_B_stub{i}")
    stamp(a, 2, mode=1)
    a("s_waitcnt vmcnt(0)"); a("s_barrier")
    a(f"s_cmp_ge_u32 s{sW}, 4"); a("s_cbranch_scc1 L_B_body")
    kv32(2)
    if DEFER: stores3()
    a("s_branch L_B_body")
    a.lab("L_B_stub2")
    stamp(a, 3, mode=1)
    a(f"s_cmp_lt_u32 s{sW}, 4"); a("s_cbranch_scc1 L_B_body")
    kv32(3)
    a("s_branch L_B_body")
    a.lab("L_B_stub3")
    stamp(a, 4, mode=1)
    a("s_waitcnt vmcnt(0)"); a("s_barrier")
    a(f"s_and_b32 s62, s{sW}, 3"); a("s_cbranch_scc1 L_B_body")
    a(f"s_cmp_eq_u32 s{sW}, 0"); a("s_cbranch_scc0 L_B_stub3b")
    publishF1(2, vT)
    a.lab("L_B_stub3b")
    a(f"v_lshlrev_b32 v{vT2}, 10, v1")
    a(f"s_and_b32 s62, s{sRB}, 7"); a("s_lshl_b32 s62, s62, 16"); a(f"s_lshl_b32 s63, s{sJ}, 7"); a("s_add_u32 s62, s62, s63")
    a(f"s_cmp_eq_u32 s{sW}, 0"); a("s_cbranch_scc0 L_B_stub3c")
    a(f"buffer_load_dword v243, v{vT2}, {S(sWOA)}, s62 offen")
    a("s_branch L_B_body")
    a.lab("L_B_stub3c")
    a(f"buffer_load_dword v243, v{vT2}, {S(sWOB)}, s62 offen")
    a("s_branch L_B_body")
    a.lab("L_B_stub4")
    stamp(a, 5, mode=1)
    a(pollF1A)
    a("s_branch L_B_body")
    a.lab("L_B_stub5")
    stamp(a, 6, mode=1)
    spin(pollF1A, 2)
    a(f"s_lshl_b32 s62, s{sW}, 12"); a(f"s_lshl_b32 s63, s{sB}, 14"); a("s_add_u32 s63, s63, s62")
    a("s_add_u32 m0, s62, 131072")
    a("s_cmp_lt_u32 s63, 16384"); a("s_cselect_b32 s62, 0, 16384")
    a("s_add_u32 s63, s63, s13"); a("s_sub_u32 s63, s63, s62")
    for i in range(4): a(f"buffer_load_dwordx4 v{vL16}, {S(sWS)}, s63 offen offset:{i*1024} {LD} lds")
    a(f"buffer_load_dwordx4 {vr(QA,4)}, v{vL16}, {S(sWS)}, s11 offen {LD}")
    a("s_lshl_b32 s16, s2, 7"); a(f"s_add_u32 s16, s16, {WS_F2:#x}")
    a(f"v_and_b32 v{vFA2}, 7, v1"); a(f"v_lshlrev_b32 v{vFA2}, 10, v{vFA2}")
    for i in range(4): a(f"v_mov_b32 v{PK[0]+i}, -1")
    a(f"v_bfe_u32 v{vT}, v1, 2, 1"); a(f"v_and_b32 v{vFA}, 3, v1"); a(f"v_lshl_add_u32 v{vFA}, v{vFA}, 3, v{vT}"); a(f"v_lshlrev_b32 v{vFA}, 7, v{vFA}")
    a(f"s_lshr_b32 s10, s{sW}, 1"); a("s_lshl_b32 s10, s10, 8")
    a(f"s_lshr_b32 s62, s{sRB}, 2"); a("s_lshl_b32 s62, s62, 12"); a("s_add_u32 s10, s10, s62")
    a(f"s_add_u32 s10, s10, {WS_F2:#x}")
    a(f"s_lshl_b32 s20, s{sRB}, 17"); a(f"s_and_b32 s62, s{sW}, 1"); a("s_lshl_b32 s62, s62, 16"); a("s_add_u32 s20, s20, s62")
    a(f"s_lshr_b32 s62, s{sW}, 1"); a("s_lshl_b32 s62, s62, 13"); a("s_add_u32 s20, s20, s62"); a(f"s_add_u32 s20, s20, {WS_O:#x}")
    a(f"v_lshrrev_b32 v{vT}, 5, v1"); a(f"v_bfe_u32 v{vT2}, v1, 2, 2")
    a(f"v_lshl_add_u32 v{vPW0}, v{vT}, 2, v{vT2}"); a(f"v_lshlrev_b32 v{vPW0}, 7, v{vPW0}")
    a(f"v_bfe_u32 v{vT}, v1, 4, 1"); a(f"v_lshlrev_b32 v{vT}, 1, v{vT}")
    a(f"v_bfe_u32 v{vT2}, v1, 1, 1"); a(f"v_add_u32 v{vT}, v{vT}, v{vT2}")
    a(f"v_bfe_u32 v{vT2}, v1, 3, 1"); a(f"v_lshl_or_b32 v{vT}, v{vT2}, 2, v{vT}")
    a(f"v_lshl_add_u32 v{vPW0}, v{vT}, 4, v{vPW0}")
    a(f"v_and_b32 v{vT}, 1, v1"); a(f"v_lshl_add_u32 v{vPW0}, v{vT}, 3, v{vPW0}")
    a(f"s_lshr_b32 s62, s{sW}, 1"); a("s_lshl_b32 s62, s62, 14"); a("s_add_u32 s62, s62, 65536")
    a(f"v_add_u32 v{vPW0}, s62, v{vPW0}")
    a(f"v_xor_b32 v{vPW1}, 64, v{vPW0}")
    a(f"s_lshr_b32 s62, s{sW}, 1"); a(f"s_mul_i32 s62, s62, {PW}"); a(f"s_and_b32 s63, s{sW}, 1"); a(f"s_mul_i32 s63, s63, {8*1088}")
    a("s_add_u32 s62, s62, s63"); a("s_add_u32 s62, s62, 65536")
    a(f"v_add_u32 v2, s62, v{vL16}")
    a("v_and_b32 v5, 7, v1"); a("v_lshrrev_b32 v6, 3, v1")
    a(f"s_and_b32 s62, s{sW}, 3"); a("s_lshl_b32 s62, s62, 3"); a("v_add_u32 v6, s62, v6")
    a("v_mul_u32_u24 v7, 1088, v5"); a("v_lshl_add_u32 v7, v6, 4, v7")
    a(f"s_lshr_b32 s62, s{sW}, 2"); a(f"s_mul_i32 s63, s62, {8*1088}"); a("s_add_u32 s63, s63, 65536")
    a("v_add_u32 v7, s63, v7")
    a("v_lshlrev_b32 v8, 10, v6"); a("v_lshl_add_u32 v8, v5, 4, v8")
    a("s_lshl_b32 s62, s62, 15"); a(f"s_lshl_b32 s63, s{sRB}, 16"); a("s_add_u32 s62, s62, s63")
    a(f"s_lshl_b32 s63, s{sJ}, 7"); a("s_add_u32 s21, s62, s63")
    a("s_branch L_B_body")
    a.lab("L_B_stub6")
    stamp(a, 7, mode=1)
    a("s_waitcnt vmcnt(0)"); a("s_barrier")
    a(f"s_cmp_ge_u32 s{sW}, 4"); a("s_cbranch_scc1 L_B_body")
    a(f"s_mul_i32 s62, s{sW}, 12"); wo_at("s62")
    wo_blocks(sWOA, 12)
    a("s_branch L_B_body")
    a.lab("L_B_stub7")
    stamp(a, 8, mode=1)
    a(f"s_cmp_lt_u32 s{sW}, 4"); a("s_cbranch_scc1 L_B_body")
    a(f"s_lshl_b32 s62, s{sW}, 2"); a("s_add_u32 s62, s62, 32"); wo_at("s62")
    wo_blocks(sWOA, 4)
    a(f"s_lshl_b32 s62, s{sW}, 3"); a("s_add_u32 s62, s62, 32"); wo_at("s62")
    wo_blocks(sWOB, 8)
    a("s_branch L_B_body")
    a.lab("L_A_fb")
    a("s_waitcnt lgkmcnt(0)")
    a("s_mov_b32 s8, 1")
    a(f"s_sub_u32 s17, 8, s{sW}"); a(f"s_cmp_eq_u32 s{sB}, 0"); a("s_cselect_b32 s17, s17, 0")
    a.lab("L_A_fb_loop")
    a("s_lshl_b32 s62, s17, 11")
    a(f"v_add_u32 v{vT}, s62, v{vKa}")
    rdK(0, vT, 0)
    a("s_sub_u32 s62, 8, s17"); a("s_lshl_b32 s62, s62, 5")
    a(f"v_add_u32 v{vT2}, s62, v{vQH}")
    a(f"v_mov_b32 v{vM}, s5")
    a("s_movk_i32 s62, 256")
    a("s_waitcnt lgkmcnt(0)")
    mfma(SB[0], 0, QA, "0")
    a("s_nop 15")
    for r in range(16):
        a(f"v_subrev_u32 v{vT}, {(r & 7) + 16*(r >> 3)}, v{vT2}")
        a(f"v_cmp_gt_u32 vcc, s62, v{vT}")
        a("s_nop 1")
        a(f"v_cndmask_b32 v{vT}, v{vM}, v{SB[0]+r}, vcc")
        a(f"v_max_f32 v{vMF}, v{vMF}, v{vT}")
    a("s_add_u32 s17, s17, 1"); a("s_cmp_lt_u32 s17, 9"); a("s_cbranch_scc1 L_A_fb_loop")
    for x in masks(): a(x)
    a_first()
    a("s_nop 15")
    a("s_branch L_A_max")
    a.lab("L_B_fb")
    a("s_waitcnt lgkmcnt(0)")
    a("s_mov_b32 s8, 1")
    a("s_mov_b32 s17, s14"); a("s_add_u32 s62, s14, 131072")
    a(f"v_mov_b32 v{vM}, s5")
    a(f"v_and_b32 v{vVb}, 0x7ff, v{vVb}")
    a.lab("L_B_fb_max")
    a(f"buffer_load_dwordx4 {vr(KB[0],4)}, v{vL16}, {S(sWS)}, s17 offen {LD}")
    a("s_add_u32 s17, s17, 2048")
    a("s_waitcnt vmcnt(0)")
    mfma(SB[0], 0, QB, "0")
    a("s_nop 15")
    for i in range(0, 16, 2): a(f"v_max3_f32 v{vM}, v{SB[0]+i}, v{SB[0]+i+1}, v{vM}")
    a("s_cmp_lt_u32 s17, s62"); a("s_cbranch_scc1 L_B_fb_max")
    halves_max()
    for r in range(16): a(f"v_sub_f32 v{CM+r}, 0, v{vM}")
    for r in range(16): a(f"v_mov_b32 v{OA+r}, 0")
    a("s_mov_b32 s17, s14")
    a.lab("L_B_fb_acc")
    a(f"buffer_load_dwordx4 {vr(KB[0],4)}, v{vL16}, {S(sWS)}, s17 offen {LD}")
    a("s_mov_b64 exec, s[22:23]")
    a(f"buffer_load_dwordx4 {vr(VB[0][0],4)}, v{vVb}, {S(sWS)}, s17 offen {LD}")
    a(f"buffer_load_dwordx4 {vr(VB[0][1],4)}, v{vVb}, {S(sWS)}, s17 offen offset:512 {LD}")
    a("s_mov_b64 exec, -1")
    a("s_add_u32 s17, s17, 2048")
    a("s_waitcnt vmcnt(0)")
    mfma(SB[0], 0, QB, vr(CM, 16))
    a("s_nop 15")
    for i in range(16): ex(SB[0], i)
    a("s_nop 1")
    smf(VB[0][0], SB[0]); smf(VB[0][1], SB[0]+8)
    a("s_cmp_lt_u32 s17, s62"); a("s_cbranch_scc1 L_B_fb_acc")
    a("s_branch L_B_fin")
    a.lab("L_code_end")
    d = desc(K, 256, 72, 256)
    if Cfg.stamp: d = d.replace("next_free_sgpr 96", "next_free_sgpr 100")
    return a.text(), d

def main(out):
    t, d = gen()
    hdr = f"""; gated_mix(sliding-window MHA, full MHA), one fused launch:
; @launch grid=(256,1,1) block=(512,1,1) lds=163840
.amdgcn_target "amdgcn-amd-amdhsa--gfx950"
"""
    open(out, "w").write(hdr + t + d)

if __name__ == "__main__":
    main(parse_args())
```

```python
from common import *

WS_FL = 16 << 20
WS_F2 = WS_FL + 32768
SC = "sc1"
SPIN = 1 << 17
PW = 16*1088

sX, sWB, sWA, sWS, sWOA, sOUT, sDBG, sWOB = 24, 28, 32, 36, 40, 44, 48, 52
sW, sRB, sJ, sHD, sB, sQT, sR16, sI = 56, 57, 58, 59, 60, 61, 68, 69
S = lambda b: f"s[{b}:{b+3}]"
vXA = 2
vWA = 10
vL16, vGA = 14, 15
WF = [16, 48]
ACC = [80, 96]
GF = 112
XR = 128
vG, QB, QA = 112, 116, 120
CF, CD = 128, 144
VB = [[160, 164], [168, 172]]
OA = 176
vIDX, vKa, vVa, vKb, vVb, vT, vM, vMF, vT2, vQH, vFA, vWo = range(192, 204)
vFA2 = 204
vPoll = 206
KB = [16, 20]
SB = [32, 48]
CM = 64
PK = [244, 248]
OF = [208, 16]
PACC = [[48, 64], [80, 96]]
vPW0, vPW1 = 240, 241
QSTG = 152*1024

def gen():
    LD = "sc1"
    HOLD = opt("x_hold", -1)
    def hold(k):
        if HOLD == k: a("s_memrealtime s[70:71]"); a("s_waitcnt lgkmcnt(0)")
    EARLY = opt("early", 1)
    def wpos(c, sb):
        if EARLY and c == 8: return (2+sb)*32768 + 24576
        if EARLY and c == 12: return sb*32768 + 24576
        return (c & 3)*32768 + sb*8192
    a = A(); K = NAME + "_kernel"; head(a, K)
    a("s_cmp_ge_u32 s2, 256"); a("s_cbranch_scc1 L_end")
    stamp(a, 0)
    hold(0)
    a("s_load_dwordx2 s[4:5], s[0:1], 0")
    a("s_load_dwordx4 s[12:15], s[0:1], 32")
    a("s_load_dwordx4 s[8:11], s[0:1], 8")
    a("s_load_dwordx2 s[6:7], s[0:1], 48")
    a("s_load_dwordx4 s[16:19], s[0:1], 56")
    a("s_load_dwordx2 s[20:21], s[0:1], 72")
    a("v_lshrrev_b32 v2, 6, v0")
    a("v_and_b32 v1, 63, v0")
    a("s_bfe_u32 s62, s2, 0x20003")
    a(f"v_readfirstlane_b32 s{sW}, v2")
    a("s_and_b32 s63, s2, 3"); a("s_lshl_b32 s63, s63, 2"); a(f"s_add_u32 s{sR16}, s63, s62")
    a(f"s_lshr_b32 s{sI}, s2, 5")
    a(f"v_lshlrev_b32 v{vL16}, 4, v1")
    a(f"s_cmp_lt_u32 s{sW}, 4"); a("s_cbranch_scc1 L_compute")

    def ids():
        a(f"s_lshl_b32 s{sRB}, s{sR16}, 1"); a(f"s_and_b32 s62, s{sI}, 1"); a(f"s_add_u32 s{sRB}, s{sRB}, s62")
        a(f"s_and_b32 s{sJ}, s2, 4"); a(f"s_lshr_b32 s62, s{sI}, 1"); a(f"s_add_u32 s{sJ}, s{sJ}, s62")
        a(f"s_and_b32 s{sHD}, s2, 7"); a(f"s_lshl_b32 s{sHD}, s{sHD}, 2"); a("s_bfe_u32 s62, s2, 0x20003"); a(f"s_add_u32 s{sHD}, s{sHD}, s62")
        a(f"s_mov_b32 s{sB}, s{sI}")
        a(f"s_lshl_b32 s{sQT}, s{sB}, 3"); a(f"s_add_u32 s{sQT}, s{sQT}, s{sW}")
    def common_srds():
        srd(a, sWS, 20, 21, ws_size())
        srd(a, sOUT, 16, 17, 2048*512*2)
        srd(a, sDBG, 18, 19, 256)
        srd(a, sWOA, 10, 11, 512*512*2)
        srd(a, sWOB, 14, 15, 512*512*2)

    def attn_setup():
        L = []; e = L.append
        e(f"s_lshl_b32 s11, s{sHD}, 6"); e(f"s_add_u32 s11, s11, s{sQT}"); e("s_lshl_b32 s11, s11, 10")
        e(f"s_add_u32 s11, s11, {WS_Q:#x}")
        e(f"s_lshl_b32 s13, s{sHD}, 17")
        e(f"s_add_u32 s14, s13, {32*131072:#x}")
        e("s_and_b32 s10, s2, 4"); e("s_lshl_b32 s10, s10, 7"); e(f"s_add_u32 s10, s10, {WS_FL:#x}")
        e("s_and_b32 s4, s2, 3"); e("s_add_u32 s5, s4, 3"); e("s_and_b32 s5, s5, 3"); e("s_xor_b32 s6, s4, 2")
        e("s_mul_i32 s7, s4, 0x1011"); e("s_lshl_b32 s9, s5, 8"); e("s_add_u32 s7, s7, s9"); e("s_add_u32 s7, s7, 0x440")
        e("s_mul_i32 s5, s5, 0x1001"); e("s_mul_i32 s6, s6, 0x110"); e("s_add_u32 s5, s5, s6"); e("s_add_u32 s5, s5, 0x400")
        e(f"v_bfe_u32 v{vT}, v1, 2, 2"); e(f"v_and_b32 v{vT2}, 3, v1"); e(f"v_lshl_add_u32 v{vT}, v{vT2}, 3, v{vT}")
        e(f"v_lshlrev_b32 v{vT}, 7, v{vT}")
        e(f"v_lshrrev_b32 v{vT2}, 4, v1"); e(f"v_lshlrev_b32 v{vT2}, 2, v{vT2}")
        e(f"v_bfe_u32 v{vFA}, s7, v{vT2}, 4"); e(f"v_lshl_add_u32 v{vFA}, v{vFA}, 12, v{vT}")
        e(f"v_bfe_u32 v{vFA2}, s5, v{vT2}, 4"); e(f"v_lshl_add_u32 v{vFA2}, v{vFA2}, 12, v{vT}")
        e(f"v_lshrrev_b32 v{vT}, 3, v1"); e(f"v_bfe_u32 v{vT2}, v1, 4, 1"); e(f"v_lshlrev_b32 v{vT2}, 2, v{vT2}")
        e(f"v_and_b32 v{vWo}, 7, v1"); e(f"v_xor_b32 v{vWo}, v{vWo}, v{vT2}"); e(f"v_lshlrev_b32 v{vWo}, 4, v{vWo}")
        e(f"v_lshl_add_u32 v{vWo}, v{vT}, 10, v{vWo}")
        e(f"v_mov_b32 v{vIDX}, 0xdddddddd")
        e("s_mov_b32 s22, 0x0000ffff"); e("s_mov_b32 s23, 0x0000ffff")
        e(f"v_lshrrev_b32 v{vQH}, 5, v1")
        e(f"v_and_b32 v{vVb}, 15, v1"); e(f"v_lshlrev_b32 v{vVb}, 4, v{vVb}")
        e(f"v_lshl_add_u32 v{vVb}, v{vQH}, 8, v{vVb}"); e(f"v_add_u32 v{vVb}, 1024, v{vVb}")
        e(f"s_lshl_b32 s4, s{sW}, 11"); e("s_add_u32 s4, s4, 131072")
        e(f"v_add_u32 v{vKa}, s4, v{vL16}")
        e(f"v_add_u32 v{vVa}, s4, v{vVb}")
        e(f"s_lshl_b32 s4, s{sW}, 10"); e(f"s_add_u32 s4, s4, {QSTG}")
        e(f"v_add_u32 v{vKb}, s4, v{vL16}")
        e(f"v_and_b32 v{vM}, 31, v1")
        e(f"v_lshlrev_b32 v{vQH}, 3, v{vQH}"); e(f"v_sub_u32 v{vQH}, v{vM}, v{vQH}")
        e(f"v_and_b32 v{vT}, 0x1b, v{vM}")
        e(f"v_cmp_eq_u32 vcc, 16, v{vT}")
        e(f"v_mov_b32 v{vT2}, 0x3f803f80")
        e(f"v_mov_b32 v{vT}, 0")
        for b in range(2):
            for j in range(2):
                for i in range(4): e(f"v_cndmask_b32 v{VB[b][j]+i}, v{vT}, v{vT2}, vcc")
        e(f"s_mov_b32 s5, {NEG_INF:#x}")
        e(f"s_cmp_eq_u32 s{sB}, 0\n    s_cselect_b32 s6, s5, 0\n    s_cselect_b32 s7, s{sW}, 64")
        e(f"v_mov_b32 v{vMF}, s5")
        e("s_mov_b32 s8, 0")
        e(f"s_lshl_b32 s15, s{sQT}, 6"); e(f"s_add_u32 s15, s15, s{sHD}"); e("s_lshl_b32 s15, s15, 10")
        e(f"s_add_u32 s15, s15, {WS_O:#x}")
        L += masks()
        return L
    def masks():
        L = []; e = L.append
        e(f"v_mov_b32 v{vT}, s5"); e(f"v_mov_b32 v{vT2}, s6")
        for r in range(16):
            e(f"v_cmp_le_i32 vcc, {(r & 7) + 16*(r >> 3)}, v{vQH}")
            e(f"v_mov_b32 v{OA+r}, 0")
            e("s_nop 0")
            e(f"v_cndmask_b32 v{CD+r}, v{vT}, v{OA+r}, vcc")
            e(f"v_cndmask_b32 v{CF+r}, v{vT2}, v{vT}, vcc")
        return L
    def gread(t):
        a(f"s_and_b32 s62, s{sI}, 1"); a("s_lshl_b32 s62, s62, 1"); a(f"s_and_b32 s63, s{sW}, 1"); a("s_add_u32 s62, s62, s63")
        a("s_lshl_b32 s62, s62, 7"); a("s_add_u32 s62, s62, 29696")
        a(f"v_and_b32 v{t}, 31, v1"); a(f"v_lshl_add_u32 v{t}, v{t}, 2, s62")
        a(f"ds_read_b32 v{vG}, v{t}")
    uid = [0]
    def spin(load, stage, cnt="s62", reg=vPoll, cmp="v_cmp_le_u32"):
        uid[0] += 1; n = uid[0]
        a(f"s_mov_b32 {cnt}, {SPIN}")
        a(f"s_branch L_chk{n}")
        a.lab(f"L_spin{n}")
        if opt("sleep", 4): a(f"s_sleep {opt('sleep', 4)}")
        a(load)
        a.lab(f"L_chk{n}")
        a("s_waitcnt vmcnt(0)")
        if "x2" in load: a(f"v_min_u32 v{reg}, v{reg}, v{reg+1}")
        a(f"{cmp} vcc, {stage}, v{reg}")
        a(f"s_sub_u32 {cnt}, {cnt}, 1"); a(f"s_cbranch_scc1 L_ok{n}")
        a("s_cmp_eq_u64 vcc, -1"); a(f"s_cbranch_scc0 L_spin{n}")
        a.lab(f"L_ok{n}")
    def kv32(q):
        a(f"s_and_b32 s62, s{sW}, 3"); a("s_lshl_b32 s62, s62, 13")
        if q: a(f"s_add_u32 s62, s62, {q*32768}")
        for g in range(2):
            a(f"s_add_u32 m0, s62, {g*4096}"); a("s_add_u32 s63, s62, s14")
            if g: a("s_add_u32 s63, s63, 4096")
            for i in range(4): a(f"buffer_load_dwordx4 v{vL16}, {S(sWS)}, s63 offen offset:{i*1024} {LD} lds")
    pollF1 = f"buffer_load_dword v{vPoll}, v{vFA}, {S(sWS)}, s10 offen {SC}"
    pollF1A = f"buffer_load_dword v{vPoll}, v{vFA2}, {S(sWS)}, s10 offen {SC}"

    a(f"s_sub_u32 s66, s{sW}, 4")
    a("v_lshrrev_b32 v2, 3, v1")
    a("v_and_b32 v3, 7, v1")
    a("v_lshrrev_b32 v4, 4, v1")
    a("v_xor_b32 v5, v3, v4")
    a("v_lshlrev_b32 v5, 4, v5")
    a("v_lshl_add_u32 v6, v2, 10, v5")
    a(f"s_lshl_b32 s63, s{sR16}, 17"); a("s_lshl_b32 s64, s66, 15"); a("s_add_u32 s63, s63, s64")
    a("v_add_u32 v16, s63, v6")
    a("v_xor_b32 v17, 64, v16"); a("v_add_u32 v17, 8192, v17")
    a("v_add_u32 v18, 16384, v16"); a("v_add_u32 v19, 16384, v17")
    a("v_and_b32 v5, 1, v4")
    a("v_lshlrev_b32 v5, 2, v5")
    a("v_xor_b32 v5, v3, v5")
    a("v_lshlrev_b32 v5, 4, v5")
    a("v_mul_u32_u24 v8, 3072, v2")
    a("s_mul_i32 s63, s66, 49152")
    a("v_add3_u32 v20, v8, v5, s63")
    a("v_add_u32 v21, 24576, v20")
    a("s_lshl_b32 s3, s62, 1"); a(f"s_add_u32 s3, s3, s{sI}"); a("s_and_b32 s3, s3, 7")
    R = opt("rot", 8)
    if R == 0: a("s_mov_b32 s3, 0")
    if R == 4: a(f"s_add_u32 s3, s62, s{sI}"); a("s_and_b32 s3, s3, 3"); a("s_lshl_b32 s3, s3, 1")
    a(f"s_and_b32 s65, s{sI}, 3"); a("s_and_b32 s64, s2, 4"); a("s_add_u32 s65, s65, s64"); a("s_lshl_b32 s65, s65, 7")
    a(f"s_cmp_lt_u32 s{sI}, 4"); a("s_cselect_b32 s64, 1024, 0"); a("s_add_u32 s22, s65, s64")
    a("s_lshl_b32 s67, s66, 12"); a("s_add_u32 s67, s67, 32768")
    a("s_lshl_b32 s23, s66, 11"); a("s_add_u32 s23, s23, 32768")
    for d, sz in ((sX, 2048*512*2), (sWB, 512*1536*2)):
        a(f"s_mov_b32 s{d+2}, {sz:#x}"); a(f"s_mov_b32 s{d+3}, 0x20000")
    a("s_waitcnt lgkmcnt(0)")
    for d, lo in ((sX, 4), (sWB, 12)):
        a(f"s_mov_b32 s{d}, s{lo}"); a(f"s_and_b32 s{d+1}, s{lo+1}, 0xffff")
    def wblock(srdw, col, ldsoff):
        a(f"s_mul_i32 s63, s3, {64*3072}"); a(f"s_add_u32 s63, s63, {col}")
        for e in range(2):
            a(f"s_add_u32 m0, s23, {ldsoff + e*1024}")
            a("s_nop 0")
            a(f"buffer_load_dwordx4 v{20+e}, {S(srdw)}, s63 offen lds")
        a("s_add_u32 s3, s3, 1"); a("s_and_b32 s3, s3, 7")
    def issue(c):
        slot = c & 3
        if c < 8:
            a("s_lshl_b32 s62, s3, 7")
            for il in range(4):
                a(f"s_add_u32 m0, s67, {slot*32768 + il*1024}")
                a("s_nop 0")
                a(f"buffer_load_dwordx4 v{16+il}, {S(sX)}, s62 offen lds")
            wblock(sWB, "s22", slot*32768 + 16384)
        else:
            for sb in range(2): wblock(sX if c < 12 else sWA, "s64" if c < 12 else "s65", wpos(c, sb))
            if EARLY and c == 8: a("s_add_u32 s3, s3, 6"); a("s_and_b32 s3, s3, 7")
            if EARLY and c == 11: a("s_add_u32 s3, s3, 2"); a("s_and_b32 s3, s3, 7")
    cnt = lambda c: 0 if c > 15 else (6 if c < 8 else 4)
    a("s_lshl_b32 s64, s66, 8"); a("s_lshl_b32 s65, s3, 7"); a("s_add_u32 s65, s65, s64")
    issue(0)
    a("v_lshlrev_b32 v24, 2, v1"); a("v_add_u32 v24, s65, v24"); a("v_and_b32 v24, 0x3ff, v24")
    srd(a, sWOB, 6, 7, 1024)
    a("s_add_u32 m0, s64, 28672"); a("s_nop 0")
    a(f"buffer_load_dword v24, {S(sWOB)}, 0 offen lds")
    issue(1)
    order = list(range(8)) + ([8, 12, 9, 10, 11, 13, 14, 15] if EARLY else list(range(8, 16)))
    issued = 2
    for c in range(2, opt("up", 3)):
        issue(c); issued += 1
    srd(a, sWA, 8, 9, 512*1536*2)
    common_srds()
    ids()
    a(f"s_add_u32 s64, s{sI}, 1"); a("s_and_b32 s64, s64, 3"); a("s_and_b32 s62, s2, 4"); a("s_add_u32 s64, s64, s62")
    a("s_lshl_b32 s64, s64, 7"); a("s_add_u32 s64, s64, 2048")
    a("s_xor_b32 s65, s22, 1280")
    lsetup = attn_setup()
    for c in range(0, 16):
        a(f"s_waitcnt vmcnt({sum(cnt(i) for i in order[order.index(c)+1:issued])})")
        a("s_barrier")
        if c in (0, 3, 7, 11): stamp(a, {0:1, 3:2, 7:3, 11:4}[c], mode=4)
        while issued < 16 and (order[issued] <= c + 3 or (EARLY and order[issued] in (8, 12))):
            if issued == 8:
                a(f"s_cmp_lt_u32 s{sI}, 4")
                a(f"s_cselect_b32 s{sX}, s{sWA}, s{sWB}"); a(f"s_cselect_b32 s{sX+1}, s{sWA+1}, s{sWB+1}")
                a(f"s_mov_b32 s{sX+2}, {512*1536*2:#x}")
            issue(order[issued]); issued += 1
        if c == 12:
            gread(2)
            for x in lsetup[:85]: a(x)
            a("s_waitcnt lgkmcnt(0)")
        if c == 13:
            for x in lsetup[85:]: a(x)
    stamp(a, 1)
    a(pollF1)
    spin(pollF1, 1)
    stamp(a, 2)
    a("s_lshl_b32 s62, s66, 11"); a(f"s_add_u32 m0, s62, {QSTG}")
    a(f"s_lshl_b32 s63, s{sW}, 10"); a("s_sub_u32 s63, s11, s63"); a("s_add_u32 s63, s63, s62"); a(f"s_add_u32 s63, s63, {32*64*1024:#x}")
    for i in range(2): a(f"buffer_load_dwordx4 v{vL16}, {S(sWS)}, s63 offen offset:{i*1024} {LD} lds")
    kv32(0)
    a("s_waitcnt vmcnt(0)"); a("s_barrier")
    stamp(a, 3)
    kv32(1)
    a("s_branch L_attn")

    a.lab("L_compute")
    CPF = opt("codepf", 0)
    if CPF:
        a("s_getpc_b64 s[62:63]")
        a.lab("L_pc")
        if CPF == 1:
            a("s_lshr_b32 s64, s2, 3"); a("s_cmp_eq_u32 s64, 1"); a("s_cbranch_scc0 L_nocpf")
            a("v_lshlrev_b32 v20, 7, v0")
        else:
            a(f"s_cmp_eq_u32 s{sW}, 2"); a("s_cbranch_scc0 L_nocpf")
            a("s_lshr_b32 s64, s2, 3"); a("s_lshl_b32 s64, s64, 10")
            a("v_and_b32 v20, 7, v1"); a("v_lshlrev_b32 v20, 7, v20"); a("v_add_u32 v20, s64, v20")
        a("v_min_u32 v20, L_code_end-L_pc-4, v20")
        a("v_mov_b32 v21, s63")
        a("v_add_co_u32 v20, vcc, s62, v20")
        a("s_nop 1")
        a("v_addc_co_u32 v21, vcc, 0, v21, vcc")
        a("global_load_dword v255, v[20:21], off")
        a.lab("L_nocpf")
    a("v_lshrrev_b32 v16, 5, v1")
    a("v_and_b32 v17, 31, v1")
    a("v_lshrrev_b32 v18, 1, v17"); a("v_and_b32 v18, 7, v18")
    a(f"s_lshl_b32 s62, s{sW}, 12"); a("s_add_u32 s62, s62, 32768")
    a("v_lshlrev_b32 v19, 7, v17"); a("v_add_u32 v19, s62, v19")
    for t in range(4):
        a(f"v_add_u32 v20, {2*t}, v16"); a("v_xor_b32 v20, v20, v18")
        a(f"v_lshl_add_u32 v{vXA+t}, v20, 4, v19")
        a(f"v_add_u32 v{vXA+4+t}, 0x10000, v{vXA+t}")
    a("v_bfe_u32 v18, v1, 2, 2")
    a("v_lshl_add_u32 v19, v16, 3, v18"); a("v_lshlrev_b32 v19, 7, v19")
    a("v_bfe_u32 v20, v1, 4, 1"); a("v_lshlrev_b32 v20, 1, v20")
    a("v_bfe_u32 v21, v1, 1, 1"); a("v_add_u32 v20, v20, v21")
    a("v_bfe_u32 v21, v1, 3, 1"); a("v_lshl_or_b32 v20, v21, 2, v20")
    a("v_lshl_add_u32 v19, v20, 4, v19")
    a("v_and_b32 v20, 1, v1"); a("v_lshl_add_u32 v19, v20, 3, v19")
    a(f"v_add_u32 v{vWA}, 32768, v19"); a(f"v_xor_b32 v{vWA+1}, 64, v{vWA}")
    a(f"v_add_u32 v{vWA+2}, 0x10000, v{vWA}"); a(f"v_add_u32 v{vWA+3}, 0x10000, v{vWA+1}")
    a(f"v_lshlrev_b32 v{vGA}, 4, v16"); a(f"v_add_u32 v{vGA}, 28672, v{vGA}")
    ids()
    a(f"s_lshl_b32 s66, s{sR16}, 2"); a(f"s_add_u32 s66, s66, s{sW}")
    a(f"s_and_b32 s62, s{sI}, 3"); a("s_and_b32 s63, s2, 4"); a("s_add_u32 s62, s62, s63"); a("s_lshl_b32 s62, s62, 8")
    a("s_add_u32 s62, s62, s66")
    a("s_xor_b32 s64, s62, 512")
    a("s_add_u32 s62, s62, 2048")
    a("s_lshl_b32 s24, s62, 11"); a("s_lshl_b32 s25, s62, 10"); a(f"s_add_u32 s25, s25, {WS_Q:#x}")
    a("s_lshl_b32 s26, s64, 11"); a("s_lshl_b32 s27, s64, 10"); a(f"s_add_u32 s27, s27, {WS_Q:#x}")
    a("s_mov_b32 s28, 0x10000"); a("s_mov_b32 s29, 0x20000")
    a(f"s_cmp_lt_u32 s{sI}, 4")
    a("s_cselect_b32 s24, s24, s25"); a("s_cselect_b32 s25, s29, s28")
    a("s_cselect_b32 s26, s27, s26"); a("s_cselect_b32 s27, s28, s29")
    a("s_cselect_b32 s64, 0, 2048")
    a(f"s_add_u32 s62, s{sI}, 1"); a("s_and_b32 s62, s62, 3"); a("s_add_u32 s62, s62, s63"); a("s_lshl_b32 s62, s62, 8")
    a("s_add_u32 s62, s62, s66"); a("s_add_u32 s62, s62, s64"); a("s_lshl_b32 s28, s62, 11"); a("s_add_u32 s29, s28, 0x40000")
    a(f"s_mov_b32 s32, {QSCALE:#x}")
    a("v_mov_b32 v0, 0")
    a("s_waitcnt lgkmcnt(0)")
    common_srds()
    for i in range(4): a(f"v_mov_b32 v{20+i}, 0")
    a("v_mov_b32 v24, 1")
    a(f"s_lshl_b32 s62, s{sW}, 8"); a("s_add_u32 s62, s62, s2"); a("s_sub_u32 s62, s62, 768")
    a("s_cmp_lt_u32 s62, 8"); a("s_cbranch_scc0 L_noinit")
    a("s_lshl_b32 s62, s2, 13"); a(f"s_add_u32 s62, s62, {WS_FL:#x}"); a("s_add_u32 s63, s62, 4096")
    for i in range(8): a(f"buffer_store_dwordx4 v[20:23], v{vL16}, {S(sWS)}, s{62+(i>>2)} offen offset:{(i&3)*1024} {SC}")
    a("s_lshl_b32 s62, s2, 5")
    a("s_waitcnt vmcnt(0)")
    a("s_mov_b64 exec, 1")
    a(f"buffer_store_dword v24, v20, {S(sDBG)}, s62 offen {SC}")
    a("s_mov_b64 exec, -1")
    a.lab("L_noinit")

    def chunk_of(m): return m if m < 8 else 8 + ((m - 8) >> 1)
    def reads(m):
        c = chunk_of(m); slot = c & 3; b = m & 1; L = []
        wp = slot*32768 + 16384 if m < 8 else wpos(c, (m - 8) & 1)
        for t in range(4):
            if m < 8:
                L.append(f"ds_read_b128 {vr(XR + 4*(4*m+t), 4)}, v{vXA + 4*(slot>>1) + t} offset:{(slot&1)*32768}")
            for cc in range(2):
                for u in range(2):
                    L.append(f"ds_read_b64_tr_b16 {vr(WF[b]+8*t+4*cc+2*u,2)}, v{vWA+2*(wp>>16)+cc} offset:{(wp & 0xffff) + (16*t+4*u)*128}")
        return L
    def greads(m): return [f"ds_read_b128 {vr(GF+4*t,4)}, v{vGA} offset:{(4*m+t)*32}" for t in range(4)]
    def dots(m): return [f"v_dot2_f32_bf16 v0, v{XR+16*m+i}, v{GF+i}, v0" for i in range(16)]
    def mfmas(m):
        b = m & 1; L = []
        for t in range(4):
            x = vr(XR + 4*(4*(m & 7)+t), 4)
            for cc in range(2):
                d = vr(ACC[cc], 16); c0 = "0" if (m & 7) == 0 and t == 0 else d
                w = vr(WF[b]+8*t+4*cc, 4)
                L.append(f"v_mfma_f32_32x32x16_bf16 {d}, {x}, {w}, {c0}" if 8 <= m < 16 else f"v_mfma_f32_32x32x16_bf16 {d}, {w}, {x}, {c0}")
        return L
    ST = opt("st", "sc1")
    DEFER = opt("defer", 1)
    def stores3():
        for i in range(4):
            a(f"buffer_store_dwordx4 {vr(208+4*i,4)}, v5, {S(sWS)}, s26 offen {ST}")
            a("s_add_u32 s26, s26, s27")
    def epilogue(ph, pk):
        if ph == 0:
            a("v_and_b32 v2, 0x33, v1")
            a("v_bfe_u32 v3, v1, 2, 1"); a("v_lshl_or_b32 v2, v3, 3, v2")
            a("v_bfe_u32 v3, v1, 3, 1"); a("v_lshl_or_b32 v2, v3, 2, v2")
            a("v_lshlrev_b32 v2, 4, v2")
            a(f"v_cmp_gt_u32 vcc, 4, v6")
            a("v_and_b32 v3, 15, v1"); a("v_lshlrev_b32 v3, 4, v3")
            a(f"v_cndmask_b32 v4, v{vL16}, v2, vcc"); a(f"v_cndmask_b32 v5, v2, v{vL16}, vcc")
            a("v_lshrrev_b32 v2, 5, v1"); a("v_lshl_add_u32 v3, v2, 8, v3")
            a("v_bfe_u32 v2, v1, 4, 1"); a("v_lshl_add_u32 v3, v2, 17, v3")
            a("v_add_u32 v3, 1024, v3")
        else: a("s_nop 10")
        if ph != 1:
            a(f"s_cmp_lt_u32 s{sI}, 4"); a(f"s_cbranch_scc{1 if ph == 0 else 0} L_noscale{ph}")
            for r in range(32): a(f"v_mul_f32 v{ACC[0]+r}, s32, v{ACC[0]+r}")
            a.lab(f"L_noscale{ph}")
        sb = 24 + ph
        for cc in range(2):
            for p in range(2):
                for i in range(4): a(f"v_cvt_pk_bf16_f32 v{pk+i}, v{ACC[cc]+8*p+2*i}, v{ACC[cc]+8*p+2*i+1}")
                if ph == 1: a(f"buffer_store_dwordx4 {vr(pk,4)}, v3, {S(sWS)}, s{28+cc} offen offset:{p*512} {ST}")
                elif ph == 0 or not DEFER:
                    a(f"buffer_store_dwordx4 {vr(pk,4)}, v{4+(ph>>1)}, {S(sWS)}, s{sb} offen {ST}")
                    a(f"s_add_u32 s{sb}, s{sb}, s{sb+1}")
                pk += 4
        a("s_nop 1")
    def publishF1(stage, t1):
        a(f"v_mov_b32 v{t1}, {stage}")
        a("s_lshl_b32 s62, s2, 7"); a(f"s_add_u32 s62, s62, {WS_FL:#x}")
        a("s_mov_b64 exec, 1")
        a(f"buffer_store_dword v{t1}, v{vL16}, {S(sWS)}, s62 offen {SC}")
        a("s_mov_b64 exec, -1")
    PUB = opt("pub", 19)
    setup = attn_setup()
    per = (len(setup) + 23) // 24
    pollI = f"buffer_load_dword v114, v115, {S(sDBG)}, 0 offen {SC}"
    stamp(a, 1)
    a("s_barrier")
    stamp(a, 2, True)
    for r in reads(0) + greads(0): a(r)
    for m in range(24):
        if m >= 8 and m % 2 == 0: stamp(a, 2 + (m-8)//2, mode=3)
        if m == 7: stamp(a, 1, mode=3)
        a("s_waitcnt lgkmcnt(0)" if m != 5 else "s_waitcnt vmcnt(0) lgkmcnt(0)")
        mm = mfmas(m)
        r = reads(m+1) if m < 23 else []
        fill = [[] for _ in range(8)]
        if m < 8:
            d = dots(m)
            for g in range(4): fill[g] += d[4*g:4*g+4]
            if m < 7: fill[4] += greads(m+1)
            else: fill[4].append(f"v_mov_b32 v6, s{sI}")
        if m >= 21:
            for g in range(8):
                fill[g] += setup[:per]; setup = setup[per:]
        bar = m < 7 or (m & 1 and m < 23)
        nr = (len(r) + 4) // 5
        for i in range(8):
            a(mm[i])
            if i == 0 and bar:
                if m == PUB: a("s_waitcnt vmcnt(0)")
                a("s_barrier")
                if m == PUB:
                    a(f"s_cmp_lg_u32 s{sW}, 0"); a("s_cbranch_scc1 L_nopub1")
                    spin(pollI, 1, cnt="s65", reg=114, cmp="v_cmp_eq_u32")
                    publishF1(1, 114)
                    a.lab("L_nopub1")
                if m == 11: gread(7)
            if i < 5:
                for x in r[i*nr:(i+1)*nr]: a(x)
            for x in fill[i]: a(x)
        if m == 7:
            stamp(a, 3)
            epilogue(0, WF[1])
            a("v_mov_b32 v113, v0")
            a("s_nop 1")
            a("v_permlane32_swap_b32 v0, v113")
            a("v_add_f32 v113, v0, v113")
            a(f"v_mul_f32 v113, {f2u(-1.4426950408889634):#x}, v113")
            a("v_exp_f32 v113, v113")
            a("v_and_b32 v114, 31, v1")
            a("v_add_f32 v113, 1.0, v113")
            a("v_rcp_f32 v113, v113")
            a(f"s_lshl_b32 s62, s{sW}, 7"); a("s_add_u32 s62, s62, 29696")
            a("v_lshl_add_u32 v114, v114, 2, s62")
            a("ds_write_b32 v114, v113")
            a("v_and_b32 v115, 7, v1"); a("v_lshlrev_b32 v115, 5, v115")
        if m == 15:
            stamp(a, 1, mode=4)
            epilogue(1, WF[1])
            a(f"s_cmp_lg_u32 s{sW}, 0"); a("s_cbranch_scc1 L_noip")
            a(pollI)
            a.lab("L_noip")
    assert not setup
    stamp(a, 4)
    epilogue(2, 208)
    a("s_barrier")

    a.lab("L_attn")
    def rdK(buf, addr, off): a(f"ds_read_b128 {vr(KB[buf],4)}, v{addr} offset:{off}")
    def rdV(buf, addr, off):
        a("s_mov_b64 exec, s[22:23]")
        a(f"ds_read_b128 {vr(VB[buf][0],4)}, v{addr} offset:{off}")
        a(f"ds_read_b128 {vr(VB[buf][1],4)}, v{addr} offset:{off+512}")
        a("s_mov_b64 exec, -1")
    def mfma(dst, kbuf, q, c): a(f"v_mfma_f32_32x32x16_bf16 {vr(dst,16)}, {vr(KB[kbuf],4)}, {vr(q,4)}, {c}")
    def smf(vreg, sreg): a(f"v_smfmac_f32_32x32x32_bf16 {vr(OA,16)}, {vr(vreg,4)}, {vr(sreg,8)}, v{vIDX}")
    def ex(s, i): a(f"v_exp_f32 v{s+i}, v{s+i}")
    def halves_max():
        a(f"v_mov_b32 v{vT}, v{vM}")
        a("s_nop 1")
        a(f"v_permlane32_swap_b32 v{vM}, v{vT}")
        a(f"v_max_f32 v{vM}, v{vM}, v{vT}")
    def rowmax(s):
        a(f"v_max3_f32 v{vM}, v{s}, v{s+1}, v{vMF}")
        for i in range(2, 16, 2): a(f"v_max3_f32 v{vM}, v{s+i}, v{s+i+1}, v{vM}")
        halves_max()
    def tile(t, first, do_mfma, q, c, kread, vread, pre_mfma=None, extra=None):
        cur, prev = SB[t & 1], SB[(t+1) & 1]
        a("s_setprio 1")
        ex(cur, 0); ex(cur, 1)
        if not first: smf(VB[(t-1) & 1][1], prev+8)
        a("s_waitcnt lgkmcnt(0)")
        if kread is not None: rdK(t & 1, *kread)
        if vread is not None: rdV((t+1) & 1, *vread)
        ex(cur, 2); ex(cur, 3); ex(cur, 4)
        if do_mfma:
            if pre_mfma: pre_mfma()
            mfma(prev, (t+1) & 1, q, c)
        for i in range(5, 10): ex(cur, i)
        smf(VB[t & 1][0], cur)
        for i in range(10, 14): ex(cur, i)
        a("s_setprio 0")
        if extra: extra()
        ex(cur, 14); ex(cur, 15)
    def a_first():
        rdK(0, vKa, 8*2048); rdK(1, vKa, 7*2048); rdV(0, vVa, 8*2048)
        a("s_waitcnt lgkmcnt(3)")
        mfma(SB[0], 0, QA, vr(CD, 16))
    def finish(tlast, fb_label, done_label, br):
        a("s_nop 1")
        smf(VB[tlast & 1][1], SB[tlast & 1]+8)
        if br:
            a.lab("L_B_fin"); a_first(); a("s_nop 4")
        else: a("s_nop 11")
        a(f"v_add_f32 v{vT}, abs(v{OA}), v{OA+8}")
        for i in range(1, 8): a(f"v_add_f32 v{vT}, abs(v{OA+i}), v{vT}")
        a(f"v_rcp_f32 v{vT2}, v{OA+8}")
        a(f"v_cmp_gt_f32 vcc, 0x71800000, v{vT}")
        a("s_cmp_lg_u32 s8, 0"); a(f"s_cbranch_scc1 {done_label}")
        a("s_cmp_eq_u64 vcc, -1"); a(f"s_cbranch_scc0 {fb_label}")
        a.lab(done_label)
        for i in range(8): a(f"v_mul_f32 v{OA+i}, v{vT2}, v{OA+i}")
        for i in range(4): a(f"v_cvt_pk_bf16_f32 v{PK[br]+i}, v{OA+2*i}, v{OA+2*i+1}")
        if br:
            a(f"buffer_store_dwordx4 {vr(PK[0],4)}, v{vL16}, {S(sWS)}, s15 offen {SC}")
        else:
            for i in range(4): a(f"v_min_u32 v{PK[0]+i}, -2, v{PK[0]+i}")
        a(f"s_add_u32 s62, s15, {br*32*1024}")
        a(f"buffer_store_dwordx4 {vr(PK[br],4)}, v{vL16}, {S(sWS)}, s62 offen {SC}")
    def publishF2(stage):
        a(f"v_mov_b32 v{vT}, {stage}")
        a("s_mov_b64 exec, 1")
        a(f"buffer_store_dword v{vT}, v{vL16}, {S(sWS)}, s16 offen {SC}")
        a("s_mov_b64 exec, -1")
    def wo_blocks(srdw, n):
        for i in range(n):
            a("s_mov_b32 m0, s19"); a("s_add_u32 s19, s19, 1024")
            a(f"buffer_load_dwordx4 v{vWo}, {S(srdw)}, s18 offen lds")
            a("s_add_u32 s18, s18, 8192")
    def wo_at(nreg):
        a(f"s_lshl_b32 s19, {nreg}, 10"); a(f"s_and_b32 s18, {nreg}, 63"); a("s_lshl_b32 s18, s18, 13")
        a(f"s_lshl_b32 s63, s{sJ}, 7"); a("s_add_u32 s18, s18, s63")

    stamp(a, 5, True)
    hold(1)
    a(f"ds_read_b128 {vr(QB,4)}, v{vKb}")
    rdK(0, vL16, 0); rdK(1, vL16, 2048); rdV(0, vVb, 0); rdV(1, vVb, 0)
    a(f"v_mov_b32 v{vKb}, v{vL16}")
    for r in range(8, 16): a(f"v_mov_b32 v{SB[1]+r}, 0")
    a("s_waitcnt lgkmcnt(5)")
    mfma(SB[0], 0, QB, "0")
    a("s_nop 11")
    rowmax(SB[0])
    for r in range(16): a(f"v_sub_f32 v{CM+r}, 0, v{vM}")
    a("s_nop 1")
    mfma(SB[0], 0, QB, vr(CM, 16))
    a("s_waitcnt lgkmcnt(0)")
    stamp(a, 1, True, mode=1)
    a("s_mov_b32 s17, 0")
    a("s_nop 8")
    a.raw(".p2align 6")
    a.lab("L_B_body")
    for t in range(8):
        tile(t, False, True, QB, vr(CM, 16), (vKb, (t+2)*2048), (vVb, (t+1)*2048))
    a(f"v_add_u32 v{vKb}, 16384, v{vKb}")
    a(f"v_add_u32 v{vVb}, 16384, v{vVb}")
    a("s_add_u32 s17, s17, 1"); a("s_cmp_lt_u32 s17, 8"); a("s_cbranch_scc1 L_B_stub")
    stamp(a, 6)
    stamp(a, 9, mode=1)
    finish(7, "L_B_fb", "L_B_done", 1)
    a("s_mov_b32 s8, 0")
    for r in range(16): a(f"v_mov_b32 v{OA+r}, 0")
    stamp(a, 7)
    hold(2)
    a.lab("L_A_max")
    rowmax(SB[0])
    for r in range(16): a(f"v_sub_f32 v{SB[0]+r}, v{SB[0]+r}, v{vM}")
    for r in range(16): a(f"v_sub_f32 v{CM+r}, 0, v{vM}")
    for r in range(16): a(f"v_sub_f32 v{CF+r}, v{CF+r}, v{vM}")
    def oloads(br):
        a(f"s_add_u32 s62, s20, {br*32768}"); a("s_add_u32 s63, s62, 4096")
        for i in range(8):
            a(f"buffer_load_dwordx4 {vr(OF[1-br]+4*i,4)}, v{vL16}, {S(sWS)}, s{62+(i>>2)} offen offset:{(i&3)*1024} {LD}")
    pollF2 = f"buffer_load_dword v{vPoll}, v{vFA}, {S(sWS)}, s10 offen {SC}"
    for t in range(9):
        def pm(t=t):
            if t < 7:
                a(f"s_cmp_lg_u32 s7, {t}"); a(f"s_cbranch_scc1 L_A_mid{t}")
                a("s_nop 7")
                for r in range(16): a(f"v_mov_b32 v{CM+r}, s5")
                a("s_nop 1")
                a.lab(f"L_A_mid{t}")
        def extra(t=t):
            if t not in (0, 1, 3, 6, 8): return
            a("s_cmp_lg_u32 s8, 0"); a(f"s_cbranch_scc1 L_A_x{t}")
            if t == 0:
                a("s_barrier")
                a(f"s_lshl_b32 s62, s{sW}, 2"); a("s_add_u32 s62, s62, 96"); wo_at("s62")
            if t < 2: wo_blocks(sWOB, 2)
            if t == 3:
                a("s_waitcnt vmcnt(4)"); a("s_barrier")
                a(f"s_cmp_lg_u32 s{sW}, 0"); a(f"s_cbranch_scc1 L_A_x{t}")
                publishF2(1)
            if t == 6: a(pollF2)
            if t == 8:
                spin(pollF2, 1, cnt="s64")
                oloads(1)
            a.lab(f"L_A_x{t}")
        tile(t, t == 0, t < 8, QA, vr(CM if t < 7 else CF, 16),
             (vKa, (8-(t+2))*2048) if t+2 <= 8 else None,
             (vVa, (8-(t+1))*2048) if t+1 <= 8 else None, pm, extra)
    finish(8, "L_A_fb", "L_A_done", 0)
    stamp(a, 8)
    stamp(a, 1, mode=2)
    a("s_barrier")
    stamp(a, 2, True, mode=2)
    WR = lambda i, c: 128 + 8*i + 4*c
    def wreads(i):
        for c in range(2):
            for u in range(2):
                a(f"ds_read_b64_tr_b16 {vr(WR(i,c)+2*u,2)}, v{vPW0+c} offset:{i*2048+u*1024}")
    def pm(br, i):
        for c in range(2):
            d = vr(PACC[br][c], 16)
            a(f"v_mfma_f32_32x32x16_bf16 {d}, {vr(WR(i,c),4)}, {vr(OF[1-br]+4*i,4)}, {'0' if i == 0 else d}")
    pollO = f"buffer_load_dword v{vPoll}, v{vFA2}, {S(sWS)}, s20 offen {SC}"
    wreads(0); wreads(1)
    for i in range(8):
        if i < 6: wreads(i+2)
        a(f"s_waitcnt vmcnt({8-i}) lgkmcnt({8 if i < 6 else 4*(7-i)})")
        pm(1, i)
    a(pollO)
    a(f"v_subrev_u32 v{vPW0}, 0x10000, v{vPW0}"); a(f"v_subrev_u32 v{vPW1}, 0x10000, v{vPW1}")
    stamp(a, 9)
    stamp(a, 4, mode=2)
    a("s_barrier")
    for i in range(8): wreads(i)
    a(f"v_sub_f32 v{vT}, 1.0, v{vG}")
    for c in range(2):
        for r in range(16): a(f"v_mul_f32 v{PACC[1][c]+r}, v{vT}, v{PACC[1][c]+r}")
    stamp(a, 5, mode=2)
    spin(pollO, -1, cnt="s64", cmp="v_cmp_ne_u32")
    stamp(a, 6, mode=2)
    a(f"s_mov_b32 s64, {SPIN}")
    a.lab("L_O_retry")
    oloads(0)
    for i in range(8):
        a(f"s_waitcnt vmcnt({7-i}) lgkmcnt(0)")
        if i == 0: stamp(a, 7, mode=2)
        pm(0, i)
        b = OF[1]+4*i
        a(f"v_max3_u32 v{vT}, v{b}, v{b+1}, {0 if i == 0 else 'v%d' % vT}")
        a(f"v_max3_u32 v{vT}, v{b+2}, v{b+3}, v{vT}")
    a(f"v_cmp_ne_u32 vcc, -1, v{vT}")
    a("s_sub_u32 s64, s64, 1"); a("s_cbranch_scc1 L_O_ok")
    a("s_cmp_eq_u64 vcc, -1"); a("s_cbranch_scc0 L_O_retry")
    a.lab("L_O_ok")
    stamp(a, 8, mode=2)
    a("s_nop 6")
    for c in range(2):
        for g in range(4):
            for r in range(4*g, 4*g+4): a(f"v_fmac_f32 v{PACC[1][c]+r}, v{vG}, v{PACC[0][c]+r}")
            a(f"ds_write_b128 v2, {vr(PACC[1][c]+4*g,4)} offset:{(c*4+g)*1088}")
    a("s_waitcnt lgkmcnt(0)"); a("s_barrier")
    stamp(a, 9, True, mode=2)
    for kq in range(4):
        for h in range(2):
            a(f"ds_read_b128 {vr(16+kq*8+h*4,4)}, v7 offset:{kq*PW + h*512}")
    a("s_waitcnt lgkmcnt(4)")
    for i in range(8): a(f"v_add_f32 v{16+i}, v{16+i}, v{24+i}")
    a("s_waitcnt lgkmcnt(0)")
    for i in range(8): a(f"v_add_f32 v{32+i}, v{32+i}, v{40+i}")
    for i in range(8): a(f"v_add_f32 v{16+i}, v{16+i}, v{32+i}")
    for i in range(4): a(f"v_cvt_pk_bf16_f32 v{48+i}, v{16+2*i}, v{16+2*i+1}")
    a(f"buffer_store_dwordx4 v[48:51], v8, {S(sOUT)}, s21 offen")
    if HOLD >= 0:
        hold(3)
        if opt("x_who") is not None:
            a(f"s_cmp_lg_u32 s2, {opt('x_who')}"); a("s_cbranch_scc1 L_end")
        a.lab("L_hold")
        a("s_memrealtime s[62:63]"); a("s_waitcnt lgkmcnt(0)")
        a("s_sub_u32 s62, s62, s70"); a("s_cmp_lt_u32 s62, 6000"); a("s_cbranch_scc1 L_hold")
    if Cfg.stamp:
        a("s_waitcnt vmcnt(0)")
        a("s_memtime s[96:97]"); a("s_waitcnt lgkmcnt(0)")
        stamp_out(a, 0, 10, sWS, sW, 8)
        a("s_nop 1"); a("v_mov_b32 v1, s96"); a(f"buffer_store_dword v1, v0, {S(sWS)}, s94 offen offset:40")
    a.lab("L_end")
    a("s_endpgm")

    a.lab("L_B_stub")
    for i in range(2, 8):
        a(f"s_cmp_eq_u32 s17, {i}"); a(f"s_cbranch_scc1 L_B_stub{i}")
    stamp(a, 2, mode=1)
    a("s_waitcnt vmcnt(0)"); a("s_barrier")
    a(f"s_cmp_ge_u32 s{sW}, 4"); a("s_cbranch_scc1 L_B_body")
    kv32(2)
    if DEFER: stores3()
    a("s_branch L_B_body")
    a.lab("L_B_stub2")
    stamp(a, 3, mode=1)
    a(f"s_cmp_lt_u32 s{sW}, 4"); a("s_cbranch_scc1 L_B_body")
    kv32(3)
    a("s_branch L_B_body")
    a.lab("L_B_stub3")
    stamp(a, 4, mode=1)
    a("s_waitcnt vmcnt(0)"); a("s_barrier")
    a(f"s_and_b32 s62, s{sW}, 3"); a("s_cbranch_scc1 L_B_body")
    a(f"s_cmp_eq_u32 s{sW}, 0"); a("s_cbranch_scc0 L_B_stub3b")
    publishF1(2, vT)
    a.lab("L_B_stub3b")
    a(f"v_lshlrev_b32 v{vT2}, 10, v1")
    a(f"s_and_b32 s62, s{sRB}, 7"); a("s_lshl_b32 s62, s62, 16"); a(f"s_lshl_b32 s63, s{sJ}, 7"); a("s_add_u32 s62, s62, s63")
    a(f"s_cmp_eq_u32 s{sW}, 0"); a("s_cbranch_scc0 L_B_stub3c")
    a(f"buffer_load_dword v243, v{vT2}, {S(sWOA)}, s62 offen")
    a("s_branch L_B_body")
    a.lab("L_B_stub3c")
    a(f"buffer_load_dword v243, v{vT2}, {S(sWOB)}, s62 offen")
    a("s_branch L_B_body")
    a.lab("L_B_stub4")
    stamp(a, 5, mode=1)
    a(pollF1A)
    a("s_branch L_B_body")
    a.lab("L_B_stub5")
    stamp(a, 6, mode=1)
    spin(pollF1A, 2)
    a(f"s_lshl_b32 s62, s{sW}, 12"); a(f"s_lshl_b32 s63, s{sB}, 14"); a("s_add_u32 s63, s63, s62")
    a("s_add_u32 m0, s62, 131072")
    a("s_cmp_lt_u32 s63, 16384"); a("s_cselect_b32 s62, 0, 16384")
    a("s_add_u32 s63, s63, s13"); a("s_sub_u32 s63, s63, s62")
    for i in range(4): a(f"buffer_load_dwordx4 v{vL16}, {S(sWS)}, s63 offen offset:{i*1024} {LD} lds")
    a(f"buffer_load_dwordx4 {vr(QA,4)}, v{vL16}, {S(sWS)}, s11 offen {LD}")
    a("s_lshl_b32 s16, s2, 7"); a(f"s_add_u32 s16, s16, {WS_F2:#x}")
    a(f"v_and_b32 v{vFA2}, 7, v1"); a(f"v_lshlrev_b32 v{vFA2}, 10, v{vFA2}")
    for i in range(4): a(f"v_mov_b32 v{PK[0]+i}, -1")
    a(f"v_bfe_u32 v{vT}, v1, 2, 1"); a(f"v_and_b32 v{vFA}, 3, v1"); a(f"v_lshl_add_u32 v{vFA}, v{vFA}, 3, v{vT}"); a(f"v_lshlrev_b32 v{vFA}, 7, v{vFA}")
    a(f"s_lshr_b32 s10, s{sW}, 1"); a("s_lshl_b32 s10, s10, 8")
    a(f"s_lshr_b32 s62, s{sRB}, 2"); a("s_lshl_b32 s62, s62, 12"); a("s_add_u32 s10, s10, s62")
    a(f"s_add_u32 s10, s10, {WS_F2:#x}")
    a(f"s_lshl_b32 s20, s{sRB}, 17"); a(f"s_and_b32 s62, s{sW}, 1"); a("s_lshl_b32 s62, s62, 16"); a("s_add_u32 s20, s20, s62")
    a(f"s_lshr_b32 s62, s{sW}, 1"); a("s_lshl_b32 s62, s62, 13"); a("s_add_u32 s20, s20, s62"); a(f"s_add_u32 s20, s20, {WS_O:#x}")
    a(f"v_lshrrev_b32 v{vT}, 5, v1"); a(f"v_bfe_u32 v{vT2}, v1, 2, 2")
    a(f"v_lshl_add_u32 v{vPW0}, v{vT}, 2, v{vT2}"); a(f"v_lshlrev_b32 v{vPW0}, 7, v{vPW0}")
    a(f"v_bfe_u32 v{vT}, v1, 4, 1"); a(f"v_lshlrev_b32 v{vT}, 1, v{vT}")
    a(f"v_bfe_u32 v{vT2}, v1, 1, 1"); a(f"v_add_u32 v{vT}, v{vT}, v{vT2}")
    a(f"v_bfe_u32 v{vT2}, v1, 3, 1"); a(f"v_lshl_or_b32 v{vT}, v{vT2}, 2, v{vT}")
    a(f"v_lshl_add_u32 v{vPW0}, v{vT}, 4, v{vPW0}")
    a(f"v_and_b32 v{vT}, 1, v1"); a(f"v_lshl_add_u32 v{vPW0}, v{vT}, 3, v{vPW0}")
    a(f"s_lshr_b32 s62, s{sW}, 1"); a("s_lshl_b32 s62, s62, 14"); a("s_add_u32 s62, s62, 65536")
    a(f"v_add_u32 v{vPW0}, s62, v{vPW0}")
    a(f"v_xor_b32 v{vPW1}, 64, v{vPW0}")
    a(f"s_lshr_b32 s62, s{sW}, 1"); a(f"s_mul_i32 s62, s62, {PW}"); a(f"s_and_b32 s63, s{sW}, 1"); a(f"s_mul_i32 s63, s63, {8*1088}")
    a("s_add_u32 s62, s62, s63"); a("s_add_u32 s62, s62, 65536")
    a(f"v_add_u32 v2, s62, v{vL16}")
    a("v_and_b32 v5, 7, v1"); a("v_lshrrev_b32 v6, 3, v1")
    a(f"s_and_b32 s62, s{sW}, 3"); a("s_lshl_b32 s62, s62, 3"); a("v_add_u32 v6, s62, v6")
    a("v_mul_u32_u24 v7, 1088, v5"); a("v_lshl_add_u32 v7, v6, 4, v7")
    a(f"s_lshr_b32 s62, s{sW}, 2"); a(f"s_mul_i32 s63, s62, {8*1088}"); a("s_add_u32 s63, s63, 65536")
    a("v_add_u32 v7, s63, v7")
    a("v_lshlrev_b32 v8, 10, v6"); a("v_lshl_add_u32 v8, v5, 4, v8")
    a("s_lshl_b32 s62, s62, 15"); a(f"s_lshl_b32 s63, s{sRB}, 16"); a("s_add_u32 s62, s62, s63")
    a(f"s_lshl_b32 s63, s{sJ}, 7"); a("s_add_u32 s21, s62, s63")
    a("s_branch L_B_body")
    a.lab("L_B_stub6")
    stamp(a, 7, mode=1)
    a("s_waitcnt vmcnt(0)"); a("s_barrier")
    a(f"s_cmp_ge_u32 s{sW}, 4"); a("s_cbranch_scc1 L_B_body")
    a(f"s_mul_i32 s62, s{sW}, 12"); wo_at("s62")
    wo_blocks(sWOA, 12)
    a("s_branch L_B_body")
    a.lab("L_B_stub7")
    stamp(a, 8, mode=1)
    a(f"s_cmp_lt_u32 s{sW}, 4"); a("s_cbranch_scc1 L_B_body")
    a(f"s_lshl_b32 s62, s{sW}, 2"); a("s_add_u32 s62, s62, 32"); wo_at("s62")
    wo_blocks(sWOA, 4)
    a(f"s_lshl_b32 s62, s{sW}, 3"); a("s_add_u32 s62, s62, 32"); wo_at("s62")
    wo_blocks(sWOB, 8)
    a("s_branch L_B_body")
    a.lab("L_A_fb")
    a("s_waitcnt lgkmcnt(0)")
    a("s_mov_b32 s8, 1")
    a(f"s_sub_u32 s17, 8, s{sW}"); a(f"s_cmp_eq_u32 s{sB}, 0"); a("s_cselect_b32 s17, s17, 0")
    a.lab("L_A_fb_loop")
    a("s_lshl_b32 s62, s17, 11")
    a(f"v_add_u32 v{vT}, s62, v{vKa}")
    rdK(0, vT, 0)
    a("s_sub_u32 s62, 8, s17"); a("s_lshl_b32 s62, s62, 5")
    a(f"v_add_u32 v{vT2}, s62, v{vQH}")
    a(f"v_mov_b32 v{vM}, s5")
    a("s_movk_i32 s62, 256")
    a("s_waitcnt lgkmcnt(0)")
    mfma(SB[0], 0, QA, "0")
    a("s_nop 15")
    for r in range(16):
        a(f"v_subrev_u32 v{vT}, {(r & 7) + 16*(r >> 3)}, v{vT2}")
        a(f"v_cmp_gt_u32 vcc, s62, v{vT}")
        a("s_nop 1")
        a(f"v_cndmask_b32 v{vT}, v{vM}, v{SB[0]+r}, vcc")
        a(f"v_max_f32 v{vMF}, v{vMF}, v{vT}")
    a("s_add_u32 s17, s17, 1"); a("s_cmp_lt_u32 s17, 9"); a("s_cbranch_scc1 L_A_fb_loop")
    for x in masks(): a(x)
    a_first()
    a("s_nop 15")
    a("s_branch L_A_max")
    a.lab("L_B_fb")
    a("s_waitcnt lgkmcnt(0)")
    a("s_mov_b32 s8, 1")
    a("s_mov_b32 s17, s14"); a("s_add_u32 s62, s14, 131072")
    a(f"v_mov_b32 v{vM}, s5")
    a(f"v_and_b32 v{vVb}, 0x7ff, v{vVb}")
    a.lab("L_B_fb_max")
    a(f"buffer_load_dwordx4 {vr(KB[0],4)}, v{vL16}, {S(sWS)}, s17 offen {LD}")
    a("s_add_u32 s17, s17, 2048")
    a("s_waitcnt vmcnt(0)")
    mfma(SB[0], 0, QB, "0")
    a("s_nop 15")
    for i in range(0, 16, 2): a(f"v_max3_f32 v{vM}, v{SB[0]+i}, v{SB[0]+i+1}, v{vM}")
    a("s_cmp_lt_u32 s17, s62"); a("s_cbranch_scc1 L_B_fb_max")
    halves_max()
    for r in range(16): a(f"v_sub_f32 v{CM+r}, 0, v{vM}")
    for r in range(16): a(f"v_mov_b32 v{OA+r}, 0")
    a("s_mov_b32 s17, s14")
    a.lab("L_B_fb_acc")
    a(f"buffer_load_dwordx4 {vr(KB[0],4)}, v{vL16}, {S(sWS)}, s17 offen {LD}")
    a("s_mov_b64 exec, s[22:23]")
    a(f"buffer_load_dwordx4 {vr(VB[0][0],4)}, v{vVb}, {S(sWS)}, s17 offen {LD}")
    a(f"buffer_load_dwordx4 {vr(VB[0][1],4)}, v{vVb}, {S(sWS)}, s17 offen offset:512 {LD}")
    a("s_mov_b64 exec, -1")
    a("s_add_u32 s17, s17, 2048")
    a("s_waitcnt vmcnt(0)")
    mfma(SB[0], 0, QB, vr(CM, 16))
    a("s_nop 15")
    for i in range(16): ex(SB[0], i)
    a("s_nop 1")
    smf(VB[0][0], SB[0]); smf(VB[0][1], SB[0]+8)
    a("s_cmp_lt_u32 s17, s62"); a("s_cbranch_scc1 L_B_fb_acc")
    a("s_branch L_B_fin")
    a.lab("L_code_end")
    d = desc(K, 256, 72, 256)
    if Cfg.stamp: d = d.replace("next_free_sgpr 96", "next_free_sgpr 100")
    return a.text(), d

def main(out):
    t, d = gen()
    hdr = f"""; gated_mix(sliding-window MHA, full MHA), one fused launch:
; @launch grid=(256,1,1) block=(512,1,1) lds=163840
.amdgcn_target "amdgcn-amd-amdhsa--gfx950"
"""
    open(out, "w").write(hdr + t + d)

if __name__ == "__main__":
    main(parse_args())
```

```python
from common import *

WS_FL = 16 << 20
WS_F2 = WS_FL + 32768
SC = "sc1"
SPIN = 1 << 17
PW = 16*1088

sX, sWB, sWA, sWS, sWOA, sOUT, sDBG, sWOB = 24, 28, 32, 36, 40, 44, 48, 52
sW, sRB, sJ, sHD, sB, sQT, sR16, sI = 56, 57, 58, 59, 60, 61, 68, 69
S = lambda b: f"s[{b}:{b+3}]"
vXA = 2
vWA = 10
vL16, vGA = 14, 15
WF = [16, 48]
ACC = [80, 96]
GF = 112
XR = 128
vG, QB, QA = 112, 116, 120
CF, CD = 128, 144
VB = [[160, 164], [168, 172]]
OA = 176
vIDX, vKa, vVa, vKb, vVb, vT, vM, vMF, vT2, vQH, vFA, vWo = range(192, 204)
vFA2 = 204
vPoll = 206
KB = [16, 20]
SB = [32, 48]
CM = 64
PK = [244, 248]
OF = [208, 16]
PACC = [[48, 64], [80, 96]]
vPW0, vPW1 = 240, 241
QSTG = 152*1024

def gen():
    LD = "sc1"
    HOLD = opt("x_hold", -1)
    def hold(k):
        if HOLD == k: a("s_memrealtime s[70:71]"); a("s_waitcnt lgkmcnt(0)")
    EARLY = opt("early", 1)
    def wpos(c, sb):
        if EARLY and c == 8: return (2+sb)*32768 + 24576
        if EARLY and c == 12: return sb*32768 + 24576
        return (c & 3)*32768 + sb*8192
    a = A(); K = NAME + "_kernel"; head(a, K)
    a("s_cmp_ge_u32 s2, 256"); a("s_cbranch_scc1 L_end")
    stamp(a, 0)
    hold(0)
    a("s_load_dwordx2 s[4:5], s[0:1], 0")
    a("s_load_dwordx4 s[12:15], s[0:1], 32")
    a("s_load_dwordx4 s[8:11], s[0:1], 8")
    a("s_load_dwordx2 s[6:7], s[0:1], 48")
    a("s_load_dwordx4 s[16:19], s[0:1], 56")
    a("s_load_dwordx2 s[20:21], s[0:1], 72")
    a("v_lshrrev_b32 v2, 6, v0")
    a("v_and_b32 v1, 63, v0")
    a("s_bfe_u32 s62, s2, 0x20003")
    a(f"v_readfirstlane_b32 s{sW}, v2")
    a("s_and_b32 s63, s2, 3"); a("s_lshl_b32 s63, s63, 2"); a(f"s_add_u32 s{sR16}, s63, s62")
    a(f"s_lshr_b32 s{sI}, s2, 5")
    a(f"v_lshlrev_b32 v{vL16}, 4, v1")
    a(f"s_cmp_lt_u32 s{sW}, 4"); a("s_cbranch_scc1 L_compute")

    def ids():
        a(f"s_lshl_b32 s{sRB}, s{sR16}, 1"); a(f"s_and_b32 s62, s{sI}, 1"); a(f"s_add_u32 s{sRB}, s{sRB}, s62")
        a(f"s_and_b32 s{sJ}, s2, 4"); a(f"s_lshr_b32 s62, s{sI}, 1"); a(f"s_add_u32 s{sJ}, s{sJ}, s62")
        a(f"s_and_b32 s{sHD}, s2, 7"); a(f"s_lshl_b32 s{sHD}, s{sHD}, 2"); a("s_bfe_u32 s62, s2, 0x20003"); a(f"s_add_u32 s{sHD}, s{sHD}, s62")
        a(f"s_mov_b32 s{sB}, s{sI}")
        a(f"s_lshl_b32 s{sQT}, s{sB}, 3"); a(f"s_add_u32 s{sQT}, s{sQT}, s{sW}")
    def common_srds():
        srd(a, sWS, 20, 21, ws_size())
        srd(a, sOUT, 16, 17, 2048*512*2)
        srd(a, sDBG, 18, 19, 256)
        srd(a, sWOA, 10, 11, 512*512*2)
        srd(a, sWOB, 14, 15, 512*512*2)

    def attn_setup():
        L = []; e = L.append
        e(f"s_lshl_b32 s11, s{sHD}, 6"); e(f"s_add_u32 s11, s11, s{sQT}"); e("s_lshl_b32 s11, s11, 10")
        e(f"s_add_u32 s11, s11, {WS_Q:#x}")
        e(f"s_lshl_b32 s13, s{sHD}, 17")
        e(f"s_add_u32 s14, s13, {32*131072:#x}")
        e("s_and_b32 s10, s2, 4"); e("s_lshl_b32 s10, s10, 7"); e(f"s_add_u32 s10, s10, {WS_FL:#x}")
        e("s_and_b32 s4, s2, 3"); e("s_add_u32 s5, s4, 3"); e("s_and_b32 s5, s5, 3"); e("s_xor_b32 s6, s4, 2")
        e("s_mul_i32 s7, s4, 0x1011"); e("s_lshl_b32 s9, s5, 8"); e("s_add_u32 s7, s7, s9"); e("s_add_u32 s7, s7, 0x440")
        e("s_mul_i32 s5, s5, 0x1001"); e("s_mul_i32 s6, s6, 0x110"); e("s_add_u32 s5, s5, s6"); e("s_add_u32 s5, s5, 0x400")
        e(f"v_bfe_u32 v{vT}, v1, 2, 2"); e(f"v_and_b32 v{vT2}, 3, v1"); e(f"v_lshl_add_u32 v{vT}, v{vT2}, 3, v{vT}")
        e(f"v_lshlrev_b32 v{vT}, 7, v{vT}")
        e(f"v_lshrrev_b32 v{vT2}, 4, v1"); e(f"v_lshlrev_b32 v{vT2}, 2, v{vT2}")
        e(f"v_bfe_u32 v{vFA}, s7, v{vT2}, 4"); e(f"v_lshl_add_u32 v{vFA}, v{vFA}, 12, v{vT}")
        e(f"v_bfe_u32 v{vFA2}, s5, v{vT2}, 4"); e(f"v_lshl_add_u32 v{vFA2}, v{vFA2}, 12, v{vT}")
        e(f"v_lshrrev_b32 v{vT}, 3, v1"); e(f"v_bfe_u32 v{vT2}, v1, 4, 1"); e(f"v_lshlrev_b32 v{vT2}, 2, v{vT2}")
        e(f"v_and_b32 v{vWo}, 7, v1"); e(f"v_xor_b32 v{vWo}, v{vWo}, v{vT2}"); e(f"v_lshlrev_b32 v{vWo}, 4, v{vWo}")
        e(f"v_lshl_add_u32 v{vWo}, v{vT}, 10, v{vWo}")
        e(f"v_mov_b32 v{vIDX}, 0xdddddddd")
        e("s_mov_b32 s22, 0x0000ffff"); e("s_mov_b32 s23, 0x0000ffff")
        e(f"v_lshrrev_b32 v{vQH}, 5, v1")
        e(f"v_and_b32 v{vVb}, 15, v1"); e(f"v_lshlrev_b32 v{vVb}, 4, v{vVb}")
        e(f"v_lshl_add_u32 v{vVb}, v{vQH}, 8, v{vVb}"); e(f"v_add_u32 v{vVb}, 1024, v{vVb}")
        e(f"s_lshl_b32 s4, s{sW}, 11"); e("s_add_u32 s4, s4, 131072")
        e(f"v_add_u32 v{vKa}, s4, v{vL16}")
        e(f"v_add_u32 v{vVa}, s4, v{vVb}")
        e(f"s_lshl_b32 s4, s{sW}, 10"); e(f"s_add_u32 s4, s4, {QSTG}")
        e(f"v_add_u32 v{vKb}, s4, v{vL16}")
        e(f"v_and_b32 v{vM}, 31, v1")
        e(f"v_lshlrev_b32 v{vQH}, 3, v{vQH}"); e(f"v_sub_u32 v{vQH}, v{vM}, v{vQH}")
        e(f"v_and_b32 v{vT}, 0x1b, v{vM}")
        e(f"v_cmp_eq_u32 vcc, 16, v{vT}")
        e(f"v_mov_b32 v{vT2}, 0x3f803f80")
        e(f"v_mov_b32 v{vT}, 0")
        for b in range(2):
            for j in range(2):
                for i in range(4): e(f"v_cndmask_b32 v{VB[b][j]+i}, v{vT}, v{vT2}, vcc")
        e(f"s_mov_b32 s5, {NEG_INF:#x}")
        e(f"s_cmp_eq_u32 s{sB}, 0\n    s_cselect_b32 s6, s5, 0\n    s_cselect_b32 s7, s{sW}, 64")
        e(f"v_mov_b32 v{vMF}, s5")
        e("s_mov_b32 s8, 0")
        e(f"s_lshl_b32 s15, s{sQT}, 6"); e(f"s_add_u32 s15, s15, s{sHD}"); e("s_lshl_b32 s15, s15, 10")
        e(f"s_add_u32 s15, s15, {WS_O:#x}")
        L += masks()
        return L
    def masks():
        L = []; e = L.append
        e(f"v_mov_b32 v{vT}, s5"); e(f"v_mov_b32 v{vT2}, s6")
        for r in range(16):
            e(f"v_cmp_le_i32 vcc, {(r & 7) + 16*(r >> 3)}, v{vQH}")
            e(f"v_mov_b32 v{OA+r}, 0")
            e("s_nop 0")
            e(f"v_cndmask_b32 v{CD+r}, v{vT}, v{OA+r}, vcc")
            e(f"v_cndmask_b32 v{CF+r}, v{vT2}, v{vT}, vcc")
        return L
    def gread(t):
        a(f"s_and_b32 s62, s{sI}, 1"); a("s_lshl_b32 s62, s62, 1"); a(f"s_and_b32 s63, s{sW}, 1"); a("s_add_u32 s62, s62, s63")
        a("s_lshl_b32 s62, s62, 7"); a("s_add_u32 s62, s62, 29696")
        a(f"v_and_b32 v{t}, 31, v1"); a(f"v_lshl_add_u32 v{t}, v{t}, 2, s62")
        a(f"ds_read_b32 v{vG}, v{t}")
    uid = [0]
    def spin(load, stage, cnt="s62", reg=vPoll, cmp="v_cmp_le_u32"):
        uid[0] += 1; n = uid[0]
        a(f"s_mov_b32 {cnt}, {SPIN}")
        a(f"s_branch L_chk{n}")
        a.lab(f"L_spin{n}")
        if opt("sleep", 4): a(f"s_sleep {opt('sleep', 4)}")
        a(load)
        a.lab(f"L_chk{n}")
        a("s_waitcnt vmcnt(0)")
        if "x2" in load: a(f"v_min_u32 v{reg}, v{reg}, v{reg+1}")
        a(f"{cmp} vcc, {stage}, v{reg}")
        a(f"s_sub_u32 {cnt}, {cnt}, 1"); a(f"s_cbranch_scc1 L_ok{n}")
        a("s_cmp_eq_u64 vcc, -1"); a(f"s_cbranch_scc0 L_spin{n}")
        a.lab(f"L_ok{n}")
    def kv32(q):
        a(f"s_and_b32 s62, s{sW}, 3"); a("s_lshl_b32 s62, s62, 13")
        if q: a(f"s_add_u32 s62, s62, {q*32768}")
        for g in range(2):
            a(f"s_add_u32 m0, s62, {g*4096}"); a("s_add_u32 s63, s62, s14")
            if g: a("s_add_u32 s63, s63, 4096")
            for i in range(4): a(f"buffer_load_dwordx4 v{vL16}, {S(sWS)}, s63 offen offset:{i*1024} {LD} lds")
    pollF1 = f"buffer_load_dword v{vPoll}, v{vFA}, {S(sWS)}, s10 offen {SC}"
    pollF1A = f"buffer_load_dword v{vPoll}, v{vFA2}, {S(sWS)}, s10 offen {SC}"

    a(f"s_sub_u32 s66, s{sW}, 4")
    a("v_lshrrev_b32 v2, 3, v1")
    a("v_and_b32 v3, 7, v1")
    a("v_lshrrev_b32 v4, 4, v1")
    a("v_xor_b32 v5, v3, v4")
    a("v_lshlrev_b32 v5, 4, v5")
    a("v_lshl_add_u32 v6, v2, 10, v5")
    a(f"s_lshl_b32 s63, s{sR16}, 17"); a("s_lshl_b32 s64, s66, 15"); a("s_add_u32 s63, s63, s64")
    a("v_add_u32 v16, s63, v6")
    a("v_xor_b32 v17, 64, v16"); a("v_add_u32 v17, 8192, v17")
    a("v_add_u32 v18, 16384, v16"); a("v_add_u32 v19, 16384, v17")
    a("v_and_b32 v5, 1, v4")
    a("v_lshlrev_b32 v5, 2, v5")
    a("v_xor_b32 v5, v3, v5")
    a("v_lshlrev_b32 v5, 4, v5")
    a("v_mul_u32_u24 v8, 3072, v2")
    a("s_mul_i32 s63, s66, 49152")
    a("v_add3_u32 v20, v8, v5, s63")
    a("v_add_u32 v21, 24576, v20")
    a("s_lshl_b32 s3, s62, 1"); a(f"s_add_u32 s3, s3, s{sI}"); a("s_and_b32 s3, s3, 7")
    R = opt("rot", 8)
    if R == 0: a("s_mov_b32 s3, 0")
    if R == 4: a(f"s_add_u32 s3, s62, s{sI}"); a("s_and_b32 s3, s3, 3"); a("s_lshl_b32 s3, s3, 1")
    a(f"s_and_b32 s65, s{sI}, 3"); a("s_and_b32 s64, s2, 4"); a("s_add_u32 s65, s65, s64"); a("s_lshl_b32 s65, s65, 7")
    a(f"s_cmp_lt_u32 s{sI}, 4"); a("s_cselect_b32 s64, 1024, 0"); a("s_add_u32 s22, s65, s64")
    a("s_lshl_b32 s67, s66, 12"); a("s_add_u32 s67, s67, 32768")
    a("s_lshl_b32 s23, s66, 11"); a("s_add_u32 s23, s23, 32768")
    for d, sz in ((sX, 2048*512*2), (sWB, 512*1536*2)):
        a(f"s_mov_b32 s{d+2}, {sz:#x}"); a(f"s_mov_b32 s{d+3}, 0x20000")
    a("s_waitcnt lgkmcnt(0)")
    for d, lo in ((sX, 4), (sWB, 12)):
        a(f"s_mov_b32 s{d}, s{lo}"); a(f"s_and_b32 s{d+1}, s{lo+1}, 0xffff")
    def wblock(srdw, col, ldsoff):
        a(f"s_mul_i32 s63, s3, {64*3072}"); a(f"s_add_u32 s63, s63, {col}")
        for e in range(2):
            a(f"s_add_u32 m0, s23, {ldsoff + e*1024}")
            a("s_nop 0")
            a(f"buffer_load_dwordx4 v{20+e}, {S(srdw)}, s63 offen lds")
        a("s_add_u32 s3, s3, 1"); a("s_and_b32 s3, s3, 7")
    def issue(c):
        slot = c & 3
        if c < 8:
            a("s_lshl_b32 s62, s3, 7")
            for il in range(4):
                a(f"s_add_u32 m0, s67, {slot*32768 + il*1024}")
                a("s_nop 0")
                a(f"buffer_load_dwordx4 v{16+il}, {S(sX)}, s62 offen lds")
            wblock(sWB, "s22", slot*32768 + 16384)
        else:
            for sb in range(2): wblock(sX if c < 12 else sWA, "s64" if c < 12 else "s65", wpos(c, sb))
            if EARLY and c == 8: a("s_add_u32 s3, s3, 6"); a("s_and_b32 s3, s3, 7")
            if EARLY and c == 11: a("s_add_u32 s3, s3, 2"); a("s_and_b32 s3, s3, 7")
    cnt = lambda c: 0 if c > 15 else (6 if c < 8 else 4)
    a("s_lshl_b32 s64, s66, 8"); a("s_lshl_b32 s65, s3, 7"); a("s_add_u32 s65, s65, s64")
    issue(0)
    a("v_lshlrev_b32 v24, 2, v1"); a("v_add_u32 v24, s65, v24"); a("v_and_b32 v24, 0x3ff, v24")
    srd(a, sWOB, 6, 7, 1024)
    a("s_add_u32 m0, s64, 28672"); a("s_nop 0")
    a(f"buffer_load_dword v24, {S(sWOB)}, 0 offen lds")
    issue(1)
    order = list(range(8)) + ([8, 12, 9, 10, 11, 13, 14, 15] if EARLY else list(range(8, 16)))
    issued = 2
    for c in range(2, opt("up", 3)):
        issue(c); issued += 1
    srd(a, sWA, 8, 9, 512*1536*2)
    common_srds()
    ids()
    a(f"s_add_u32 s64, s{sI}, 1"); a("s_and_b32 s64, s64, 3"); a("s_and_b32 s62, s2, 4"); a("s_add_u32 s64, s64, s62")
    a("s_lshl_b32 s64, s64, 7"); a("s_add_u32 s64, s64, 2048")
    a("s_xor_b32 s65, s22, 1280")
    lsetup = attn_setup()
    for c in range(0, 16):
        a(f"s_waitcnt vmcnt({sum(cnt(i) for i in order[order.index(c)+1:issued])})")
        a("s_barrier")
        if c in (0, 3, 7, 11): stamp(a, {0:1, 3:2, 7:3, 11:4}[c], mode=4)
        while issued < 16 and (order[issued] <= c + 3 or (EARLY and order[issued] in (8, 12))):
            if issued == 8:
                a(f"s_cmp_lt_u32 s{sI}, 4")
                a(f"s_cselect_b32 s{sX}, s{sWA}, s{sWB}"); a(f"s_cselect_b32 s{sX+1}, s{sWA+1}, s{sWB+1}")
                a(f"s_mov_b32 s{sX+2}, {512*1536*2:#x}")
            issue(order[issued]); issued += 1
        if c == 12:
            gread(2)
            for x in lsetup[:85]: a(x)
            a("s_waitcnt lgkmcnt(0)")
        if c == 13:
            for x in lsetup[85:]: a(x)
    stamp(a, 1)
    a(pollF1)
    spin(pollF1, 1)
    stamp(a, 2)
    a("s_lshl_b32 s62, s66, 11"); a(f"s_add_u32 m0, s62, {QSTG}")
    a(f"s_lshl_b32 s63, s{sW}, 10"); a("s_sub_u32 s63, s11, s63"); a("s_add_u32 s63, s63, s62"); a(f"s_add_u32 s63, s63, {32*64*1024:#x}")
    for i in range(2): a(f"buffer_load_dwordx4 v{vL16}, {S(sWS)}, s63 offen offset:{i*1024} {LD} lds")
    kv32(0)
    a("s_waitcnt vmcnt(0)"); a("s_barrier")
    stamp(a, 3)
    kv32(1)
    a("s_branch L_attn")

    a.lab("L_compute")
    CPF = opt("codepf", 0)
    if CPF:
        a("s_getpc_b64 s[62:63]")
        a.lab("L_pc")
        if CPF == 1:
            a("s_lshr_b32 s64, s2, 3"); a("s_cmp_eq_u32 s64, 1"); a("s_cbranch_scc0 L_nocpf")
            a("v_lshlrev_b32 v20, 7, v0")
        else:
            a(f"s_cmp_eq_u32 s{sW}, 2"); a("s_cbranch_scc0 L_nocpf")
            a("s_lshr_b32 s64, s2, 3"); a("s_lshl_b32 s64, s64, 10")
            a("v_and_b32 v20, 7, v1"); a("v_lshlrev_b32 v20, 7, v20"); a("v_add_u32 v20, s64, v20")
        a("v_min_u32 v20, L_code_end-L_pc-4, v20")
        a("v_mov_b32 v21, s63")
        a("v_add_co_u32 v20, vcc, s62, v20")
        a("s_nop 1")
        a("v_addc_co_u32 v21, vcc, 0, v21, vcc")
        a("global_load_dword v255, v[20:21], off")
        a.lab("L_nocpf")
    a("v_lshrrev_b32 v16, 5, v1")
    a("v_and_b32 v17, 31, v1")
    a("v_lshrrev_b32 v18, 1, v17"); a("v_and_b32 v18, 7, v18")
    a(f"s_lshl_b32 s62, s{sW}, 12"); a("s_add_u32 s62, s62, 32768")
    a("v_lshlrev_b32 v19, 7, v17"); a("v_add_u32 v19, s62, v19")
    for t in range(4):
        a(f"v_add_u32 v20, {2*t}, v16"); a("v_xor_b32 v20, v20, v18")
        a(f"v_lshl_add_u32 v{vXA+t}, v20, 4, v19")
        a(f"v_add_u32 v{vXA+4+t}, 0x10000, v{vXA+t}")
    a("v_bfe_u32 v18, v1, 2, 2")
    a("v_lshl_add_u32 v19, v16, 3, v18"); a("v_lshlrev_b32 v19, 7, v19")
    a("v_bfe_u32 v20, v1, 4, 1"); a("v_lshlrev_b32 v20, 1, v20")
    a("v_bfe_u32 v21, v1, 1, 1"); a("v_add_u32 v20, v20, v21")
    a("v_bfe_u32 v21, v1, 3, 1"); a("v_lshl_or_b32 v20, v21, 2, v20")
    a("v_lshl_add_u32 v19, v20, 4, v19")
    a("v_and_b32 v20, 1, v1"); a("v_lshl_add_u32 v19, v20, 3, v19")
    a(f"v_add_u32 v{vWA}, 32768, v19"); a(f"v_xor_b32 v{vWA+1}, 64, v{vWA}")
    a(f"v_add_u32 v{vWA+2}, 0x10000, v{vWA}"); a(f"v_add_u32 v{vWA+3}, 0x10000, v{vWA+1}")
    a(f"v_lshlrev_b32 v{vGA}, 4, v16"); a(f"v_add_u32 v{vGA}, 28672, v{vGA}")
    ids()
    a(f"s_lshl_b32 s66, s{sR16}, 2"); a(f"s_add_u32 s66, s66, s{sW}")
    a(f"s_and_b32 s62, s{sI}, 3"); a("s_and_b32 s63, s2, 4"); a("s_add_u32 s62, s62, s63"); a("s_lshl_b32 s62, s62, 8")
    a("s_add_u32 s62, s62, s66")
    a("s_xor_b32 s64, s62, 512")
    a("s_add_u32 s62, s62, 2048")
    a("s_lshl_b32 s24, s62, 11"); a("s_lshl_b32 s25, s62, 10"); a(f"s_add_u32 s25, s25, {WS_Q:#x}")
    a("s_lshl_b32 s26, s64, 11"); a("s_lshl_b32 s27, s64, 10"); a(f"s_add_u32 s27, s27, {WS_Q:#x}")
    a("s_mov_b32 s28, 0x10000"); a("s_mov_b32 s29, 0x20000")
    a(f"s_cmp_lt_u32 s{sI}, 4")
    a("s_cselect_b32 s24, s24, s25"); a("s_cselect_b32 s25, s29, s28")
    a("s_cselect_b32 s26, s27, s26"); a("s_cselect_b32 s27, s28, s29")
    a("s_cselect_b32 s64, 0, 2048")
    a(f"s_add_u32 s62, s{sI}, 1"); a("s_and_b32 s62, s62, 3"); a("s_add_u32 s62, s62, s63"); a("s_lshl_b32 s62, s62, 8")
    a("s_add_u32 s62, s62, s66"); a("s_add_u32 s62, s62, s64"); a("s_lshl_b32 s28, s62, 11"); a("s_add_u32 s29, s28, 0x40000")
    a(f"s_mov_b32 s32, {QSCALE:#x}")
    a("v_mov_b32 v0, 0")
    a("s_waitcnt lgkmcnt(0)")
    common_srds()
    for i in range(4): a(f"v_mov_b32 v{20+i}, 0")
    a("v_mov_b32 v24, 1")
    a(f"s_lshl_b32 s62, s{sW}, 8"); a("s_add_u32 s62, s62, s2"); a("s_sub_u32 s62, s62, 768")
    a("s_cmp_lt_u32 s62, 8"); a("s_cbranch_scc0 L_noinit")
    a("s_lshl_b32 s62, s2, 13"); a(f"s_add_u32 s62, s62, {WS_FL:#x}"); a("s_add_u32 s63, s62, 4096")
    for i in range(8): a(f"buffer_store_dwordx4 v[20:23], v{vL16}, {S(sWS)}, s{62+(i>>2)} offen offset:{(i&3)*1024} {SC}")
    a("s_lshl_b32 s62, s2, 5")
    a("s_waitcnt vmcnt(0)")
    a("s_mov_b64 exec, 1")
    a(f"buffer_store_dword v24, v20, {S(sDBG)}, s62 offen {SC}")
    a("s_mov_b64 exec, -1")
    a.lab("L_noinit")

    def chunk_of(m): return m if m < 8 else 8 + ((m - 8) >> 1)
    def reads(m):
        c = chunk_of(m); slot = c & 3; b = m & 1; L = []
        wp = slot*32768 + 16384 if m < 8 else wpos(c, (m - 8) & 1)
        for t in range(4):
            if m < 8:
                L.append(f"ds_read_b128 {vr(XR + 4*(4*m+t), 4)}, v{vXA + 4*(slot>>1) + t} offset:{(slot&1)*32768}")
            for cc in range(2):
                for u in range(2):
                    L.append(f"ds_read_b64_tr_b16 {vr(WF[b]+8*t+4*cc+2*u,2)}, v{vWA+2*(wp>>16)+cc} offset:{(wp & 0xffff) + (16*t+4*u)*128}")
        return L
    def greads(m): return [f"ds_read_b128 {vr(GF+4*t,4)}, v{vGA} offset:{(4*m+t)*32}" for t in range(4)]
    def dots(m): return [f"v_dot2_f32_bf16 v0, v{XR+16*m+i}, v{GF+i}, v0" for i in range(16)]
    def mfmas(m):
        b = m & 1; L = []
        for t in range(4):
            x = vr(XR + 4*(4*(m & 7)+t), 4)
            for cc in range(2):
                d = vr(ACC[cc], 16); c0 = "0" if (m & 7) == 0 and t == 0 else d
                w = vr(WF[b]+8*t+4*cc, 4)
                L.append(f"v_mfma_f32_32x32x16_bf16 {d}, {x}, {w}, {c0}" if 8 <= m < 16 else f"v_mfma_f32_32x32x16_bf16 {d}, {w}, {x}, {c0}")
        return L
    ST = opt("st", "sc1")
    DEFER = opt("defer", 1)
    def stores3():
        for i in range(4):
            a(f"buffer_store_dwordx4 {vr(208+4*i,4)}, v5, {S(sWS)}, s26 offen {ST}")
            a("s_add_u32 s26, s26, s27")
    def epilogue(ph, pk):
        if ph == 0:
            a("v_and_b32 v2, 0x33, v1")
            a("v_bfe_u32 v3, v1, 2, 1"); a("v_lshl_or_b32 v2, v3, 3, v2")
            a("v_bfe_u32 v3, v1, 3, 1"); a("v_lshl_or_b32 v2, v3, 2, v2")
            a("v_lshlrev_b32 v2, 4, v2")
            a(f"v_cmp_gt_u32 vcc, 4, v6")
            a("v_and_b32 v3, 15, v1"); a("v_lshlrev_b32 v3, 4, v3")
            a(f"v_cndmask_b32 v4, v{vL16}, v2, vcc"); a(f"v_cndmask_b32 v5, v2, v{vL16}, vcc")
            a("v_lshrrev_b32 v2, 5, v1"); a("v_lshl_add_u32 v3, v2, 8, v3")
            a("v_bfe_u32 v2, v1, 4, 1"); a("v_lshl_add_u32 v3, v2, 17, v3")
            a("v_add_u32 v3, 1024, v3")
        else: a("s_nop 10")
        if ph != 1:
            a(f"s_cmp_lt_u32 s{sI}, 4"); a(f"s_cbranch_scc{1 if ph == 0 else 0} L_noscale{ph}")
            for r in range(32): a(f"v_mul_f32 v{ACC[0]+r}, s32, v{ACC[0]+r}")
            a.lab(f"L_noscale{ph}")
        sb = 24 + ph
        for cc in range(2):
            for p in range(2):
                for i in range(4): a(f"v_cvt_pk_bf16_f32 v{pk+i}, v{ACC[cc]+8*p+2*i}, v{ACC[cc]+8*p+2*i+1}")
                if ph == 1: a(f"buffer_store_dwordx4 {vr(pk,4)}, v3, {S(sWS)}, s{28+cc} offen offset:{p*512} {ST}")
                elif ph == 0 or not DEFER:
                    a(f"buffer_store_dwordx4 {vr(pk,4)}, v{4+(ph>>1)}, {S(sWS)}, s{sb} offen {ST}")
                    a(f"s_add_u32 s{sb}, s{sb}, s{sb+1}")
                pk += 4
        a("s_nop 1")
    def publishF1(stage, t1):
        a(f"v_mov_b32 v{t1}, {stage}")
        a("s_lshl_b32 s62, s2, 7"); a(f"s_add_u32 s62, s62, {WS_FL:#x}")
        a("s_mov_b64 exec, 1")
        a(f"buffer_store_dword v{t1}, v{vL16}, {S(sWS)}, s62 offen {SC}")
        a("s_mov_b64 exec, -1")
    PUB = opt("pub", 19)
    setup = attn_setup()
    per = (len(setup) + 23) // 24
    pollI = f"buffer_load_dword v114, v115, {S(sDBG)}, 0 offen {SC}"
    stamp(a, 1)
    a("s_barrier")
    stamp(a, 2, True)
    for r in reads(0) + greads(0): a(r)
    for m in range(24):
        if m >= 8 and m % 2 == 0: stamp(a, 2 + (m-8)//2, mode=3)
        if m == 7: stamp(a, 1, mode=3)
        a("s_waitcnt lgkmcnt(0)" if m != 5 else "s_waitcnt vmcnt(0) lgkmcnt(0)")
        mm = mfmas(m)
        r = reads(m+1) if m < 23 else []
        fill = [[] for _ in range(8)]
        if m < 8:
            d = dots(m)
            for g in range(4): fill[g] += d[4*g:4*g+4]
            if m < 7: fill[4] += greads(m+1)
            else: fill[4].append(f"v_mov_b32 v6, s{sI}")
        if m >= 21:
            for g in range(8):
                fill[g] += setup[:per]; setup = setup[per:]
        bar = m < 7 or (m & 1 and m < 23)
        nr = (len(r) + 4) // 5
        for i in range(8):
            a(mm[i])
            if i == 0 and bar:
                if m == PUB: a("s_waitcnt vmcnt(0)")
                a("s_barrier")
                if m == PUB:
                    a(f"s_cmp_lg_u32 s{sW}, 0"); a("s_cbranch_scc1 L_nopub1")
                    spin(pollI, 1, cnt="s65", reg=114, cmp="v_cmp_eq_u32")
                    publishF1(1, 114)
                    a.lab("L_nopub1")
                if m == 11: gread(7)
            if i < 5:
                for x in r[i*nr:(i+1)*nr]: a(x)
            for x in fill[i]: a(x)
        if m == 7:
            stamp(a, 3)
            epilogue(0, WF[1])
            a("v_mov_b32 v113, v0")
            a("s_nop 1")
            a("v_permlane32_swap_b32 v0, v113")
            a("v_add_f32 v113, v0, v113")
            a(f"v_mul_f32 v113, {f2u(-1.4426950408889634):#x}, v113")
            a("v_exp_f32 v113, v113")
            a("v_and_b32 v114, 31, v1")
            a("v_add_f32 v113, 1.0, v113")
            a("v_rcp_f32 v113, v113")
            a(f"s_lshl_b32 s62, s{sW}, 7"); a("s_add_u32 s62, s62, 29696")
            a("v_lshl_add_u32 v114, v114, 2, s62")
            a("ds_write_b32 v114, v113")
            a("v_and_b32 v115, 7, v1"); a("v_lshlrev_b32 v115, 5, v115")
        if m == 15:
            stamp(a, 1, mode=4)
            epilogue(1, WF[1])
            a(f"s_cmp_lg_u32 s{sW}, 0"); a("s_cbranch_scc1 L_noip")
            a(pollI)
            a.lab("L_noip")
    assert not setup
    stamp(a, 4)
    epilogue(2, 208)
    a("s_barrier")

    a.lab("L_attn")
    def rdK(buf, addr, off): a(f"ds_read_b128 {vr(KB[buf],4)}, v{addr} offset:{off}")
    def rdV(buf, addr, off):
        a("s_mov_b64 exec, s[22:23]")
        a(f"ds_read_b128 {vr(VB[buf][0],4)}, v{addr} offset:{off}")
        a(f"ds_read_b128 {vr(VB[buf][1],4)}, v{addr} offset:{off+512}")
        a("s_mov_b64 exec, -1")
    def mfma(dst, kbuf, q, c): a(f"v_mfma_f32_32x32x16_bf16 {vr(dst,16)}, {vr(KB[kbuf],4)}, {vr(q,4)}, {c}")
    def smf(vreg, sreg):
        if opt("x_nosmf"): return
        a(f"v_smfmac_f32_32x32x32_bf16 {vr(OA,16)}, {vr(vreg,4)}, {vr(sreg,8)}, v{vIDX}")
    def ex(s, i): a(f"v_exp_f32 v{s+i}, v{s+i}" if not opt("x_expc") else f"v_exp_f32 v{vT2}, v{vMF}")
    def halves_max():
        a(f"v_mov_b32 v{vT}, v{vM}")
        a("s_nop 1")
        a(f"v_permlane32_swap_b32 v{vM}, v{vT}")
        a(f"v_max_f32 v{vM}, v{vM}, v{vT}")
    def rowmax(s):
        a(f"v_max3_f32 v{vM}, v{s}, v{s+1}, v{vMF}")
        for i in range(2, 16, 2): a(f"v_max3_f32 v{vM}, v{s+i}, v{s+i+1}, v{vM}")
        halves_max()
    def tile(t, first, do_mfma, q, c, kread, vread, pre_mfma=None, extra=None):
        cur, prev = SB[t & 1], SB[(t+1) & 1]
        a("s_setprio 1")
        ex(cur, 0); ex(cur, 1)
        if not first: smf(VB[(t-1) & 1][1], prev+8)
        a("s_waitcnt lgkmcnt(0)")
        if opt("x_half") and t & 2: kread = vread = None
        if opt("x_nord"): kread = vread = None
        if kread is not None: rdK(t & 1, *kread)
        if vread is not None: rdV((t+1) & 1, *vread)
        ex(cur, 2); ex(cur, 3); ex(cur, 4)
        if do_mfma:
            if pre_mfma: pre_mfma()
            if not opt("x_noqk"): mfma(prev, (t+1) & 1, q, c)
        for i in range(5, 10): ex(cur, i)
        smf(VB[t & 1][0], cur)
        for i in range(10, 14): ex(cur, i)
        a("s_setprio 0")
        if extra: extra()
        ex(cur, 14); ex(cur, 15)
    def a_first():
        rdK(0, vKa, 8*2048); rdK(1, vKa, 7*2048); rdV(0, vVa, 8*2048)
        a("s_waitcnt lgkmcnt(3)")
        mfma(SB[0], 0, QA, vr(CD, 16))
    def finish(tlast, fb_label, done_label, br):
        a("s_nop 1")
        smf(VB[tlast & 1][1], SB[tlast & 1]+8)
        if br:
            a.lab("L_B_fin"); a_first(); a("s_nop 4")
        else: a("s_nop 11")
        a(f"v_add_f32 v{vT}, abs(v{OA}), v{OA+8}")
        for i in range(1, 8): a(f"v_add_f32 v{vT}, abs(v{OA+i}), v{vT}")
        a(f"v_rcp_f32 v{vT2}, v{OA+8}")
        a(f"v_cmp_gt_f32 vcc, 0x71800000, v{vT}")
        a("s_cmp_lg_u32 s8, 0"); a(f"s_cbranch_scc1 {done_label}")
        if not opt("x_nofb"): a("s_cmp_eq_u64 vcc, -1"); a(f"s_cbranch_scc0 {fb_label}")
        a.lab(done_label)
        for i in range(8): a(f"v_mul_f32 v{OA+i}, v{vT2}, v{OA+i}")
        for i in range(4): a(f"v_cvt_pk_bf16_f32 v{PK[br]+i}, v{OA+2*i}, v{OA+2*i+1}")
        if br:
            a(f"buffer_store_dwordx4 {vr(PK[0],4)}, v{vL16}, {S(sWS)}, s15 offen {SC}")
        else:
            for i in range(4): a(f"v_min_u32 v{PK[0]+i}, -2, v{PK[0]+i}")
        a(f"s_add_u32 s62, s15, {br*32*1024}")
        a(f"buffer_store_dwordx4 {vr(PK[br],4)}, v{vL16}, {S(sWS)}, s62 offen {SC}")
    def publishF2(stage):
        a(f"v_mov_b32 v{vT}, {stage}")
        a("s_mov_b64 exec, 1")
        a(f"buffer_store_dword v{vT}, v{vL16}, {S(sWS)}, s16 offen {SC}")
        a("s_mov_b64 exec, -1")
    def wo_blocks(srdw, n):
        for i in range(n):
            a("s_mov_b32 m0, s19"); a("s_add_u32 s19, s19, 1024")
            a(f"buffer_load_dwordx4 v{vWo}, {S(srdw)}, s18 offen lds")
            a("s_add_u32 s18, s18, 8192")
    def wo_at(nreg):
        a(f"s_lshl_b32 s19, {nreg}, 10"); a(f"s_and_b32 s18, {nreg}, 63"); a("s_lshl_b32 s18, s18, 13")
        a(f"s_lshl_b32 s63, s{sJ}, 7"); a("s_add_u32 s18, s18, s63")

    stamp(a, 5, True)
    hold(1)
    a(f"ds_read_b128 {vr(QB,4)}, v{vKb}")
    rdK(0, vL16, 0); rdK(1, vL16, 2048); rdV(0, vVb, 0); rdV(1, vVb, 0)
    a(f"v_mov_b32 v{vKb}, v{vL16}")
    for r in range(8, 16): a(f"v_mov_b32 v{SB[1]+r}, 0")
    a("s_waitcnt lgkmcnt(5)")
    mfma(SB[0], 0, QB, "0")
    a("s_nop 11")
    rowmax(SB[0])
    for r in range(16): a(f"v_sub_f32 v{CM+r}, 0, v{vM}")
    a("s_nop 1")
    mfma(SB[0], 0, QB, vr(CM, 16))
    a("s_waitcnt lgkmcnt(0)")
    stamp(a, 1, True, mode=1)
    if Cfg.stamp and opt("smode") == 5:
        a("s_memtime s[72:73]"); a("s_memrealtime s[74:75]"); a("s_waitcnt lgkmcnt(0)")
    a("s_mov_b32 s17, 0")
    a("s_nop 8")
    a.raw(".p2align 6")
    a.lab("L_B_body")
    for t in range(8):
        tile(t, False, True, QB, vr(CM, 16), (vKb, (t+2)*2048), (vVb, (t+1)*2048))
    a(f"v_add_u32 v{vKb}, 16384, v{vKb}")
    a(f"v_add_u32 v{vVb}, 16384, v{vVb}")
    a("s_add_u32 s17, s17, 1"); a("s_cmp_lt_u32 s17, 8"); a("s_cbranch_scc1 L_B_stub")
    stamp(a, 6)
    stamp(a, 9, mode=1)
    if Cfg.stamp and opt("smode") == 5:
        a("s_memtime s[76:77]"); a("s_memrealtime s[78:79]"); a("s_waitcnt lgkmcnt(0)")
    finish(7, "L_B_fb", "L_B_done", 1)
    a("s_mov_b32 s8, 0")
    for r in range(16): a(f"v_mov_b32 v{OA+r}, 0")
    stamp(a, 7)
    hold(2)
    a.lab("L_A_max")
    rowmax(SB[0])
    for r in range(16): a(f"v_sub_f32 v{SB[0]+r}, v{SB[0]+r}, v{vM}")
    for r in range(16): a(f"v_sub_f32 v{CM+r}, 0, v{vM}")
    for r in range(16): a(f"v_sub_f32 v{CF+r}, v{CF+r}, v{vM}")
    def oloads(br):
        a(f"s_add_u32 s62, s20, {br*32768}"); a("s_add_u32 s63, s62, 4096")
        for i in range(8):
            a(f"buffer_load_dwordx4 {vr(OF[1-br]+4*i,4)}, v{vL16}, {S(sWS)}, s{62+(i>>2)} offen offset:{(i&3)*1024} {LD}")
    pollF2 = f"buffer_load_dword v{vPoll}, v{vFA}, {S(sWS)}, s10 offen {SC}"
    for t in range(9):
        def pm(t=t):
            if t < 7:
                a(f"s_cmp_lg_u32 s7, {t}"); a(f"s_cbranch_scc1 L_A_mid{t}")
                a("s_nop 7")
                for r in range(16): a(f"v_mov_b32 v{CM+r}, s5")
                a("s_nop 1")
                a.lab(f"L_A_mid{t}")
        def extra(t=t):
            if t not in (0, 1, 3, 6, 8): return
            a("s_cmp_lg_u32 s8, 0"); a(f"s_cbranch_scc1 L_A_x{t}")
            if t == 0:
                a("s_barrier")
                a(f"s_lshl_b32 s62, s{sW}, 2"); a("s_add_u32 s62, s62, 96"); wo_at("s62")
            if t < 2: wo_blocks(sWOB, 2)
            if t == 3:
                a("s_waitcnt vmcnt(4)"); a("s_barrier")
                a(f"s_cmp_lg_u32 s{sW}, 0"); a(f"s_cbranch_scc1 L_A_x{t}")
                publishF2(1)
            if t == 6: a(pollF2)
            if t == 8:
                spin(pollF2, 1, cnt="s64")
                oloads(1)
            a.lab(f"L_A_x{t}")
        tile(t, t == 0, t < 8, QA, vr(CM if t < 7 else CF, 16),
             (vKa, (8-(t+2))*2048) if t+2 <= 8 else None,
             (vVa, (8-(t+1))*2048) if t+1 <= 8 else None, pm, extra)
    finish(8, "L_A_fb", "L_A_done", 0)
    stamp(a, 8)
    stamp(a, 1, mode=2)
    a("s_barrier")
    stamp(a, 2, True, mode=2)
    WR = lambda i, c: 128 + 8*i + 4*c
    def wreads(i):
        for c in range(2):
            for u in range(2):
                a(f"ds_read_b64_tr_b16 {vr(WR(i,c)+2*u,2)}, v{vPW0+c} offset:{i*2048+u*1024}")
    def pm(br, i):
        for c in range(2):
            d = vr(PACC[br][c], 16)
            a(f"v_mfma_f32_32x32x16_bf16 {d}, {vr(WR(i,c),4)}, {vr(OF[1-br]+4*i,4)}, {'0' if i == 0 else d}")
    pollO = f"buffer_load_dword v{vPoll}, v{vFA2}, {S(sWS)}, s20 offen {SC}"
    wreads(0); wreads(1)
    for i in range(8):
        if i < 6: wreads(i+2)
        a(f"s_waitcnt vmcnt({8-i}) lgkmcnt({8 if i < 6 else 4*(7-i)})")
        pm(1, i)
    a(pollO)
    a(f"v_subrev_u32 v{vPW0}, 0x10000, v{vPW0}"); a(f"v_subrev_u32 v{vPW1}, 0x10000, v{vPW1}")
    stamp(a, 9)
    stamp(a, 4, mode=2)
    a("s_barrier")
    for i in range(8): wreads(i)
    a(f"v_sub_f32 v{vT}, 1.0, v{vG}")
    for c in range(2):
        for r in range(16): a(f"v_mul_f32 v{PACC[1][c]+r}, v{vT}, v{PACC[1][c]+r}")
    stamp(a, 5, mode=2)
    spin(pollO, -1, cnt="s64", cmp="v_cmp_ne_u32")
    stamp(a, 6, mode=2)
    a(f"s_mov_b32 s64, {SPIN}")
    a.lab("L_O_retry")
    oloads(0)
    for i in range(8):
        a(f"s_waitcnt vmcnt({7-i}) lgkmcnt(0)")
        if i == 0: stamp(a, 7, mode=2)
        pm(0, i)
        b = OF[1]+4*i
        a(f"v_max3_u32 v{vT}, v{b}, v{b+1}, {0 if i == 0 else 'v%d' % vT}")
        a(f"v_max3_u32 v{vT}, v{b+2}, v{b+3}, v{vT}")
    a(f"v_cmp_ne_u32 vcc, -1, v{vT}")
    a("s_sub_u32 s64, s64, 1"); a("s_cbranch_scc1 L_O_ok")
    a("s_cmp_eq_u64 vcc, -1"); a("s_cbranch_scc0 L_O_retry")
    a.lab("L_O_ok")
    stamp(a, 8, mode=2)
    a("s_nop 6")
    for c in range(2):
        for g in range(4):
            for r in range(4*g, 4*g+4): a(f"v_fmac_f32 v{PACC[1][c]+r}, v{vG}, v{PACC[0][c]+r}")
            a(f"ds_write_b128 v2, {vr(PACC[1][c]+4*g,4)} offset:{(c*4+g)*1088}")
    a("s_waitcnt lgkmcnt(0)"); a("s_barrier")
    stamp(a, 9, True, mode=2)
    for kq in range(4):
        for h in range(2):
            a(f"ds_read_b128 {vr(16+kq*8+h*4,4)}, v7 offset:{kq*PW + h*512}")
    a("s_waitcnt lgkmcnt(4)")
    for i in range(8): a(f"v_add_f32 v{16+i}, v{16+i}, v{24+i}")
    a("s_waitcnt lgkmcnt(0)")
    for i in range(8): a(f"v_add_f32 v{32+i}, v{32+i}, v{40+i}")
    for i in range(8): a(f"v_add_f32 v{16+i}, v{16+i}, v{32+i}")
    for i in range(4): a(f"v_cvt_pk_bf16_f32 v{48+i}, v{16+2*i}, v{16+2*i+1}")
    a(f"buffer_store_dwordx4 v[48:51], v8, {S(sOUT)}, s21 offen")
    if HOLD >= 0:
        hold(3)
        if opt("x_who") is not None:
            a(f"s_cmp_lg_u32 s2, {opt('x_who')}"); a("s_cbranch_scc1 L_end")
        a.lab("L_hold")
        a("s_memrealtime s[62:63]"); a("s_waitcnt lgkmcnt(0)")
        a("s_sub_u32 s62, s62, s70"); a("s_cmp_lt_u32 s62, 6000"); a("s_cbranch_scc1 L_hold")
    if Cfg.stamp:
        a("s_waitcnt vmcnt(0)")
        a("s_memtime s[96:97]"); a("s_waitcnt lgkmcnt(0)")
        stamp_out(a, 0, 10, sWS, sW, 8)
        a("s_nop 1"); a("v_mov_b32 v1, s96"); a(f"buffer_store_dword v1, v0, {S(sWS)}, s94 offen offset:40")
    a.lab("L_end")
    a("s_endpgm")

    a.lab("L_B_stub")
    for i in range(2, 8):
        a(f"s_cmp_eq_u32 s17, {i}"); a(f"s_cbranch_scc1 L_B_stub{i}")
    stamp(a, 2, mode=1)
    a("s_waitcnt vmcnt(0)"); a("s_barrier")
    a(f"s_cmp_ge_u32 s{sW}, 4"); a("s_cbranch_scc1 L_B_body")
    kv32(2)
    if DEFER: stores3()
    a("s_branch L_B_body")
    a.lab("L_B_stub2")
    stamp(a, 3, mode=1)
    a(f"s_cmp_lt_u32 s{sW}, 4"); a("s_cbranch_scc1 L_B_body")
    kv32(3)
    a("s_branch L_B_body")
    a.lab("L_B_stub3")
    stamp(a, 4, mode=1)
    a("s_waitcnt vmcnt(0)"); a("s_barrier")
    a(f"s_and_b32 s62, s{sW}, 3"); a("s_cbranch_scc1 L_B_body")
    a(f"s_cmp_eq_u32 s{sW}, 0"); a("s_cbranch_scc0 L_B_stub3b")
    publishF1(2, vT)
    a.lab("L_B_stub3b")
    a(f"v_lshlrev_b32 v{vT2}, 10, v1")
    a(f"s_and_b32 s62, s{sRB}, 7"); a("s_lshl_b32 s62, s62, 16"); a(f"s_lshl_b32 s63, s{sJ}, 7"); a("s_add_u32 s62, s62, s63")
    a(f"s_cmp_eq_u32 s{sW}, 0"); a("s_cbranch_scc0 L_B_stub3c")
    a(f"buffer_load_dword v243, v{vT2}, {S(sWOA)}, s62 offen")
    a("s_branch L_B_body")
    a.lab("L_B_stub3c")
    a(f"buffer_load_dword v243, v{vT2}, {S(sWOB)}, s62 offen")
    a("s_branch L_B_body")
    a.lab("L_B_stub4")
    stamp(a, 5, mode=1)
    a(pollF1A)
    a("s_branch L_B_body")
    a.lab("L_B_stub5")
    stamp(a, 6, mode=1)
    spin(pollF1A, 2)
    a(f"s_lshl_b32 s62, s{sW}, 12"); a(f"s_lshl_b32 s63, s{sB}, 14"); a("s_add_u32 s63, s63, s62")
    a("s_add_u32 m0, s62, 131072")
    a("s_cmp_lt_u32 s63, 16384"); a("s_cselect_b32 s62, 0, 16384")
    a("s_add_u32 s63, s63, s13"); a("s_sub_u32 s63, s63, s62")
    for i in range(4): a(f"buffer_load_dwordx4 v{vL16}, {S(sWS)}, s63 offen offset:{i*1024} {LD} lds")
    a(f"buffer_load_dwordx4 {vr(QA,4)}, v{vL16}, {S(sWS)}, s11 offen {LD}")
    a("s_lshl_b32 s16, s2, 7"); a(f"s_add_u32 s16, s16, {WS_F2:#x}")
    a(f"v_and_b32 v{vFA2}, 7, v1"); a(f"v_lshlrev_b32 v{vFA2}, 10, v{vFA2}")
    for i in range(4): a(f"v_mov_b32 v{PK[0]+i}, -1")
    a(f"v_bfe_u32 v{vT}, v1, 2, 1"); a(f"v_and_b32 v{vFA}, 3, v1"); a(f"v_lshl_add_u32 v{vFA}, v{vFA}, 3, v{vT}"); a(f"v_lshlrev_b32 v{vFA}, 7, v{vFA}")
    a(f"s_lshr_b32 s10, s{sW}, 1"); a("s_lshl_b32 s10, s10, 8")
    a(f"s_lshr_b32 s62, s{sRB}, 2"); a("s_lshl_b32 s62, s62, 12"); a("s_add_u32 s10, s10, s62")
    a(f"s_add_u32 s10, s10, {WS_F2:#x}")
    a(f"s_lshl_b32 s20, s{sRB}, 17"); a(f"s_and_b32 s62, s{sW}, 1"); a("s_lshl_b32 s62, s62, 16"); a("s_add_u32 s20, s20, s62")
    a(f"s_lshr_b32 s62, s{sW}, 1"); a("s_lshl_b32 s62, s62, 13"); a("s_add_u32 s20, s20, s62"); a(f"s_add_u32 s20, s20, {WS_O:#x}")
    a(f"v_lshrrev_b32 v{vT}, 5, v1"); a(f"v_bfe_u32 v{vT2}, v1, 2, 2")
    a(f"v_lshl_add_u32 v{vPW0}, v{vT}, 2, v{vT2}"); a(f"v_lshlrev_b32 v{vPW0}, 7, v{vPW0}")
    a(f"v_bfe_u32 v{vT}, v1, 4, 1"); a(f"v_lshlrev_b32 v{vT}, 1, v{vT}")
    a(f"v_bfe_u32 v{vT2}, v1, 1, 1"); a(f"v_add_u32 v{vT}, v{vT}, v{vT2}")
    a(f"v_bfe_u32 v{vT2}, v1, 3, 1"); a(f"v_lshl_or_b32 v{vT}, v{vT2}, 2, v{vT}")
    a(f"v_lshl_add_u32 v{vPW0}, v{vT}, 4, v{vPW0}")
    a(f"v_and_b32 v{vT}, 1, v1"); a(f"v_lshl_add_u32 v{vPW0}, v{vT}, 3, v{vPW0}")
    a(f"s_lshr_b32 s62, s{sW}, 1"); a("s_lshl_b32 s62, s62, 14"); a("s_add_u32 s62, s62, 65536")
    a(f"v_add_u32 v{vPW0}, s62, v{vPW0}")
    a(f"v_xor_b32 v{vPW1}, 64, v{vPW0}")
    a(f"s_lshr_b32 s62, s{sW}, 1"); a(f"s_mul_i32 s62, s62, {PW}"); a(f"s_and_b32 s63, s{sW}, 1"); a(f"s_mul_i32 s63, s63, {8*1088}")
    a("s_add_u32 s62, s62, s63"); a("s_add_u32 s62, s62, 65536")
    a(f"v_add_u32 v2, s62, v{vL16}")
    a("v_and_b32 v5, 7, v1"); a("v_lshrrev_b32 v6, 3, v1")
    a(f"s_and_b32 s62, s{sW}, 3"); a("s_lshl_b32 s62, s62, 3"); a("v_add_u32 v6, s62, v6")
    a("v_mul_u32_u24 v7, 1088, v5"); a("v_lshl_add_u32 v7, v6, 4, v7")
    a(f"s_lshr_b32 s62, s{sW}, 2"); a(f"s_mul_i32 s63, s62, {8*1088}"); a("s_add_u32 s63, s63, 65536")
    a("v_add_u32 v7, s63, v7")
    a("v_lshlrev_b32 v8, 10, v6"); a("v_lshl_add_u32 v8, v5, 4, v8")
    a("s_lshl_b32 s62, s62, 15"); a(f"s_lshl_b32 s63, s{sRB}, 16"); a("s_add_u32 s62, s62, s63")
    a(f"s_lshl_b32 s63, s{sJ}, 7"); a("s_add_u32 s21, s62, s63")
    a("s_branch L_B_body")
    a.lab("L_B_stub6")
    stamp(a, 7, mode=1)
    a("s_waitcnt vmcnt(0)"); a("s_barrier")
    a(f"s_cmp_ge_u32 s{sW}, 4"); a("s_cbranch_scc1 L_B_body")
    a(f"s_mul_i32 s62, s{sW}, 12"); wo_at("s62")
    wo_blocks(sWOA, 12)
    a("s_branch L_B_body")
    a.lab("L_B_stub7")
    stamp(a, 8, mode=1)
    a(f"s_cmp_lt_u32 s{sW}, 4"); a("s_cbranch_scc1 L_B_body")
    a(f"s_lshl_b32 s62, s{sW}, 2"); a("s_add_u32 s62, s62, 32"); wo_at("s62")
    wo_blocks(sWOA, 4)
    a(f"s_lshl_b32 s62, s{sW}, 3"); a("s_add_u32 s62, s62, 32"); wo_at("s62")
    wo_blocks(sWOB, 8)
    a("s_branch L_B_body")
    a.lab("L_A_fb")
    a("s_waitcnt lgkmcnt(0)")
    a("s_mov_b32 s8, 1")
    a(f"s_sub_u32 s17, 8, s{sW}"); a(f"s_cmp_eq_u32 s{sB}, 0"); a("s_cselect_b32 s17, s17, 0")
    a.lab("L_A_fb_loop")
    a("s_lshl_b32 s62, s17, 11")
    a(f"v_add_u32 v{vT}, s62, v{vKa}")
    rdK(0, vT, 0)
    a("s_sub_u32 s62, 8, s17"); a("s_lshl_b32 s62, s62, 5")
    a(f"v_add_u32 v{vT2}, s62, v{vQH}")
    a(f"v_mov_b32 v{vM}, s5")
    a("s_movk_i32 s62, 256")
    a("s_waitcnt lgkmcnt(0)")
    mfma(SB[0], 0, QA, "0")
    a("s_nop 15")
    for r in range(16):
        a(f"v_subrev_u32 v{vT}, {(r & 7) + 16*(r >> 3)}, v{vT2}")
        a(f"v_cmp_gt_u32 vcc, s62, v{vT}")
        a("s_nop 1")
        a(f"v_cndmask_b32 v{vT}, v{vM}, v{SB[0]+r}, vcc")
        a(f"v_max_f32 v{vMF}, v{vMF}, v{vT}")
    a("s_add_u32 s17, s17, 1"); a("s_cmp_lt_u32 s17, 9"); a("s_cbranch_scc1 L_A_fb_loop")
    for x in masks(): a(x)
    a_first()
    a("s_nop 15")
    a("s_branch L_A_max")
    a.lab("L_B_fb")
    a("s_waitcnt lgkmcnt(0)")
    a("s_mov_b32 s8, 1")
    a("s_mov_b32 s17, s14"); a("s_add_u32 s62, s14, 131072")
    a(f"v_mov_b32 v{vM}, s5")
    a(f"v_and_b32 v{vVb}, 0x7ff, v{vVb}")
    a.lab("L_B_fb_max")
    a(f"buffer_load_dwordx4 {vr(KB[0],4)}, v{vL16}, {S(sWS)}, s17 offen {LD}")
    a("s_add_u32 s17, s17, 2048")
    a("s_waitcnt vmcnt(0)")
    mfma(SB[0], 0, QB, "0")
    a("s_nop 15")
    for i in range(0, 16, 2): a(f"v_max3_f32 v{vM}, v{SB[0]+i}, v{SB[0]+i+1}, v{vM}")
    a("s_cmp_lt_u32 s17, s62"); a("s_cbranch_scc1 L_B_fb_max")
    halves_max()
    for r in range(16): a(f"v_sub_f32 v{CM+r}, 0, v{vM}")
    for r in range(16): a(f"v_mov_b32 v{OA+r}, 0")
    a("s_mov_b32 s17, s14")
    a.lab("L_B_fb_acc")
    a(f"buffer_load_dwordx4 {vr(KB[0],4)}, v{vL16}, {S(sWS)}, s17 offen {LD}")
    a("s_mov_b64 exec, s[22:23]")
    a(f"buffer_load_dwordx4 {vr(VB[0][0],4)}, v{vVb}, {S(sWS)}, s17 offen {LD}")
    a(f"buffer_load_dwordx4 {vr(VB[0][1],4)}, v{vVb}, {S(sWS)}, s17 offen offset:512 {LD}")
    a("s_mov_b64 exec, -1")
    a("s_add_u32 s17, s17, 2048")
    a("s_waitcnt vmcnt(0)")
    mfma(SB[0], 0, QB, vr(CM, 16))
    a("s_nop 15")
    for i in range(16): ex(SB[0], i)
    a("s_nop 1")
    smf(VB[0][0], SB[0]); smf(VB[0][1], SB[0]+8)
    a("s_cmp_lt_u32 s17, s62"); a("s_cbranch_scc1 L_B_fb_acc")
    a("s_branch L_B_fin")
    a.lab("L_code_end")
    d = desc(K, 256, 72, 256)
    if Cfg.stamp: d = d.replace("next_free_sgpr 96", "next_free_sgpr 100")
    return a.text(), d

def main(out):
    t, d = gen()
    hdr = f"""; gated_mix(sliding-window MHA, full MHA), one fused launch:
; @launch grid=(256,1,1) block=(512,1,1) lds=163840
.amdgcn_target "amdgcn-amd-amdhsa--gfx950"
"""
    open(out, "w").write(hdr + t + d)

if __name__ == "__main__":
    main(parse_args())
```

```python
from common import *

WS_FL = 16 << 20
WS_F2 = WS_FL + 32768
SC = "sc1"
SPIN = 1 << 17
PW = 16*1088

sX, sWB, sWA, sWS, sWOA, sOUT, sDBG, sWOB = 24, 28, 32, 36, 40, 44, 48, 52
sW, sRB, sJ, sHD, sB, sQT, sR16, sI = 56, 57, 58, 59, 60, 61, 68, 69
sD = 28
S = lambda b: f"s[{b}:{b+3}]"
vXA = 2
vWA = 10
vL16, vGA = 14, 15
WF = [16, 48]
ACC = [80, 96]
GF = 112
XR = 128
vG, QB, QA = 112, 116, 120
CF, CD = 128, 144
VB = [[160, 164], [168, 172]]
OA = 176
vIDX, vKa, vVa, vKb, vVb, vT, vM, vMF, vT2, vQH, vFA, vWo = range(192, 204)
vFA2, vD = 204, 205
vPoll = 124
KB = [16, 20]
SB = [32, 48]
CM = 64
PK = [244, 248]
OF = [208, 16]
PACC = [[48, 64], [80, 96]]
vPW0, vPW1 = 240, 241
QSTG = 152*1024

def gen():
    LD = "sc1"
    PUB1 = opt("pub1", 13)
    HOLD = opt("x_hold", -1)
    def hold(k):
        if HOLD == k or (k == 0 and HOLD >= 10): a("s_memrealtime s[72:73]"); a("s_waitcnt lgkmcnt(0)")
    def wpos(c, sb):
        if c == 8: return 3*sb*32768 + 24576
        if c == 12: return (1+sb)*32768 + 24576
        n = 2*(c-9 if c < 12 else c-10) + sb
        return (n//3)*32768 + (n % 3)*8192
    a = A(); K = NAME + "_kernel"; head(a, K)
    a("s_cmp_ge_u32 s2, 256"); a("s_cbranch_scc1 L_end")
    stamp(a, 0)
    hold(0)
    a("s_load_dwordx2 s[4:5], s[0:1], 0")
    a("s_load_dwordx4 s[12:15], s[0:1], 32")
    a("s_load_dwordx4 s[8:11], s[0:1], 8")
    a("s_load_dwordx2 s[6:7], s[0:1], 48")
    a("s_load_dwordx4 s[16:19], s[0:1], 56")
    a("s_load_dwordx2 s[20:21], s[0:1], 72")
    a("v_lshrrev_b32 v2, 6, v0")
    a("v_and_b32 v1, 63, v0")
    a("s_bfe_u32 s62, s2, 0x20003")
    a(f"v_readfirstlane_b32 s{sW}, v2")
    a("s_and_b32 s63, s2, 3"); a("s_lshl_b32 s63, s63, 2"); a(f"s_add_u32 s{sR16}, s63, s62")
    a(f"s_lshr_b32 s{sI}, s2, 5")
    a(f"v_lshlrev_b32 v{vL16}, 4, v1")
    a(f"s_cmp_lt_u32 s{sW}, 4"); a("s_cbranch_scc1 L_compute")

    def ids():
        a(f"s_lshl_b32 s{sRB}, s{sR16}, 1"); a(f"s_and_b32 s62, s{sI}, 1"); a(f"s_add_u32 s{sRB}, s{sRB}, s62")
        a(f"s_and_b32 s{sJ}, s2, 4"); a(f"s_lshr_b32 s62, s{sI}, 1"); a(f"s_add_u32 s{sJ}, s{sJ}, s62")
        a(f"s_and_b32 s{sHD}, s2, 7"); a(f"s_lshl_b32 s{sHD}, s{sHD}, 2"); a("s_bfe_u32 s62, s2, 0x20003"); a(f"s_add_u32 s{sHD}, s{sHD}, s62")
        a(f"s_mov_b32 s{sB}, s{sI}")
        a(f"s_lshl_b32 s{sQT}, s{sB}, 3"); a(f"s_add_u32 s{sQT}, s{sQT}, s{sW}")
    def roles():
        a(f"s_lshr_b32 s64, s{sI}, 1"); a("s_xor_b32 s64, s64, s2"); a("s_and_b32 s64, s64, 1"); a("s_lshl_b32 s64, s64, 1")
        a(f"s_and_b32 s65, s{sI}, 1"); a("s_add_u32 s65, s65, s64"); a("s_xor_b32 s64, s65, 2")
        a(f"s_and_b32 s22, s{sI}, 3"); a(f"s_add_u32 s23, s{sI}, 1"); a("s_and_b32 s23, s23, 3")
        a(f"s_cmp_lt_u32 s{sI}, 4"); a("s_cselect_b32 s64, s64, s22"); a("s_cselect_b32 s65, s65, s23")
        a("s_and_b32 s22, s2, 4"); a("s_add_u32 s64, s64, s22"); a("s_add_u32 s65, s65, s22")
    def common_srds():
        srd(a, sWS, 20, 21, ws_size())
        srd(a, sOUT, 16, 17, 2048*512*2)
        srd(a, sDBG, 18, 19, 256)
        srd(a, sWOA, 10, 11, 512*512*2)
        srd(a, sWOB, 14, 15, 512*512*2)

    def attn_setup():
        L = []; e = L.append
        e(f"s_lshl_b32 s11, s{sHD}, 6"); e(f"s_add_u32 s11, s11, s{sQT}"); e("s_lshl_b32 s11, s11, 10")
        e(f"s_add_u32 s11, s11, {WS_Q:#x}")
        e(f"s_lshl_b32 s13, s{sHD}, 17")
        e(f"s_add_u32 s14, s13, {32*131072:#x}")
        e(f"s_mov_b32 s10, {WS_FL:#x}")
        e("s_and_b32 s4, s2, 3"); e("s_add_u32 s5, s4, 3"); e("s_and_b32 s5, s5, 3"); e("s_xor_b32 s6, s4, 2")
        e("s_and_b32 s7, s2, 1"); e("s_mul_i32 s7, s7, 0x1011"); e("s_lshl_b32 s9, s4, 8"); e("s_add_u32 s7, s7, s9"); e("s_add_u32 s7, s7, 0x420")
        e("s_mul_i32 s6, s6, 0x110"); e("s_add_u32 s5, s5, s6"); e("s_add_u32 s5, s5, 0x404")
        e(f"v_bfe_u32 v{vT}, v1, 2, 2"); e(f"v_and_b32 v{vT2}, 3, v1"); e(f"v_lshl_add_u32 v{vT}, v{vT2}, 3, v{vT}")
        e(f"v_lshlrev_b32 v{vT}, 7, v{vT}")
        e(f"v_lshrrev_b32 v{vT2}, 4, v1"); e(f"v_lshlrev_b32 v{vT2}, 2, v{vT2}")
        e(f"v_bfe_u32 v{vFA}, s7, v{vT2}, 4"); e(f"v_lshl_add_u32 v{vFA}, v{vFA}, 12, v{vT}")
        e(f"v_bfe_u32 v{vFA2}, s5, v{vT2}, 4"); e(f"v_lshl_add_u32 v{vFA2}, v{vFA2}, 12, v{vT}")
        e("s_and_b32 s4, s2, 4"); e("s_lshl_b32 s4, s4, 7")
        e(f"v_add_u32 v{vFA}, s4, v{vFA}"); e(f"v_add_u32 v{vFA2}, s4, v{vFA2}")
        e(f"v_and_b32 v{vT}, 0xc80, v{vT}")
        e(f"s_lshr_b32 s4, s{sW}, 1"); e("s_lshl_b32 s4, s4, 8"); e(f"s_lshr_b32 s5, s{sRB}, 2"); e("s_lshl_b32 s5, s5, 12"); e("s_add_u32 s4, s4, s5")
        e(f"v_add_u32 v{vT}, s4, v{vT}")
        e("v_cmp_lt_u32 vcc, 47, v1")
        e("s_bfe_u32 s4, s2, 0x10001"); e("s_lshl_b32 s4, s4, 15")
        e(f"v_cndmask_b32 v{vFA2}, v{vFA2}, v{vT}, vcc")
        e("s_add_u32 s16, s14, s4"); e("s_xor_b32 s4, s4, 0x8000"); e("s_add_u32 s21, s14, s4")
        e(f"v_lshrrev_b32 v{vT}, 3, v1"); e(f"v_bfe_u32 v{vT2}, v1, 4, 1"); e(f"v_lshlrev_b32 v{vT2}, 2, v{vT2}")
        e(f"v_and_b32 v{vWo}, 7, v1"); e(f"v_xor_b32 v{vWo}, v{vWo}, v{vT2}"); e(f"v_lshlrev_b32 v{vWo}, 4, v{vWo}")
        e(f"v_lshl_add_u32 v{vWo}, v{vT}, 10, v{vWo}")
        e(f"v_mov_b32 v{vIDX}, 0xdddddddd")
        e("s_mov_b32 s22, 0x0000ffff"); e("s_mov_b32 s23, 0x0000ffff")
        e(f"v_lshrrev_b32 v{vQH}, 5, v1")
        e(f"v_and_b32 v{vVb}, 15, v1"); e(f"v_lshlrev_b32 v{vVb}, 4, v{vVb}")
        e(f"v_lshl_add_u32 v{vVb}, v{vQH}, 8, v{vVb}"); e(f"v_add_u32 v{vVb}, 1024, v{vVb}")
        e(f"s_lshl_b32 s4, s{sW}, 11"); e("s_add_u32 s4, s4, 131072")
        e(f"v_add_u32 v{vKa}, s4, v{vL16}")
        e(f"v_add_u32 v{vVa}, s4, v{vVb}")
        e(f"s_lshl_b32 s4, s{sW}, 10"); e(f"s_add_u32 s4, s4, {QSTG}")
        e(f"v_add_u32 v{vKb}, s4, v{vL16}")
        e(f"v_and_b32 v{vM}, 31, v1")
        e(f"v_lshlrev_b32 v{vQH}, 3, v{vQH}"); e(f"v_sub_u32 v{vQH}, v{vM}, v{vQH}")
        e(f"v_and_b32 v{vT}, 0x1b, v{vM}")
        e(f"v_cmp_eq_u32 vcc, 16, v{vT}")
        e(f"v_mov_b32 v{vT2}, 0x3f803f80")
        e(f"v_mov_b32 v{vT}, 0")
        for b in range(2):
            for j in range(2):
                for i in range(4): e(f"v_cndmask_b32 v{VB[b][j]+i}, v{vT}, v{vT2}, vcc")
        e(f"s_mov_b32 s5, {NEG_INF:#x}")
        e(f"s_cmp_eq_u32 s{sB}, 0\n    s_cselect_b32 s6, s5, 0\n    s_cselect_b32 s7, s{sW}, 64")
        e(f"v_mov_b32 v{vMF}, s5")
        e("s_mov_b32 s8, 0")
        e(f"v_mov_b32 v{vD}, v{vL16}")
        e(f"s_lshl_b32 s15, s{sQT}, 6"); e(f"s_add_u32 s15, s15, s{sHD}"); e("s_lshl_b32 s15, s15, 10")
        e(f"s_add_u32 s15, s15, {WS_O:#x}")
        L += masks()
        return L
    def masks():
        L = []; e = L.append
        e(f"v_mov_b32 v{vT}, s5"); e(f"v_mov_b32 v{vT2}, s6")
        for r in range(16):
            e(f"v_cmp_le_i32 vcc, {(r & 7) + 16*(r >> 3)}, v{vQH}")
            e(f"v_mov_b32 v{OA+r}, 0")
            e("s_nop 0")
            e(f"v_cndmask_b32 v{CD+r}, v{vT}, v{OA+r}, vcc")
            e(f"v_cndmask_b32 v{CF+r}, v{vT2}, v{vT}, vcc")
        return L
    def gread(t):
        a(f"s_and_b32 s62, s{sI}, 1"); a("s_lshl_b32 s62, s62, 1"); a(f"s_and_b32 s63, s{sW}, 1"); a("s_add_u32 s62, s62, s63")
        a("s_lshl_b32 s62, s62, 7"); a("s_add_u32 s62, s62, 29696")
        a(f"v_and_b32 v{t}, 31, v1"); a(f"v_lshl_add_u32 v{t}, v{t}, 2, s62")
        a(f"ds_read_b32 v{vG}, v{t}")
    uid = [0]
    def spin(load, stage, cnt="s62", reg=vPoll, cmp="v_cmp_le_u32"):
        uid[0] += 1; n = uid[0]
        a(f"s_mov_b32 {cnt}, {SPIN}")
        a(f"s_branch L_chk{n}")
        a.lab(f"L_spin{n}")
        if opt("sleep", 4): a(f"s_sleep {opt('sleep', 4)}")
        a(load)
        a.lab(f"L_chk{n}")
        a("s_waitcnt vmcnt(0)")
        if "x4" in load:
            a(f"v_min3_u32 v{reg}, v{reg}, v{reg+1}, v{reg+2}"); a(f"v_min_u32 v{reg}, v{reg}, v{reg+3}")
        a(f"{cmp} vcc, {stage}, v{reg}")
        a(f"s_sub_u32 {cnt}, {cnt}, 1"); a(f"s_cbranch_scc1 L_ok{n}")
        a("s_cmp_eq_u64 vcc, -1"); a(f"s_cbranch_scc0 L_spin{n}")
        a.lab(f"L_ok{n}")
    pollF1 = f"buffer_load_dword v{vPoll}, v{vFA}, {S(sWS)}, s10 offen {SC}"
    pollF1b = f"buffer_load_dwordx4 {vr(vPoll,4)}, v{vFA}, {S(sWS)}, s3 offen {SC}"
    pollF1A = f"buffer_load_dword v{vPoll}, v{vFA2}, {S(sWS)}, s10 offen {SC}"

    a(f"s_sub_u32 s66, s{sW}, 4")
    a("v_lshrrev_b32 v2, 3, v1")
    a("v_and_b32 v3, 7, v1")
    a("v_lshrrev_b32 v4, 4, v1")
    a("v_xor_b32 v5, v3, v4")
    a("v_lshlrev_b32 v5, 4, v5")
    a("v_lshl_add_u32 v6, v2, 10, v5")
    a(f"s_lshl_b32 s63, s{sR16}, 17"); a("s_lshl_b32 s64, s66, 15"); a("s_add_u32 s63, s63, s64")
    a("v_add_u32 v16, s63, v6")
    a("v_xor_b32 v17, 64, v16"); a("v_add_u32 v17, 8192, v17")
    a("v_add_u32 v18, 16384, v16"); a("v_add_u32 v19, 16384, v17")
    a("v_and_b32 v5, 1, v4")
    a("v_lshlrev_b32 v5, 2, v5")
    a("v_xor_b32 v5, v3, v5")
    a("v_lshlrev_b32 v5, 4, v5")
    a("v_mul_u32_u24 v8, 3072, v2")
    a("s_mul_i32 s63, s66, 49152")
    a("v_add3_u32 v20, v8, v5, s63")
    a("v_add_u32 v21, 24576, v20")
    a("s_lshl_b32 s3, s62, 1"); a(f"s_add_u32 s3, s3, s{sI}"); a("s_and_b32 s3, s3, 7")
    R = opt("rot", 8)
    if R == 0: a("s_mov_b32 s3, 0")
    if R == 4: a(f"s_add_u32 s3, s62, s{sI}"); a("s_and_b32 s3, s3, 3"); a("s_lshl_b32 s3, s3, 1")
    roles()
    a("s_lshl_b32 s64, s64, 7"); a("s_lshl_b32 s65, s65, 7"); a("s_add_u32 s65, s65, 2048")
    a(f"s_cmp_lt_u32 s{sI}, 4"); a("s_cselect_b32 s22, 1024, 0"); a("s_add_u32 s64, s64, s22")
    a(f"s_cmp_lt_u32 s{sI}, 2"); a("s_cselect_b32 s22, s65, s64"); a("s_cselect_b32 s71, s64, s65")
    a("s_lshl_b32 s67, s66, 12"); a("s_add_u32 s67, s67, 32768")
    a("s_lshl_b32 s23, s66, 11"); a("s_add_u32 s23, s23, 32768")
    for d, sz in ((sX, 2048*512*2), (sWB, 512*1536*2)):
        a(f"s_mov_b32 s{d+2}, {sz:#x}"); a(f"s_mov_b32 s{d+3}, 0x20000")
    a("s_waitcnt lgkmcnt(0)")
    for d, lo in ((sX, 4), (sWB, 12)):
        a(f"s_mov_b32 s{d}, s{lo}"); a(f"s_and_b32 s{d+1}, s{lo+1}, 0xffff")
    RW = ["s22", "s23"]
    def wblock(srdw, col, ldsoff):
        a(f"s_mul_i32 s63, s3, {64*3072}"); a(f"s_add_u32 s63, s63, {col}")
        for e in range(2):
            a(f"s_add_u32 m0, {RW[1]}, {ldsoff + e*1024}")
            a("s_nop 0")
            a(f"buffer_load_dwordx4 v{20+e}, {S(srdw)}, s63 offen lds")
        a("s_add_u32 s3, s3, 1"); a("s_and_b32 s3, s3, 7")
    seq = []
    def issue(c):
        slot = c & 3
        a("s_lshl_b32 s62, s3, 7")
        for il in range(4):
            a(f"s_add_u32 m0, s67, {slot*32768 + il*1024}")
            a("s_nop 0")
            a(f"buffer_load_dwordx4 v{16+il}, {S(sX)}, s62 offen lds")
        wblock(sWB, RW[0], slot*32768 + 16384)
        seq.append((c, 6))
    def issue_w(c, sb):
        k = 2*((c-8) & 3) + sb
        a(f"s_add_u32 s3, s64, {k}"); a("s_and_b32 s3, s3, 7")
        wblock(sX if c < 12 else sWA, "s71" if c < 12 else "s65", wpos(c, sb))
        seq.append((c, 2))
    def wait_for(c):
        last = max(k for k, (cc, n) in enumerate(seq) if cc == c)
        a(f"s_waitcnt vmcnt({sum(n for cc, n in seq[last+1:])})")
    a("s_lshl_b32 s64, s66, 8"); a("s_lshl_b32 s65, s3, 7"); a("s_add_u32 s65, s65, s64")
    issue(0)
    a("v_lshlrev_b32 v24, 2, v1"); a("v_add_u32 v24, s65, v24"); a("v_and_b32 v24, 0x3ff, v24")
    srd(a, sWOB, 6, 7, 1024)
    a("s_add_u32 m0, s64, 28672"); a("s_nop 0")
    a(f"buffer_load_dword v24, {S(sWOB)}, 0 offen lds")
    issue(1); issue(2)
    srd(a, sWA, 8, 9, 512*1536*2)
    common_srds()
    a("s_mov_b32 s17, s22"); a("s_mov_b32 s18, s23"); RW[:] = ["s17", "s18"]
    ids()
    a(f"s_xor_b32 s65, s{sI}, 2"); a("s_and_b32 s65, s65, 3"); a("s_and_b32 s62, s2, 4"); a("s_add_u32 s65, s65, s62"); a("s_lshl_b32 s65, s65, 7")
    a(f"s_and_b32 s62, s{sI}, 4"); a("s_lshl_b32 s62, s62, 8"); a("s_add_u32 s65, s65, s62")
    SCH = {5: {4: [8], 5: [12], 7: [9], 8: [10, 11], 10: [13, 14], 11: [15]},
           2: {4: [8], 6: [12], 7: [9], 8: [10, 11], 10: [13, 14], 11: [15]},
           6: {4: [8], 5: [12], 7: [9], 8: [10], 9: [11], 10: [13, 14], 11: [15]},
           7: {4: [8, 12], 7: [9], 8: [10, 11], 10: [13, 14], 11: [15]}}[opt("sch", 5)]
    lset = attn_setup()
    LSPLIT = opt("lsplit", 60)
    def after(k):
        for cc in SCH.get(k, []):
            for sb in range(2): issue_w(cc, sb)
    for c in range(0, 9):
        stamp(a, c+1, mode=6)
        wait_for(c)
        stamp(a, c+1, mode=7)
        a("s_barrier")
        stamp(a, c+1, mode=4)
        if c == 0: hold(10)
        if c == 4: hold(16)
        if c == 8: hold(11)
        if c + 3 < 8: issue(c+3)
        if c == 4:
            a(f"s_cmp_lt_u32 s{sI}, 4")
            a(f"s_cselect_b32 s{sX}, s{sWB}, s{sWA}"); a(f"s_cselect_b32 s{sX+1}, s{sWB+1}, s{sWA+1}")
            a(f"s_mov_b32 s{sX+2}, {512*1536*2:#x}")
            a("s_mov_b32 s64, s3")
        after(c)
    wait_for(9); a("s_barrier")
    after(9)
    wait_for(11); a("s_barrier")
    after(10)
    gread(2)
    a("s_waitcnt lgkmcnt(0)")
    a("s_barrier")
    hold(12)
    after(11)
    for x in lset[:LSPLIT]: a(x)
    a("s_waitcnt vmcnt(0)"); a("s_barrier")
    hold(13)
    for x in lset[LSPLIT:]: a(x)
    stamp(a, 1)
    a(pollF1)
    spin(pollF1, 1)
    hold(14)
    stamp(a, 2)
    a("s_lshl_b32 s62, s66, 11"); a(f"s_add_u32 m0, s62, {QSTG}")
    a(f"s_lshl_b32 s63, s{sW}, 10"); a("s_sub_u32 s63, s11, s63"); a("s_add_u32 s63, s63, s62"); a(f"s_add_u32 s63, s63, {32*64*1024:#x}")
    for i in range(2): a(f"buffer_load_dwordx4 v{vL16}, {S(sWS)}, s63 offen offset:{i*1024} {LD} lds")
    a("s_lshl_b32 s62, s66, 13"); a("s_add_u32 s63, s62, s16")
    for g in range(4):
        a(f"s_add_u32 m0, s62, {(g>>1)*32768 + (g&1)*4096}"); a(f"s_add_u32 s64, s63, {(g>>1)*65536 + (g&1)*4096}")
        for i in range(4): a(f"buffer_load_dwordx4 v{vL16}, {S(sWS)}, s64 offen offset:{i*1024} {LD} lds")
    a(f"s_waitcnt vmcnt({8 if opt('t1', 0) else 0})"); a("s_barrier")
    stamp(a, 3)
    a("s_branch L_attn")

    a.lab("L_compute")
    CPF = opt("codepf", 2)
    if CPF:
        a("s_getpc_b64 s[62:63]")
        a.lab("L_pc")
        if CPF == 1:
            a("s_lshr_b32 s64, s2, 3"); a("s_cmp_eq_u32 s64, 1"); a("s_cbranch_scc0 L_nocpf")
            a("v_lshlrev_b32 v20, 7, v0")
        else:
            a(f"s_cmp_eq_u32 s{sW}, 2"); a("s_cbranch_scc0 L_nocpf")
            a("s_lshr_b32 s64, s2, 3"); a("s_lshl_b32 s64, s64, 7")
            a("v_and_b32 v20, 15, v1"); a("v_lshlrev_b32 v20, 12, v20"); a("v_add_u32 v20, s64, v20")
        a(f"s_sub_u32 s62, s62, L_pc-{K}"); a("s_subb_u32 s63, s63, 0")
        a(f"v_min_u32 v20, L_code_end-{K}-4, v20")
        a("v_mov_b32 v21, s63")
        a("v_add_co_u32 v20, vcc, s62, v20")
        a("s_nop 1")
        a("v_addc_co_u32 v21, vcc, 0, v21, vcc")
        a("global_load_dword v255, v[20:21], off")
        a.lab("L_nocpf")
    a("v_lshrrev_b32 v16, 5, v1")
    a("v_and_b32 v17, 31, v1")
    a("v_lshrrev_b32 v18, 1, v17"); a("v_and_b32 v18, 7, v18")
    a(f"s_lshl_b32 s62, s{sW}, 12"); a("s_add_u32 s62, s62, 32768")
    a("v_lshlrev_b32 v19, 7, v17"); a("v_add_u32 v19, s62, v19")
    for t in range(4):
        a(f"v_add_u32 v20, {2*t}, v16"); a("v_xor_b32 v20, v20, v18")
        a(f"v_lshl_add_u32 v{vXA+t}, v20, 4, v19")
        a(f"v_add_u32 v{vXA+4+t}, 0x10000, v{vXA+t}")
    a("v_bfe_u32 v18, v1, 2, 2")
    a("v_lshl_add_u32 v19, v16, 3, v18"); a("v_lshlrev_b32 v19, 7, v19")
    a("v_bfe_u32 v20, v1, 4, 1"); a("v_lshlrev_b32 v20, 1, v20")
    a("v_bfe_u32 v21, v1, 1, 1"); a("v_add_u32 v20, v20, v21")
    a("v_bfe_u32 v21, v1, 3, 1"); a("v_lshl_or_b32 v20, v21, 2, v20")
    a("v_lshl_add_u32 v19, v20, 4, v19")
    a("v_and_b32 v20, 1, v1"); a("v_lshl_add_u32 v19, v20, 3, v19")
    a(f"v_add_u32 v{vWA}, 32768, v19"); a(f"v_xor_b32 v{vWA+1}, 64, v{vWA}")
    a(f"v_add_u32 v{vWA+2}, 0x10000, v{vWA}"); a(f"v_add_u32 v{vWA+3}, 0x10000, v{vWA+1}")
    a(f"v_lshlrev_b32 v{vGA}, 4, v16"); a(f"v_add_u32 v{vGA}, 28672, v{vGA}")
    ids()
    roles()
    a(f"s_lshl_b32 s66, s{sR16}, 2"); a(f"s_add_u32 s66, s66, s{sW}")
    a("s_lshl_b32 s62, s64, 8"); a("s_add_u32 s62, s62, s66"); a("s_add_u32 s62, s62, 2048")
    a(f"s_xor_b32 s64, s{sI}, 2"); a("s_and_b32 s64, s64, 3"); a("s_add_u32 s64, s64, s22"); a("s_lshl_b32 s64, s64, 8"); a("s_add_u32 s64, s64, s66")
    a("s_lshl_b32 s24, s62, 11"); a("s_lshl_b32 s25, s62, 10"); a(f"s_add_u32 s25, s25, {WS_Q:#x}")
    a("s_lshl_b32 s26, s64, 11"); a("s_lshl_b32 s27, s64, 10"); a(f"s_add_u32 s27, s27, {WS_Q:#x}")
    a("s_mov_b32 s28, 0x10000"); a("s_mov_b32 s29, 0x20000")
    a(f"s_cmp_lt_u32 s{sI}, 4")
    a("s_cselect_b32 s24, s24, s25"); a("s_cselect_b32 s25, s29, s28")
    a("s_cselect_b32 s26, s27, s26"); a("s_cselect_b32 s27, s28, s29")
    a("s_cselect_b32 s64, 2048, 0")
    a("s_lshl_b32 s62, s65, 8"); a("s_add_u32 s62, s62, s66"); a("s_add_u32 s62, s62, s64")
    a("s_lshl_b32 s28, s62, 11"); a("s_add_u32 s29, s28, 0x40000")
    a(f"s_mov_b32 s32, {QSCALE:#x}")
    a("v_mov_b32 v0, 0")
    a("s_waitcnt lgkmcnt(0)")
    common_srds()
    for i in range(4): a(f"v_mov_b32 v{20+i}, 0")
    a("v_mov_b32 v24, 1")
    a(f"s_lshl_b32 s62, s{sW}, 8"); a("s_add_u32 s62, s62, s2"); a("s_sub_u32 s62, s62, 768")
    a("s_cmp_lt_u32 s62, 8"); a("s_cbranch_scc0 L_noinit")
    a("s_lshl_b32 s62, s2, 13"); a(f"s_add_u32 s62, s62, {WS_FL:#x}"); a("s_add_u32 s63, s62, 4096")
    for i in range(8): a(f"buffer_store_dwordx4 v[20:23], v{vL16}, {S(sWS)}, s{62+(i>>2)} offen offset:{(i&3)*1024} {SC}")
    a("s_lshl_b32 s62, s2, 5")
    a("s_waitcnt vmcnt(0)")
    a("s_mov_b64 exec, 1")
    a(f"buffer_store_dword v24, v20, {S(sDBG)}, s62 offen {SC}")
    a("s_mov_b64 exec, -1")
    a.lab("L_noinit")

    def chunk_of(m): return m if m < 8 else 8 + ((m - 8) >> 1)
    def reads(m):
        c = chunk_of(m); slot = c & 3; b = m & 1; L = []
        wp = slot*32768 + 16384 if m < 8 else wpos(c, (m - 8) & 1)
        for t in range(4):
            if m < 8:
                L.append(f"ds_read_b128 {vr(XR + 4*(4*m+t), 4)}, v{vXA + 4*(slot>>1) + t} offset:{(slot&1)*32768}")
            for cc in range(2):
                for u in range(2):
                    L.append(f"ds_read_b64_tr_b16 {vr(WF[b]+8*t+4*cc+2*u,2)}, v{vWA+2*(wp>>16)+cc} offset:{(wp & 0xffff) + (16*t+4*u)*128}")
        return L
    def greads(m): return [f"ds_read_b128 {vr(GF+4*t,4)}, v{vGA} offset:{(4*m+t)*32}" for t in range(4)]
    def dots(m): return [f"v_dot2_f32_bf16 v0, v{XR+16*m+i}, v{GF+i}, v0" for i in range(16)]
    def mfmas(m, vphase):
        b = m & 1; L = []
        for t in range(4):
            x = vr(XR + 4*(4*(m & 7)+t), 4)
            for cc in range(2):
                d = vr(ACC[cc], 16); c0 = "0" if (m & 7) == 0 and t == 0 else d
                w = vr(WF[b]+8*t+4*cc, 4)
                L.append(f"v_mfma_f32_32x32x16_bf16 {d}, {x}, {w}, {c0}" if (m >> 3) == vphase else f"v_mfma_f32_32x32x16_bf16 {d}, {w}, {x}, {c0}")
        return L
    ST = opt("st", "sc1")
    def stores3():
        for i in range(4):
            a(f"buffer_store_dwordx4 {vr(208+4*i,4)}, v5, {S(sWS)}, s26 offen {ST}")
            a("s_add_u32 s26, s26, s27")
    def epilogue(ph, pk, vphase):
        if ph == 0:
            a("v_and_b32 v2, 0x33, v1")
            a("v_bfe_u32 v3, v1, 2, 1"); a("v_lshl_or_b32 v2, v3, 3, v2")
            a("v_bfe_u32 v3, v1, 3, 1"); a("v_lshl_or_b32 v2, v3, 2, v2")
            a("v_lshlrev_b32 v2, 4, v2")
            a(f"v_cmp_gt_u32 vcc, 4, v6")
            a("v_and_b32 v3, 15, v1"); a("v_lshlrev_b32 v3, 4, v3")
            a(f"v_cndmask_b32 v4, v{vL16}, v2, vcc"); a(f"v_cndmask_b32 v5, v2, v{vL16}, vcc")
            a("v_lshrrev_b32 v2, 5, v1"); a("v_lshl_add_u32 v3, v2, 8, v3")
            a("v_bfe_u32 v2, v1, 4, 1"); a("v_lshl_add_u32 v3, v2, 17, v3")
            a("v_add_u32 v3, 1024, v3")
        else: a("s_nop 10")
        if ph == 2 or (ph == 0 and vphase == 1):
            a(f"s_cmp_lt_u32 s{sI}, 4"); a(f"s_cbranch_scc{1 if ph == 0 else 0} L_noscale{ph}")
            for r in range(32): a(f"v_mul_f32 v{ACC[0]+r}, s32, v{ACC[0]+r}")
            a.lab(f"L_noscale{ph}")
        for cc in range(2):
            for p in range(2):
                for i in range(4): a(f"v_cvt_pk_bf16_f32 v{pk+i}, v{ACC[cc]+8*p+2*i}, v{ACC[cc]+8*p+2*i+1}")
                if ph == vphase: a(f"buffer_store_dwordx4 {vr(pk,4)}, v3, {S(sWS)}, s{28+cc} offen offset:{p*512} {ST}")
                elif ph < 2:
                    a(f"buffer_store_dwordx4 {vr(pk,4)}, v4, {S(sWS)}, s24 offen {ST}")
                    a("s_add_u32 s24, s24, s25")
                pk += 4
        a("s_nop 1")
    def publishF1(stage, t1):
        a(f"v_mov_b32 v{t1}, {stage}")
        a("s_lshl_b32 s62, s2, 7"); a(f"s_add_u32 s62, s62, {WS_FL:#x}")
        a("s_mov_b64 exec, 1")
        a(f"buffer_store_dword v{t1}, v{vL16}, {S(sWS)}, s62 offen {SC}")
        a("s_mov_b64 exec, -1")
    setup = attn_setup()
    per = (len(setup) + 23) // 24
    pollI = f"buffer_load_dword v114, v115, {S(sDBG)}, 0 offen {SC}"
    def step(m, vphase):
        nonlocal setup
        tag = "v" if vphase == 0 else "q"
        if m >= 8 and m % 2 == 0: stamp(a, 2 + (m-8)//2, mode=3)
        if m == 7: stamp(a, 1, mode=3)
        a("s_waitcnt lgkmcnt(0)" if m != 5 else "s_waitcnt vmcnt(0) lgkmcnt(0)")
        mm = mfmas(m, vphase)
        r = reads(m+1) if m < 23 else []
        fill = [[] for _ in range(8)]
        if m < 8:
            d = dots(m) if not opt("x_nodot") else []
            for g in range(4): fill[g] += d[4*g:4*g+4]
            if m < 7: fill[4] += greads(m+1)
            else: fill[4].append(f"v_mov_b32 v6, s{sI}")
        if m >= 21:
            for g in range(8):
                fill[g] += setup[:per]; setup = setup[per:]
        nr = (len(r) + 4) // 5
        for i in range(8):
            a(mm[i])
            if i == 0:
                if m == PUB1:
                    a("s_waitcnt vmcnt(0)")
                    a(f"s_cmp_lg_u32 s{sW}, 0"); a(f"s_cbranch_scc1 L_noinitchk{tag}")
                    spin(pollI, 1, cnt="s65", reg=114, cmp="v_cmp_eq_u32")
                    a.lab(f"L_noinitchk{tag}")
                if m <= 7: stamp(a, m+2, mode=7)
                if m <= 7 or m in (9, 11, 13, 17): a("s_barrier")
                if m == PUB1:
                    a(f"s_cmp_lg_u32 s{sW}, 0"); a(f"s_cbranch_scc1 L_nopub1{tag}")
                    publishF1(1, 114)
                    a.lab(f"L_nopub1{tag}")
                if m == 11: gread(7)
            if i < 5:
                for x in r[i*nr:(i+1)*nr]: a(x)
            for x in fill[i]: a(x)
        if m == 7:
            stamp(a, 3)
            epilogue(0, WF[1], vphase)
            a("v_mov_b32 v113, v0")
            a("s_nop 1")
            a("v_permlane32_swap_b32 v0, v113")
            a("v_add_f32 v113, v0, v113")
            a(f"v_mul_f32 v113, {f2u(-1.4426950408889634):#x}, v113")
            a("v_exp_f32 v113, v113")
            a("v_and_b32 v114, 31, v1")
            a("v_add_f32 v113, 1.0, v113")
            a("v_rcp_f32 v113, v113")
            a(f"s_lshl_b32 s62, s{sW}, 7"); a("s_add_u32 s62, s62, 29696")
            a("v_lshl_add_u32 v114, v114, 2, s62")
            a("ds_write_b32 v114, v113")
            a("v_and_b32 v115, 7, v1"); a("v_lshlrev_b32 v115, 5, v115")
            a(f"s_cmp_lg_u32 s{sW}, 0"); a(f"s_cbranch_scc1 L_noip{tag}")
            a(pollI)
            a.lab(f"L_noip{tag}")
        if m == 15:
            epilogue(1, WF[1], vphase)
    stamp(a, 1)
    a(f"s_cmp_lt_u32 s{sI}, 2"); a("s_cbranch_scc0 L_p12q")
    for vphase in (0, 1):
        if vphase: a.lab("L_p12q")
        a("s_barrier")
        stamp(a, 2, True)
        for r in reads(0) + greads(0): a(r)
        for m in range(16): step(m, vphase)
        if vphase == 0: a("s_branch L_p3")
    a.lab("L_p3")
    for m in range(16, 24): step(m, -1)
    assert not setup
    stamp(a, 4)
    a("s_waitcnt vmcnt(0)")
    a("s_lshl_b32 s62, s2, 7"); a(f"s_lshl_b32 s63, s{sW}, 2"); a("s_add_u32 s62, s62, s63"); a(f"s_add_u32 s62, s62, {WS_F2:#x}")
    a("v_mov_b32 v114, 1")
    a("s_mov_b64 exec, 1")
    a(f"buffer_store_dword v114, v{vL16}, {S(sWS)}, s62 offen {SC}")
    a("s_mov_b64 exec, -1")
    epilogue(2, 208, -1)
    hold(15)
    a("s_barrier")

    a.lab("L_attn")
    def rdK(buf, addr, off): a(f"ds_read_b128 {vr(KB[buf],4)}, v{addr} offset:{off}")
    def rdV(buf, addr, off):
        a("s_mov_b64 exec, s[22:23]")
        a(f"ds_read_b128 {vr(VB[buf][0],4)}, v{addr} offset:{off}")
        a(f"ds_read_b128 {vr(VB[buf][1],4)}, v{addr} offset:{off+512}")
        a("s_mov_b64 exec, -1")
    def mfma(dst, kbuf, q, c): a(f"v_mfma_f32_32x32x16_bf16 {vr(dst,16)}, {vr(KB[kbuf],4)}, {vr(q,4)}, {c}")
    def smf(vreg, sreg):
        if opt("x_nosmf"): return
        a(f"v_smfmac_f32_32x32x32_bf16 {vr(OA,16)}, {vr(vreg,4)}, {vr(sreg,8)}, v{vIDX}")
    def ex(s, i): a(f"v_exp_f32 v{s+i}, v{s+i}" if not opt("x_expc") else f"v_exp_f32 v{vT2}, v{vMF}")
    def halves_max():
        a(f"v_mov_b32 v{vT}, v{vM}")
        a("s_nop 1")
        a(f"v_permlane32_swap_b32 v{vM}, v{vT}")
        a(f"v_max_f32 v{vM}, v{vM}, v{vT}")
    def rowmax(s):
        a(f"v_max3_f32 v{vM}, v{s}, v{s+1}, v{vMF}")
        for i in range(2, 16, 2): a(f"v_max3_f32 v{vM}, v{s+i}, v{s+i+1}, v{vM}")
        halves_max()
    def tile(t, first, do_mfma, q, c, kread, vread, pre_mfma=None, extra=None):
        cur, prev = SB[t & 1], SB[(t+1) & 1]
        SP = opt("slotpos", 2)
        a("s_setprio 1")
        if extra and SP == 1: extra()
        ex(cur, 0); ex(cur, 1)
        if not first: smf(VB[(t-1) & 1][1], prev+8)
        a("s_waitcnt lgkmcnt(0)")
        if opt("x_half") and t & 2: kread = vread = None
        if opt("x_nord"): kread = vread = None
        if kread is not None: rdK(t & 1, *kread)
        if vread is not None: rdV((t+1) & 1, *vread)
        if extra and SP == 2: extra()
        ex(cur, 2); ex(cur, 3); ex(cur, 4)
        if do_mfma:
            if pre_mfma: pre_mfma()
            if not opt("x_noqk"): mfma(prev, (t+1) & 1, q, c)
        for i in range(5, 10): ex(cur, i)
        smf(VB[t & 1][0], cur)
        if extra and SP == 3: extra()
        for i in range(10, 14): ex(cur, i)
        a("s_setprio 0")
        if extra and SP == 0: extra()
        ex(cur, 14); ex(cur, 15)
        if extra and SP == 4: extra()
    def a_first():
        rdK(0, vKa, 8*2048); rdK(1, vKa, 7*2048); rdV(0, vVa, 8*2048)
        a("s_waitcnt lgkmcnt(3)")
        mfma(SB[0], 0, QA, vr(CD, 16))
    def finish(tlast, fb_label, done_label, br):
        a("s_nop 1")
        smf(VB[tlast & 1][1], SB[tlast & 1]+8)
        if br:
            a.lab("L_B_fin"); a_first(); a("s_nop 4")
        else: a("s_nop 11")
        a(f"v_add_f32 v{vT}, abs(v{OA}), v{OA+8}")
        for i in range(1, 8): a(f"v_add_f32 v{vT}, abs(v{OA+i}), v{vT}")
        a(f"v_rcp_f32 v{vT2}, v{OA+8}")
        a(f"v_cmp_gt_f32 vcc, 0x71800000, v{vT}")
        a("s_cmp_lg_u32 s8, 0"); a(f"s_cbranch_scc1 {done_label}")
        if not opt("x_nofb"): a("s_cmp_eq_u64 vcc, -1"); a(f"s_cbranch_scc0 {fb_label}")
        a.lab(done_label)
        for i in range(8): a(f"v_mul_f32 v{OA+i}, v{vT2}, v{OA+i}")
        for i in range(4): a(f"v_cvt_pk_bf16_f32 v{PK[br]+i}, v{OA+2*i}, v{OA+2*i+1}")
        for i in range(4): a(f"v_min_u32 v{PK[br]+i}, -2, v{PK[br]+i}")
        a(f"s_add_u32 s62, s15, {br*32*1024}")
        a(f"buffer_store_dwordx4 {vr(PK[br],4)}, v{vL16}, {S(sWS)}, s62 offen {SC}")
    def copy(srdw, voff, lds, src):
        a(f"s_add_u32 m0, {lds[0]}, {lds[1]}"); a(f"s_add_u32 s63, {src[0]}, {src[1]}")
        a(f"buffer_load_dwordx4 v{voff}, {S(srdw)}, s63 offen {LD} lds")
    def wo_copy(n0, k):
        copy(sWOA if n0 < 64 else sWOB, vWo, ("s19", (n0+k)*1024), ("s18", ((n0 & 63)+k)*8192))
    class Rec:
        def __init__(s): s.L = []
        def __call__(s, t): s.L.append(t)
    def late_setup():
        a = Rec()
        a(f"s_lshl_b32 s19, s{sW}, 12"); a(f"s_lshl_b32 s18, s{sW}, 15"); a(f"s_lshl_b32 s62, s{sJ}, 7"); a("s_add_u32 s18, s18, s62")
        a(f"s_lshl_b32 s20, s{sRB}, 17"); a(f"s_and_b32 s62, s{sW}, 1"); a("s_lshl_b32 s62, s62, 16"); a("s_add_u32 s20, s20, s62")
        a(f"s_lshr_b32 s62, s{sW}, 1"); a("s_lshl_b32 s62, s62, 13"); a("s_add_u32 s20, s20, s62"); a(f"s_add_u32 s20, s20, {WS_O:#x}")
        a(f"v_lshrrev_b32 v{vT}, 5, v1"); a(f"v_bfe_u32 v{vT2}, v1, 2, 2")
        a(f"v_lshl_add_u32 v{vPW0}, v{vT}, 2, v{vT2}"); a(f"v_lshlrev_b32 v{vPW0}, 7, v{vPW0}")
        a(f"v_bfe_u32 v{vT}, v1, 4, 1"); a(f"v_lshlrev_b32 v{vT}, 1, v{vT}")
        a(f"v_bfe_u32 v{vT2}, v1, 1, 1"); a(f"v_add_u32 v{vT}, v{vT}, v{vT2}")
        a(f"v_bfe_u32 v{vT2}, v1, 3, 1"); a(f"v_lshl_or_b32 v{vT}, v{vT2}, 2, v{vT}")
        a(f"v_lshl_add_u32 v{vPW0}, v{vT}, 4, v{vPW0}")
        a(f"v_and_b32 v{vT}, 1, v1"); a(f"v_lshl_add_u32 v{vPW0}, v{vT}, 3, v{vPW0}")
        a(f"s_lshr_b32 s62, s{sW}, 1"); a("s_lshl_b32 s62, s62, 14"); a("s_add_u32 s62, s62, 65536")
        a(f"v_add_u32 v{vPW0}, s62, v{vPW0}")
        a(f"v_xor_b32 v{vPW1}, 64, v{vPW0}")
        a(f"s_lshr_b32 s62, s{sW}, 1"); a(f"s_mul_i32 s62, s62, {PW}"); a(f"s_and_b32 s64, s{sW}, 1"); a(f"s_mul_i32 s64, s64, {8*1088}")
        a("s_add_u32 s62, s62, s64"); a("s_add_u32 s62, s62, 65536")
        a(f"v_add_u32 v2, s62, v{vL16}")
        a("v_and_b32 v5, 7, v1"); a("v_lshrrev_b32 v6, 3, v1")
        a(f"s_and_b32 s62, s{sW}, 3"); a("s_lshl_b32 s62, s62, 3"); a("v_add_u32 v6, s62, v6")
        a("v_mul_u32_u24 v7, 1088, v5"); a("v_lshl_add_u32 v7, v6, 4, v7")
        a(f"s_lshr_b32 s62, s{sW}, 2"); a(f"s_mul_i32 s64, s62, {8*1088}"); a("s_add_u32 s64, s64, 65536")
        a("v_add_u32 v7, s64, v7")
        a("v_lshlrev_b32 v8, 10, v6"); a("v_lshl_add_u32 v8, v5, 4, v8")
        a("s_lshl_b32 s62, s62, 15"); a(f"s_lshl_b32 s64, s{sRB}, 16"); a("s_add_u32 s62, s62, s64")
        a(f"s_lshl_b32 s64, s{sJ}, 7"); a("s_add_u32 s21, s62, s64")
        return a.L

    stamp(a, 5, True)
    hold(1)
    a(f"ds_read_b128 {vr(QB,4)}, v{vKb}")
    rdK(0, vL16, 0); rdK(1, vL16, 2048); rdV(0, vVb, 0)
    a(f"v_mov_b32 v{vKb}, v{vL16}")
    a("s_waitcnt lgkmcnt(3)")
    mfma(SB[0], 0, QB, "0")
    a(f"s_lshl_b32 s19, s{sW}, 13"); a("s_and_b32 s18, s19, 0x8000"); a("s_add_u32 s18, s18, s19"); a("s_add_u32 s18, s18, s21")
    a("s_mov_b32 s9, 0"); a(f"s_mov_b32 s3, {WS_F2:#x}")
    a("s_nop 5")
    rowmax(SB[0])
    for r in range(16): a(f"v_sub_f32 v{CM+r}, 0, v{vM}")
    a("s_nop 1")
    mfma(SB[0], 0, QB, vr(CM, 16))
    a("s_waitcnt lgkmcnt(0)")
    stamp(a, 1, True, mode=1)
    if Cfg.stamp and opt("smode") == 5:
        a("s_memtime s[72:73]"); a("s_memrealtime s[74:75]"); a("s_waitcnt lgkmcnt(0)")
    a("s_nop 9")
    X = {u: [] for u in range(64)}
    def at(u, f): X[u].append(f)
    U1 = opt("u1", 4)
    at(U1-3, lambda: a(pollF1b))
    at(U1, lambda: spin(pollF1b, 1))
    if opt("t1", 0): at(U1, lambda: a("s_barrier"))
    for k in range(8): at(U1+k, lambda k=k: copy(sWS, vL16, ("s19", 65536 + k*1024), ("s18", k*1024)))
    def marks():
        for i in range(4): a(f"v_mov_b32 v{PK[0]+i}, -1")
        a("s_add_u32 s62, s15, 32768")
        a(f"buffer_store_dwordx4 {vr(PK[0],4)}, v{vL16}, {S(sWS)}, s15 offen {SC}")
        a(f"buffer_store_dwordx4 {vr(PK[0],4)}, v{vL16}, {S(sWS)}, s62 offen {SC}")
    at(U1+8, marks)
    def st3():
        a(f"s_cmp_ge_u32 s{sW}, 4"); a("s_cbranch_scc1 L_nost3"); stores3(); a.lab("L_nost3")
    at(U1+9, st3)
    U2 = opt("u2", 20)
    def t2():
        a("s_waitcnt vmcnt(0)"); a("s_barrier")
        a(f"s_and_b32 s62, s{sW}, 3"); a("s_cbranch_scc0 L_t2x")
        a.lab("L_t2r")
    at(U2, t2)
    ls = late_setup()
    n = (len(ls) + 9) // 10
    for k in range(10): at(U2+1+k, lambda k=k: [a(x) for x in ls[k*n:(k+1)*n]])
    for k in range(4): at(U2+11+k, lambda k=k: wo_copy(0, k))
    U3 = opt("u3", 38)
    at(U3-3, lambda: a(pollF1A))
    def win():
        spin(pollF1A, 2)
        a(f"s_lshl_b32 s12, s{sB}, 14"); a("s_add_u32 s12, s12, s19")
        a("s_cmp_lt_u32 s12, 16384"); a("s_cselect_b32 s62, 0, 16384")
        a("s_add_u32 s12, s12, s13"); a("s_sub_u32 s12, s12, s62")
        a(f"buffer_load_dwordx4 {vr(QA,4)}, v{vL16}, {S(sWS)}, s11 offen {LD}")
        a(f"v_and_b32 v{vFA2}, 7, v1"); a(f"v_lshlrev_b32 v{vFA2}, 10, v{vFA2}")
        a("s_add_u32 s10, s20, 32768")
    at(U3, win)
    for k in range(4): at(U3+1+k, lambda k=k: copy(sWS, vL16, ("s19", 131072 + k*1024), ("s12", k*1024)))
    at(48, lambda: (a("s_waitcnt vmcnt(0)"), a("s_barrier")))
    for k in range(8): at(49+k, lambda k=k: wo_copy(32 + 32*(k >> 2), k & 3))
    for u in range(64):
        if u and u % 8 == 0: stamp(a, 1 + u//8, mode=1)
        if u == 30: a(f"v_add_u32 v{vKb}, 0x10000, v{vKb}")
        if u == 31: a(f"v_add_u32 v{vVb}, 0x10000, v{vVb}")
        tile(u, u == 0, u < 63, QB, vr(CM, 16), (vKb, ((u+2)*2048) & 0xffff) if u < 62 else None,
             (vVb, ((u+1)*2048) & 0xffff) if u < 63 else None, None, lambda u=u: [f() for f in X[u]])
    stamp(a, 6)
    stamp(a, 9, mode=1)
    if Cfg.stamp and opt("smode") == 5:
        a("s_memtime s[76:77]"); a("s_memrealtime s[78:79]"); a("s_waitcnt lgkmcnt(0)")
    finish(63, "L_B_fb", "L_B_done", 1)
    a("s_mov_b32 s8, 0")
    for r in range(16): a(f"v_mov_b32 v{OA+r}, 0")
    stamp(a, 7)
    hold(2)
    a.lab("L_A_max")
    rowmax(SB[0])
    for r in range(16): a(f"v_sub_f32 v{SB[0]+r}, v{SB[0]+r}, v{vM}")
    for r in range(16): a(f"v_sub_f32 v{CM+r}, 0, v{vM}")
    for r in range(16): a(f"v_sub_f32 v{CF+r}, v{CF+r}, v{vM}")
    def oloads(br):
        a(f"s_add_u32 s62, s20, {br*32768}"); a("s_add_u32 s63, s62, 4096")
        for i in range(8):
            a(f"buffer_load_dwordx4 {vr(OF[1-br]+4*i,4)}, v{vL16}, {S(sWS)}, s{62+(i>>2)} offen offset:{(i&3)*1024} {LD}")
    pollO = [f"buffer_load_dword v{vPoll}, v{vFA2}, {S(sWS)}, s20 offen {SC}", f"buffer_load_dword v{vPoll}, v{vFA2}, {S(sWS)}, s10 offen {SC}"]
    for t in range(9):
        def pm(t=t):
            if t < 7:
                a(f"s_cmp_eq_u32 s7, {t}"); a(f"s_cbranch_scc1 L_A_off{t}")
                a.lab(f"L_A_mid{t}")
        def extra(t=t):
            if t in (4, 6, 8): return
            a("s_cmp_lg_u32 s8, 0"); a(f"s_cbranch_scc1 L_A_x{t}")
            if t == 0:
                a("s_barrier")
            if t < 4: wo_copy(96, t)
            if t == 5: a(pollO[1])
            if t == 7:
                a("s_waitcnt vmcnt(0)")
                a(f"v_cmp_ne_u32 vcc, -1, v{vPoll}")
                a("s_cmp_eq_u64 vcc, -1"); a(f"s_cbranch_scc0 L_A_x{t}")
                oloads(1)
                a("s_mov_b32 s9, 1")
            a.lab(f"L_A_x{t}")
        tile(t, t == 0, t < 8, QA, vr(CM if t < 7 else CF, 16),
             (vKa, (8-(t+2))*2048) if t+2 <= 8 else None,
             (vVa, (8-(t+1))*2048) if t+1 <= 8 else None, pm, extra)
    finish(8, "L_A_fb", "L_A_done", 0)
    stamp(a, 8)
    stamp(a, 1, mode=2)
    a("s_barrier")
    stamp(a, 2, True, mode=2)
    WR = lambda i, c: 128 + 8*i + 4*c
    def wreads(i):
        for c in range(2):
            for u in range(2):
                a(f"ds_read_b64_tr_b16 {vr(WR(i,c)+2*u,2)}, v{vPW0+c} offset:{i*2048+u*1024}")
    def pm(br, i):
        for c in range(2):
            d = vr(PACC[br][c], 16)
            a(f"v_mfma_f32_32x32x16_bf16 {d}, {vr(WR(i,c),4)}, {vr(OF[1-br]+4*i,4)}, {'0' if i == 0 else d}")
    def chk(br, i):
        b = OF[1-br]+4*i
        a(f"v_max3_u32 v{vT}, v{b}, v{b+1}, {0 if i == 0 else 'v%d' % vT}")
        a(f"v_max3_u32 v{vT}, v{b+2}, v{b+3}, v{vT}")
    for i in range(8): wreads(i)
    a(f"s_mov_b32 s65, {SPIN}")
    a("s_cmp_lg_u32 s9, 0"); a("s_cbranch_scc1 L_OB_have")
    a(pollO[1])
    spin(pollO[1], -1, cnt="s64", cmp="v_cmp_ne_u32")
    a.lab("L_OB_retry")
    oloads(1)
    a(pollO[0])
    a.lab("L_OB_have")
    for i in range(8):
        a(f"s_waitcnt vmcnt({8-i if i < 5 else 9-i}) lgkmcnt({max(0, min(15, 4*(7-i)))})")
        pm(1, i)
        chk(1, i)
        if i == 4: a(pollO[0])
    a(f"v_cmp_ne_u32 vcc, -1, v{vT}")
    a("s_sub_u32 s65, s65, 1"); a("s_cbranch_scc1 L_OB_ok")
    a("s_cmp_eq_u64 vcc, -1"); a("s_cbranch_scc0 L_OB_retry")
    a.lab("L_OB_ok")
    a(f"v_subrev_u32 v{vPW0}, 0x10000, v{vPW0}"); a(f"v_subrev_u32 v{vPW1}, 0x10000, v{vPW1}")
    stamp(a, 9)
    stamp(a, 4, mode=2)
    for i in range(8): wreads(i)
    stamp(a, 5, mode=2)
    spin(pollO[0], -1, cnt="s64", cmp="v_cmp_ne_u32")
    stamp(a, 6, mode=2)
    oloads(0)
    a("s_barrier")
    a(f"v_sub_f32 v{vT}, 1.0, v{vG}")
    for c in range(2):
        for r in range(16): a(f"v_mul_f32 v{PACC[1][c]+r}, v{vT}, v{PACC[1][c]+r}")
    a(f"s_mov_b32 s64, {SPIN}")
    a("s_branch L_O_go")
    a.lab("L_O_retry")
    oloads(0)
    a.lab("L_O_go")
    for i in range(8):
        a(f"s_waitcnt vmcnt({7-i}) lgkmcnt(0)")
        if i == 0: stamp(a, 7, mode=2)
        pm(0, i)
        chk(0, i)
    a(f"v_cmp_ne_u32 vcc, -1, v{vT}")
    a("s_sub_u32 s64, s64, 1"); a("s_cbranch_scc1 L_O_ok")
    a("s_cmp_eq_u64 vcc, -1"); a("s_cbranch_scc0 L_O_retry")
    a.lab("L_O_ok")
    stamp(a, 8, mode=2)
    a("s_nop 6")
    for c in range(2):
        for g in range(4):
            for r in range(4*g, 4*g+4): a(f"v_fmac_f32 v{PACC[1][c]+r}, v{vG}, v{PACC[0][c]+r}")
            a(f"ds_write_b128 v2, {vr(PACC[1][c]+4*g,4)} offset:{(c*4+g)*1088}")
    a("s_waitcnt lgkmcnt(0)"); a("s_barrier")
    stamp(a, 9, True, mode=2)
    for kq in range(4):
        for h in range(2):
            a(f"ds_read_b128 {vr(16+kq*8+h*4,4)}, v7 offset:{kq*PW + h*512}")
    a("s_waitcnt lgkmcnt(4)")
    for i in range(8): a(f"v_add_f32 v{16+i}, v{16+i}, v{24+i}")
    a("s_waitcnt lgkmcnt(0)")
    for i in range(8): a(f"v_add_f32 v{32+i}, v{32+i}, v{40+i}")
    for i in range(8): a(f"v_add_f32 v{16+i}, v{16+i}, v{32+i}")
    for i in range(4): a(f"v_cvt_pk_bf16_f32 v{48+i}, v{16+2*i}, v{16+2*i+1}")
    a(f"buffer_store_dwordx4 v[48:51], v8, {S(sOUT)}, s21 offen")
    if HOLD >= 0:
        hold(3)
        if opt("x_who") is not None:
            a(f"s_cmp_lg_u32 s2, {opt('x_who')}"); a("s_cbranch_scc1 L_end")
        a.lab("L_hold")
        a("s_memrealtime s[62:63]"); a("s_waitcnt lgkmcnt(0)")
        a("s_sub_u32 s62, s62, s72"); a("s_cmp_lt_u32 s62, 6000"); a("s_cbranch_scc1 L_hold")
    if Cfg.stamp:
        a("s_waitcnt vmcnt(0)")
        a("s_memtime s[96:97]"); a("s_waitcnt lgkmcnt(0)")
        stamp_out(a, 0, 10, sWS, sW, 8)
        a("s_nop 1"); a("v_mov_b32 v1, s96"); a(f"buffer_store_dword v1, v0, {S(sWS)}, s94 offen offset:40")
    a.lab("L_end")
    a("s_endpgm")

    a.lab("L_t2x")
    a(f"v_lshlrev_b32 v{vT2}, 10, v1")
    a(f"s_and_b32 s64, s{sRB}, 7"); a("s_lshl_b32 s64, s64, 16"); a(f"s_lshl_b32 s63, s{sJ}, 7"); a("s_add_u32 s64, s64, s63")
    a(f"s_cmp_eq_u32 s{sW}, 0"); a("s_cbranch_scc0 L_t2y")
    publishF1(2, vT)
    a(f"buffer_load_dword v243, v{vT2}, {S(sWOA)}, s64 offen")
    a("s_branch L_t2r")
    a.lab("L_t2y")
    a(f"buffer_load_dword v243, v{vT2}, {S(sWOB)}, s64 offen")
    a("s_branch L_t2r")
    for t in range(7):
        a.lab(f"L_A_off{t}")
        a("s_nop 7")
        for r in range(16): a(f"v_mov_b32 v{CM+r}, s5")
        a("s_nop 1")
        a(f"s_branch L_A_mid{t}")
    a.lab("L_A_fb")
    a("s_waitcnt lgkmcnt(0)")
    a("s_mov_b32 s8, 1")
    a(f"s_sub_u32 s17, 8, s{sW}"); a(f"s_cmp_eq_u32 s{sB}, 0"); a("s_cselect_b32 s17, s17, 0")
    a.lab("L_A_fb_loop")
    a("s_lshl_b32 s62, s17, 11")
    a(f"v_add_u32 v{vT}, s62, v{vKa}")
    rdK(0, vT, 0)
    a("s_sub_u32 s62, 8, s17"); a("s_lshl_b32 s62, s62, 5")
    a(f"v_add_u32 v{vT2}, s62, v{vQH}")
    a(f"v_mov_b32 v{vM}, s5")
    a("s_movk_i32 s62, 256")
    a("s_waitcnt lgkmcnt(0)")
    mfma(SB[0], 0, QA, "0")
    a("s_nop 15")
    for r in range(16):
        a(f"v_subrev_u32 v{vT}, {(r & 7) + 16*(r >> 3)}, v{vT2}")
        a(f"v_cmp_gt_u32 vcc, s62, v{vT}")
        a("s_nop 1")
        a(f"v_cndmask_b32 v{vT}, v{vM}, v{SB[0]+r}, vcc")
        a(f"v_max_f32 v{vMF}, v{vMF}, v{vT}")
    a("s_add_u32 s17, s17, 1"); a("s_cmp_lt_u32 s17, 9"); a("s_cbranch_scc1 L_A_fb_loop")
    for x in masks(): a(x)
    a_first()
    a("s_nop 15")
    a("s_branch L_A_max")
    a.lab("L_B_fb")
    a("s_waitcnt lgkmcnt(0)")
    a("s_mov_b32 s8, 1")
    a("s_mov_b32 s17, s14"); a("s_add_u32 s62, s14, 131072")
    a(f"v_mov_b32 v{vM}, s5")
    a(f"v_and_b32 v{vVb}, 0x7ff, v{vVb}")
    a.lab("L_B_fb_max")
    a(f"buffer_load_dwordx4 {vr(KB[0],4)}, v{vL16}, {S(sWS)}, s17 offen {LD}")
    a("s_add_u32 s17, s17, 2048")
    a("s_waitcnt vmcnt(0)")
    mfma(SB[0], 0, QB, "0")
    a("s_nop 15")
    for i in range(0, 16, 2): a(f"v_max3_f32 v{vM}, v{SB[0]+i}, v{SB[0]+i+1}, v{vM}")
    a("s_cmp_lt_u32 s17, s62"); a("s_cbranch_scc1 L_B_fb_max")
    halves_max()
    for r in range(16): a(f"v_sub_f32 v{CM+r}, 0, v{vM}")
    for r in range(16): a(f"v_mov_b32 v{OA+r}, 0")
    a("s_mov_b32 s17, s14")
    a.lab("L_B_fb_acc")
    a(f"buffer_load_dwordx4 {vr(KB[0],4)}, v{vL16}, {S(sWS)}, s17 offen {LD}")
    a("s_mov_b64 exec, s[22:23]")
    a(f"buffer_load_dwordx4 {vr(VB[0][0],4)}, v{vVb}, {S(sWS)}, s17 offen {LD}")
    a(f"buffer_load_dwordx4 {vr(VB[0][1],4)}, v{vVb}, {S(sWS)}, s17 offen offset:512 {LD}")
    a("s_mov_b64 exec, -1")
    a("s_add_u32 s17, s17, 2048")
    a("s_waitcnt vmcnt(0)")
    mfma(SB[0], 0, QB, vr(CM, 16))
    a("s_nop 15")
    for i in range(16): ex(SB[0], i)
    a("s_nop 1")
    smf(VB[0][0], SB[0]); smf(VB[0][1], SB[0]+8)
    a("s_cmp_lt_u32 s17, s62"); a("s_cbranch_scc1 L_B_fb_acc")
    a("s_branch L_B_fin")
    a.lab("L_code_end")
    d = desc(K, 256, 74, 256)
    if Cfg.stamp: d = d.replace("next_free_sgpr 96", "next_free_sgpr 100")
    return a.text(), d

def main(out):
    t, d = gen()
    hdr = f"""; gated_mix(sliding-window MHA, full MHA), one fused launch:
; @launch grid=(256,1,1) block=(512,1,1) lds=163840
.amdgcn_target "amdgcn-amd-amdhsa--gfx950"
"""
    open(out, "w").write(hdr + t + d)

if __name__ == "__main__":
    main(parse_args())
```

```python
import re
from common import *

WS_FL = 16 << 20
WS_F2 = WS_FL + 32768
SC = "sc1"
SPIN = 1 << 17
PW = 16*1088

sX, sWB, sWA, sWS, sWOA, sOUT, sDBG, sWOB = 24, 28, 32, 36, 40, 44, 48, 52
sW, sRB, sJ, sHD, sB, sQT, sR16, sI = 56, 57, 58, 59, 60, 61, 68, 69
S = lambda b: f"s[{b}:{b+3}]"
vXA = 2
vWA = 10
vL16, vGA = 14, 15
WF = [16, 48]
ACC = [80, 96]
GF = 112
XR = 128
vG, QB, QA = 112, 116, 120
vIDX, vKa, vVa, vKb, vVb, vT, vM, vMF, vT2, vQH, vFA, vWo, vFA2 = range(128, 141)
VB = [[144, 148], [152, 156]]
OA = 160
CD, CF = 176, 192
vPoll = 124
KB = [16, 20]
SB = [32, 48]
CM = 64
PK = [244, 248]
OF = [208, 16]
PACC = [[48, 64], [80, 96]]
vPW0, vPW1, vPWR, vPRD, vOUT = 8, 9, 2, 7, 6
QSTG = 152*1024

def gen():
    LD = "sc1"
    PUB1 = opt("pub1", 13)
    HOLD = opt("x_hold", -1)
    def hold(k):
        if HOLD == k or (k == 0 and HOLD >= 10): a("s_memrealtime s[72:73]"); a("s_waitcnt lgkmcnt(0)")
    def wpos(c, sb):
        if c == 8: return 3*sb*32768 + 24576
        if c == 12: return (1+sb)*32768 + 24576
        n = 2*(c-9 if c < 12 else c-10) + sb
        return (n//3)*32768 + (n % 3)*8192
    a = A(); K = NAME + "_kernel"; head(a, K)
    a("s_cmp_ge_u32 s2, 256"); a("s_cbranch_scc1 L_end")
    stamp(a, 0)
    hold(0)
    a("s_load_dwordx2 s[4:5], s[0:1], 0")
    a("s_load_dwordx4 s[12:15], s[0:1], 32")
    a("s_load_dwordx4 s[8:11], s[0:1], 8")
    a("s_load_dwordx2 s[6:7], s[0:1], 48")
    a("s_load_dwordx4 s[16:19], s[0:1], 56")
    a("s_load_dwordx2 s[20:21], s[0:1], 72")
    a("v_lshrrev_b32 v2, 6, v0")
    a("v_and_b32 v1, 63, v0")
    a("s_bfe_u32 s62, s2, 0x20003")
    a(f"v_readfirstlane_b32 s{sW}, v2")
    a("s_and_b32 s63, s2, 3"); a("s_lshl_b32 s63, s63, 2"); a(f"s_add_u32 s{sR16}, s63, s62")
    a(f"s_lshr_b32 s{sI}, s2, 5")
    a(f"v_lshlrev_b32 v{vL16}, 4, v1")
    a(f"s_cmp_lt_u32 s{sW}, 4"); a("s_cbranch_scc1 L_compute")

    def ids():
        a(f"s_lshl_b32 s{sRB}, s{sR16}, 1"); a(f"s_and_b32 s62, s{sI}, 1"); a(f"s_add_u32 s{sRB}, s{sRB}, s62")
        a(f"s_and_b32 s{sJ}, s2, 4"); a(f"s_lshr_b32 s62, s{sI}, 1"); a(f"s_add_u32 s{sJ}, s{sJ}, s62")
        a(f"s_and_b32 s{sHD}, s2, 7"); a(f"s_lshl_b32 s{sHD}, s{sHD}, 2"); a("s_bfe_u32 s62, s2, 0x20003"); a(f"s_add_u32 s{sHD}, s{sHD}, s62")
        a(f"s_mov_b32 s{sB}, s{sI}")
        a(f"s_lshl_b32 s{sQT}, s{sB}, 3"); a(f"s_add_u32 s{sQT}, s{sQT}, s{sW}")
    def roles():
        a(f"s_lshr_b32 s64, s{sI}, 1"); a("s_xor_b32 s64, s64, s2"); a("s_and_b32 s64, s64, 1"); a("s_lshl_b32 s64, s64, 1")
        a(f"s_and_b32 s65, s{sI}, 1"); a("s_add_u32 s65, s65, s64"); a("s_xor_b32 s64, s65, 2")
        a(f"s_and_b32 s22, s{sI}, 3"); a(f"s_add_u32 s23, s{sI}, 1"); a("s_and_b32 s23, s23, 3")
        a(f"s_cmp_lt_u32 s{sI}, 4"); a("s_cselect_b32 s64, s64, s22"); a("s_cselect_b32 s65, s65, s23")
        a("s_and_b32 s22, s2, 4"); a("s_add_u32 s64, s64, s22"); a("s_add_u32 s65, s65, s22")
    def common_srds():
        srd(a, sWS, 20, 21, ws_size())
        srd(a, sOUT, 16, 17, 2048*512*2)
        srd(a, sDBG, 18, 19, 256)
        srd(a, sWOA, 10, 11, 512*512*2)
        srd(a, sWOB, 14, 15, 512*512*2)

    class Rec:
        def __init__(s): s.L = []
        def __call__(s, t): s.L.append(t)
    def late_setup():
        a = Rec()
        a(f"s_lshl_b32 s20, s{sRB}, 17"); a(f"s_and_b32 s4, s{sW}, 1"); a("s_lshl_b32 s4, s4, 16"); a("s_add_u32 s20, s20, s4")
        a(f"s_lshr_b32 s4, s{sW}, 1"); a("s_lshl_b32 s4, s4, 13"); a("s_add_u32 s20, s20, s4"); a(f"s_add_u32 s20, s20, {WS_O:#x}")
        a(f"v_lshrrev_b32 v116, 5, v1"); a(f"v_bfe_u32 v117, v1, 2, 2")
        a(f"v_lshl_add_u32 v{vPW0}, v116, 2, v117"); a(f"v_lshlrev_b32 v{vPW0}, 7, v{vPW0}")
        a(f"v_bfe_u32 v116, v1, 4, 1"); a(f"v_lshlrev_b32 v116, 1, v116")
        a(f"v_bfe_u32 v117, v1, 1, 1"); a(f"v_add_u32 v116, v116, v117")
        a(f"v_bfe_u32 v117, v1, 3, 1"); a(f"v_lshl_or_b32 v116, v117, 2, v116")
        a(f"v_lshl_add_u32 v{vPW0}, v116, 4, v{vPW0}")
        a(f"v_and_b32 v116, 1, v1"); a(f"v_lshl_add_u32 v{vPW0}, v116, 3, v{vPW0}")
        a(f"s_lshr_b32 s4, s{sW}, 1"); a("s_lshl_b32 s4, s4, 14"); a("s_add_u32 s4, s4, 65536")
        a(f"v_add_u32 v{vPW0}, s4, v{vPW0}")
        a(f"v_xor_b32 v{vPW1}, 64, v{vPW0}")
        a(f"s_lshr_b32 s4, s{sW}, 1"); a(f"s_mul_i32 s4, s4, {PW}"); a(f"s_and_b32 s5, s{sW}, 1"); a(f"s_mul_i32 s5, s5, {8*1088}")
        a("s_add_u32 s4, s4, s5"); a("s_add_u32 s4, s4, 65536")
        a(f"v_add_u32 v{vPWR}, s4, v{vL16}")
        a("v_and_b32 v116, 7, v1"); a("v_lshrrev_b32 v117, 3, v1")
        a(f"s_and_b32 s4, s{sW}, 3"); a("s_lshl_b32 s4, s4, 3"); a("v_add_u32 v117, s4, v117")
        a(f"v_mul_u32_u24 v{vPRD}, 1088, v116"); a(f"v_lshl_add_u32 v{vPRD}, v117, 4, v{vPRD}")
        a(f"s_lshr_b32 s4, s{sW}, 2"); a(f"s_mul_i32 s5, s4, {8*1088}"); a("s_add_u32 s5, s5, 65536")
        a(f"v_add_u32 v{vPRD}, s5, v{vPRD}")
        a(f"v_lshlrev_b32 v{vOUT}, 10, v117"); a(f"v_lshl_add_u32 v{vOUT}, v116, 4, v{vOUT}")
        a("s_lshl_b32 s4, s4, 15"); a(f"s_lshl_b32 s5, s{sRB}, 16"); a("s_add_u32 s4, s4, s5")
        a(f"s_lshl_b32 s5, s{sJ}, 7"); a("s_add_u32 s33, s4, s5")
        return a.L

    def attn_setup():
        L = []; e = L.append
        e(f"s_lshl_b32 s11, s{sHD}, 6"); e(f"s_add_u32 s11, s11, s{sQT}"); e("s_lshl_b32 s11, s11, 10")
        e(f"s_add_u32 s11, s11, {WS_Q:#x}")
        e(f"s_lshl_b32 s13, s{sHD}, 17")
        e(f"s_add_u32 s14, s13, {32*131072:#x}")
        e(f"s_mov_b32 s10, {WS_FL:#x}")
        e("s_and_b32 s4, s2, 3"); e("s_add_u32 s5, s4, 3"); e("s_and_b32 s5, s5, 3"); e("s_xor_b32 s6, s4, 2")
        e("s_and_b32 s7, s2, 1"); e("s_mul_i32 s7, s7, 0x1011"); e("s_lshl_b32 s9, s4, 8"); e("s_add_u32 s7, s7, s9"); e("s_add_u32 s7, s7, 0x420")
        e("s_mul_i32 s6, s6, 0x110"); e("s_add_u32 s5, s5, s6"); e("s_add_u32 s5, s5, 0x404")
        e(f"v_bfe_u32 v{vT}, v1, 2, 2"); e(f"v_and_b32 v{vT2}, 3, v1"); e(f"v_lshl_add_u32 v{vT}, v{vT2}, 3, v{vT}")
        e(f"v_lshlrev_b32 v{vT}, 7, v{vT}")
        e(f"v_lshrrev_b32 v{vT2}, 4, v1"); e(f"v_lshlrev_b32 v{vT2}, 2, v{vT2}")
        e(f"v_bfe_u32 v{vFA}, s7, v{vT2}, 4"); e(f"v_lshl_add_u32 v{vFA}, v{vFA}, 12, v{vT}")
        e(f"v_bfe_u32 v{vFA2}, s5, v{vT2}, 4"); e(f"v_lshl_add_u32 v{vFA2}, v{vFA2}, 12, v{vT}")
        e("s_and_b32 s4, s2, 4"); e("s_lshl_b32 s4, s4, 7")
        e(f"v_add_u32 v{vFA}, s4, v{vFA}"); e(f"v_add_u32 v{vFA2}, s4, v{vFA2}")
        e(f"v_and_b32 v{vT}, 0xc80, v{vT}")
        e(f"s_lshr_b32 s4, s{sW}, 1"); e("s_lshl_b32 s4, s4, 8"); e(f"s_lshr_b32 s5, s{sRB}, 2"); e("s_lshl_b32 s5, s5, 12"); e("s_add_u32 s4, s4, s5")
        e(f"v_add_u32 v{vT}, s4, v{vT}")
        e("v_cmp_lt_u32 vcc, 47, v1")
        e("s_bfe_u32 s4, s2, 0x10001"); e("s_lshl_b32 s4, s4, 15")
        e(f"v_cndmask_b32 v{vFA2}, v{vFA2}, v{vT}, vcc")
        e("s_add_u32 s16, s14, s4"); e("s_xor_b32 s4, s4, 0x8000"); e("s_add_u32 s21, s14, s4")
        e(f"v_lshrrev_b32 v{vT}, 3, v1"); e(f"v_bfe_u32 v{vT2}, v1, 4, 1"); e(f"v_lshlrev_b32 v{vT2}, 2, v{vT2}")
        e(f"v_and_b32 v{vWo}, 7, v1"); e(f"v_xor_b32 v{vWo}, v{vWo}, v{vT2}"); e(f"v_lshlrev_b32 v{vWo}, 4, v{vWo}")
        e(f"v_lshl_add_u32 v{vWo}, v{vT}, 10, v{vWo}")
        e(f"v_mov_b32 v{vIDX}, 0xdddddddd")
        e("s_mov_b32 s22, 0x0000ffff"); e("s_mov_b32 s23, 0x0000ffff")
        e(f"v_lshrrev_b32 v{vQH}, 5, v1")
        e(f"v_and_b32 v{vVb}, 15, v1"); e(f"v_lshlrev_b32 v{vVb}, 4, v{vVb}")
        e(f"v_lshl_add_u32 v{vVb}, v{vQH}, 8, v{vVb}"); e(f"v_add_u32 v{vVb}, 1024, v{vVb}")
        e(f"s_lshl_b32 s4, s{sW}, 11"); e("s_add_u32 s4, s4, 131072")
        e(f"v_add_u32 v{vKa}, s4, v{vL16}")
        e(f"v_add_u32 v{vVa}, s4, v{vVb}")
        e(f"s_lshl_b32 s4, s{sW}, 10"); e(f"s_add_u32 s4, s4, {QSTG}")
        e(f"v_add_u32 v{vKb}, s4, v{vL16}")
        e(f"v_and_b32 v{vM}, 31, v1")
        e(f"v_lshlrev_b32 v{vQH}, 3, v{vQH}"); e(f"v_sub_u32 v{vQH}, v{vM}, v{vQH}")
        e(f"v_and_b32 v{vT}, 0x1b, v{vM}")
        e(f"v_cmp_eq_u32 vcc, 16, v{vT}")
        e(f"v_mov_b32 v{vT2}, {0 if opt('x_noones') else 0x3f803f80:#x}")
        e(f"v_mov_b32 v{vT}, 0")
        for b in range(2):
            for j in range(2):
                for i in range(4): e(f"v_cndmask_b32 v{VB[b][j]+i}, v{vT}, v{vT2}, vcc")
        e(f"s_mov_b32 s5, {NEG_INF:#x}")
        e(f"s_cmp_eq_u32 s{sB}, 0\n    s_cselect_b32 s6, s5, 0\n    s_cselect_b32 s7, s{sW}, 64")
        e(f"v_mov_b32 v{vMF}, s5")
        e("s_mov_b32 s8, 0")
        e(f"s_lshl_b32 s15, s{sQT}, 6"); e(f"s_add_u32 s15, s15, s{sHD}"); e("s_lshl_b32 s15, s15, 10")
        e(f"s_add_u32 s15, s15, {WS_O:#x}")
        L += masks()
        return L
    def masks():
        L = []; e = L.append
        e(f"v_mov_b32 v{vT}, s5"); e(f"v_mov_b32 v{vT2}, s6")
        for r in range(16):
            e(f"v_cmp_le_i32 vcc, {(r & 7) + 16*(r >> 3)}, v{vQH}")
            e(f"v_mov_b32 v{OA+r}, 0")
            e("s_nop 0")
            e(f"v_cndmask_b32 v{CD+r}, v{vT}, v{OA+r}, vcc")
            e(f"v_cndmask_b32 v{CF+r}, v{vT2}, v{vT}, vcc")
        return L
    def gread(t):
        a(f"s_and_b32 s62, s{sI}, 1"); a("s_lshl_b32 s62, s62, 1"); a(f"s_and_b32 s63, s{sW}, 1"); a("s_add_u32 s62, s62, s63")
        a("s_lshl_b32 s62, s62, 7"); a("s_add_u32 s62, s62, 29696")
        a(f"v_and_b32 v{t}, 31, v1"); a(f"v_lshl_add_u32 v{t}, v{t}, 2, s62")
        a(f"ds_read_b32 v{vG}, v{t}")
    uid = [0]
    def spin(load, stage, cnt="s62", reg=vPoll, cmp="v_cmp_le_u32"):
        uid[0] += 1; n = uid[0]
        a(f"s_mov_b32 {cnt}, {SPIN}")
        a(f"s_branch L_chk{n}")
        a.lab(f"L_spin{n}")
        if opt("sleep", 4): a(f"s_sleep {opt('sleep', 4)}")
        a(load)
        a.lab(f"L_chk{n}")
        a("s_waitcnt vmcnt(0)")
        if "x4" in load:
            a(f"v_min3_u32 v{reg}, v{reg}, v{reg+1}, v{reg+2}"); a(f"v_min_u32 v{reg}, v{reg}, v{reg+3}")
        a(f"{cmp} vcc, {stage}, v{reg}")
        a(f"s_sub_u32 {cnt}, {cnt}, 1"); a(f"s_cbranch_scc1 L_ok{n}")
        a("s_cmp_eq_u64 vcc, -1"); a(f"s_cbranch_scc0 L_spin{n}")
        a.lab(f"L_ok{n}")
    pollF1 = f"buffer_load_dword v{vPoll}, v{vFA}, {S(sWS)}, s10 offen {SC}"
    pollF1b = f"buffer_load_dwordx4 {vr(vPoll,4)}, v{vFA}, {S(sWS)}, s3 offen {SC}"
    pollF1A = f"buffer_load_dword v{vPoll}, v{vFA2}, {S(sWS)}, s10 offen {SC}"

    a(f"s_sub_u32 s66, s{sW}, 4")
    a("v_lshrrev_b32 v2, 3, v1")
    a("v_and_b32 v3, 7, v1")
    a("v_lshrrev_b32 v4, 4, v1")
    a("v_xor_b32 v5, v3, v4")
    a("v_lshlrev_b32 v5, 4, v5")
    a("v_lshl_add_u32 v6, v2, 10, v5")
    a(f"s_lshl_b32 s63, s{sR16}, 17"); a("s_lshl_b32 s64, s66, 15"); a("s_add_u32 s63, s63, s64")
    a("v_add_u32 v16, s63, v6")
    a("v_xor_b32 v17, 64, v16"); a("v_add_u32 v17, 8192, v17")
    a("v_add_u32 v18, 16384, v16"); a("v_add_u32 v19, 16384, v17")
    a("v_and_b32 v5, 1, v4")
    a("v_lshlrev_b32 v5, 2, v5")
    a("v_xor_b32 v5, v3, v5")
    a("v_lshlrev_b32 v5, 4, v5")
    a("v_mul_u32_u24 v8, 3072, v2")
    a("s_mul_i32 s63, s66, 49152")
    a("v_add3_u32 v20, v8, v5, s63")
    a("v_add_u32 v21, 24576, v20")
    a("s_lshl_b32 s3, s62, 1"); a(f"s_add_u32 s3, s3, s{sI}"); a("s_and_b32 s3, s3, 7")
    R = opt("rot", 4)
    if R == 0: a("s_mov_b32 s3, 0")
    if R >= 16:
        a("s_and_b32 s3, s2, 3"); a("s_lshl_b32 s3, s3, 1"); a("s_and_b32 s63, s2, 4"); a("s_add_u32 s3, s3, s63")
        if R == 17: a(f"s_and_b32 s63, s{sI}, 1"); a("s_lshl_b32 s63, s63, 1"); a("s_add_u32 s3, s3, s63")
        if R == 18: a(f"s_add_u32 s63, s{sI}, s62"); a("s_and_b32 s63, s63, 1"); a("s_lshl_b32 s63, s63, 1"); a("s_add_u32 s3, s3, s63")
        if R == 19: a(f"s_add_u32 s63, s{sI}, s62"); a("s_and_b32 s63, s63, 3"); a("s_add_u32 s3, s3, s63")
        a("s_and_b32 s3, s3, 7")
    if R == 5:
        a(f"s_add_u32 s3, s62, s{sI}"); a("s_and_b32 s3, s3, 3"); a("s_lshl_b32 s3, s3, 1"); a("s_bfe_u32 s63, s2, 0x10002"); a("s_add_u32 s3, s3, s63")
    if R == 4: a(f"s_add_u32 s3, s62, s{sI}"); a("s_and_b32 s3, s3, 3"); a("s_lshl_b32 s3, s3, 1")
    roles()
    a("s_lshl_b32 s64, s64, 7"); a("s_lshl_b32 s65, s65, 7"); a("s_add_u32 s65, s65, 2048")
    a(f"s_cmp_lt_u32 s{sI}, 4"); a("s_cselect_b32 s22, 1024, 0"); a("s_add_u32 s64, s64, s22")
    a(f"s_cmp_lt_u32 s{sI}, 2"); a("s_cselect_b32 s22, s65, s64"); a("s_cselect_b32 s71, s64, s65")
    a("s_lshl_b32 s67, s66, 12"); a("s_add_u32 s67, s67, 32768")
    a("s_lshl_b32 s23, s66, 11"); a("s_add_u32 s23, s23, 32768")
    for d, sz in ((sX, 2048*512*2), (sWB, 512*1536*2)):
        a(f"s_mov_b32 s{d+2}, {sz:#x}"); a(f"s_mov_b32 s{d+3}, 0x20000")
    stamp(a, 1, mode=8)
    a("s_waitcnt lgkmcnt(0)")
    stamp(a, 2, mode=8)
    for d, lo in ((sX, 4), (sWB, 12)):
        a(f"s_mov_b32 s{d}, s{lo}"); a(f"s_and_b32 s{d+1}, s{lo+1}, 0xffff")
    RW = ["s22", "s23"]
    def wblock(srdw, col, ldsoff):
        a(f"s_mul_i32 s63, s3, {64*3072}"); a(f"s_add_u32 s63, s63, {col}")
        for e in range(2):
            a(f"s_add_u32 m0, {RW[1]}, {ldsoff + e*1024}")
            a("s_nop 0")
            a(f"buffer_load_dwordx4 v{20+e}, {S(srdw)}, s63 offen lds")
        a("s_add_u32 s3, s3, 1"); a("s_and_b32 s3, s3, 7")
    seq = []
    def issue(c):
        slot = c & 3
        a("s_lshl_b32 s62, s3, 7")
        for il in range(4):
            a(f"s_add_u32 m0, s67, {slot*32768 + il*1024}")
            a("s_nop 0")
            a(f"buffer_load_dwordx4 v{16+il}, {S(sX)}, s62 offen lds")
        wblock(sWB, RW[0], slot*32768 + 16384)
        seq.append((c, 6))
    def issue_w(c, sb):
        k = 2*((c-8) & 3) + sb
        a(f"s_add_u32 s3, s64, {k}"); a("s_and_b32 s3, s3, 7")
        wblock(sX if c < 12 else sWA, "s71" if c < 12 else "s65", wpos(c, sb))
        seq.append((c, 2))
    def wait_for(c):
        last = max(k for k, (cc, n) in enumerate(seq) if cc == c)
        a(f"s_waitcnt vmcnt({sum(n for cc, n in seq[last+1:])})")
    a("s_lshl_b32 s64, s66, 8"); a("s_lshl_b32 s65, s3, 7"); a("s_add_u32 s65, s65, s64")
    issue(0)
    stamp(a, 3, mode=8)
    a("v_lshlrev_b32 v24, 2, v1"); a("v_add_u32 v24, s65, v24"); a("v_and_b32 v24, 0x3ff, v24")
    srd(a, sWOB, 6, 7, 1024)
    a("s_add_u32 m0, s64, 28672"); a("s_nop 0")
    a(f"buffer_load_dword v24, {S(sWOB)}, 0 offen lds")
    issue(1)
    stamp(a, 4, mode=8)
    issue(2)
    stamp(a, 5, mode=8)
    srd(a, sWA, 8, 9, 512*1536*2)
    common_srds()
    a("s_mov_b32 s17, s22"); a("s_mov_b32 s18, s23"); RW[:] = ["s17", "s18"]
    ids()
    a(f"s_xor_b32 s65, s{sI}, 2"); a("s_and_b32 s65, s65, 3"); a("s_and_b32 s62, s2, 4"); a("s_add_u32 s65, s65, s62"); a("s_lshl_b32 s65, s65, 7")
    a(f"s_and_b32 s62, s{sI}, 4"); a("s_lshl_b32 s62, s62, 8"); a("s_add_u32 s65, s65, s62")
    SCH = {5: {4: [8], 5: [12], 7: [9], 8: [10, 11], 10: [13, 14], 11: [15]},
           2: {4: [8], 6: [12], 7: [9], 8: [10, 11], 10: [13, 14], 11: [15]},
           6: {4: [8], 5: [12], 7: [9], 8: [10], 9: [11], 10: [13, 14], 11: [15]},
           7: {4: [8, 12], 7: [9], 8: [10, 11], 10: [13, 14], 11: [15]}}[opt("sch", 5)]
    lset = late_setup() + attn_setup()
    LSPLIT = opt("lsplit", 110)
    def after(k):
        for cc in SCH.get(k, []):
            for sb in range(2): issue_w(cc, sb)
    for c in range(0, 9):
        stamp(a, c+1, mode=6)
        wait_for(c)
        stamp(a, c+1, mode=7)
        if c < 2: stamp(a, 6+2*c, mode=8)
        a("s_barrier")
        if c < 2: stamp(a, 7+2*c, mode=8)
        stamp(a, c+1, mode=4)
        if c == 0: hold(10)
        if c == 4: hold(16)
        if c == 8: hold(11)
        if c + 3 < 8: issue(c+3)
        if c == 4:
            a(f"s_cmp_lt_u32 s{sI}, 4")
            a(f"s_cselect_b32 s{sX}, s{sWB}, s{sWA}"); a(f"s_cselect_b32 s{sX+1}, s{sWB+1}, s{sWA+1}")
            a(f"s_mov_b32 s{sX+2}, {512*1536*2:#x}")
            a("s_mov_b32 s64, s3")
        after(c)
    wait_for(9); a("s_barrier")
    after(9)
    wait_for(11); a("s_barrier")
    after(10)
    gread(3)
    a("s_waitcnt lgkmcnt(0)")
    a("s_barrier")
    hold(12)
    after(11)
    for x in lset[:LSPLIT]: a(x)
    a("s_waitcnt vmcnt(0)"); a("s_barrier")
    hold(13)
    L2 = opt("lsplit2", 140)
    while L2 < len(lset) and not lset[L2].startswith("v_cmp"): L2 += 1
    for x in lset[LSPLIT:L2]: a(x)
    stamp(a, 1)
    NP = opt("npoll", 2)
    if NP < 4: a(f"s_cmp_ge_u32 s66, {NP}"); a("s_cbranch_scc1 L_nokv")
    a(pollF1)
    spin(pollF1, 1)
    hold(14)
    stamp(a, 2)
    qn = 8//NP
    a(f"s_mul_i32 s62, s66, {qn*1024}")
    a(f"s_lshl_b32 s63, s{sW}, 10"); a("s_sub_u32 s63, s11, s63"); a("s_add_u32 s63, s63, s62"); a(f"s_add_u32 s63, s63, {32*64*1024:#x}")
    for g in range((qn+3)//4):
        a(f"s_add_u32 m0, s62, {QSTG + g*4096}"); a(f"s_add_u32 s64, s63, {g*4096}")
        for i in range(min(qn, 4)): a(f"buffer_load_dwordx4 v{vL16}, {S(sWS)}, s64 offen offset:{i*1024} {LD} lds")
    a(f"s_mul_i32 s62, s66, {qn*4096}"); a("s_add_u32 s63, s62, s16")
    for q in range(2):
        if NP == 1 and q: a("s_waitcnt vmcnt(24)")
        for g in range(qn):
            a(f"s_add_u32 m0, s62, {q*32768 + g*4096}"); a(f"s_add_u32 s64, s63, {q*65536 + g*4096}")
            for i in range(4): a(f"buffer_load_dwordx4 v{vL16}, {S(sWS)}, s64 offen offset:{i*1024} {LD} lds")
    a.lab("L_nokv")
    for x in lset[L2:]: a(x)
    a(f"s_waitcnt vmcnt({4*qn if opt('t1', 0) else 0})"); a("s_barrier")
    stamp(a, 3)
    a("s_branch L_attn")

    a.lab("L_compute")
    CPF = opt("codepf", 2)
    if CPF:
        a("s_getpc_b64 s[62:63]")
        a.lab("L_pc")
        if CPF == 1:
            a("s_lshr_b32 s64, s2, 3"); a("s_cmp_eq_u32 s64, 1"); a("s_cbranch_scc0 L_nocpf")
            a("v_lshlrev_b32 v20, 7, v0")
        else:
            a(f"s_cmp_eq_u32 s{sW}, 2"); a("s_cbranch_scc0 L_nocpf")
            a("s_lshr_b32 s64, s2, 3"); a("s_lshl_b32 s64, s64, 7")
            a("v_and_b32 v20, 15, v1"); a("v_lshlrev_b32 v20, 12, v20"); a("v_add_u32 v20, s64, v20")
        a(f"s_sub_u32 s62, s62, L_pc-{K}"); a("s_subb_u32 s63, s63, 0")
        a(f"v_min_u32 v20, L_code_end-{K}-4, v20")
        a("v_mov_b32 v21, s63")
        a("v_add_co_u32 v20, vcc, s62, v20")
        a("s_nop 1")
        a("v_addc_co_u32 v21, vcc, 0, v21, vcc")
        a("global_load_dword v255, v[20:21], off")
        a.lab("L_nocpf")
    a("v_lshrrev_b32 v16, 5, v1")
    a("v_and_b32 v17, 31, v1")
    a("v_lshrrev_b32 v18, 1, v17"); a("v_and_b32 v18, 7, v18")
    a(f"s_lshl_b32 s62, s{sW}, 12"); a("s_add_u32 s62, s62, 32768")
    a("v_lshlrev_b32 v19, 7, v17"); a("v_add_u32 v19, s62, v19")
    for t in range(4):
        a(f"v_add_u32 v20, {2*t}, v16"); a("v_xor_b32 v20, v20, v18")
        a(f"v_lshl_add_u32 v{vXA+t}, v20, 4, v19")
        a(f"v_add_u32 v{vXA+4+t}, 0x10000, v{vXA+t}")
    a("v_bfe_u32 v18, v1, 2, 2")
    a("v_lshl_add_u32 v19, v16, 3, v18"); a("v_lshlrev_b32 v19, 7, v19")
    a("v_bfe_u32 v20, v1, 4, 1"); a("v_lshlrev_b32 v20, 1, v20")
    a("v_bfe_u32 v21, v1, 1, 1"); a("v_add_u32 v20, v20, v21")
    a("v_bfe_u32 v21, v1, 3, 1"); a("v_lshl_or_b32 v20, v21, 2, v20")
    a("v_lshl_add_u32 v19, v20, 4, v19")
    a("v_and_b32 v20, 1, v1"); a("v_lshl_add_u32 v19, v20, 3, v19")
    a(f"v_add_u32 v{vWA}, 32768, v19"); a(f"v_xor_b32 v{vWA+1}, 64, v{vWA}")
    a(f"v_add_u32 v{vWA+2}, 0x10000, v{vWA}"); a(f"v_add_u32 v{vWA+3}, 0x10000, v{vWA+1}")
    a(f"v_lshlrev_b32 v{vGA}, 4, v16"); a(f"v_add_u32 v{vGA}, 28672, v{vGA}")
    ids()
    roles()
    a(f"s_lshl_b32 s66, s{sR16}, 2"); a(f"s_add_u32 s66, s66, s{sW}")
    a("s_lshl_b32 s62, s64, 8"); a("s_add_u32 s62, s62, s66"); a("s_add_u32 s62, s62, 2048")
    a(f"s_xor_b32 s64, s{sI}, 2"); a("s_and_b32 s64, s64, 3"); a("s_add_u32 s64, s64, s22"); a("s_lshl_b32 s64, s64, 8"); a("s_add_u32 s64, s64, s66")
    a("s_lshl_b32 s24, s62, 11"); a("s_lshl_b32 s25, s62, 10"); a(f"s_add_u32 s25, s25, {WS_Q:#x}")
    a("s_lshl_b32 s26, s64, 11"); a("s_lshl_b32 s27, s64, 10"); a(f"s_add_u32 s27, s27, {WS_Q:#x}")
    a("s_mov_b32 s28, 0x10000"); a("s_mov_b32 s29, 0x20000")
    a(f"s_cmp_lt_u32 s{sI}, 4")
    a("s_cselect_b32 s24, s24, s25"); a("s_cselect_b32 s25, s29, s28")
    a("s_cselect_b32 s26, s27, s26"); a("s_cselect_b32 s27, s28, s29")
    a("s_cselect_b32 s64, 2048, 0")
    a("s_lshl_b32 s62, s65, 8"); a("s_add_u32 s62, s62, s66"); a("s_add_u32 s62, s62, s64")
    a("s_lshl_b32 s28, s62, 11"); a("s_add_u32 s29, s28, 0x40000")
    a(f"s_mov_b32 s32, {QSCALE:#x}")
    a("v_mov_b32 v0, 0")
    a("s_waitcnt lgkmcnt(0)")
    common_srds()
    for i in range(4): a(f"v_mov_b32 v{20+i}, 0")
    a("v_mov_b32 v24, 1")
    a(f"s_lshl_b32 s62, s{sW}, 8"); a("s_add_u32 s62, s62, s2"); a("s_sub_u32 s62, s62, 768")
    a("s_cmp_lt_u32 s62, 8"); a("s_cbranch_scc0 L_noinit")
    a("s_lshl_b32 s62, s2, 13"); a(f"s_add_u32 s62, s62, {WS_FL:#x}"); a("s_add_u32 s63, s62, 4096")
    for i in range(8): a(f"buffer_store_dwordx4 v[20:23], v{vL16}, {S(sWS)}, s{62+(i>>2)} offen offset:{(i&3)*1024} {SC}")
    a("s_lshl_b32 s62, s2, 5")
    a("s_waitcnt vmcnt(0)")
    a("s_mov_b64 exec, 1")
    a(f"buffer_store_dword v24, v20, {S(sDBG)}, s62 offen {SC}")
    a("s_mov_b64 exec, -1")
    a.lab("L_noinit")

    def chunk_of(m): return m if m < 8 else 8 + ((m - 8) >> 1)
    def reads(m):
        c = chunk_of(m); slot = c & 3; b = m & 1; L = []
        wp = slot*32768 + 16384 if m < 8 else wpos(c, (m - 8) & 1)
        for t in range(4):
            if m < 8:
                L.append(f"ds_read_b128 {vr(XR + 4*(4*m+t), 4)}, v{vXA + 4*(slot>>1) + t} offset:{(slot&1)*32768}")
            for cc in range(2):
                for u in range(2):
                    L.append(f"ds_read_b64_tr_b16 {vr(WF[b]+8*t+4*cc+2*u,2)}, v{vWA+2*(wp>>16)+cc} offset:{(wp & 0xffff) + (16*t+4*u)*128}")
        return L
    def greads(m): return [f"ds_read_b128 {vr(GF+4*t,4)}, v{vGA} offset:{(4*m+t)*32}" for t in range(4)]
    def dots(m): return [f"v_dot2_f32_bf16 v0, v{XR+16*m+i}, v{GF+i}, v0" for i in range(16)]
    def mfmas(m, vphase):
        b = m & 1; L = []
        for t in range(4):
            x = vr(XR + 4*(4*(m & 7)+t), 4)
            for cc in range(2):
                d = vr(ACC[cc], 16); c0 = "0" if (m & 7) == 0 and t == 0 else d
                w = vr(WF[b]+8*t+4*cc, 4)
                if opt("x_m16"):
                    x2 = vr(XR + 4*(4*(m & 7)+(t^1)), 4)
                    d1 = vr(ACC[cc]+8*(t&1), 4); d2 = vr(ACC[cc]+8*(t&1)+4, 4)
                    z = (m & 7) == 0 and t < 2
                    L.append(f"v_mfma_f32_16x16x32_bf16 {d1}, {w}, {x}, {0 if z else d1}\n    v_mfma_f32_16x16x32_bf16 {d2}, {w}, {x2}, {0 if z else d2}")
                    continue
                L.append(f"v_mfma_f32_32x32x16_bf16 {d}, {x}, {w}, {c0}" if (m >> 3) == vphase else f"v_mfma_f32_32x32x16_bf16 {d}, {w}, {x}, {c0}")
        return L
    ST = opt("st", "sc1")
    def stores3():
        for i in range(4):
            a(f"buffer_store_dwordx4 {vr(208+4*i,4)}, v5, {S(sWS)}, s26 offen {ST}")
            a("s_add_u32 s26, s26, s27")
    def epilogue(ph, pk, vphase):
        a("s_nop 6" if ph == 0 else "s_nop 10")
        if ph == 2 or (ph == 0 and vphase == 1):
            a(f"s_cmp_lt_u32 s{sI}, 4"); a(f"s_cbranch_scc{1 if ph == 0 else 0} L_noscale{ph}")
            for r in range(32): a(f"v_mul_f32 v{ACC[0]+r}, s32, v{ACC[0]+r}")
            a.lab(f"L_noscale{ph}")
        for cc in range(2):
            for p in range(2):
                for i in range(4): a(f"v_cvt_pk_bf16_f32 v{pk+i}, v{ACC[cc]+8*p+2*i}, v{ACC[cc]+8*p+2*i+1}")
                if ph == vphase: a(f"buffer_store_dwordx4 {vr(pk,4)}, v3, {S(sWS)}, s{28+cc} offen offset:{p*512} {ST}")
                elif ph < 2:
                    a(f"buffer_store_dwordx4 {vr(pk,4)}, v4, {S(sWS)}, s24 offen {ST}")
                    a("s_add_u32 s24, s24, s25")
                pk += 4
        a("s_nop 1")
    def publishF1(stage, t1):
        a(f"v_mov_b32 v{t1}, {stage}")
        a("s_lshl_b32 s62, s2, 7"); a(f"s_add_u32 s62, s62, {WS_FL:#x}")
        a("s_mov_b64 exec, 1")
        a(f"buffer_store_dword v{t1}, v{vL16}, {S(sWS)}, s62 offen {SC}")
        a("s_mov_b64 exec, -1")
    def first_step(x):
        regs = [int(r) for r in re.findall(r"\bv(\d+)", x)]
        hi = max([r for r in regs if r >= XR], default=0)
        return 16 + (hi - XR)//16 + 1 if hi else 16
    plan = {m: [[] for _ in range(8)] for m in range(24)}
    pos = 16*8
    for x in attn_setup():
        pos = max(pos, first_step(x)*8)
        while len(plan[pos >> 3][pos & 7]) >= (3 if pos < 21*8 else 4): pos += 1
        plan[pos >> 3][pos & 7].append(x)
    staddr = ["v_and_b32 v2, 0x33, v1", "v_bfe_u32 v3, v1, 2, 1", "v_lshl_or_b32 v2, v3, 3, v2", "v_bfe_u32 v3, v1, 3, 1",
              "v_lshl_or_b32 v2, v3, 2, v2", "v_lshlrev_b32 v2, 4, v2", f"v_mov_b32 v6, s{sI}", "v_cmp_gt_u32 vcc, 4, v6",
              "v_and_b32 v3, 15, v1", "v_lshlrev_b32 v3, 4, v3", f"v_cndmask_b32 v4, v{vL16}, v2, vcc", f"v_cndmask_b32 v5, v2, v{vL16}, vcc",
              "v_lshrrev_b32 v2, 5, v1", "v_lshl_add_u32 v3, v2, 8, v3", "v_bfe_u32 v2, v1, 4, 1", "v_lshl_add_u32 v3, v2, 17, v3", "v_add_u32 v3, 1024, v3"]
    for k, x in enumerate(staddr): plan[7][4 + k*4//len(staddr)].append(x)
    gate = ["v_mov_b32 v113, v0", "v_and_b32 v119, 31, v1", f"s_lshl_b32 s62, s{sW}, 7", "v_permlane32_swap_b32 v0, v113", "v_add_f32 v113, v0, v113",
            f"v_mul_f32 v113, {f2u(-1.4426950408889634):#x}, v113", "v_exp_f32 v113, v113", "s_add_u32 s62, s62, 29696", "v_add_f32 v113, 1.0, v113",
            "v_rcp_f32 v113, v113", "v_lshl_add_u32 v119, v119, 2, s62", "ds_write_b32 v119, v113"]
    for k, x in enumerate(gate): plan[8][k*6//len(gate)].append(x)
    ls = late_setup()
    for k, x in enumerate(ls):
        p = 9*8 + k*48//len(ls); plan[p >> 3][p & 7].append(x)
    pollI = f"buffer_load_dword v114, v115, {S(sDBG)}, 0 offen {SC}"
    def step(m, vphase):
        tag = "v" if vphase == 0 else "q"
        if m >= 8 and m % 2 == 0: stamp(a, 2 + (m-8)//2, mode=3)
        if m == 7: stamp(a, 1, mode=3)
        a("s_waitcnt lgkmcnt(0)" if m != 5 else "s_waitcnt vmcnt(0) lgkmcnt(0)")
        mm = mfmas(m, vphase)
        r = reads(m+1) if m < 23 else []
        fill = [[] for _ in range(8)]
        if m < 8:
            d = dots(m) if not opt("x_nodot") else []
            for g in range(4): fill[g] += d[4*g:4*g+4]
            if m < 7: fill[4] += greads(m+1)
        for g in range(8): fill[g] += plan[m][g]
        nr = (len(r) + 4) // 5
        for i in range(8):
            a(mm[i])
            if i == 0:
                if m == PUB1:
                    a("s_waitcnt vmcnt(0)")
                    a(f"s_cmp_lg_u32 s{sW}, 0"); a(f"s_cbranch_scc1 L_noinitchk{tag}")
                    spin(pollI, 1, cnt="s65", reg=114, cmp="v_cmp_eq_u32")
                    a.lab(f"L_noinitchk{tag}")
                if m <= 7: stamp(a, m+2, mode=7)
                if m <= 7 or m in (9, 11, 13, 17): a("s_barrier")
                if m == PUB1:
                    a(f"s_cmp_lg_u32 s{sW}, 0"); a(f"s_cbranch_scc1 L_nopub1{tag}")
                    publishF1(1, 114)
                    a.lab(f"L_nopub1{tag}")
                if m == 11: gread(118)
            if i < 5:
                for x in r[i*nr:(i+1)*nr]: a(x)
            for x in fill[i]: a(x)
        if m == 7:
            stamp(a, 3)
            epilogue(0, WF[1], vphase)
            a("v_and_b32 v115, 7, v1"); a("v_lshlrev_b32 v115, 5, v115")
            a(f"s_cmp_lg_u32 s{sW}, 0"); a(f"s_cbranch_scc1 L_noip{tag}")
            a(pollI)
            a.lab(f"L_noip{tag}")
        if m == 15:
            epilogue(1, WF[1], vphase)
    stamp(a, 1)
    a(f"s_cmp_lt_u32 s{sI}, 2"); a("s_cbranch_scc0 L_p12q")
    for vphase in (0, 1):
        if vphase: a.lab("L_p12q")
        a("s_barrier")
        stamp(a, 2, True)
        for r in reads(0) + greads(0): a(r)
        for m in range(16): step(m, vphase)
        if vphase == 0: a("s_branch L_p3")
    a.lab("L_p3")
    for m in range(16, 24): step(m, -1)
    stamp(a, 4)
    a("s_waitcnt vmcnt(0)")
    a("s_lshl_b32 s62, s2, 7"); a(f"s_lshl_b32 s63, s{sW}, 2"); a("s_add_u32 s62, s62, s63"); a(f"s_add_u32 s62, s62, {WS_F2:#x}")
    a("v_mov_b32 v114, 1")
    a("s_mov_b64 exec, 1")
    a(f"buffer_store_dword v114, v{vL16}, {S(sWS)}, s62 offen {SC}")
    a("s_mov_b64 exec, -1")
    epilogue(2, 208, -1)
    hold(15)
    a("s_barrier")

    a.lab("L_attn")
    def rdK(buf, addr, off): a(f"ds_read_b128 {vr(KB[buf],4)}, v{addr} offset:{off}")
    def rdV(buf, addr, off):
        a("s_mov_b64 exec, s[22:23]")
        a(f"ds_read_b128 {vr(VB[buf][0],4)}, v{addr} offset:{off}")
        a(f"ds_read_b128 {vr(VB[buf][1],4)}, v{addr} offset:{off+512}")
        a("s_mov_b64 exec, -1")
    def mfma(dst, kbuf, q, c): a(f"v_mfma_f32_32x32x16_bf16 {vr(dst,16)}, {vr(KB[kbuf],4)}, {vr(q,4)}, {c}")
    def smf(vreg, sreg):
        if opt("x_nosmf"): return
        if opt("x_dense") == 1:
            for i in range(4): a(f"v_cvt_pk_bf16_f32 v{24+i}, v{sreg+2*i}, v{sreg+2*i+1}")
            a("s_nop 1")
            a(f"v_mfma_f32_32x32x16_bf16 {vr(OA,16)}, {vr(vreg,4)}, v[24:27], {vr(OA,16)}")
            return
        if opt("x_dense") == 2:
            a(f"v_mfma_f32_32x32x16_bf16 {vr(OA,16)}, {vr(vreg,4)}, {vr(QB,4)}, {vr(OA,16)}")
            return
        if opt("x_dense") == 3:
            a(f"v_smfmac_f32_16x16x64_bf16 {vr(OA,4)}, {vr(KB[0],4)}, {vr(sreg,8)}, v{vIDX}")
            return
        if opt("x_dense") == 4:
            a(f"v_smfmac_f32_32x32x16_bf16 {vr(OA,16)}, {vr(vreg,2)}, {vr(sreg,4)}, v{vIDX}")
            a(f"v_smfmac_f32_32x32x16_bf16 {vr(OA,16)}, {vr(vreg+2,2)}, {vr(sreg+4,4)}, v{vIDX}")
            return
        a(f"v_smfmac_f32_32x32x32_bf16 {vr(OA,16)}, {vr(vreg,4)}, {vr(sreg,8)}, v{vIDX}")
    def ex(s, i): a(f"v_exp_f32 v{s+i}, v{s+i}" if not opt("x_expc") else f"v_exp_f32 v{vT2}, v{vMF}")
    def halves_max():
        a(f"v_mov_b32 v{vT}, v{vM}")
        a("s_nop 1")
        a(f"v_permlane32_swap_b32 v{vM}, v{vT}")
        a(f"v_max_f32 v{vM}, v{vM}, v{vT}")
    def rowmax(s):
        a(f"v_max3_f32 v{vM}, v{s}, v{s+1}, v{vMF}")
        for i in range(2, 16, 2): a(f"v_max3_f32 v{vM}, v{s+i}, v{s+i+1}, v{vM}")
        halves_max()
    def tile(t, first, do_mfma, q, c, kread, vread, pre_mfma=None, extra=None, side=None):
        cur, prev = SB[t & 1], SB[(t+1) & 1]
        LO, HI = opt("lo", 14), opt("hi", 0)
        def e(i):
            if i == HI: a("s_setprio 1")
            if i == LO: a("s_setprio 0")
            ex(cur, i)
            if side and i in side:
                for x in side[i]: a(x)
        e(0); e(1)
        if not first and opt("adj", 0): smf(VB[(t-1) & 1][0], prev)
        if not first: smf(VB[(t-1) & 1][1], prev+8)
        a("s_waitcnt lgkmcnt(0)")
        if opt("x_half") and t & 2: kread = vread = None
        if opt("x_c0"): c = "0"
        if kread is not None: rdK(t & 1, *kread)
        if vread is not None: rdV((t+1) & 1, *vread)
        if extra: extra()
        e(2); e(3); e(4)
        if do_mfma:
            if pre_mfma: pre_mfma()
            if not (opt("x_noqk") and t > 2): mfma(prev, (t+1) & 1, q, c)
        for i in range(5, 10): e(i)
        if not opt("adj", 0): smf(VB[t & 1][0], cur)
        else: a("s_nop 0")
        for i in range(10, 16): e(i)
    def a_first():
        rdK(0, vKa, 8*2048); rdK(1, vKa, 7*2048); rdV(0, vVa, 8*2048)
        a("s_waitcnt lgkmcnt(3)")
        mfma(SB[0], 0, QA, vr(CD, 16))
    def finish(tlast, fb_label, done_label, br):
        a("s_nop 1")
        if opt("adj", 0): smf(VB[tlast & 1][0], SB[tlast & 1])
        smf(VB[tlast & 1][1], SB[tlast & 1]+8)
        if br:
            a.lab("L_B_fin"); a_first(); a("s_nop 4")
        else: a("s_nop 11")
        a(f"v_add_f32 v{vT}, abs(v{OA}), v{OA+8}")
        for i in range(1, 8): a(f"v_add_f32 v{vT}, abs(v{OA+i}), v{vT}")
        a(f"v_rcp_f32 v{vT2}, v{OA+8}")
        a(f"v_cmp_gt_f32 vcc, 0x71800000, v{vT}")
        a("s_cmp_lg_u32 s8, 0"); a(f"s_cbranch_scc1 {done_label}")
        if not opt("x_nofb"): a("s_cmp_eq_u64 vcc, -1"); a(f"s_cbranch_scc0 {fb_label}")
        a.lab(done_label)
        for i in range(8): a(f"v_mul_f32 v{OA+i}, v{vT2}, v{OA+i}")
        for i in range(4): a(f"v_cvt_pk_bf16_f32 v{PK[br]+i}, v{OA+2*i}, v{OA+2*i+1}")
        for i in range(4): a(f"v_min_u32 v{PK[br]+i}, -2, v{PK[br]+i}")
        a(f"s_add_u32 s62, s15, {br*32*1024}")
        a(f"buffer_store_dwordx4 {vr(PK[br],4)}, v{vL16}, {S(sWS)}, s62 offen {SC}")
    def copy(srdw, voff, lds, src):
        a(f"s_add_u32 m0, {lds[0]}, {lds[1]}"); a(f"s_add_u32 s63, {src[0]}, {src[1]}")
        a(f"buffer_load_dwordx4 v{voff}, {S(srdw)}, s63 offen {LD} lds")
    def wo_copy(n0, k):
        copy(sWOA if n0 < 64 else sWOB, vWo, ("s19", (n0+k)*1024), ("s18", ((n0 & 63)+k)*8192))
    stamp(a, 5, True)
    hold(1)
    for k in range(opt("x_idle", 0)): a("s_sleep 64")
    a(f"ds_read_b128 {vr(QB,4)}, v{vKb}")
    rdK(0, vL16, 0); rdK(1, vL16, 2048); rdV(0, vVb, 0)
    a(f"v_mov_b32 v{vKb}, v{vL16}")
    a("s_waitcnt lgkmcnt(3)")
    mfma(SB[0], 0, QB, "0")
    a(f"s_lshl_b32 s19, s{sW}, 13"); a("s_and_b32 s18, s19, 0x8000"); a("s_add_u32 s18, s18, s19"); a("s_add_u32 s18, s18, s21")
    a("s_mov_b32 s9, 0"); a(f"s_mov_b32 s3, {WS_F2:#x}")
    a("s_nop 5")
    rowmax(SB[0])
    for r in range(16): a(f"v_sub_f32 v{CM+r}, 0, v{vM}")
    a("s_nop 1")
    mfma(SB[0], 0, QB, vr(CM, 16))
    a("s_waitcnt lgkmcnt(0)")
    stamp(a, 1, True, mode=1)
    if Cfg.stamp and opt("smode") == 5:
        a("s_memtime s[72:73]"); a("s_memrealtime s[74:75]"); a("s_waitcnt lgkmcnt(0)")
    a("s_nop 9")
    X = {u: [] for u in range(64)}
    def at(u, f): X[u].append(f)
    U1 = opt("u1", 8)
    at(U1-3, lambda: a(pollF1b))
    at(U1, lambda: spin(pollF1b, 1))
    if opt("t1", 0): at(U1, lambda: a("s_barrier"))
    for k in range(8): at(U1+k, lambda k=k: copy(sWS, vL16, ("s19", 65536 + k*1024), ("s18", k*1024)))
    def marks():
        for i in range(4): a(f"v_mov_b32 v{PK[0]+i}, -1")
        a("s_add_u32 s62, s15, 32768")
        a(f"buffer_store_dwordx4 {vr(PK[0],4)}, v{vL16}, {S(sWS)}, s15 offen {SC}")
        a(f"buffer_store_dwordx4 {vr(PK[0],4)}, v{vL16}, {S(sWS)}, s62 offen {SC}")
    at(U1+8, marks)
    def st3():
        a(f"s_cmp_ge_u32 s{sW}, 4"); a("s_cbranch_scc1 L_nost3"); stores3(); a.lab("L_nost3")
    at(U1+9, st3)
    U2 = opt("u2", 24)
    def t2():
        a("s_waitcnt vmcnt(0)"); a("s_barrier")
        a(f"s_and_b32 s62, s{sW}, 3"); a("s_cbranch_scc0 L_t2x")
        a.lab("L_t2r")
    at(U2, t2)
    at(U2+1, lambda: (a(f"s_lshl_b32 s19, s{sW}, 12"), a(f"s_lshl_b32 s18, s{sW}, 15"), a(f"s_lshl_b32 s62, s{sJ}, 7"), a("s_add_u32 s18, s18, s62")))
    for k in range(4): at(U2+11+k, lambda k=k: wo_copy(0, k))
    U3 = opt("u3", 42)
    at(U3-3, lambda: a(pollF1A))
    def win():
        spin(pollF1A, 2)
        a(f"s_lshl_b32 s12, s{sB}, 14"); a("s_add_u32 s12, s12, s19")
        a("s_cmp_lt_u32 s12, 16384"); a("s_cselect_b32 s62, 0, 16384")
        a("s_add_u32 s12, s12, s13"); a("s_sub_u32 s12, s12, s62")
        a(f"buffer_load_dwordx4 {vr(QA,4)}, v{vL16}, {S(sWS)}, s11 offen {LD}")
        a(f"v_and_b32 v{vFA2}, 7, v1"); a(f"v_lshlrev_b32 v{vFA2}, 10, v{vFA2}")
        a("s_add_u32 s10, s20, 32768")
    at(U3, win)
    for k in range(4): at(U3+1+k, lambda k=k: copy(sWS, vL16, ("s19", 131072 + k*1024), ("s12", k*1024)))
    at(48, lambda: (a("s_waitcnt vmcnt(0)"), a("s_barrier")))
    for k in range(8): at(49+k, lambda k=k: wo_copy(32 + 32*(k >> 2), k & 3))
    for u in range(64):
        if u and u % 8 == 0: stamp(a, 1 + u//8, mode=1)
        if u == 30: a(f"v_add_u32 v{vKb}, 0x10000, v{vKb}")
        if u == 31: a(f"v_add_u32 v{vVb}, 0x10000, v{vVb}")
        tile(u, u == 0, u < 63, QB, vr(CM, 16), (vKb, ((u+2)*2048) & 0xffff) if u < 62 else None,
             (vVb, ((u+1)*2048) & 0xffff) if u < 63 else None, None, lambda u=u: [f() for f in X[u]])
    stamp(a, 6)
    stamp(a, 9, mode=1)
    if Cfg.stamp and opt("smode") == 5:
        a("s_memtime s[76:77]"); a("s_memrealtime s[78:79]"); a("s_waitcnt lgkmcnt(0)")
    finish(63, "L_B_fb", "L_B_done", 1)
    a("s_mov_b32 s8, 0")
    for r in range(9): a(f"v_mov_b32 v{OA+r}, 0")
    stamp(a, 7)
    hold(2)
    a.lab("L_A_max")
    rowmax(SB[0])
    for r in range(16): a(f"v_sub_f32 v{SB[0]+r}, v{SB[0]+r}, v{vM}")
    for r in range(16): a(f"v_sub_f32 v{CM+r}, 0, v{vM}")
    for r in range(16): a(f"v_sub_f32 v{CF+r}, v{CF+r}, v{vM}")
    def oloads(br):
        a(f"s_add_u32 s62, s20, {br*32768}"); a("s_add_u32 s63, s62, 4096")
        for i in range(8):
            a(f"buffer_load_dwordx4 {vr(OF[1-br]+4*i,4)}, v{vL16}, {S(sWS)}, s{62+(i>>2)} offen offset:{(i&3)*1024} {LD}")
    pollO = [f"buffer_load_dword v{vPoll}, v{vFA2}, {S(sWS)}, s20 offen {SC}", f"buffer_load_dword v{vPoll}, v{vFA2}, {S(sWS)}, s10 offen {SC}"]
    OBP = opt("obp", 4)
    OAP = -1
    for t in range(9):
        def pm(t=t):
            if t < 7:
                a(f"s_cmp_eq_u32 s7, {t}"); a(f"s_cbranch_scc1 L_A_off{t}")
                a.lab(f"L_A_mid{t}")
        def extra(t=t):
            if t not in (0, 1, OBP, OBP+2, OAP): return
            a("s_cmp_lg_u32 s8, 0"); a(f"s_cbranch_scc1 L_A_x{t}")
            if t == 0: a("s_barrier")
            if t < 2: wo_copy(96, 2*t); wo_copy(96, 2*t+1)
            if t == OBP:
                if opt("twe", 2) == 2: a("s_waitcnt vmcnt(0)"); a("s_barrier")
                a(pollO[1])
            if t == OBP+2:
                a("s_waitcnt vmcnt(0)")
                if opt("twe", 2) == 1: a("s_barrier")
                a(f"v_cmp_ne_u32 vcc, -1, v{vPoll}")
                a(f"v_mov_b32 v{OF[0]}, -1")
                a("s_cmp_eq_u64 vcc, -1"); a(f"s_cbranch_scc0 L_A_x{t}")
                oloads(1)
            if t == OAP: a(pollO[0])
            a.lab(f"L_A_x{t}")
        tile(t, t == 0, t < 8, QA, vr(CM if t < 7 else CF, 16),
             (vKa, (8-(t+2))*2048) if t+2 <= 8 else None,
             (vVa, (8-(t+1))*2048) if t+1 <= 8 else None, pm, extra)
    finish(8, "L_A_fb", "L_A_done", 0)
    stamp(a, 8)
    stamp(a, 1, mode=2)
    WR = lambda i, c: 144 + 8*i + 4*c
    def wreads(i):
        for c in range(2):
            for u in range(2):
                a(f"ds_read_b64_tr_b16 {vr(WR(i,c)+2*u,2)}, v{vPW0+c} offset:{i*2048+u*1024}")
    def pm(br, i):
        for c in range(2):
            d = vr(PACC[br][c], 16)
            a(f"v_mfma_f32_32x32x16_bf16 {d}, {vr(WR(i,c),4)}, {vr(OF[1-br]+4*i,4)}, {'0' if i == 0 else d}")
    def chk(br, i):
        b = OF[1-br]+4*i
        a(f"v_max3_u32 v{vT}, v{b}, v{b+1}, {0 if i == 0 else 'v%d' % vT}")
        a(f"v_max3_u32 v{vT}, v{b+2}, v{b+3}, v{vT}")
    a("s_waitcnt vmcnt(1)")
    if not opt("twe", 2): a("s_barrier")
    stamp(a, 2, True, mode=2)
    for i in range(8): wreads(i)
    for i in range(8): chk(1, i)
    a(f"v_cmp_ne_u32 vcc, -1, v{vT}")
    a("s_cmp_eq_u64 vcc, -1"); a("s_cbranch_scc0 L_OB_get")
    a.lab("L_OB_ok")
    for i in range(8):
        a(f"s_waitcnt lgkmcnt({max(0, min(15, 4*(7-i)))})")
        pm(1, i)
        if i == opt('pp', 4): a(pollO[0])
    a(f"v_subrev_u32 v{vPW0}, 0x10000, v{vPW0}"); a(f"v_subrev_u32 v{vPW1}, 0x10000, v{vPW1}")
    stamp(a, 9)
    stamp(a, 4, mode=2)
    if not opt("tr1", 1): a("s_barrier")
    for i in range(8): wreads(i)
    stamp(a, 5, mode=2)
    spin(pollO[0], -1, cnt="s64", cmp="v_cmp_ne_u32")
    oloads(0)
    if opt("tr1", 1): a("s_barrier")
    stamp(a, 6, mode=2)
    a(f"v_sub_f32 v{vT}, 1.0, v{vG}")
    for c in range(2):
        for r in range(16): a(f"v_mul_f32 v{PACC[1][c]+r}, v{vT}, v{PACC[1][c]+r}")
    a(f"s_mov_b32 s64, {SPIN}")
    a("s_branch L_O_go")
    a.lab("L_O_retry")
    oloads(0)
    a.lab("L_O_go")
    for i in range(8):
        a(f"s_waitcnt vmcnt({7-i}) lgkmcnt(0)")
        if i == 0: stamp(a, 7, mode=2)
        pm(0, i)
        chk(0, i)
    a(f"v_cmp_ne_u32 vcc, -1, v{vT}")
    a("s_sub_u32 s64, s64, 1"); a("s_cbranch_scc1 L_O_ok")
    a("s_cmp_eq_u64 vcc, -1"); a("s_cbranch_scc0 L_O_retry")
    a.lab("L_O_ok")
    stamp(a, 8, mode=2)
    a("s_nop 6")
    for c in range(2):
        for g in range(4):
            for r in range(4*g, 4*g+4): a(f"v_fmac_f32 v{PACC[1][c]+r}, v{vG}, v{PACC[0][c]+r}")
            a(f"ds_write_b128 v{vPWR}, {vr(PACC[1][c]+4*g,4)} offset:{(c*4+g)*1088}")
    a("s_waitcnt lgkmcnt(0)"); a("s_barrier")
    stamp(a, 9, True, mode=2)
    for kq in range(4):
        for h in range(2):
            a(f"ds_read_b128 {vr(16+kq*8+h*4,4)}, v{vPRD} offset:{kq*PW + h*512}")
    a("s_waitcnt lgkmcnt(4)")
    for i in range(8): a(f"v_add_f32 v{16+i}, v{16+i}, v{24+i}")
    a("s_waitcnt lgkmcnt(0)")
    for i in range(8): a(f"v_add_f32 v{32+i}, v{32+i}, v{40+i}")
    for i in range(8): a(f"v_add_f32 v{16+i}, v{16+i}, v{32+i}")
    for i in range(4): a(f"v_cvt_pk_bf16_f32 v{48+i}, v{16+2*i}, v{16+2*i+1}")
    a(f"buffer_store_dwordx4 v[48:51], v{vOUT}, {S(sOUT)}, s33 offen {opt('ost', '')}")
    if HOLD >= 0:
        hold(3)
        if opt("x_who") is not None:
            a(f"s_cmp_lg_u32 s2, {opt('x_who')}"); a("s_cbranch_scc1 L_end")
        a.lab("L_hold")
        a("s_memrealtime s[62:63]"); a("s_waitcnt lgkmcnt(0)")
        a("s_sub_u32 s62, s62, s72"); a("s_cmp_lt_u32 s62, 6000"); a("s_cbranch_scc1 L_hold")
    if Cfg.stamp:
        a("s_waitcnt vmcnt(0)")
        a("s_memtime s[96:97]"); a("s_waitcnt lgkmcnt(0)")
        stamp_out(a, 0, 10, sWS, sW, 8)
        a("s_nop 1"); a("v_mov_b32 v1, s96"); a(f"buffer_store_dword v1, v0, {S(sWS)}, s94 offen offset:40")
    a.lab("L_end")
    a("s_endpgm")

    a.lab("L_OB_get")
    a(pollO[1])
    spin(pollO[1], -1, cnt="s64", cmp="v_cmp_ne_u32")
    a(f"s_mov_b32 s65, {SPIN}")
    a.lab("L_OB_retry")
    oloads(1)
    a("s_waitcnt vmcnt(0)")
    for i in range(8): chk(1, i)
    a(f"v_cmp_ne_u32 vcc, -1, v{vT}")
    a("s_sub_u32 s65, s65, 1"); a("s_cbranch_scc1 L_OB_ok")
    a("s_cmp_eq_u64 vcc, -1"); a("s_cbranch_scc0 L_OB_retry")
    a("s_branch L_OB_ok")
    a.lab("L_t2x")
    a(f"v_lshlrev_b32 v{vT2}, 10, v1")
    a(f"s_and_b32 s64, s{sRB}, 7"); a("s_lshl_b32 s64, s64, 16"); a(f"s_lshl_b32 s63, s{sJ}, 7"); a("s_add_u32 s64, s64, s63")
    a(f"s_cmp_eq_u32 s{sW}, 0"); a("s_cbranch_scc0 L_t2y")
    publishF1(2, vT)
    a(f"buffer_load_dword v243, v{vT2}, {S(sWOA)}, s64 offen")
    a("s_branch L_t2r")
    a.lab("L_t2y")
    a(f"buffer_load_dword v243, v{vT2}, {S(sWOB)}, s64 offen")
    a("s_branch L_t2r")
    for t in range(7):
        a.lab(f"L_A_off{t}")
        a("s_nop 7")
        for r in range(16): a(f"v_mov_b32 v{CM+r}, s5")
        a("s_nop 1")
        a(f"s_branch L_A_mid{t}")
    a.lab("L_A_fb")
    a("s_waitcnt lgkmcnt(0)")
    a("s_mov_b32 s8, 1")
    a(f"s_sub_u32 s17, 8, s{sW}"); a(f"s_cmp_eq_u32 s{sB}, 0"); a("s_cselect_b32 s17, s17, 0")
    a.lab("L_A_fb_loop")
    a("s_lshl_b32 s62, s17, 11")
    a(f"v_add_u32 v{vT}, s62, v{vKa}")
    rdK(0, vT, 0)
    a("s_sub_u32 s62, 8, s17"); a("s_lshl_b32 s62, s62, 5")
    a(f"v_add_u32 v{vT2}, s62, v{vQH}")
    a(f"v_mov_b32 v{vM}, s5")
    a("s_movk_i32 s62, 256")
    a("s_waitcnt lgkmcnt(0)")
    mfma(SB[0], 0, QA, "0")
    a("s_nop 15")
    for r in range(16):
        a(f"v_subrev_u32 v{vT}, {(r & 7) + 16*(r >> 3)}, v{vT2}")
        a(f"v_cmp_gt_u32 vcc, s62, v{vT}")
        a("s_nop 1")
        a(f"v_cndmask_b32 v{vT}, v{vM}, v{SB[0]+r}, vcc")
        a(f"v_max_f32 v{vMF}, v{vMF}, v{vT}")
    a("s_add_u32 s17, s17, 1"); a("s_cmp_lt_u32 s17, 9"); a("s_cbranch_scc1 L_A_fb_loop")
    for x in masks(): a(x)
    a_first()
    a("s_nop 15")
    a("s_branch L_A_max")
    a.lab("L_B_fb")
    a("s_waitcnt lgkmcnt(0)")
    a("s_mov_b32 s8, 1")
    a("s_mov_b32 s17, s14"); a("s_add_u32 s62, s14, 131072")
    a(f"v_mov_b32 v{vM}, s5")
    a(f"v_and_b32 v{vVb}, 0x7ff, v{vVb}")
    a.lab("L_B_fb_max")
    a(f"buffer_load_dwordx4 {vr(KB[0],4)}, v{vL16}, {S(sWS)}, s17 offen {LD}")
    a("s_add_u32 s17, s17, 2048")
    a("s_waitcnt vmcnt(0)")
    mfma(SB[0], 0, QB, "0")
    a("s_nop 15")
    for i in range(0, 16, 2): a(f"v_max3_f32 v{vM}, v{SB[0]+i}, v{SB[0]+i+1}, v{vM}")
    a("s_cmp_lt_u32 s17, s62"); a("s_cbranch_scc1 L_B_fb_max")
    halves_max()
    for r in range(16): a(f"v_sub_f32 v{CM+r}, 0, v{vM}")
    for r in range(16): a(f"v_mov_b32 v{OA+r}, 0")
    a("s_mov_b32 s17, s14")
    a.lab("L_B_fb_acc")
    a(f"buffer_load_dwordx4 {vr(KB[0],4)}, v{vL16}, {S(sWS)}, s17 offen {LD}")
    a("s_mov_b64 exec, s[22:23]")
    a(f"buffer_load_dwordx4 {vr(VB[0][0],4)}, v{vVb}, {S(sWS)}, s17 offen {LD}")
    a(f"buffer_load_dwordx4 {vr(VB[0][1],4)}, v{vVb}, {S(sWS)}, s17 offen offset:512 {LD}")
    a("s_mov_b64 exec, -1")
    a("s_add_u32 s17, s17, 2048")
    a("s_waitcnt vmcnt(0)")
    mfma(SB[0], 0, QB, vr(CM, 16))
    a("s_nop 15")
    for i in range(16): ex(SB[0], i)
    a("s_nop 1")
    smf(VB[0][0], SB[0]); smf(VB[0][1], SB[0]+8)
    a("s_cmp_lt_u32 s17, s62"); a("s_cbranch_scc1 L_B_fb_acc")
    a("s_branch L_B_fin")
    a.lab("L_code_end")
    d = desc(K, 256, 74, 256)
    if Cfg.stamp: d = d.replace("next_free_sgpr 96", "next_free_sgpr 100")
    return a.text(), d

def main(out):
    t, d = gen()
    hdr = f"""; gated_mix(sliding-window MHA, full MHA), one fused launch:
; @launch grid=(256,1,1) block=(512,1,1) lds=163840
.amdgcn_target "amdgcn-amd-amdhsa--gfx950"
"""
    open(out, "w").write(hdr + t + d)

if __name__ == "__main__":
    main(parse_args())
```

```python
import re
from common import *

WS_FL = 16 << 20
WS_F2 = WS_FL + 32768
SC = "sc1"
SPIN = 1 << 17
PW = 16*1088

sX, sWB, sWA, sWS, sWOA, sOUT, sDBG, sWOB = 24, 28, 32, 36, 40, 44, 48, 52
sW, sRB, sJ, sHD, sB, sQT, sR16, sI = 56, 57, 58, 59, 60, 61, 68, 69
S = lambda b: f"s[{b}:{b+3}]"
vXA = 2
vWA = 10
vL16, vGA = 14, 15
WF = [16, 48]
ACC = [80, 96]
GF = 112
XR = 128
vG, QB, QA = 112, 116, 120
vIDX, vKa, vVa, vKb, vVb, vT, vM, vMF, vT2, vQH, vFA, vWo, vFA2 = range(128, 141)
VB = [[144, 148], [152, 156]]
OA = 160
CD, CF = 176, 192
vPoll = 124
KB = [16, 20]
SB = [32, 48]
CM = 64
PK = [244, 248]
OF = [208, 16]
PACC = [[48, 64], [80, 96]]
vPW0, vPW1, vPWR, vPRD, vOUT = 8, 9, 2, 7, 6
QSTG = 152*1024

def gen():
    LD = "sc1"
    PP = opt("ppol", "sc1")
    PUB1 = opt("pub1", 13)
    HOLD = opt("x_hold", -1)
    def hold(k):
        if HOLD == k or (k == 0 and HOLD >= 10): a("s_memrealtime s[72:73]"); a("s_waitcnt lgkmcnt(0)")
    def wpos(c, sb):
        if c == 8: return 3*sb*32768 + 24576
        if c == 12: return (1+sb)*32768 + 24576
        n = 2*(c-9 if c < 12 else c-10) + sb
        return (n//3)*32768 + (n % 3)*8192
    a = A(); K = NAME + "_kernel"; head(a, K)
    a("s_cmp_ge_u32 s2, 256"); a("s_cbranch_scc1 L_end")
    stamp(a, 0)
    hold(0)
    a("s_load_dwordx2 s[4:5], s[0:1], 0")
    a("s_load_dwordx4 s[12:15], s[0:1], 32")
    a("s_load_dwordx4 s[8:11], s[0:1], 8")
    a("s_load_dwordx2 s[6:7], s[0:1], 48")
    a("s_load_dwordx4 s[16:19], s[0:1], 56")
    a("s_load_dwordx2 s[20:21], s[0:1], 72")
    a("v_lshrrev_b32 v2, 6, v0")
    a("v_and_b32 v1, 63, v0")
    a("s_bfe_u32 s62, s2, 0x20003")
    a(f"v_readfirstlane_b32 s{sW}, v2")
    a("s_and_b32 s63, s2, 3"); a("s_lshl_b32 s63, s63, 2"); a(f"s_add_u32 s{sR16}, s63, s62")
    a(f"s_lshr_b32 s{sI}, s2, 5")
    a(f"v_lshlrev_b32 v{vL16}, 4, v1")
    a(f"s_cmp_lt_u32 s{sW}, 4"); a("s_cbranch_scc1 L_compute")

    def ids():
        a(f"s_lshl_b32 s{sRB}, s{sR16}, 1"); a(f"s_and_b32 s62, s{sI}, 1"); a(f"s_add_u32 s{sRB}, s{sRB}, s62")
        a(f"s_and_b32 s{sJ}, s2, 4"); a(f"s_lshr_b32 s62, s{sI}, 1"); a(f"s_add_u32 s{sJ}, s{sJ}, s62")
        a(f"s_and_b32 s{sHD}, s2, 7"); a(f"s_lshl_b32 s{sHD}, s{sHD}, 2"); a("s_bfe_u32 s62, s2, 0x20003"); a(f"s_add_u32 s{sHD}, s{sHD}, s62")
        a(f"s_mov_b32 s{sB}, s{sI}")
        a(f"s_lshl_b32 s{sQT}, s{sB}, 3"); a(f"s_add_u32 s{sQT}, s{sQT}, s{sW}")
    def roles():
        a(f"s_lshr_b32 s64, s{sI}, 1"); a("s_xor_b32 s64, s64, s2"); a("s_and_b32 s64, s64, 1"); a("s_lshl_b32 s64, s64, 1")
        a(f"s_and_b32 s65, s{sI}, 1"); a("s_add_u32 s65, s65, s64"); a("s_xor_b32 s64, s65, 2")
        a(f"s_and_b32 s22, s{sI}, 3"); a(f"s_add_u32 s23, s{sI}, 1"); a("s_and_b32 s23, s23, 3")
        a(f"s_cmp_lt_u32 s{sI}, 4"); a("s_cselect_b32 s64, s64, s22"); a("s_cselect_b32 s65, s65, s23")
        a("s_and_b32 s22, s2, 4"); a("s_add_u32 s64, s64, s22"); a("s_add_u32 s65, s65, s22")
    def common_srds():
        srd(a, sWS, 20, 21, ws_size())
        srd(a, sOUT, 16, 17, 2048*512*2)
        srd(a, sDBG, 18, 19, 256)
        srd(a, sWOA, 10, 11, 512*512*2)
        srd(a, sWOB, 14, 15, 512*512*2)

    class Rec:
        def __init__(s): s.L = []
        def __call__(s, t): s.L.append(t)
    def late_setup():
        a = Rec()
        a(f"s_lshl_b32 s20, s{sRB}, 17"); a(f"s_and_b32 s4, s{sW}, 1"); a("s_lshl_b32 s4, s4, 16"); a("s_add_u32 s20, s20, s4")
        a(f"s_lshr_b32 s4, s{sW}, 1"); a("s_lshl_b32 s4, s4, 13"); a("s_add_u32 s20, s20, s4"); a(f"s_add_u32 s20, s20, {WS_O:#x}")
        a(f"v_lshrrev_b32 v116, 5, v1"); a(f"v_bfe_u32 v117, v1, 2, 2")
        a(f"v_lshl_add_u32 v{vPW0}, v116, 2, v117"); a(f"v_lshlrev_b32 v{vPW0}, 7, v{vPW0}")
        a(f"v_bfe_u32 v116, v1, 4, 1"); a(f"v_lshlrev_b32 v116, 1, v116")
        a(f"v_bfe_u32 v117, v1, 1, 1"); a(f"v_add_u32 v116, v116, v117")
        a(f"v_bfe_u32 v117, v1, 3, 1"); a(f"v_lshl_or_b32 v116, v117, 2, v116")
        a(f"v_lshl_add_u32 v{vPW0}, v116, 4, v{vPW0}")
        a(f"v_and_b32 v116, 1, v1"); a(f"v_lshl_add_u32 v{vPW0}, v116, 3, v{vPW0}")
        a(f"s_lshr_b32 s4, s{sW}, 1"); a("s_lshl_b32 s4, s4, 14"); a("s_add_u32 s4, s4, 65536")
        a(f"v_add_u32 v{vPW0}, s4, v{vPW0}")
        a(f"v_xor_b32 v{vPW1}, 64, v{vPW0}")
        a(f"s_lshr_b32 s4, s{sW}, 1"); a(f"s_mul_i32 s4, s4, {PW}"); a(f"s_and_b32 s5, s{sW}, 1"); a(f"s_mul_i32 s5, s5, {8*1088}")
        a("s_add_u32 s4, s4, s5"); a("s_add_u32 s4, s4, 65536")
        a(f"v_add_u32 v{vPWR}, s4, v{vL16}")
        a("v_and_b32 v116, 7, v1"); a("v_lshrrev_b32 v117, 3, v1")
        a(f"s_and_b32 s4, s{sW}, 3"); a("s_lshl_b32 s4, s4, 3"); a("v_add_u32 v117, s4, v117")
        a(f"v_mul_u32_u24 v{vPRD}, 1088, v116"); a(f"v_lshl_add_u32 v{vPRD}, v117, 4, v{vPRD}")
        a(f"s_lshr_b32 s4, s{sW}, 2"); a(f"s_mul_i32 s5, s4, {8*1088}"); a("s_add_u32 s5, s5, 65536")
        a(f"v_add_u32 v{vPRD}, s5, v{vPRD}")
        a(f"v_lshlrev_b32 v{vOUT}, 10, v117"); a(f"v_lshl_add_u32 v{vOUT}, v116, 4, v{vOUT}")
        a("s_lshl_b32 s4, s4, 15"); a(f"s_lshl_b32 s5, s{sRB}, 16"); a("s_add_u32 s4, s4, s5")
        a(f"s_lshl_b32 s5, s{sJ}, 7"); a("s_add_u32 s33, s4, s5")
        return a.L

    def attn_setup():
        L = []; e = L.append
        e(f"s_lshl_b32 s11, s{sHD}, 6"); e(f"s_add_u32 s11, s11, s{sQT}"); e("s_lshl_b32 s11, s11, 10")
        e(f"s_add_u32 s11, s11, {WS_Q:#x}")
        e(f"s_lshl_b32 s13, s{sHD}, 17")
        e(f"s_add_u32 s14, s13, {32*131072:#x}")
        e(f"s_mov_b32 s10, {WS_FL:#x}")
        e("s_and_b32 s4, s2, 3"); e("s_add_u32 s5, s4, 3"); e("s_and_b32 s5, s5, 3"); e("s_xor_b32 s6, s4, 2")
        e("s_and_b32 s7, s2, 1"); e("s_mul_i32 s7, s7, 0x1011"); e("s_lshl_b32 s9, s4, 8"); e("s_add_u32 s7, s7, s9"); e("s_add_u32 s7, s7, 0x420")
        e("s_mul_i32 s6, s6, 0x110"); e("s_add_u32 s5, s5, s6"); e("s_add_u32 s5, s5, 0x404")
        e(f"v_bfe_u32 v{vT}, v1, 2, 2"); e(f"v_and_b32 v{vT2}, 3, v1"); e(f"v_lshl_add_u32 v{vT}, v{vT2}, 3, v{vT}")
        e(f"v_lshlrev_b32 v{vT}, 7, v{vT}")
        e(f"v_lshrrev_b32 v{vT2}, 4, v1"); e(f"v_lshlrev_b32 v{vT2}, 2, v{vT2}")
        e(f"v_bfe_u32 v{vFA}, s7, v{vT2}, 4"); e(f"v_lshl_add_u32 v{vFA}, v{vFA}, 12, v{vT}")
        e(f"v_bfe_u32 v{vFA2}, s5, v{vT2}, 4"); e(f"v_lshl_add_u32 v{vFA2}, v{vFA2}, 12, v{vT}")
        e("s_and_b32 s4, s2, 4"); e("s_lshl_b32 s4, s4, 7")
        e(f"v_add_u32 v{vFA}, s4, v{vFA}"); e(f"v_add_u32 v{vFA2}, s4, v{vFA2}")
        e(f"v_and_b32 v{vT}, 0xc80, v{vT}")
        e(f"s_lshr_b32 s4, s{sW}, 1"); e("s_lshl_b32 s4, s4, 8"); e(f"s_lshr_b32 s5, s{sRB}, 2"); e("s_lshl_b32 s5, s5, 12"); e("s_add_u32 s4, s4, s5")
        e(f"v_add_u32 v{vT}, s4, v{vT}")
        e("v_cmp_lt_u32 vcc, 47, v1")
        e("s_bfe_u32 s4, s2, 0x10001"); e("s_lshl_b32 s4, s4, 15")
        e(f"v_cndmask_b32 v{vFA2}, v{vFA2}, v{vT}, vcc")
        e("s_add_u32 s16, s14, s4"); e("s_xor_b32 s4, s4, 0x8000"); e("s_add_u32 s21, s14, s4")
        e(f"v_lshrrev_b32 v{vT}, 3, v1"); e(f"v_bfe_u32 v{vT2}, v1, 4, 1"); e(f"v_lshlrev_b32 v{vT2}, 2, v{vT2}")
        e(f"v_and_b32 v{vWo}, 7, v1"); e(f"v_xor_b32 v{vWo}, v{vWo}, v{vT2}"); e(f"v_lshlrev_b32 v{vWo}, 4, v{vWo}")
        e(f"v_lshl_add_u32 v{vWo}, v{vT}, 10, v{vWo}")
        e(f"v_mov_b32 v{vIDX}, 0xdddddddd")
        e("s_mov_b32 s22, 0x0000ffff"); e("s_mov_b32 s23, 0x0000ffff")
        e(f"v_lshrrev_b32 v{vQH}, 5, v1")
        e(f"v_and_b32 v{vVb}, 15, v1"); e(f"v_lshlrev_b32 v{vVb}, 4, v{vVb}")
        e(f"v_lshl_add_u32 v{vVb}, v{vQH}, 8, v{vVb}"); e(f"v_add_u32 v{vVb}, 1024, v{vVb}")
        e(f"s_lshl_b32 s4, s{sW}, 11"); e("s_add_u32 s4, s4, 131072")
        e(f"v_add_u32 v{vKa}, s4, v{vL16}")
        e(f"v_add_u32 v{vVa}, s4, v{vVb}")
        e(f"s_lshl_b32 s4, s{sW}, 10"); e(f"s_add_u32 s4, s4, {QSTG}")
        e(f"v_add_u32 v{vKb}, s4, v{vL16}")
        e(f"v_and_b32 v{vM}, 31, v1")
        e(f"v_lshlrev_b32 v{vQH}, 3, v{vQH}"); e(f"v_sub_u32 v{vQH}, v{vM}, v{vQH}")
        e(f"v_and_b32 v{vT}, 0x1b, v{vM}")
        e(f"v_cmp_eq_u32 vcc, 16, v{vT}")
        e(f"v_mov_b32 v{vT2}, {0 if opt('x_noones') else 0x3f803f80:#x}")
        e(f"v_mov_b32 v{vT}, 0")
        for b in range(2):
            for j in range(2):
                for i in range(4): e(f"v_cndmask_b32 v{VB[b][j]+i}, v{vT}, v{vT2}, vcc")
        e(f"s_mov_b32 s5, {NEG_INF:#x}")
        e(f"s_cmp_eq_u32 s{sB}, 0\n    s_cselect_b32 s6, s5, 0\n    s_cselect_b32 s7, s{sW}, 64")
        e(f"v_mov_b32 v{vMF}, s5")
        e("s_mov_b32 s8, 0")
        e(f"s_lshl_b32 s15, s{sQT}, 6"); e(f"s_add_u32 s15, s15, s{sHD}"); e("s_lshl_b32 s15, s15, 10")
        e(f"s_add_u32 s15, s15, {WS_O:#x}")
        L += masks()
        return L
    def masks():
        L = []; e = L.append
        e(f"v_mov_b32 v{vT}, s5"); e(f"v_mov_b32 v{vT2}, s6")
        for r in range(16):
            e(f"v_cmp_le_i32 vcc, {(r & 7) + 16*(r >> 3)}, v{vQH}")
            e(f"v_mov_b32 v{OA+r}, 0")
            e("s_nop 0")
            e(f"v_cndmask_b32 v{CD+r}, v{vT}, v{OA+r}, vcc")
            e(f"v_cndmask_b32 v{CF+r}, v{vT2}, v{vT}, vcc")
        return L
    def gread(t):
        a(f"s_and_b32 s62, s{sI}, 1"); a("s_lshl_b32 s62, s62, 1"); a(f"s_and_b32 s63, s{sW}, 1"); a("s_add_u32 s62, s62, s63")
        a("s_lshl_b32 s62, s62, 7"); a("s_add_u32 s62, s62, 29696")
        a(f"v_and_b32 v{t}, 31, v1"); a(f"v_lshl_add_u32 v{t}, v{t}, 2, s62")
        a(f"ds_read_b32 v{vG}, v{t}")
    uid = [0]
    def spin(load, stage, cnt="s62", reg=vPoll, cmp="v_cmp_le_u32"):
        uid[0] += 1; n = uid[0]
        a(f"s_mov_b32 {cnt}, {SPIN}")
        a(f"s_branch L_chk{n}")
        a.lab(f"L_spin{n}")
        if opt("sleep", 4): a(f"s_sleep {opt('sleep', 4)}")
        a(load)
        a.lab(f"L_chk{n}")
        a("s_waitcnt vmcnt(0)")
        if "x4" in load:
            a(f"v_min3_u32 v{reg}, v{reg}, v{reg+1}, v{reg+2}"); a(f"v_min_u32 v{reg}, v{reg}, v{reg+3}")
        a(f"{cmp} vcc, {stage}, v{reg}")
        a(f"s_sub_u32 {cnt}, {cnt}, 1"); a(f"s_cbranch_scc1 L_ok{n}")
        a("s_cmp_eq_u64 vcc, -1"); a(f"s_cbranch_scc0 L_spin{n}")
        a.lab(f"L_ok{n}")
    pollF1 = f"buffer_load_dword v{vPoll}, v{vFA}, {S(sWS)}, s10 offen {PP}"
    pollF1b = f"buffer_load_dwordx4 {vr(vPoll,4)}, v{vFA}, {S(sWS)}, s3 offen {PP}"
    pollF1A = f"buffer_load_dword v{vPoll}, v{vFA2}, {S(sWS)}, s10 offen {PP}"

    a(f"s_sub_u32 s66, s{sW}, 4")
    a("v_lshrrev_b32 v2, 3, v1")
    a("v_and_b32 v3, 7, v1")
    a("v_lshrrev_b32 v4, 4, v1")
    a("v_xor_b32 v5, v3, v4")
    a("v_lshlrev_b32 v5, 4, v5")
    a("v_lshl_add_u32 v6, v2, 10, v5")
    a(f"s_lshl_b32 s63, s{sR16}, 17"); a("s_lshl_b32 s64, s66, 15"); a("s_add_u32 s63, s63, s64")
    a("v_add_u32 v16, s63, v6")
    a("v_xor_b32 v17, 64, v16"); a("v_add_u32 v17, 8192, v17")
    a("v_add_u32 v18, 16384, v16"); a("v_add_u32 v19, 16384, v17")
    a("v_and_b32 v5, 1, v4")
    a("v_lshlrev_b32 v5, 2, v5")
    a("v_xor_b32 v5, v3, v5")
    a("v_lshlrev_b32 v5, 4, v5")
    a("v_mul_u32_u24 v8, 3072, v2")
    a("s_mul_i32 s63, s66, 49152")
    a("v_add3_u32 v20, v8, v5, s63")
    a("v_add_u32 v21, 24576, v20")
    a("s_lshl_b32 s3, s62, 1"); a(f"s_add_u32 s3, s3, s{sI}"); a("s_and_b32 s3, s3, 7")
    R = opt("rot", 4)
    if R == 0: a("s_mov_b32 s3, 0")
    if R >= 16:
        a("s_and_b32 s3, s2, 3"); a("s_lshl_b32 s3, s3, 1"); a("s_and_b32 s63, s2, 4"); a("s_add_u32 s3, s3, s63")
        if R == 17: a(f"s_and_b32 s63, s{sI}, 1"); a("s_lshl_b32 s63, s63, 1"); a("s_add_u32 s3, s3, s63")
        if R == 18: a(f"s_add_u32 s63, s{sI}, s62"); a("s_and_b32 s63, s63, 1"); a("s_lshl_b32 s63, s63, 1"); a("s_add_u32 s3, s3, s63")
        if R == 19: a(f"s_add_u32 s63, s{sI}, s62"); a("s_and_b32 s63, s63, 3"); a("s_add_u32 s3, s3, s63")
        a("s_and_b32 s3, s3, 7")
    if R == 5:
        a(f"s_add_u32 s3, s62, s{sI}"); a("s_and_b32 s3, s3, 3"); a("s_lshl_b32 s3, s3, 1"); a("s_bfe_u32 s63, s2, 0x10002"); a("s_add_u32 s3, s3, s63")
    if R == 4: a(f"s_add_u32 s3, s62, s{sI}"); a("s_and_b32 s3, s3, 3"); a("s_lshl_b32 s3, s3, 1")
    roles()
    a("s_lshl_b32 s64, s64, 7"); a("s_lshl_b32 s65, s65, 7"); a("s_add_u32 s65, s65, 2048")
    a(f"s_cmp_lt_u32 s{sI}, 4"); a("s_cselect_b32 s22, 1024, 0"); a("s_add_u32 s64, s64, s22")
    a(f"s_cmp_lt_u32 s{sI}, 2"); a("s_cselect_b32 s22, s65, s64"); a("s_cselect_b32 s71, s64, s65")
    a("s_lshl_b32 s67, s66, 12"); a("s_add_u32 s67, s67, 32768")
    a("s_lshl_b32 s23, s66, 11"); a("s_add_u32 s23, s23, 32768")
    for d, sz in ((sX, 2048*512*2), (sWB, 512*1536*2)):
        a(f"s_mov_b32 s{d+2}, {sz:#x}"); a(f"s_mov_b32 s{d+3}, 0x20000")
    stamp(a, 1, mode=8)
    a("s_waitcnt lgkmcnt(0)")
    stamp(a, 2, mode=8)
    for d, lo in ((sX, 4), (sWB, 12)):
        a(f"s_mov_b32 s{d}, s{lo}"); a(f"s_and_b32 s{d+1}, s{lo+1}, 0xffff")
    RW = ["s22", "s23"]
    def wblock(srdw, col, ldsoff):
        a(f"s_mul_i32 s63, s3, {64*3072}"); a(f"s_add_u32 s63, s63, {col}")
        for e in range(2):
            a(f"s_add_u32 m0, {RW[1]}, {ldsoff + e*1024}")
            a("s_nop 0")
            a(f"buffer_load_dwordx4 v{20+e}, {S(srdw)}, s63 offen lds")
        a("s_add_u32 s3, s3, 1"); a("s_and_b32 s3, s3, 7")
    seq = []
    def issue(c):
        slot = c & 3
        a("s_lshl_b32 s62, s3, 7")
        for il in range(4):
            a(f"s_add_u32 m0, s67, {slot*32768 + il*1024}")
            a("s_nop 0")
            a(f"buffer_load_dwordx4 v{16+il}, {S(sX)}, s62 offen lds")
        wblock(sWB, RW[0], slot*32768 + 16384)
        seq.append((c, 6))
    def issue_w(c, sb):
        k = 2*((c-8) & 3) + sb
        a(f"s_add_u32 s3, s64, {k}"); a("s_and_b32 s3, s3, 7")
        wblock(sX if c < 12 else sWA, "s71" if c < 12 else "s65", wpos(c, sb))
        seq.append((c, 2))
    def wait_for(c):
        last = max(k for k, (cc, n) in enumerate(seq) if cc == c)
        a(f"s_waitcnt vmcnt({sum(n for cc, n in seq[last+1:])})")
    a("s_lshl_b32 s64, s66, 8"); a("s_lshl_b32 s65, s3, 7"); a("s_add_u32 s65, s65, s64")
    issue(0)
    stamp(a, 3, mode=8)
    a("v_lshlrev_b32 v24, 2, v1"); a("v_add_u32 v24, s65, v24"); a("v_and_b32 v24, 0x3ff, v24")
    srd(a, sWOB, 6, 7, 1024)
    a("s_add_u32 m0, s64, 28672"); a("s_nop 0")
    a(f"buffer_load_dword v24, {S(sWOB)}, 0 offen lds")
    issue(1)
    stamp(a, 4, mode=8)
    issue(2)
    stamp(a, 5, mode=8)
    srd(a, sWA, 8, 9, 512*1536*2)
    common_srds()
    a("s_mov_b32 s17, s22"); a("s_mov_b32 s18, s23"); RW[:] = ["s17", "s18"]
    ids()
    a(f"s_xor_b32 s65, s{sI}, 2"); a("s_and_b32 s65, s65, 3"); a("s_and_b32 s62, s2, 4"); a("s_add_u32 s65, s65, s62"); a("s_lshl_b32 s65, s65, 7")
    a(f"s_and_b32 s62, s{sI}, 4"); a("s_lshl_b32 s62, s62, 8"); a("s_add_u32 s65, s65, s62")
    SCH = {5: {4: [8], 5: [12], 7: [9], 8: [10, 11], 10: [13, 14], 11: [15]},
           2: {4: [8], 6: [12], 7: [9], 8: [10, 11], 10: [13, 14], 11: [15]},
           6: {4: [8], 5: [12], 7: [9], 8: [10], 9: [11], 10: [13, 14], 11: [15]},
           7: {4: [8, 12], 7: [9], 8: [10, 11], 10: [13, 14], 11: [15]}}[opt("sch", 5)]
    lset = late_setup() + attn_setup()
    LSPLIT = opt("lsplit", 110)
    def after(k):
        for cc in SCH.get(k, []):
            for sb in range(2): issue_w(cc, sb)
    for c in range(0, 9):
        stamp(a, c+1, mode=6)
        wait_for(c)
        stamp(a, c+1, mode=7)
        if c < 2: stamp(a, 6+2*c, mode=8)
        a("s_barrier")
        if c < 2: stamp(a, 7+2*c, mode=8)
        stamp(a, c+1, mode=4)
        if c == 0: hold(10)
        if c == 4: hold(16)
        if c == 8: hold(11)
        if c + 3 < 8: issue(c+3)
        if c == 4:
            a(f"s_cmp_lt_u32 s{sI}, 4")
            a(f"s_cselect_b32 s{sX}, s{sWB}, s{sWA}"); a(f"s_cselect_b32 s{sX+1}, s{sWB+1}, s{sWA+1}")
            a(f"s_mov_b32 s{sX+2}, {512*1536*2:#x}")
            a("s_mov_b32 s64, s3")
        after(c)
    wait_for(9); a("s_barrier")
    after(9)
    wait_for(11); a("s_barrier")
    after(10)
    gread(3)
    a("s_waitcnt lgkmcnt(0)")
    a("s_barrier")
    hold(12)
    after(11)
    for x in lset[:LSPLIT]: a(x)
    a("s_waitcnt vmcnt(0)"); a("s_barrier")
    hold(13)
    L2 = opt("lsplit2", 140)
    while L2 < len(lset) and not lset[L2].startswith("v_cmp"): L2 += 1
    for x in lset[LSPLIT:L2]: a(x)
    stamp(a, 1)
    NP = opt("npoll", 2)
    if NP < 4: a(f"s_cmp_ge_u32 s66, {NP}"); a("s_cbranch_scc1 L_nokv")
    a(pollF1)
    spin(pollF1, 1)
    hold(14)
    stamp(a, 2)
    qn = 8//NP
    a(f"s_mul_i32 s62, s66, {qn*1024}")
    a(f"s_lshl_b32 s63, s{sW}, 10"); a("s_sub_u32 s63, s11, s63"); a("s_add_u32 s63, s63, s62"); a(f"s_add_u32 s63, s63, {32*64*1024:#x}")
    for g in range((qn+3)//4):
        a(f"s_add_u32 m0, s62, {QSTG + g*4096}"); a(f"s_add_u32 s64, s63, {g*4096}")
        for i in range(min(qn, 4)): a(f"buffer_load_dwordx4 v{vL16}, {S(sWS)}, s64 offen offset:{i*1024} {LD} lds")
    a(f"s_mul_i32 s62, s66, {qn*4096}"); a("s_add_u32 s63, s62, s16")
    for q in range(2):
        if NP == 1 and q: a("s_waitcnt vmcnt(24)")
        for g in range(qn):
            a(f"s_add_u32 m0, s62, {q*32768 + g*4096}"); a(f"s_add_u32 s64, s63, {q*65536 + g*4096}")
            for i in range(4): a(f"buffer_load_dwordx4 v{vL16}, {S(sWS)}, s64 offen offset:{i*1024} {LD} lds")
    a.lab("L_nokv")
    for x in lset[L2:]: a(x)
    a(f"s_waitcnt vmcnt({4*qn if opt('t1', 0) else 0})"); a("s_barrier")
    stamp(a, 3)
    a("s_branch L_attn")

    a.lab("L_compute")
    CPF = opt("codepf", 2)
    if CPF:
        a("s_getpc_b64 s[62:63]")
        a.lab("L_pc")
        if CPF == 1:
            a("s_lshr_b32 s64, s2, 3"); a("s_cmp_eq_u32 s64, 1"); a("s_cbranch_scc0 L_nocpf")
            a("v_lshlrev_b32 v20, 7, v0")
        else:
            a(f"s_cmp_eq_u32 s{sW}, 2"); a("s_cbranch_scc0 L_nocpf")
            a("s_lshr_b32 s64, s2, 3"); a("s_lshl_b32 s64, s64, 7")
            a("v_and_b32 v20, 15, v1"); a("v_lshlrev_b32 v20, 12, v20"); a("v_add_u32 v20, s64, v20")
        a(f"s_sub_u32 s62, s62, L_pc-{K}"); a("s_subb_u32 s63, s63, 0")
        a(f"v_min_u32 v20, L_code_end-{K}-4, v20")
        a("v_mov_b32 v21, s63")
        a("v_add_co_u32 v20, vcc, s62, v20")
        a("s_nop 1")
        a("v_addc_co_u32 v21, vcc, 0, v21, vcc")
        a("global_load_dword v255, v[20:21], off")
        a.lab("L_nocpf")
    a("v_lshrrev_b32 v16, 5, v1")
    a("v_and_b32 v17, 31, v1")
    a("v_lshrrev_b32 v18, 1, v17"); a("v_and_b32 v18, 7, v18")
    a(f"s_lshl_b32 s62, s{sW}, 12"); a("s_add_u32 s62, s62, 32768")
    a("v_lshlrev_b32 v19, 7, v17"); a("v_add_u32 v19, s62, v19")
    for t in range(4):
        a(f"v_add_u32 v20, {2*t}, v16"); a("v_xor_b32 v20, v20, v18")
        a(f"v_lshl_add_u32 v{vXA+t}, v20, 4, v19")
        a(f"v_add_u32 v{vXA+4+t}, 0x10000, v{vXA+t}")
    a("v_bfe_u32 v18, v1, 2, 2")
    a("v_lshl_add_u32 v19, v16, 3, v18"); a("v_lshlrev_b32 v19, 7, v19")
    a("v_bfe_u32 v20, v1, 4, 1"); a("v_lshlrev_b32 v20, 1, v20")
    a("v_bfe_u32 v21, v1, 1, 1"); a("v_add_u32 v20, v20, v21")
    a("v_bfe_u32 v21, v1, 3, 1"); a("v_lshl_or_b32 v20, v21, 2, v20")
    a("v_lshl_add_u32 v19, v20, 4, v19")
    a("v_and_b32 v20, 1, v1"); a("v_lshl_add_u32 v19, v20, 3, v19")
    a(f"v_add_u32 v{vWA}, 32768, v19"); a(f"v_xor_b32 v{vWA+1}, 64, v{vWA}")
    a(f"v_add_u32 v{vWA+2}, 0x10000, v{vWA}"); a(f"v_add_u32 v{vWA+3}, 0x10000, v{vWA+1}")
    a(f"v_lshlrev_b32 v{vGA}, 4, v16"); a(f"v_add_u32 v{vGA}, 28672, v{vGA}")
    ids()
    roles()
    a(f"s_lshl_b32 s66, s{sR16}, 2"); a(f"s_add_u32 s66, s66, s{sW}")
    a("s_lshl_b32 s62, s64, 8"); a("s_add_u32 s62, s62, s66"); a("s_add_u32 s62, s62, 2048")
    a(f"s_xor_b32 s64, s{sI}, 2"); a("s_and_b32 s64, s64, 3"); a("s_add_u32 s64, s64, s22"); a("s_lshl_b32 s64, s64, 8"); a("s_add_u32 s64, s64, s66")
    a("s_lshl_b32 s24, s62, 11"); a("s_lshl_b32 s25, s62, 10"); a(f"s_add_u32 s25, s25, {WS_Q:#x}")
    a("s_lshl_b32 s26, s64, 11"); a("s_lshl_b32 s27, s64, 10"); a(f"s_add_u32 s27, s27, {WS_Q:#x}")
    a("s_mov_b32 s28, 0x10000"); a("s_mov_b32 s29, 0x20000")
    a(f"s_cmp_lt_u32 s{sI}, 4")
    a("s_cselect_b32 s24, s24, s25"); a("s_cselect_b32 s25, s29, s28")
    a("s_cselect_b32 s26, s27, s26"); a("s_cselect_b32 s27, s28, s29")
    a("s_cselect_b32 s64, 2048, 0")
    a("s_lshl_b32 s62, s65, 8"); a("s_add_u32 s62, s62, s66"); a("s_add_u32 s62, s62, s64")
    a("s_lshl_b32 s28, s62, 11"); a("s_add_u32 s29, s28, 0x40000")
    a(f"s_mov_b32 s32, {QSCALE:#x}")
    a("v_mov_b32 v0, 0")
    a("s_waitcnt lgkmcnt(0)")
    common_srds()
    for i in range(4): a(f"v_mov_b32 v{20+i}, 0")
    a("v_mov_b32 v24, 1")
    a(f"s_lshl_b32 s62, s{sW}, 8"); a("s_add_u32 s62, s62, s2"); a("s_sub_u32 s62, s62, 768")
    a("s_cmp_lt_u32 s62, 8"); a("s_cbranch_scc0 L_noinit")
    a("s_lshl_b32 s62, s2, 13"); a(f"s_add_u32 s62, s62, {WS_FL:#x}"); a("s_add_u32 s63, s62, 4096")
    for i in range(8): a(f"buffer_store_dwordx4 v[20:23], v{vL16}, {S(sWS)}, s{62+(i>>2)} offen offset:{(i&3)*1024} {SC}")
    a("s_lshl_b32 s62, s2, 5")
    a("s_waitcnt vmcnt(0)")
    a("s_mov_b64 exec, 1")
    a(f"buffer_store_dword v24, v20, {S(sDBG)}, s62 offen {SC}")
    a("s_mov_b64 exec, -1")
    a.lab("L_noinit")

    def chunk_of(m): return m if m < 8 else 8 + ((m - 8) >> 1)
    def reads(m):
        c = chunk_of(m); slot = c & 3; b = m & 1; L = []
        wp = slot*32768 + 16384 if m < 8 else wpos(c, (m - 8) & 1)
        for t in range(4):
            if m < 8:
                L.append(f"ds_read_b128 {vr(XR + 4*(4*m+t), 4)}, v{vXA + 4*(slot>>1) + t} offset:{(slot&1)*32768}")
            for cc in range(2):
                for u in range(2):
                    L.append(f"ds_read_b64_tr_b16 {vr(WF[b]+8*t+4*cc+2*u,2)}, v{vWA+2*(wp>>16)+cc} offset:{(wp & 0xffff) + (16*t+4*u)*128}")
        return L
    def greads(m): return [f"ds_read_b128 {vr(GF+4*t,4)}, v{vGA} offset:{(4*m+t)*32}" for t in range(4)]
    def dots(m): return [f"v_dot2_f32_bf16 v0, v{XR+16*m+i}, v{GF+i}, v0" for i in range(16)]
    def mfmas(m, vphase):
        b = m & 1; L = []
        for t in range(4):
            x = vr(XR + 4*(4*(m & 7)+t), 4)
            for cc in range(2):
                d = vr(ACC[cc], 16); c0 = "0" if (m & 7) == 0 and t == 0 else d
                w = vr(WF[b]+8*t+4*cc, 4)
                if opt("x_m16"):
                    x2 = vr(XR + 4*(4*(m & 7)+(t^1)), 4)
                    d1 = vr(ACC[cc]+8*(t&1), 4); d2 = vr(ACC[cc]+8*(t&1)+4, 4)
                    z = (m & 7) == 0 and t < 2
                    L.append(f"v_mfma_f32_16x16x32_bf16 {d1}, {w}, {x}, {0 if z else d1}\n    v_mfma_f32_16x16x32_bf16 {d2}, {w}, {x2}, {0 if z else d2}")
                    continue
                L.append(f"v_mfma_f32_32x32x16_bf16 {d}, {x}, {w}, {c0}" if (m >> 3) == vphase else f"v_mfma_f32_32x32x16_bf16 {d}, {w}, {x}, {c0}")
        return L
    ST = opt("st", "sc1")
    def stores3():
        for i in range(4):
            a(f"buffer_store_dwordx4 {vr(208+4*i,4)}, v5, {S(sWS)}, s26 offen {ST}")
            a("s_add_u32 s26, s26, s27")
    def epilogue(ph, pk, vphase):
        a("s_nop 6" if ph == 0 else "s_nop 10")
        if ph == 2 or (ph == 0 and vphase == 1):
            a(f"s_cmp_lt_u32 s{sI}, 4"); a(f"s_cbranch_scc{1 if ph == 0 else 0} L_noscale{ph}")
            for r in range(32): a(f"v_mul_f32 v{ACC[0]+r}, s32, v{ACC[0]+r}")
            a.lab(f"L_noscale{ph}")
        for cc in range(2):
            for p in range(2):
                for i in range(4): a(f"v_cvt_pk_bf16_f32 v{pk+i}, v{ACC[cc]+8*p+2*i}, v{ACC[cc]+8*p+2*i+1}")
                if ph == vphase: a(f"buffer_store_dwordx4 {vr(pk,4)}, v3, {S(sWS)}, s{28+cc} offen offset:{p*512} {ST}")
                elif ph < 2:
                    a(f"buffer_store_dwordx4 {vr(pk,4)}, v4, {S(sWS)}, s24 offen {ST}")
                    a("s_add_u32 s24, s24, s25")
                pk += 4
        a("s_nop 1")
    def publishF1(stage, t1):
        a(f"v_mov_b32 v{t1}, {stage}")
        a("s_lshl_b32 s62, s2, 7"); a(f"s_add_u32 s62, s62, {WS_FL:#x}")
        a("s_mov_b64 exec, 1")
        a(f"buffer_store_dword v{t1}, v{vL16}, {S(sWS)}, s62 offen {SC}")
        a("s_mov_b64 exec, -1")
    def first_step(x):
        regs = [int(r) for r in re.findall(r"\bv(\d+)", x)]
        hi = max([r for r in regs if r >= XR], default=0)
        return 16 + (hi - XR)//16 + 1 if hi else 16
    plan = {m: [[] for _ in range(8)] for m in range(24)}
    pos = 16*8
    for x in attn_setup():
        pos = max(pos, first_step(x)*8)
        while len(plan[pos >> 3][pos & 7]) >= (3 if pos < 21*8 else 4): pos += 1
        plan[pos >> 3][pos & 7].append(x)
    staddr = ["v_and_b32 v2, 0x33, v1", "v_bfe_u32 v3, v1, 2, 1", "v_lshl_or_b32 v2, v3, 3, v2", "v_bfe_u32 v3, v1, 3, 1",
              "v_lshl_or_b32 v2, v3, 2, v2", "v_lshlrev_b32 v2, 4, v2", f"v_mov_b32 v6, s{sI}", "v_cmp_gt_u32 vcc, 4, v6",
              "v_and_b32 v3, 15, v1", "v_lshlrev_b32 v3, 4, v3", f"v_cndmask_b32 v4, v{vL16}, v2, vcc", f"v_cndmask_b32 v5, v2, v{vL16}, vcc",
              "v_lshrrev_b32 v2, 5, v1", "v_lshl_add_u32 v3, v2, 8, v3", "v_bfe_u32 v2, v1, 4, 1", "v_lshl_add_u32 v3, v2, 17, v3", "v_add_u32 v3, 1024, v3"]
    for k, x in enumerate(staddr): plan[7][4 + k*4//len(staddr)].append(x)
    gate = ["v_mov_b32 v113, v0", "v_and_b32 v119, 31, v1", f"s_lshl_b32 s62, s{sW}, 7", "v_permlane32_swap_b32 v0, v113", "v_add_f32 v113, v0, v113",
            f"v_mul_f32 v113, {f2u(-1.4426950408889634):#x}, v113", "v_exp_f32 v113, v113", "s_add_u32 s62, s62, 29696", "v_add_f32 v113, 1.0, v113",
            "v_rcp_f32 v113, v113", "v_lshl_add_u32 v119, v119, 2, s62", "ds_write_b32 v119, v113"]
    for k, x in enumerate(gate): plan[8][k*6//len(gate)].append(x)
    ls = late_setup()
    for k, x in enumerate(ls):
        p = 9*8 + k*48//len(ls); plan[p >> 3][p & 7].append(x)
    pollI = f"buffer_load_dword v114, v115, {S(sDBG)}, 0 offen {PP}"
    def step(m, vphase):
        tag = "v" if vphase == 0 else "q"
        if m >= 8 and m % 2 == 0: stamp(a, 2 + (m-8)//2, mode=3)
        if m == 7: stamp(a, 1, mode=3)
        a("s_waitcnt lgkmcnt(0)" if m != 5 else "s_waitcnt vmcnt(0) lgkmcnt(0)")
        mm = mfmas(m, vphase)
        r = reads(m+1) if m < 23 else []
        fill = [[] for _ in range(8)]
        if m < 8:
            d = dots(m) if not opt("x_nodot") else []
            for g in range(4): fill[g] += d[4*g:4*g+4]
            if m < 7: fill[4] += greads(m+1)
        for g in range(8): fill[g] += plan[m][g]
        nr = (len(r) + 4) // 5
        for i in range(8):
            a(mm[i])
            if i == 0:
                if m == PUB1:
                    a("s_waitcnt vmcnt(0)")
                    a(f"s_cmp_lg_u32 s{sW}, 0"); a(f"s_cbranch_scc1 L_noinitchk{tag}")
                    spin(pollI, 1, cnt="s65", reg=114, cmp="v_cmp_eq_u32")
                    a.lab(f"L_noinitchk{tag}")
                if m <= 7: stamp(a, m+2, mode=7)
                if m <= 7 or m in (9, 11, 13, 17): a("s_barrier")
                if m == PUB1:
                    a(f"s_cmp_lg_u32 s{sW}, 0"); a(f"s_cbranch_scc1 L_nopub1{tag}")
                    publishF1(1, 114)
                    a.lab(f"L_nopub1{tag}")
                if m == 11: gread(118)
            if i < 5:
                for x in r[i*nr:(i+1)*nr]: a(x)
            for x in fill[i]: a(x)
        if m == 7:
            stamp(a, 3)
            epilogue(0, WF[1], vphase)
            a("v_and_b32 v115, 7, v1"); a("v_lshlrev_b32 v115, 5, v115")
            a(f"s_cmp_lg_u32 s{sW}, 0"); a(f"s_cbranch_scc1 L_noip{tag}")
            a(pollI)
            a.lab(f"L_noip{tag}")
        if m == 15:
            epilogue(1, WF[1], vphase)
    stamp(a, 1)
    a(f"s_cmp_lt_u32 s{sI}, 2"); a("s_cbranch_scc0 L_p12q")
    for vphase in (0, 1):
        if vphase: a.lab("L_p12q")
        a("s_barrier")
        stamp(a, 2, True)
        for r in reads(0) + greads(0): a(r)
        for m in range(16): step(m, vphase)
        if vphase == 0: a("s_branch L_p3")
    a.lab("L_p3")
    for m in range(16, 24): step(m, -1)
    stamp(a, 4)
    a("s_waitcnt vmcnt(0)")
    a("s_lshl_b32 s62, s2, 7"); a(f"s_lshl_b32 s63, s{sW}, 2"); a("s_add_u32 s62, s62, s63"); a(f"s_add_u32 s62, s62, {WS_F2:#x}")
    a("v_mov_b32 v114, 1")
    a("s_mov_b64 exec, 1")
    a(f"buffer_store_dword v114, v{vL16}, {S(sWS)}, s62 offen {SC}")
    a("s_mov_b64 exec, -1")
    epilogue(2, 208, -1)
    hold(15)
    a("s_barrier")

    a.lab("L_attn")
    def rdK(buf, addr, off): a(f"ds_read_b128 {vr(KB[buf],4)}, v{addr} offset:{off}")
    def rdV(buf, addr, off):
        a("s_mov_b64 exec, s[22:23]")
        a(f"ds_read_b128 {vr(VB[buf][0],4)}, v{addr} offset:{off}")
        a(f"ds_read_b128 {vr(VB[buf][1],4)}, v{addr} offset:{off+512}")
        a("s_mov_b64 exec, -1")
    def mfma(dst, kbuf, q, c): a(f"v_mfma_f32_32x32x16_bf16 {vr(dst,16)}, {vr(KB[kbuf],4)}, {vr(q,4)}, {c}")
    def smf(vreg, sreg):
        if opt("x_nosmf"): return
        if opt("x_dense") == 1:
            for i in range(4): a(f"v_cvt_pk_bf16_f32 v{24+i}, v{sreg+2*i}, v{sreg+2*i+1}")
            a("s_nop 1")
            a(f"v_mfma_f32_32x32x16_bf16 {vr(OA,16)}, {vr(vreg,4)}, v[24:27], {vr(OA,16)}")
            return
        if opt("x_dense") == 2:
            a(f"v_mfma_f32_32x32x16_bf16 {vr(OA,16)}, {vr(vreg,4)}, {vr(QB,4)}, {vr(OA,16)}")
            return
        if opt("x_dense") == 3:
            a(f"v_smfmac_f32_16x16x64_bf16 {vr(OA,4)}, {vr(KB[0],4)}, {vr(sreg,8)}, v{vIDX}")
            return
        if opt("x_dense") == 4:
            a(f"v_smfmac_f32_32x32x16_bf16 {vr(OA,16)}, {vr(vreg,2)}, {vr(sreg,4)}, v{vIDX}")
            a(f"v_smfmac_f32_32x32x16_bf16 {vr(OA,16)}, {vr(vreg+2,2)}, {vr(sreg+4,4)}, v{vIDX}")
            return
        a(f"v_smfmac_f32_32x32x32_bf16 {vr(OA,16)}, {vr(vreg,4)}, {vr(sreg,8)}, v{vIDX}")
    def ex(s, i): a(f"v_exp_f32 v{s+i}, v{s+i}" if not opt("x_expc") else f"v_exp_f32 v{vT2}, v{vMF}")
    def halves_max():
        a(f"v_mov_b32 v{vT}, v{vM}")
        a("s_nop 1")
        a(f"v_permlane32_swap_b32 v{vM}, v{vT}")
        a(f"v_max_f32 v{vM}, v{vM}, v{vT}")
    def rowmax(s):
        a(f"v_max3_f32 v{vM}, v{s}, v{s+1}, v{vMF}")
        for i in range(2, 16, 2): a(f"v_max3_f32 v{vM}, v{s+i}, v{s+i+1}, v{vM}")
        halves_max()
    def tile(t, first, do_mfma, q, c, kread, vread, pre_mfma=None, extra=None, side=None):
        cur, prev = SB[t & 1], SB[(t+1) & 1]
        LO, HI = opt("lo", 14), opt("hi", 0)
        def e(i):
            if i == HI: a("s_setprio 1")
            if i == LO: a("s_setprio 0")
            ex(cur, i)
            if side and i in side:
                for x in side[i]: a(x)
        e(0); e(1)
        if not first and opt("adj", 0): smf(VB[(t-1) & 1][0], prev)
        if not first: smf(VB[(t-1) & 1][1], prev+8)
        a("s_waitcnt lgkmcnt(0)")
        if opt("x_half") and t & 2: kread = vread = None
        if opt("x_c0"): c = "0"
        if kread is not None: rdK(t & 1, *kread)
        if vread is not None: rdV((t+1) & 1, *vread)
        if extra: extra()
        e(2); e(3); e(4)
        if do_mfma:
            if pre_mfma: pre_mfma()
            if not (opt("x_noqk") and t > 2): mfma(prev, (t+1) & 1, q, c)
        for i in range(5, 10): e(i)
        if not opt("adj", 0): smf(VB[t & 1][0], cur)
        else: a("s_nop 0")
        for i in range(10, 16): e(i)
    def a_first():
        rdK(0, vKa, 8*2048); rdK(1, vKa, 7*2048); rdV(0, vVa, 8*2048)
        a("s_waitcnt lgkmcnt(3)")
        mfma(SB[0], 0, QA, vr(CD, 16))
    def finish(tlast, fb_label, done_label, br):
        a("s_nop 1")
        if opt("adj", 0): smf(VB[tlast & 1][0], SB[tlast & 1])
        smf(VB[tlast & 1][1], SB[tlast & 1]+8)
        if br:
            a.lab("L_B_fin"); a_first(); a("s_nop 4")
        else: a("s_nop 11")
        a(f"v_add_f32 v{vT}, abs(v{OA}), v{OA+8}")
        for i in range(1, 8): a(f"v_add_f32 v{vT}, abs(v{OA+i}), v{vT}")
        a(f"v_rcp_f32 v{vT2}, v{OA+8}")
        a(f"v_cmp_gt_f32 vcc, 0x71800000, v{vT}")
        a("s_cmp_lg_u32 s8, 0"); a(f"s_cbranch_scc1 {done_label}")
        if not opt("x_nofb"): a("s_cmp_eq_u64 vcc, -1"); a(f"s_cbranch_scc0 {fb_label}")
        a.lab(done_label)
        for i in range(8): a(f"v_mul_f32 v{OA+i}, v{vT2}, v{OA+i}")
        for i in range(4): a(f"v_cvt_pk_bf16_f32 v{PK[br]+i}, v{OA+2*i}, v{OA+2*i+1}")
        for i in range(4): a(f"v_min_u32 v{PK[br]+i}, -2, v{PK[br]+i}")
        a(f"s_add_u32 s62, s15, {br*32*1024}")
        a(f"buffer_store_dwordx4 {vr(PK[br],4)}, v{vL16}, {S(sWS)}, s62 offen {SC}")
    def copy(srdw, voff, lds, src):
        a(f"s_add_u32 m0, {lds[0]}, {lds[1]}"); a(f"s_add_u32 s63, {src[0]}, {src[1]}")
        a(f"buffer_load_dwordx4 v{voff}, {S(srdw)}, s63 offen {LD} lds")
    def wo_copy(n0, k):
        copy(sWOA if n0 < 64 else sWOB, vWo, ("s19", (n0+k)*1024), ("s18", ((n0 & 63)+k)*8192))
    stamp(a, 5, True)
    hold(1)
    for k in range(opt("x_idle", 0)): a("s_sleep 64")
    a(f"ds_read_b128 {vr(QB,4)}, v{vKb}")
    rdK(0, vL16, 0); rdK(1, vL16, 2048); rdV(0, vVb, 0)
    a(f"v_mov_b32 v{vKb}, v{vL16}")
    a("s_waitcnt lgkmcnt(3)")
    mfma(SB[0], 0, QB, "0")
    a(f"s_lshl_b32 s19, s{sW}, 13"); a("s_and_b32 s18, s19, 0x8000"); a("s_add_u32 s18, s18, s19"); a("s_add_u32 s18, s18, s21")
    a("s_mov_b32 s9, 0"); a(f"s_mov_b32 s3, {WS_F2:#x}")
    a("s_nop 5")
    rowmax(SB[0])
    for r in range(16): a(f"v_sub_f32 v{CM+r}, 0, v{vM}")
    a("s_nop 1")
    mfma(SB[0], 0, QB, vr(CM, 16))
    a("s_waitcnt lgkmcnt(0)")
    stamp(a, 1, True, mode=1)
    if Cfg.stamp and opt("smode") == 5:
        a("s_memtime s[72:73]"); a("s_memrealtime s[74:75]"); a("s_waitcnt lgkmcnt(0)")
    a("s_nop 9")
    X = {u: [] for u in range(64)}
    def at(u, f): X[u].append(f)
    U1 = opt("u1", 8)
    at(U1-3, lambda: a(pollF1b))
    at(U1, lambda: spin(pollF1b, 1))
    if opt("t1", 0): at(U1, lambda: a("s_barrier"))
    for k in range(8): at(U1+k, lambda k=k: copy(sWS, vL16, ("s19", 65536 + k*1024), ("s18", k*1024)))
    def marks():
        for i in range(4): a(f"v_mov_b32 v{PK[0]+i}, -1")
        a("s_add_u32 s62, s15, 32768")
        a(f"buffer_store_dwordx4 {vr(PK[0],4)}, v{vL16}, {S(sWS)}, s15 offen {SC}")
        a(f"buffer_store_dwordx4 {vr(PK[0],4)}, v{vL16}, {S(sWS)}, s62 offen {SC}")
    at(U1+8, marks)
    def st3():
        a(f"s_cmp_ge_u32 s{sW}, 4"); a("s_cbranch_scc1 L_nost3"); stores3(); a.lab("L_nost3")
    at(U1+9, st3)
    U2 = opt("u2", 24)
    def t2():
        a("s_waitcnt vmcnt(0)"); a("s_barrier")
        a(f"s_and_b32 s62, s{sW}, 3"); a("s_cbranch_scc0 L_t2x")
        a.lab("L_t2r")
    at(U2, t2)
    at(U2+1, lambda: (a(f"s_lshl_b32 s19, s{sW}, 12"), a(f"s_lshl_b32 s18, s{sW}, 15"), a(f"s_lshl_b32 s62, s{sJ}, 7"), a("s_add_u32 s18, s18, s62")))
    for k in range(4): at(U2+11+k, lambda k=k: wo_copy(0, k))
    U3 = opt("u3", 42)
    at(U3-3, lambda: a(pollF1A))
    def win():
        spin(pollF1A, 2)
        a(f"s_lshl_b32 s12, s{sB}, 14"); a("s_add_u32 s12, s12, s19")
        a("s_cmp_lt_u32 s12, 16384"); a("s_cselect_b32 s62, 0, 16384")
        a("s_add_u32 s12, s12, s13"); a("s_sub_u32 s12, s12, s62")
        a(f"buffer_load_dwordx4 {vr(QA,4)}, v{vL16}, {S(sWS)}, s11 offen {LD}")
        a(f"v_and_b32 v{vFA2}, 7, v1"); a(f"v_lshlrev_b32 v{vFA2}, 10, v{vFA2}")
        a("s_add_u32 s10, s20, 32768")
    at(U3, win)
    for k in range(4): at(U3+1+k, lambda k=k: copy(sWS, vL16, ("s19", 131072 + k*1024), ("s12", k*1024)))
    at(48, lambda: (a("s_waitcnt vmcnt(0)"), a("s_barrier")))
    for k in range(8): at(49+k, lambda k=k: wo_copy(32 + 32*(k >> 2), k & 3))
    for u in range(64):
        if u and u % 8 == 0: stamp(a, 1 + u//8, mode=1)
        if u == 30: a(f"v_add_u32 v{vKb}, 0x10000, v{vKb}")
        if u == 31: a(f"v_add_u32 v{vVb}, 0x10000, v{vVb}")
        tile(u, u == 0, u < 63, QB, vr(CM, 16), (vKb, ((u+2)*2048) & 0xffff) if u < 62 else None,
             (vVb, ((u+1)*2048) & 0xffff) if u < 63 else None, None, lambda u=u: [f() for f in X[u]])
    stamp(a, 6)
    stamp(a, 1, mode=9)
    stamp(a, 9, mode=1)
    if Cfg.stamp and opt("smode") == 5:
        a("s_memtime s[76:77]"); a("s_memrealtime s[78:79]"); a("s_waitcnt lgkmcnt(0)")
    finish(63, "L_B_fb", "L_B_done", 1)
    a("s_mov_b32 s8, 0")
    for r in range(9): a(f"v_mov_b32 v{OA+r}, 0")
    stamp(a, 7)
    stamp(a, 2, mode=9)
    hold(2)
    a.lab("L_A_max")
    rowmax(SB[0])
    for r in range(16): a(f"v_sub_f32 v{SB[0]+r}, v{SB[0]+r}, v{vM}")
    for r in range(16): a(f"v_sub_f32 v{CM+r}, 0, v{vM}")
    for r in range(16): a(f"v_sub_f32 v{CF+r}, v{CF+r}, v{vM}")
    def oloads(br):
        a(f"s_add_u32 s62, s20, {br*32768}"); a("s_add_u32 s63, s62, 4096")
        for i in range(8):
            a(f"buffer_load_dwordx4 {vr(OF[1-br]+4*i,4)}, v{vL16}, {S(sWS)}, s{62+(i>>2)} offen offset:{(i&3)*1024} {LD}")
    pollO = [f"buffer_load_dword v{vPoll}, v{vFA2}, {S(sWS)}, s20 offen {PP}", f"buffer_load_dword v{vPoll}, v{vFA2}, {S(sWS)}, s10 offen {PP}"]
    if opt("patom"):
        pollO = [f"v_mov_b32 v{vPoll}, 0\n    s_mov_b64 exec, 0xff\n    buffer_atomic_or v{vPoll}, v{vFA2}, {S(sWS)}, s{r} offen sc0\n    s_mov_b64 exec, -1" for r in (20, 10)]
    OBP = opt("obp", 4)
    OAP = -1
    for t in range(9):
        def pm(t=t):
            if t < 7:
                a(f"s_cmp_eq_u32 s7, {t}"); a(f"s_cbranch_scc1 L_A_off{t}")
                a.lab(f"L_A_mid{t}")
        def extra(t=t):
            if t not in (0, 1, OBP, OBP+2, OAP): return
            a("s_cmp_lg_u32 s8, 0"); a(f"s_cbranch_scc1 L_A_x{t}")
            if t == 0: a("s_barrier")
            if t < 2: wo_copy(96, 2*t); wo_copy(96, 2*t+1)
            if t == OBP:
                if opt("twe", 2) == 2: a("s_waitcnt vmcnt(0)"); a("s_barrier")
                a(pollO[1])
            if t == OBP+2:
                a("s_waitcnt vmcnt(0)")
                if opt("twe", 2) == 1: a("s_barrier")
                a(f"v_cmp_ne_u32 vcc, -1, v{vPoll}")
                a(f"v_mov_b32 v{OF[0]}, -1")
                a("s_cmp_eq_u64 vcc, -1"); a(f"s_cbranch_scc0 L_A_x{t}")
                oloads(1)
            if t == OAP: a(pollO[0])
            a.lab(f"L_A_x{t}")
        if t in (0, 1, 2, 4, 5, 7): stamp(a, {0:3, 1:4, 2:5, 4:6, 5:7, 7:8}[t], mode=9)
        tile(t, t == 0, t < 8, QA, vr(CM if t < 7 else CF, 16),
             (vKa, (8-(t+2))*2048) if t+2 <= 8 else None,
             (vVa, (8-(t+1))*2048) if t+1 <= 8 else None, pm, extra)
    finish(8, "L_A_fb", "L_A_done", 0)
    stamp(a, 8)
    stamp(a, 9, mode=9)
    stamp(a, 1, mode=2)
    WR = lambda i, c: 144 + 8*i + 4*c
    def wreads(i):
        for c in range(2):
            for u in range(2):
                a(f"ds_read_b64_tr_b16 {vr(WR(i,c)+2*u,2)}, v{vPW0+c} offset:{i*2048+u*1024}")
    def pm(br, i):
        for c in range(2):
            d = vr(PACC[br][c], 16)
            a(f"v_mfma_f32_32x32x16_bf16 {d}, {vr(WR(i,c),4)}, {vr(OF[1-br]+4*i,4)}, {'0' if i == 0 else d}")
    def chk(br, i):
        b = OF[1-br]+4*i
        a(f"v_max3_u32 v{vT}, v{b}, v{b+1}, {0 if i == 0 else 'v%d' % vT}")
        a(f"v_max3_u32 v{vT}, v{b+2}, v{b+3}, v{vT}")
    a("s_waitcnt vmcnt(1)")
    if not opt("twe", 2): a("s_barrier")
    stamp(a, 2, True, mode=2)
    for i in range(8): wreads(i)
    for i in range(8): chk(1, i)
    a(f"v_cmp_ne_u32 vcc, -1, v{vT}")
    a("s_cmp_eq_u64 vcc, -1"); a("s_cbranch_scc0 L_OB_get")
    a.lab("L_OB_ok")
    for i in range(8):
        a(f"s_waitcnt lgkmcnt({max(0, min(15, 4*(7-i)))})")
        pm(1, i)
        if i == opt('pp', 4): a(pollO[0])
    a(f"v_subrev_u32 v{vPW0}, 0x10000, v{vPW0}"); a(f"v_subrev_u32 v{vPW1}, 0x10000, v{vPW1}")
    stamp(a, 9)
    stamp(a, 4, mode=2)
    if not opt("tr1", 1): a("s_barrier")
    for i in range(8): wreads(i)
    stamp(a, 5, mode=2)
    spin(pollO[0], -1, cnt="s64", cmp="v_cmp_ne_u32")
    oloads(0)
    if opt("tr1", 1): a("s_barrier")
    stamp(a, 6, mode=2)
    a(f"v_sub_f32 v{vT}, 1.0, v{vG}")
    for c in range(2):
        for r in range(16): a(f"v_mul_f32 v{PACC[1][c]+r}, v{vT}, v{PACC[1][c]+r}")
    a(f"s_mov_b32 s64, {SPIN}")
    a("s_branch L_O_go")
    a.lab("L_O_retry")
    oloads(0)
    a.lab("L_O_go")
    for i in range(8):
        a(f"s_waitcnt vmcnt({7-i}) lgkmcnt(0)")
        if i == 0: stamp(a, 7, mode=2)
        pm(0, i)
        chk(0, i)
    a(f"v_cmp_ne_u32 vcc, -1, v{vT}")
    a("s_sub_u32 s64, s64, 1"); a("s_cbranch_scc1 L_O_ok")
    a("s_cmp_eq_u64 vcc, -1"); a("s_cbranch_scc0 L_O_retry")
    a.lab("L_O_ok")
    stamp(a, 8, mode=2)
    a("s_nop 6")
    for c in range(2):
        for g in range(4):
            for r in range(4*g, 4*g+4): a(f"v_fmac_f32 v{PACC[1][c]+r}, v{vG}, v{PACC[0][c]+r}")
            a(f"ds_write_b128 v{vPWR}, {vr(PACC[1][c]+4*g,4)} offset:{(c*4+g)*1088}")
    a("s_waitcnt lgkmcnt(0)"); a("s_barrier")
    stamp(a, 9, True, mode=2)
    for kq in range(4):
        for h in range(2):
            a(f"ds_read_b128 {vr(16+kq*8+h*4,4)}, v{vPRD} offset:{kq*PW + h*512}")
    a("s_waitcnt lgkmcnt(4)")
    for i in range(8): a(f"v_add_f32 v{16+i}, v{16+i}, v{24+i}")
    a("s_waitcnt lgkmcnt(0)")
    for i in range(8): a(f"v_add_f32 v{32+i}, v{32+i}, v{40+i}")
    for i in range(8): a(f"v_add_f32 v{16+i}, v{16+i}, v{32+i}")
    for i in range(4): a(f"v_cvt_pk_bf16_f32 v{48+i}, v{16+2*i}, v{16+2*i+1}")
    a(f"buffer_store_dwordx4 v[48:51], v{vOUT}, {S(sOUT)}, s33 offen {opt('ost', 'sc1')}")
    if HOLD >= 0:
        hold(3)
        if opt("x_who") is not None:
            a(f"s_cmp_lg_u32 s2, {opt('x_who')}"); a("s_cbranch_scc1 L_end")
        a.lab("L_hold")
        a("s_memrealtime s[62:63]"); a("s_waitcnt lgkmcnt(0)")
        a("s_sub_u32 s62, s62, s72"); a("s_cmp_lt_u32 s62, 6000"); a("s_cbranch_scc1 L_hold")
    if Cfg.stamp:
        a("s_waitcnt vmcnt(0)")
        a("s_memtime s[96:97]"); a("s_waitcnt lgkmcnt(0)")
        stamp_out(a, 0, 10, sWS, sW, 8)
        a("s_nop 1"); a("v_mov_b32 v1, s96"); a(f"buffer_store_dword v1, v0, {S(sWS)}, s94 offen offset:40")
    a.lab("L_end")
    a("s_endpgm")

    a.lab("L_OB_get")
    a(pollO[1])
    spin(pollO[1], -1, cnt="s64", cmp="v_cmp_ne_u32")
    a(f"s_mov_b32 s65, {SPIN}")
    a.lab("L_OB_retry")
    oloads(1)
    a("s_waitcnt vmcnt(0)")
    for i in range(8): chk(1, i)
    a(f"v_cmp_ne_u32 vcc, -1, v{vT}")
    a("s_sub_u32 s65, s65, 1"); a("s_cbranch_scc1 L_OB_ok")
    a("s_cmp_eq_u64 vcc, -1"); a("s_cbranch_scc0 L_OB_retry")
    a("s_branch L_OB_ok")
    a.lab("L_t2x")
    a(f"v_lshlrev_b32 v{vT2}, 10, v1")
    a(f"s_and_b32 s64, s{sRB}, 7"); a("s_lshl_b32 s64, s64, 16"); a(f"s_lshl_b32 s63, s{sJ}, 7"); a("s_add_u32 s64, s64, s63")
    a(f"s_cmp_eq_u32 s{sW}, 0"); a("s_cbranch_scc0 L_t2y")
    publishF1(2, vT)
    a(f"buffer_load_dword v243, v{vT2}, {S(sWOA)}, s64 offen")
    a("s_branch L_t2r")
    a.lab("L_t2y")
    a(f"buffer_load_dword v243, v{vT2}, {S(sWOB)}, s64 offen")
    a("s_branch L_t2r")
    for t in range(7):
        a.lab(f"L_A_off{t}")
        a("s_nop 7")
        for r in range(16): a(f"v_mov_b32 v{CM+r}, s5")
        a("s_nop 1")
        a(f"s_branch L_A_mid{t}")
    a.lab("L_A_fb")
    a("s_waitcnt lgkmcnt(0)")
    a("s_mov_b32 s8, 1")
    a(f"s_sub_u32 s17, 8, s{sW}"); a(f"s_cmp_eq_u32 s{sB}, 0"); a("s_cselect_b32 s17, s17, 0")
    a.lab("L_A_fb_loop")
    a("s_lshl_b32 s62, s17, 11")
    a(f"v_add_u32 v{vT}, s62, v{vKa}")
    rdK(0, vT, 0)
    a("s_sub_u32 s62, 8, s17"); a("s_lshl_b32 s62, s62, 5")
    a(f"v_add_u32 v{vT2}, s62, v{vQH}")
    a(f"v_mov_b32 v{vM}, s5")
    a("s_movk_i32 s62, 256")
    a("s_waitcnt lgkmcnt(0)")
    mfma(SB[0], 0, QA, "0")
    a("s_nop 15")
    for r in range(16):
        a(f"v_subrev_u32 v{vT}, {(r & 7) + 16*(r >> 3)}, v{vT2}")
        a(f"v_cmp_gt_u32 vcc, s62, v{vT}")
        a("s_nop 1")
        a(f"v_cndmask_b32 v{vT}, v{vM}, v{SB[0]+r}, vcc")
        a(f"v_max_f32 v{vMF}, v{vMF}, v{vT}")
    a("s_add_u32 s17, s17, 1"); a("s_cmp_lt_u32 s17, 9"); a("s_cbranch_scc1 L_A_fb_loop")
    for x in masks(): a(x)
    a_first()
    a("s_nop 15")
    a("s_branch L_A_max")
    a.lab("L_B_fb")
    a("s_waitcnt lgkmcnt(0)")
    a("s_mov_b32 s8, 1")
    a("s_mov_b32 s17, s14"); a("s_add_u32 s62, s14, 131072")
    a(f"v_mov_b32 v{vM}, s5")
    a(f"v_and_b32 v{vVb}, 0x7ff, v{vVb}")
    a.lab("L_B_fb_max")
    a(f"buffer_load_dwordx4 {vr(KB[0],4)}, v{vL16}, {S(sWS)}, s17 offen {LD}")
    a("s_add_u32 s17, s17, 2048")
    a("s_waitcnt vmcnt(0)")
    mfma(SB[0], 0, QB, "0")
    a("s_nop 15")
    for i in range(0, 16, 2): a(f"v_max3_f32 v{vM}, v{SB[0]+i}, v{SB[0]+i+1}, v{vM}")
    a("s_cmp_lt_u32 s17, s62"); a("s_cbranch_scc1 L_B_fb_max")
    halves_max()
    for r in range(16): a(f"v_sub_f32 v{CM+r}, 0, v{vM}")
    for r in range(16): a(f"v_mov_b32 v{OA+r}, 0")
    a("s_mov_b32 s17, s14")
    a.lab("L_B_fb_acc")
    a(f"buffer_load_dwordx4 {vr(KB[0],4)}, v{vL16}, {S(sWS)}, s17 offen {LD}")
    a("s_mov_b64 exec, s[22:23]")
    a(f"buffer_load_dwordx4 {vr(VB[0][0],4)}, v{vVb}, {S(sWS)}, s17 offen {LD}")
    a(f"buffer_load_dwordx4 {vr(VB[0][1],4)}, v{vVb}, {S(sWS)}, s17 offen offset:512 {LD}")
    a("s_mov_b64 exec, -1")
    a("s_add_u32 s17, s17, 2048")
    a("s_waitcnt vmcnt(0)")
    mfma(SB[0], 0, QB, vr(CM, 16))
    a("s_nop 15")
    for i in range(16): ex(SB[0], i)
    a("s_nop 1")
    smf(VB[0][0], SB[0]); smf(VB[0][1], SB[0]+8)
    a("s_cmp_lt_u32 s17, s62"); a("s_cbranch_scc1 L_B_fb_acc")
    a("s_branch L_B_fin")
    a.lab("L_code_end")
    d = desc(K, 256, 74, 256)
    if Cfg.stamp: d = d.replace("next_free_sgpr 96", "next_free_sgpr 100")
    return a.text(), d

def main(out):
    t, d = gen()
    hdr = f"""; gated_mix(sliding-window MHA, full MHA), one fused launch:
; @launch grid=(256,1,1) block=(512,1,1) lds=163840
.amdgcn_target "amdgcn-amd-amdhsa--gfx950"
"""
    open(out, "w").write(hdr + t + d)

if __name__ == "__main__":
    main(parse_args())
```

```python
import re
from common import *

WS_FL = 16 << 20
WS_F2 = WS_FL + 32768
SC = "sc1"
SPIN = 1 << 17
PW = 16*1088

sX, sWB, sWA, sWS, sWOA, sOUT, sDBG, sWOB = 24, 28, 32, 36, 40, 44, 48, 52
sW, sRB, sJ, sHD, sB, sQT, sR16, sI = 56, 57, 58, 59, 60, 61, 68, 69
S = lambda b: f"s[{b}:{b+3}]"
vXA = 2
vWA = 10
vL16, vGA = 14, 15
WF = [16, 48]
ACC = [80, 96]
GF = 112
XR = 128
vG, QB, QA = 112, 116, 120
vIDX, vKa, vVa, vKb, vVb, vT, vM, vMF, vT2, vQH, vFA, vWo, vFA2, vK2, vV2 = range(128, 143)
VB = [[144, 148], [152, 156]]
OA = 160
CD, CF = 176, 192
vPoll = 124
KB = [16, 20]
SB = [32, 48]
CM = 64
PK = [244, 248]
OF = [208, 16]
PACC = [[48, 64], [80, 96]]
vPW0, vPW1, vPWR, vPRD, vOUT = 8, 9, 2, 7, 6
QSTG = 152*1024

def gen():
    LD = "sc1"
    PP = opt("ppol", "sc1")
    PUB1 = opt("pub1", 13)
    HOLD = opt("x_hold", -1)
    def hold(k):
        if HOLD == k or (k == 0 and HOLD >= 10): a("s_memrealtime s[72:73]"); a("s_waitcnt lgkmcnt(0)")
    def wpos(c, sb):
        if c == 8: return 3*sb*32768 + 24576
        if c == 12: return (1+sb)*32768 + 24576
        n = 2*(c-9 if c < 12 else c-10) + sb
        return (n//3)*32768 + (n % 3)*8192
    a = A(); K = NAME + "_kernel"; head(a, K)
    a("s_cmp_ge_u32 s2, 256"); a("s_cbranch_scc1 L_end")
    stamp(a, 0)
    hold(0)
    a("s_load_dwordx2 s[4:5], s[0:1], 0")
    a("s_load_dwordx4 s[12:15], s[0:1], 32")
    a("s_load_dwordx4 s[8:11], s[0:1], 8")
    a("s_load_dwordx2 s[6:7], s[0:1], 48")
    a("s_load_dwordx4 s[16:19], s[0:1], 56")
    a("s_load_dwordx2 s[20:21], s[0:1], 72")
    a("v_lshrrev_b32 v2, 6, v0")
    a("v_and_b32 v1, 63, v0")
    a("s_bfe_u32 s62, s2, 0x20003")
    a(f"v_readfirstlane_b32 s{sW}, v2")
    a("s_and_b32 s63, s2, 3"); a("s_lshl_b32 s63, s63, 2"); a(f"s_add_u32 s{sR16}, s63, s62")
    a(f"s_lshr_b32 s{sI}, s2, 5")
    a(f"v_lshlrev_b32 v{vL16}, 4, v1")
    a(f"s_cmp_lt_u32 s{sW}, 4"); a("s_cbranch_scc1 L_compute")

    def ids():
        a(f"s_lshl_b32 s{sRB}, s{sR16}, 1"); a(f"s_and_b32 s62, s{sI}, 1"); a(f"s_add_u32 s{sRB}, s{sRB}, s62")
        a(f"s_and_b32 s{sJ}, s2, 4"); a(f"s_lshr_b32 s62, s{sI}, 1"); a(f"s_add_u32 s{sJ}, s{sJ}, s62")
        a(f"s_and_b32 s{sHD}, s2, 7"); a(f"s_lshl_b32 s{sHD}, s{sHD}, 2"); a("s_bfe_u32 s62, s2, 0x20003"); a(f"s_add_u32 s{sHD}, s{sHD}, s62")
        a(f"s_mov_b32 s{sB}, s{sI}")
        a(f"s_lshl_b32 s{sQT}, s{sB}, 3"); a(f"s_add_u32 s{sQT}, s{sQT}, s{sW}")
    def roles():
        a(f"s_lshr_b32 s64, s{sI}, 1"); a("s_xor_b32 s64, s64, s2"); a("s_and_b32 s64, s64, 1"); a("s_lshl_b32 s64, s64, 1")
        a(f"s_and_b32 s65, s{sI}, 1"); a("s_add_u32 s65, s65, s64"); a("s_xor_b32 s64, s65, 2")
        a(f"s_and_b32 s22, s{sI}, 3"); a(f"s_add_u32 s23, s{sI}, 1"); a("s_and_b32 s23, s23, 3")
        a(f"s_cmp_lt_u32 s{sI}, 4"); a("s_cselect_b32 s64, s64, s22"); a("s_cselect_b32 s65, s65, s23")
        a("s_and_b32 s22, s2, 4"); a("s_add_u32 s64, s64, s22"); a("s_add_u32 s65, s65, s22")
    def common_srds():
        srd(a, sWS, 20, 21, ws_size())
        srd(a, sOUT, 16, 17, 2048*512*2)
        srd(a, sDBG, 18, 19, 256)
        srd(a, sWOA, 10, 11, 512*512*2)
        srd(a, sWOB, 14, 15, 512*512*2)

    class Rec:
        def __init__(s): s.L = []
        def __call__(s, t): s.L.append(t)
    def late_setup():
        a = Rec()
        a(f"s_lshl_b32 s20, s{sRB}, 17"); a(f"s_and_b32 s4, s{sW}, 1"); a("s_lshl_b32 s4, s4, 16"); a("s_add_u32 s20, s20, s4")
        a(f"s_lshr_b32 s4, s{sW}, 1"); a("s_lshl_b32 s4, s4, 13"); a("s_add_u32 s20, s20, s4"); a(f"s_add_u32 s20, s20, {WS_O:#x}")
        a(f"v_lshrrev_b32 v116, 5, v1"); a(f"v_bfe_u32 v117, v1, 2, 2")
        a(f"v_lshl_add_u32 v{vPW0}, v116, 2, v117"); a(f"v_lshlrev_b32 v{vPW0}, 7, v{vPW0}")
        a(f"v_bfe_u32 v116, v1, 4, 1"); a(f"v_lshlrev_b32 v116, 1, v116")
        a(f"v_bfe_u32 v117, v1, 1, 1"); a(f"v_add_u32 v116, v116, v117")
        a(f"v_bfe_u32 v117, v1, 3, 1"); a(f"v_lshl_or_b32 v116, v117, 2, v116")
        a(f"v_lshl_add_u32 v{vPW0}, v116, 4, v{vPW0}")
        a(f"v_and_b32 v116, 1, v1"); a(f"v_lshl_add_u32 v{vPW0}, v116, 3, v{vPW0}")
        a(f"s_lshr_b32 s4, s{sW}, 1"); a("s_lshl_b32 s4, s4, 14")
        a(f"v_add_u32 v{vPW0}, s4, v{vPW0}")
        a(f"v_xor_b32 v{vPW1}, 64, v{vPW0}")
        a(f"s_lshr_b32 s4, s{sW}, 1"); a(f"s_mul_i32 s4, s4, {PW}"); a(f"s_and_b32 s5, s{sW}, 1"); a(f"s_mul_i32 s5, s5, {8*1088}")
        a(f"s_cmp_ge_u32 s{sW}, 6\n    s_cselect_b32 s4, 131072, s4"); a("s_add_u32 s4, s4, s5")
        a(f"v_add_u32 v{vPWR}, s4, v{vL16}")
        a("v_and_b32 v116, 7, v1"); a("v_lshrrev_b32 v117, 3, v1")
        a(f"s_and_b32 s4, s{sW}, 3"); a("s_lshl_b32 s4, s4, 3"); a("v_add_u32 v117, s4, v117")
        a(f"v_mul_u32_u24 v{vPRD}, 1088, v116"); a(f"v_lshl_add_u32 v{vPRD}, v117, 4, v{vPRD}")
        a(f"s_lshr_b32 s4, s{sW}, 2"); a(f"s_mul_i32 s5, s4, {8*1088}")
        a(f"v_add_u32 v{vPRD}, s5, v{vPRD}")
        a(f"v_lshlrev_b32 v{vOUT}, 10, v117"); a(f"v_lshl_add_u32 v{vOUT}, v116, 4, v{vOUT}")
        a("s_lshl_b32 s4, s4, 15"); a(f"s_lshl_b32 s5, s{sRB}, 16"); a("s_add_u32 s4, s4, s5")
        a(f"s_lshl_b32 s5, s{sJ}, 7"); a("s_add_u32 s33, s4, s5")
        return a.L

    def attn_setup():
        L = []; e = L.append
        e(f"s_lshl_b32 s11, s{sHD}, 6"); e(f"s_add_u32 s11, s11, s{sQT}"); e("s_lshl_b32 s11, s11, 10")
        e(f"s_add_u32 s11, s11, {WS_Q:#x}")
        e(f"s_lshl_b32 s13, s{sHD}, 17")
        e(f"s_add_u32 s14, s13, {32*131072:#x}")
        e(f"s_mov_b32 s10, {WS_FL:#x}")
        e("s_and_b32 s4, s2, 3"); e("s_add_u32 s5, s4, 3"); e("s_and_b32 s5, s5, 3"); e("s_xor_b32 s6, s4, 2")
        e("s_and_b32 s7, s2, 1"); e("s_mul_i32 s7, s7, 0x1011"); e("s_lshl_b32 s9, s4, 8"); e("s_add_u32 s7, s7, s9"); e("s_add_u32 s7, s7, 0x420")
        e("s_mul_i32 s6, s6, 0x110"); e("s_add_u32 s5, s5, s6"); e("s_add_u32 s5, s5, 0x404")
        e(f"v_bfe_u32 v{vT}, v1, 2, 2"); e(f"v_and_b32 v{vT2}, 3, v1"); e(f"v_lshl_add_u32 v{vT}, v{vT2}, 3, v{vT}")
        e(f"v_lshlrev_b32 v{vT}, 7, v{vT}")
        e(f"v_lshrrev_b32 v{vT2}, 4, v1"); e(f"v_lshlrev_b32 v{vT2}, 2, v{vT2}")
        e(f"v_bfe_u32 v{vFA}, s7, v{vT2}, 4"); e(f"v_lshl_add_u32 v{vFA}, v{vFA}, 12, v{vT}")
        e(f"v_bfe_u32 v{vFA2}, s5, v{vT2}, 4"); e(f"v_lshl_add_u32 v{vFA2}, v{vFA2}, 12, v{vT}")
        e("s_and_b32 s4, s2, 4"); e("s_lshl_b32 s4, s4, 7")
        e(f"v_add_u32 v{vFA}, s4, v{vFA}"); e(f"v_add_u32 v{vFA2}, s4, v{vFA2}")
        e(f"v_and_b32 v{vT}, 0xc80, v{vT}")
        e(f"s_lshr_b32 s4, s{sW}, 1"); e("s_lshl_b32 s4, s4, 8"); e(f"s_lshr_b32 s5, s{sRB}, 2"); e("s_lshl_b32 s5, s5, 12"); e("s_add_u32 s4, s4, s5")
        e(f"v_add_u32 v{vT}, s4, v{vT}")
        e("v_cmp_lt_u32 vcc, 47, v1")
        e("s_bfe_u32 s4, s2, 0x10001"); e("s_lshl_b32 s4, s4, 15")
        e(f"v_cndmask_b32 v{vFA2}, v{vFA2}, v{vT}, vcc")
        e("s_add_u32 s16, s14, s4"); e("s_xor_b32 s4, s4, 0x8000"); e("s_add_u32 s21, s14, s4")
        e(f"v_lshrrev_b32 v{vT}, 3, v1"); e(f"v_bfe_u32 v{vT2}, v1, 4, 1"); e(f"v_lshlrev_b32 v{vT2}, 2, v{vT2}")
        e(f"v_and_b32 v{vWo}, 7, v1"); e(f"v_xor_b32 v{vWo}, v{vWo}, v{vT2}"); e(f"v_lshlrev_b32 v{vWo}, 4, v{vWo}")
        e(f"v_lshl_add_u32 v{vWo}, v{vT}, 10, v{vWo}")
        e(f"v_mov_b32 v{vIDX}, 0xdddddddd")
        e("s_mov_b32 s22, 0x0000ffff"); e("s_mov_b32 s23, 0x0000ffff")
        e(f"v_lshrrev_b32 v{vQH}, 5, v1")
        e(f"v_and_b32 v{vVb}, 15, v1"); e(f"v_lshlrev_b32 v{vVb}, 4, v{vVb}")
        e(f"v_lshl_add_u32 v{vVb}, v{vQH}, 8, v{vVb}"); e(f"v_add_u32 v{vVb}, 1024, v{vVb}")
        e(f"s_lshl_b32 s4, s{sW}, 11"); e("s_add_u32 s4, s4, 131072")
        e(f"v_add_u32 v{vKa}, s4, v{vL16}")
        e(f"v_add_u32 v{vVa}, s4, v{vVb}")
        e(f"s_lshl_b32 s4, s{sW}, 10"); e(f"s_add_u32 s4, s4, {QSTG}")
        e(f"v_add_u32 v{vKb}, s4, v{vL16}")
        e(f"v_and_b32 v{vM}, 31, v1")
        e(f"v_lshlrev_b32 v{vQH}, 3, v{vQH}"); e(f"v_sub_u32 v{vQH}, v{vM}, v{vQH}")
        e(f"v_and_b32 v{vT}, 0x1b, v{vM}")
        e(f"v_cmp_eq_u32 vcc, 16, v{vT}")
        e(f"v_mov_b32 v{vT2}, {0 if opt('x_noones') else 0x3f803f80:#x}")
        e(f"v_mov_b32 v{vT}, 0")
        for b in range(2):
            for j in range(2):
                for i in range(4): e(f"v_cndmask_b32 v{VB[b][j]+i}, v{vT}, v{vT2}, vcc")
        e(f"s_mov_b32 s5, {NEG_INF:#x}")
        e(f"s_cmp_eq_u32 s{sB}, 0\n    s_cselect_b32 s6, s5, 0\n    s_cselect_b32 s7, s{sW}, 64")
        e("s_mov_b32 s8, 0")
        e(f"s_lshl_b32 s15, s{sQT}, 6"); e(f"s_add_u32 s15, s15, s{sHD}"); e("s_lshl_b32 s15, s15, 10")
        e(f"s_add_u32 s15, s15, {WS_O:#x}")
        L += masks()
        return L
    def masks():
        L = []; e = L.append
        e(f"v_mov_b32 v{vT}, s5"); e(f"v_mov_b32 v{vT2}, s6")
        for r in range(16):
            e(f"v_cmp_le_i32 vcc, {(r & 7) + 16*(r >> 3)}, v{vQH}")
            e(f"v_mov_b32 v{OA+r}, 0")
            e("s_nop 0")
            e(f"v_cndmask_b32 v{CD+r}, v{vT}, v{OA+r}, vcc")
            e(f"v_cndmask_b32 v{CF+r}, v{vT2}, v{vT}, vcc")
        return L
    def gread(t):
        a(f"s_and_b32 s62, s{sI}, 1"); a("s_lshl_b32 s62, s62, 1"); a(f"s_and_b32 s63, s{sW}, 1"); a("s_add_u32 s62, s62, s63")
        a("s_lshl_b32 s62, s62, 7"); a("s_add_u32 s62, s62, 29696")
        a(f"v_and_b32 v{t}, 31, v1"); a(f"v_lshl_add_u32 v{t}, v{t}, 2, s62")
        a(f"ds_read_b32 v{vG}, v{t}")
    uid = [0]
    def spin(load, stage, cnt="s62", reg=vPoll, cmp="v_cmp_le_u32"):
        uid[0] += 1; n = uid[0]
        a(f"s_mov_b32 {cnt}, {SPIN}")
        a(f"s_branch L_chk{n}")
        a.lab(f"L_spin{n}")
        if opt("sleep", 0): a(f"s_sleep {opt('sleep', 0)}")
        a(load)
        a.lab(f"L_chk{n}")
        a("s_waitcnt vmcnt(0)")
        if "x4" in load:
            a(f"v_min3_u32 v{reg}, v{reg}, v{reg+1}, v{reg+2}"); a(f"v_min_u32 v{reg}, v{reg}, v{reg+3}")
        a(f"{cmp} vcc, {stage}, v{reg}")
        a(f"s_sub_u32 {cnt}, {cnt}, 1"); a(f"s_cbranch_scc1 L_ok{n}")
        a("s_cmp_eq_u64 vcc, -1"); a(f"s_cbranch_scc0 L_spin{n}")
        a.lab(f"L_ok{n}")
    pollF1 = f"buffer_load_dword v{vPoll}, v{vFA}, {S(sWS)}, s10 offen {PP}"
    pollF1b = f"buffer_load_dwordx4 {vr(vPoll,4)}, v{vFA}, {S(sWS)}, s3 offen {PP}"
    pollF1A = f"buffer_load_dword v{vPoll}, v{vFA2}, {S(sWS)}, s10 offen {PP}"

    a(f"s_sub_u32 s66, s{sW}, 4")
    a("v_lshrrev_b32 v2, 3, v1")
    a("v_and_b32 v3, 7, v1")
    a("v_lshrrev_b32 v4, 4, v1")
    a("v_xor_b32 v5, v3, v4")
    a("v_lshlrev_b32 v5, 4, v5")
    a("v_lshl_add_u32 v6, v2, 10, v5")
    a(f"s_lshl_b32 s63, s{sR16}, 17"); a("s_lshl_b32 s64, s66, 15"); a("s_add_u32 s63, s63, s64")
    a("v_add_u32 v16, s63, v6")
    a("v_xor_b32 v17, 64, v16"); a("v_add_u32 v17, 8192, v17")
    a("v_add_u32 v18, 16384, v16"); a("v_add_u32 v19, 16384, v17")
    a("v_and_b32 v5, 1, v4")
    a("v_lshlrev_b32 v5, 2, v5")
    a("v_xor_b32 v5, v3, v5")
    a("v_lshlrev_b32 v5, 4, v5")
    a("v_mul_u32_u24 v8, 3072, v2")
    a("s_mul_i32 s63, s66, 49152")
    a("v_add3_u32 v20, v8, v5, s63")
    a("v_add_u32 v21, 24576, v20")
    a("s_lshl_b32 s3, s62, 1"); a(f"s_add_u32 s3, s3, s{sI}"); a("s_and_b32 s3, s3, 7")
    R = opt("rot", 4)
    if R == 0: a("s_mov_b32 s3, 0")
    if R >= 16:
        a("s_and_b32 s3, s2, 3"); a("s_lshl_b32 s3, s3, 1"); a("s_and_b32 s63, s2, 4"); a("s_add_u32 s3, s3, s63")
        if R == 17: a(f"s_and_b32 s63, s{sI}, 1"); a("s_lshl_b32 s63, s63, 1"); a("s_add_u32 s3, s3, s63")
        if R == 18: a(f"s_add_u32 s63, s{sI}, s62"); a("s_and_b32 s63, s63, 1"); a("s_lshl_b32 s63, s63, 1"); a("s_add_u32 s3, s3, s63")
        if R == 19: a(f"s_add_u32 s63, s{sI}, s62"); a("s_and_b32 s63, s63, 3"); a("s_add_u32 s3, s3, s63")
        a("s_and_b32 s3, s3, 7")
    if R == 5:
        a(f"s_add_u32 s3, s62, s{sI}"); a("s_and_b32 s3, s3, 3"); a("s_lshl_b32 s3, s3, 1"); a("s_bfe_u32 s63, s2, 0x10002"); a("s_add_u32 s3, s3, s63")
    if R == 4: a(f"s_add_u32 s3, s62, s{sI}"); a("s_and_b32 s3, s3, 3"); a("s_lshl_b32 s3, s3, 1")
    roles()
    a("s_lshl_b32 s64, s64, 7"); a("s_lshl_b32 s65, s65, 7"); a("s_add_u32 s65, s65, 2048")
    a(f"s_cmp_lt_u32 s{sI}, 4"); a("s_cselect_b32 s22, 1024, 0"); a("s_add_u32 s64, s64, s22")
    a(f"s_cmp_lt_u32 s{sI}, 2"); a("s_cselect_b32 s22, s65, s64"); a("s_cselect_b32 s71, s64, s65")
    a("s_lshl_b32 s67, s66, 12"); a("s_add_u32 s67, s67, 32768")
    a("s_lshl_b32 s23, s66, 11"); a("s_add_u32 s23, s23, 32768")
    for d, sz in ((sX, 2048*512*2), (sWB, 512*1536*2)):
        a(f"s_mov_b32 s{d+2}, {sz:#x}"); a(f"s_mov_b32 s{d+3}, 0x20000")
    stamp(a, 1, mode=8)
    a("s_waitcnt lgkmcnt(0)")
    stamp(a, 2, mode=8)
    for d, lo in ((sX, 4), (sWB, 12)):
        a(f"s_mov_b32 s{d}, s{lo}"); a(f"s_and_b32 s{d+1}, s{lo+1}, 0xffff")
    RW = ["s22", "s23"]
    def wblock(srdw, col, ldsoff):
        a(f"s_mul_i32 s63, s3, {64*3072}"); a(f"s_add_u32 s63, s63, {col}")
        for e in range(2):
            a(f"s_add_u32 m0, {RW[1]}, {ldsoff + e*1024}")
            a("s_nop 0")
            a(f"buffer_load_dwordx4 v{20+e}, {S(srdw)}, s63 offen lds")
        a("s_add_u32 s3, s3, 1"); a("s_and_b32 s3, s3, 7")
    seq = []
    def issue(c):
        slot = c & 3
        a("s_lshl_b32 s62, s3, 7")
        for il in range(4):
            a(f"s_add_u32 m0, s67, {slot*32768 + il*1024}")
            a("s_nop 0")
            a(f"buffer_load_dwordx4 v{16+il}, {S(sX)}, s62 offen lds")
        wblock(sWB, RW[0], slot*32768 + 16384)
        seq.append((c, 6))
    def issue_w(c, sb):
        k = 2*((c-8) & 3) + sb
        a(f"s_add_u32 s3, s64, {k}"); a("s_and_b32 s3, s3, 7")
        wblock(sX if c < 12 else sWA, "s71" if c < 12 else "s65", wpos(c, sb))
        seq.append((c, 2))
    def wait_for(c):
        last = max(k for k, (cc, n) in enumerate(seq) if cc == c)
        a(f"s_waitcnt vmcnt({sum(n for cc, n in seq[last+1:])})")
    a("s_lshl_b32 s64, s66, 8"); a("s_lshl_b32 s65, s3, 7"); a("s_add_u32 s65, s65, s64")
    issue(0)
    stamp(a, 3, mode=8)
    a("v_lshlrev_b32 v24, 2, v1"); a("v_add_u32 v24, s65, v24"); a("v_and_b32 v24, 0x3ff, v24")
    srd(a, sWOB, 6, 7, 1024)
    a("s_add_u32 m0, s64, 28672"); a("s_nop 0")
    a(f"buffer_load_dword v24, {S(sWOB)}, 0 offen lds")
    issue(1)
    stamp(a, 4, mode=8)
    issue(2)
    stamp(a, 5, mode=8)
    srd(a, sWA, 8, 9, 512*1536*2)
    common_srds()
    a("s_mov_b32 s17, s22"); a("s_mov_b32 s18, s23"); RW[:] = ["s17", "s18"]
    ids()
    a(f"s_xor_b32 s65, s{sI}, 2"); a("s_and_b32 s65, s65, 3"); a("s_and_b32 s62, s2, 4"); a("s_add_u32 s65, s65, s62"); a("s_lshl_b32 s65, s65, 7")
    a(f"s_and_b32 s62, s{sI}, 4"); a("s_lshl_b32 s62, s62, 8"); a("s_add_u32 s65, s65, s62")
    SCH = {5: {4: [8], 5: [12], 7: [9], 8: [10, 11], 10: [13, 14], 11: [15]},
           2: {4: [8], 6: [12], 7: [9], 8: [10, 11], 10: [13, 14], 11: [15]},
           6: {4: [8], 5: [12], 7: [9], 8: [10], 9: [11], 10: [13, 14], 11: [15]},
           7: {4: [8, 12], 7: [9], 8: [10, 11], 10: [13, 14], 11: [15]}}[opt("sch", 5)]
    lset = late_setup() + attn_setup()
    LSPLIT = opt("lsplit", 110)
    def after(k):
        for cc in SCH.get(k, []):
            for sb in range(2): issue_w(cc, sb)
    for c in range(0, 9):
        stamp(a, c+1, mode=6)
        wait_for(c)
        stamp(a, c+1, mode=7)
        if c < 2: stamp(a, 6+2*c, mode=8)
        a("s_barrier")
        if c < 2: stamp(a, 7+2*c, mode=8)
        stamp(a, c+1, mode=4)
        if c == 0: hold(10)
        if c == 4: hold(16)
        if c == 8: hold(11)
        if c + 3 < 8: issue(c+3)
        if c == 4:
            a(f"s_cmp_lt_u32 s{sI}, 4")
            a(f"s_cselect_b32 s{sX}, s{sWB}, s{sWA}"); a(f"s_cselect_b32 s{sX+1}, s{sWB+1}, s{sWA+1}")
            a(f"s_mov_b32 s{sX+2}, {512*1536*2:#x}")
            a("s_mov_b32 s64, s3")
        after(c)
    wait_for(9); a("s_barrier")
    after(9)
    wait_for(11); a("s_barrier")
    after(10)
    gread(3)
    a("s_waitcnt lgkmcnt(0)")
    a("s_barrier")
    hold(12)
    after(11)
    for x in lset[:LSPLIT]: a(x)
    a("s_waitcnt vmcnt(0)"); a("s_barrier")
    hold(13)
    L2 = opt("lsplit2", 140)
    while L2 < len(lset) and not lset[L2].startswith("v_cmp"): L2 += 1
    for x in lset[LSPLIT:L2]: a(x)
    stamp(a, 1)
    NP = opt("npoll", 2)
    if NP < 4: a(f"s_cmp_ge_u32 s66, {NP}"); a("s_cbranch_scc1 L_nokv")
    a(pollF1)
    spin(pollF1, 1)
    hold(14)
    stamp(a, 2)
    qn = 8//NP
    a(f"s_mul_i32 s62, s66, {qn*1024}")
    a(f"s_lshl_b32 s63, s{sW}, 10"); a("s_sub_u32 s63, s11, s63"); a("s_add_u32 s63, s63, s62"); a(f"s_add_u32 s63, s63, {32*64*1024:#x}")
    for g in range((qn+3)//4):
        a(f"s_add_u32 m0, s62, {QSTG + g*4096}"); a(f"s_add_u32 s64, s63, {g*4096}")
        for i in range(min(qn, 4)): a(f"buffer_load_dwordx4 v{vL16}, {S(sWS)}, s64 offen offset:{i*1024} {LD} lds")
    a(f"s_mul_i32 s62, s66, {qn*4096}"); a("s_add_u32 s63, s62, s16")
    for q in range(2):
        if NP == 1 and q: a("s_waitcnt vmcnt(24)")
        for g in range(qn):
            a(f"s_add_u32 m0, s62, {q*32768 + g*4096}"); a(f"s_add_u32 s64, s63, {q*65536 + g*4096}")
            for i in range(4): a(f"buffer_load_dwordx4 v{vL16}, {S(sWS)}, s64 offen offset:{i*1024} {LD} lds")
    a.lab("L_nokv")
    for x in lset[L2:]: a(x)
    a(f"s_waitcnt vmcnt({4*qn if opt('t1', 0) else 0})"); a("s_barrier")
    stamp(a, 3)
    a("s_branch L_attn")

    a.lab("L_compute")
    CPF = opt("codepf", 2)
    if CPF:
        a("s_getpc_b64 s[62:63]")
        a.lab("L_pc")
        if CPF == 1:
            a("s_lshr_b32 s64, s2, 3"); a("s_cmp_eq_u32 s64, 1"); a("s_cbranch_scc0 L_nocpf")
            a("v_lshlrev_b32 v20, 7, v0")
        else:
            a(f"s_cmp_eq_u32 s{sW}, 2"); a("s_cbranch_scc0 L_nocpf")
            a("s_lshr_b32 s64, s2, 3"); a("s_lshl_b32 s64, s64, 7")
            a("v_and_b32 v20, 15, v1"); a("v_lshlrev_b32 v20, 12, v20"); a("v_add_u32 v20, s64, v20")
        a(f"s_sub_u32 s62, s62, L_pc-{K}"); a("s_subb_u32 s63, s63, 0")
        a(f"v_min_u32 v20, L_code_end-{K}-4, v20")
        a("v_mov_b32 v21, s63")
        a("v_add_co_u32 v20, vcc, s62, v20")
        a("s_nop 1")
        a("v_addc_co_u32 v21, vcc, 0, v21, vcc")
        a("global_load_dword v255, v[20:21], off")
        a.lab("L_nocpf")
    a("v_lshrrev_b32 v16, 5, v1")
    a("v_and_b32 v17, 31, v1")
    a("v_lshrrev_b32 v18, 1, v17"); a("v_and_b32 v18, 7, v18")
    a(f"s_lshl_b32 s62, s{sW}, 12"); a("s_add_u32 s62, s62, 32768")
    a("v_lshlrev_b32 v19, 7, v17"); a("v_add_u32 v19, s62, v19")
    for t in range(4):
        a(f"v_add_u32 v20, {2*t}, v16"); a("v_xor_b32 v20, v20, v18")
        a(f"v_lshl_add_u32 v{vXA+t}, v20, 4, v19")
        a(f"v_add_u32 v{vXA+4+t}, 0x10000, v{vXA+t}")
    a("v_bfe_u32 v18, v1, 2, 2")
    a("v_lshl_add_u32 v19, v16, 3, v18"); a("v_lshlrev_b32 v19, 7, v19")
    a("v_bfe_u32 v20, v1, 4, 1"); a("v_lshlrev_b32 v20, 1, v20")
    a("v_bfe_u32 v21, v1, 1, 1"); a("v_add_u32 v20, v20, v21")
    a("v_bfe_u32 v21, v1, 3, 1"); a("v_lshl_or_b32 v20, v21, 2, v20")
    a("v_lshl_add_u32 v19, v20, 4, v19")
    a("v_and_b32 v20, 1, v1"); a("v_lshl_add_u32 v19, v20, 3, v19")
    a(f"v_add_u32 v{vWA}, 32768, v19"); a(f"v_xor_b32 v{vWA+1}, 64, v{vWA}")
    a(f"v_add_u32 v{vWA+2}, 0x10000, v{vWA}"); a(f"v_add_u32 v{vWA+3}, 0x10000, v{vWA+1}")
    a(f"v_lshlrev_b32 v{vGA}, 4, v16"); a(f"v_add_u32 v{vGA}, 28672, v{vGA}")
    ids()
    roles()
    a(f"s_lshl_b32 s66, s{sR16}, 2"); a(f"s_add_u32 s66, s66, s{sW}")
    a("s_lshl_b32 s62, s64, 8"); a("s_add_u32 s62, s62, s66"); a("s_add_u32 s62, s62, 2048")
    a(f"s_xor_b32 s64, s{sI}, 2"); a("s_and_b32 s64, s64, 3"); a("s_add_u32 s64, s64, s22"); a("s_lshl_b32 s64, s64, 8"); a("s_add_u32 s64, s64, s66")
    a("s_lshl_b32 s24, s62, 11"); a("s_lshl_b32 s25, s62, 10"); a(f"s_add_u32 s25, s25, {WS_Q:#x}")
    a("s_lshl_b32 s26, s64, 11"); a("s_lshl_b32 s27, s64, 10"); a(f"s_add_u32 s27, s27, {WS_Q:#x}")
    a("s_mov_b32 s28, 0x10000"); a("s_mov_b32 s29, 0x20000")
    a(f"s_cmp_lt_u32 s{sI}, 4")
    a("s_cselect_b32 s24, s24, s25"); a("s_cselect_b32 s25, s29, s28")
    a("s_cselect_b32 s26, s27, s26"); a("s_cselect_b32 s27, s28, s29")
    a("s_cselect_b32 s64, 2048, 0")
    a("s_lshl_b32 s62, s65, 8"); a("s_add_u32 s62, s62, s66"); a("s_add_u32 s62, s62, s64")
    a("s_lshl_b32 s28, s62, 11"); a("s_add_u32 s29, s28, 0x40000")
    a(f"s_mov_b32 s32, {QSCALE:#x}")
    a("v_mov_b32 v0, 0")
    a("s_waitcnt lgkmcnt(0)")
    common_srds()
    for i in range(4): a(f"v_mov_b32 v{20+i}, 0")
    a("v_mov_b32 v24, 1")
    a(f"s_lshl_b32 s62, s{sW}, 8"); a("s_add_u32 s62, s62, s2"); a("s_sub_u32 s62, s62, 768")
    a("s_cmp_lt_u32 s62, 8"); a("s_cbranch_scc0 L_noinit")
    a("s_lshl_b32 s62, s2, 13"); a(f"s_add_u32 s62, s62, {WS_FL:#x}"); a("s_add_u32 s63, s62, 4096")
    for i in range(8): a(f"buffer_store_dwordx4 v[20:23], v{vL16}, {S(sWS)}, s{62+(i>>2)} offen offset:{(i&3)*1024} {SC}")
    a("s_lshl_b32 s62, s2, 5")
    a("s_waitcnt vmcnt(0)")
    a("s_mov_b64 exec, 1")
    a(f"buffer_store_dword v24, v20, {S(sDBG)}, s62 offen {SC}")
    a("s_mov_b64 exec, -1")
    a.lab("L_noinit")

    def chunk_of(m): return m if m < 8 else 8 + ((m - 8) >> 1)
    def reads(m):
        c = chunk_of(m); slot = c & 3; b = m & 1; L = []
        wp = slot*32768 + 16384 if m < 8 else wpos(c, (m - 8) & 1)
        for t in range(4):
            if m < 8:
                L.append(f"ds_read_b128 {vr(XR + 4*(4*m+t), 4)}, v{vXA + 4*(slot>>1) + t} offset:{(slot&1)*32768}")
            for cc in range(2):
                for u in range(2):
                    L.append(f"ds_read_b64_tr_b16 {vr(WF[b]+8*t+4*cc+2*u,2)}, v{vWA+2*(wp>>16)+cc} offset:{(wp & 0xffff) + (16*t+4*u)*128}")
        return L
    def greads(m): return [f"ds_read_b128 {vr(GF+4*t,4)}, v{vGA} offset:{(4*m+t)*32}" for t in range(4)]
    def dots(m): return [f"v_dot2_f32_bf16 v0, v{XR+16*m+i}, v{GF+i}, v0" for i in range(16)]
    def mfmas(m, vphase):
        b = m & 1; L = []
        for t in range(4):
            x = vr(XR + 4*(4*(m & 7)+t), 4)
            for cc in range(2):
                d = vr(ACC[cc], 16); c0 = "0" if (m & 7) == 0 and t == 0 else d
                w = vr(WF[b]+8*t+4*cc, 4)
                if opt("x_m16"):
                    x2 = vr(XR + 4*(4*(m & 7)+(t^1)), 4)
                    d1 = vr(ACC[cc]+8*(t&1), 4); d2 = vr(ACC[cc]+8*(t&1)+4, 4)
                    z = (m & 7) == 0 and t < 2
                    L.append(f"v_mfma_f32_16x16x32_bf16 {d1}, {w}, {x}, {0 if z else d1}\n    v_mfma_f32_16x16x32_bf16 {d2}, {w}, {x2}, {0 if z else d2}")
                    continue
                L.append(f"v_mfma_f32_32x32x16_bf16 {d}, {x}, {w}, {c0}" if (m >> 3) == vphase else f"v_mfma_f32_32x32x16_bf16 {d}, {w}, {x}, {c0}")
        return L
    ST = opt("st", "sc1")
    def stores3():
        for i in range(4):
            a(f"buffer_store_dwordx4 {vr(208+4*i,4)}, v5, {S(sWS)}, s26 offen {ST}")
            a("s_add_u32 s26, s26, s27")
    def epilogue(ph, pk, vphase):
        a("s_nop 6" if ph == 0 else "s_nop 10")
        if ph == 2 or (ph == 0 and vphase == 1):
            a(f"s_cmp_lt_u32 s{sI}, 4"); a(f"s_cbranch_scc{1 if ph == 0 else 0} L_noscale{ph}")
            for r in range(32): a(f"v_mul_f32 v{ACC[0]+r}, s32, v{ACC[0]+r}")
            a.lab(f"L_noscale{ph}")
        for cc in range(2):
            for p in range(2):
                for i in range(4): a(f"v_cvt_pk_bf16_f32 v{pk+i}, v{ACC[cc]+8*p+2*i}, v{ACC[cc]+8*p+2*i+1}")
                if ph == vphase: a(f"buffer_store_dwordx4 {vr(pk,4)}, v3, {S(sWS)}, s{28+cc} offen offset:{p*512} {ST}")
                elif ph < 2:
                    a(f"buffer_store_dwordx4 {vr(pk,4)}, v4, {S(sWS)}, s24 offen {ST}")
                    a("s_add_u32 s24, s24, s25")
                pk += 4
        a("s_nop 1")
    def publishF1(stage, t1):
        a(f"v_mov_b32 v{t1}, {stage}")
        a("s_lshl_b32 s62, s2, 7"); a(f"s_add_u32 s62, s62, {WS_FL:#x}")
        a("s_mov_b64 exec, 1")
        a(f"buffer_store_dword v{t1}, v{vL16}, {S(sWS)}, s62 offen {SC}")
        a("s_mov_b64 exec, -1")
    def first_step(x):
        regs = [int(r) for r in re.findall(r"\bv(\d+)", x)]
        hi = max([r for r in regs if r >= XR], default=0)
        return 16 + (hi - XR)//16 + 1 if hi else 16
    plan = {m: [[] for _ in range(8)] for m in range(24)}
    pos = 16*8
    for x in attn_setup():
        pos = max(pos, first_step(x)*8)
        while len(plan[pos >> 3][pos & 7]) >= (3 if pos < 21*8 else 4): pos += 1
        plan[pos >> 3][pos & 7].append(x)
    staddr = ["v_and_b32 v2, 0x33, v1", "v_bfe_u32 v3, v1, 2, 1", "v_lshl_or_b32 v2, v3, 3, v2", "v_bfe_u32 v3, v1, 3, 1",
              "v_lshl_or_b32 v2, v3, 2, v2", "v_lshlrev_b32 v2, 4, v2", f"v_mov_b32 v6, s{sI}", "v_cmp_gt_u32 vcc, 4, v6",
              "v_and_b32 v3, 15, v1", "v_lshlrev_b32 v3, 4, v3", f"v_cndmask_b32 v4, v{vL16}, v2, vcc", f"v_cndmask_b32 v5, v2, v{vL16}, vcc",
              "v_lshrrev_b32 v2, 5, v1", "v_lshl_add_u32 v3, v2, 8, v3", "v_bfe_u32 v2, v1, 4, 1", "v_lshl_add_u32 v3, v2, 17, v3", "v_add_u32 v3, 1024, v3"]
    for k, x in enumerate(staddr): plan[7][4 + k*4//len(staddr)].append(x)
    gate = ["v_mov_b32 v113, v0", "v_and_b32 v119, 31, v1", f"s_lshl_b32 s62, s{sW}, 7", "v_permlane32_swap_b32 v0, v113", "v_add_f32 v113, v0, v113",
            f"v_mul_f32 v113, {f2u(-1.4426950408889634):#x}, v113", "v_exp_f32 v113, v113", "s_add_u32 s62, s62, 29696", "v_add_f32 v113, 1.0, v113",
            "v_rcp_f32 v113, v113", "v_lshl_add_u32 v119, v119, 2, s62", "ds_write_b32 v119, v113"]
    for k, x in enumerate(gate): plan[8][k*6//len(gate)].append(x)
    ls = late_setup()
    for k, x in enumerate(ls):
        p = 9*8 + k*48//len(ls); plan[p >> 3][p & 7].append(x)
    pollI = f"buffer_load_dword v114, v115, {S(sDBG)}, 0 offen {PP}"
    def step(m, vphase):
        tag = "v" if vphase == 0 else "q"
        if m >= 8 and m % 2 == 0: stamp(a, 2 + (m-8)//2, mode=3)
        if m == 7: stamp(a, 1, mode=3)
        a("s_waitcnt lgkmcnt(0)" if m != 5 else "s_waitcnt vmcnt(0) lgkmcnt(0)")
        mm = mfmas(m, vphase)
        r = reads(m+1) if m < 23 else []
        fill = [[] for _ in range(8)]
        if m < 8:
            d = dots(m) if not opt("x_nodot") else []
            for g in range(4): fill[g] += d[4*g:4*g+4]
            if m < 7: fill[4] += greads(m+1)
        for g in range(8): fill[g] += plan[m][g]
        nr = (len(r) + 4) // 5
        for i in range(8):
            a(mm[i])
            if i == 0:
                if m == PUB1:
                    a("s_waitcnt vmcnt(0)")
                    a(f"s_cmp_lg_u32 s{sW}, 0"); a(f"s_cbranch_scc1 L_noinitchk{tag}")
                    spin(pollI, 1, cnt="s65", reg=114, cmp="v_cmp_eq_u32")
                    a.lab(f"L_noinitchk{tag}")
                if m <= 7: stamp(a, m+2, mode=7)
                if m <= 7 or m in (9, 11, 13, 17): a("s_barrier")
                if m == PUB1:
                    a(f"s_cmp_lg_u32 s{sW}, 0"); a(f"s_cbranch_scc1 L_nopub1{tag}")
                    publishF1(1, 114)
                    a.lab(f"L_nopub1{tag}")
                if m == 11: gread(118)
            if i < 5:
                for x in r[i*nr:(i+1)*nr]: a(x)
            for x in fill[i]: a(x)
        if m == 7:
            stamp(a, 3)
            epilogue(0, WF[1], vphase)
            a("v_and_b32 v115, 7, v1"); a("v_lshlrev_b32 v115, 5, v115")
            a(f"s_cmp_lg_u32 s{sW}, 0"); a(f"s_cbranch_scc1 L_noip{tag}")
            a(pollI)
            a.lab(f"L_noip{tag}")
        if m == 15:
            epilogue(1, WF[1], vphase)
    stamp(a, 1)
    a(f"s_cmp_lt_u32 s{sI}, 2"); a("s_cbranch_scc0 L_p12q")
    for vphase in (0, 1):
        if vphase: a.lab("L_p12q")
        a("s_barrier")
        stamp(a, 2, True)
        for r in reads(0) + greads(0): a(r)
        for m in range(16): step(m, vphase)
        if vphase == 0: a("s_branch L_p3")
    a.lab("L_p3")
    for m in range(16, 24): step(m, -1)
    stamp(a, 4)
    a("s_waitcnt vmcnt(0)")
    a("s_lshl_b32 s62, s2, 7"); a(f"s_lshl_b32 s63, s{sW}, 2"); a("s_add_u32 s62, s62, s63"); a(f"s_add_u32 s62, s62, {WS_F2:#x}")
    a("v_mov_b32 v114, 1")
    a("s_mov_b64 exec, 1")
    a(f"buffer_store_dword v114, v{vL16}, {S(sWS)}, s62 offen {SC}")
    a("s_mov_b64 exec, -1")
    epilogue(2, 208, -1)
    hold(15)
    a("s_barrier")

    a.lab("L_attn")
    OA2, CM2 = 80, 96
    PF, PS = [80, 96], [48, 64]
    OF1, OF2 = 208, 16
    def rdK(buf, addr, off): a(f"ds_read_b128 {vr(KB[buf],4)}, v{addr} offset:{off}")
    def rdV(buf, addr, off):
        a("s_mov_b64 exec, s[22:23]")
        a(f"ds_read_b128 {vr(VB[buf][0],4)}, v{addr} offset:{off}")
        a(f"ds_read_b128 {vr(VB[buf][1],4)}, v{addr} offset:{off+512}")
        a("s_mov_b64 exec, -1")
    def mfma(dst, k, q, c): a(f"v_mfma_f32_32x32x16_bf16 {vr(dst,16)}, {vr(k,4)}, {vr(q,4)}, {c}")
    def smf(o, vreg, sreg): a(f"v_smfmac_f32_32x32x32_bf16 {vr(o,16)}, {vr(vreg,4)}, {vr(sreg,8)}, v{vIDX}")
    def halves_max():
        a(f"v_mov_b32 v{vT}, v{vM}")
        a("s_nop 1")
        a(f"v_permlane32_swap_b32 v{vM}, v{vT}")
        a(f"v_max_f32 v{vM}, v{vM}, v{vT}")
    def rowmax(s):
        a(f"v_max_f32 v{vM}, v{s}, v{s+1}")
        for i in range(2, 16, 2): a(f"v_max3_f32 v{vM}, v{s+i}, v{s+i+1}, v{vM}")
        halves_max()
    uidf = [0]
    def check(o, br):
        a(f"v_add_f32 v{vT}, abs(v{o}), v{o+8}")
        for i in range(1, 8): a(f"v_add_f32 v{vT}, abs(v{o+i}), v{vT}")
        a(f"v_cmp_gt_f32 vcc, 0x71800000, v{vT}")
        a("s_cmp_eq_u64 vcc, -1"); a(f"s_cselect_b32 s62, 0, {1 << br}"); a("s_or_b32 s8, s8, s62")
    def emit(o, soff, br=None):
        a(f"v_rcp_f32 v{vT2}, v{o+8}")
        a("s_nop 0")
        for i in range(8): a(f"v_mul_f32 v{o+i}, v{vT2}, v{o+i}")
        for i in range(4): a(f"v_cvt_pk_bf16_f32 v{PK[0]+i}, v{o+2*i}, v{o+2*i+1}")
        for i in range(4): a(f"v_min_u32 v{PK[0]+i}, -2, v{PK[0]+i}")
        if br is not None: a(f"s_bitcmp1_b32 s8, {br}"); a(f"s_cbranch_scc1 L_nost{br}")
        a(f"buffer_store_dwordx4 {vr(PK[0],4)}, v{vL16}, {S(sWS)}, {soff} offen {SC}")
        if br is not None: a.lab(f"L_nost{br}")
    def copy(srdw, voff, lds, src):
        a(f"s_add_u32 m0, {lds[0]}, {lds[1]}"); a(f"s_add_u32 s63, {src[0]}, {src[1]}")
        a(f"buffer_load_dwordx4 v{voff}, {S(srdw)}, s63 offen {LD} lds")
    def wo_copy(n0, k):
        copy(sWOB if n0 < 64 else sWOA, vWo, ("s19", (n0 + k)*1024), ("s18", ((n0 & 63)+k)*8192))
    def oloads(dst, sb):
        a(f"s_add_u32 s63, s{sb}, 4096")
        for i in range(8):
            a(f"buffer_load_dwordx4 {vr(dst+4*i,4)}, v{vL16}, {S(sWS)}, s{sb if i < 4 else 63} offen offset:{(i&3)*1024} {LD}")
    pollO = [f"buffer_load_dword v{vPoll}, v{vFA2}, {S(sWS)}, s{r} offen {SC}" for r in (20, 10)]
    def wread(dst, i):
        for c in range(2):
            for u in range(2): a(f"ds_read_b64_tr_b16 {vr(dst+4*c+2*u,2)}, v{vPW0+c} offset:{i*2048+u*1024}")
    def pmf(acc, w, o, i, c):
        d = vr(acc[c], 16)
        return f"v_mfma_f32_32x32x16_bf16 {d}, {vr(w+4*c,4)}, {vr(o+4*i,4)}, {'0' if i == 0 else d}"
    def chk(t, o, i, c): return f"v_max3_u32 v{t}, v{o+4*i+2*c}, v{o+4*i+2*c+1}, {0 if i == 0 and c == 0 else 'v%d' % t}"

    P = 64
    T = []
    for u in range(64): T.append((QB, CM, OA, vKb if u < 32 else vK2, vVb if u < 32 else vV2, (u*2048) & 0xffff))
    for t in range(9): T.append((QA, CD if t == 0 else (CM2 if t < 8 else CF), OA2, vKa, vVa, (8-t)*2048))
    N = len(T)
    stamp(a, 5, True)
    hold(1)
    a(f"ds_read_b128 {vr(QB,4)}, v{vKb}")
    rdK(0, vL16, 0); rdK(1, vL16, 2048); rdV(0, vVb, 0)
    a(f"v_mov_b32 v{vKb}, v{vL16}")
    a("s_waitcnt lgkmcnt(3)")
    mfma(SB[0], KB[0], QB, "0")
    a(f"s_lshl_b32 s19, s{sW}, 13"); a("s_and_b32 s18, s19, 0x8000"); a("s_add_u32 s18, s18, s19"); a("s_add_u32 s18, s18, s21")
    a(f"s_mov_b32 s3, {WS_F2:#x}"); a("s_add_u32 s9, s15, 32768")
    a(f"v_add_u32 v{vK2}, 0x10000, v{vL16}"); a(f"v_add_u32 v{vV2}, 0x10000, v{vVb}")
    a("s_nop 3")
    rowmax(SB[0])
    for r in range(16): a(f"v_sub_f32 v{CM+r}, 0, v{vM}")
    a("s_nop 1")
    mfma(SB[0], KB[0], QB, vr(CM, 16))
    a("s_waitcnt lgkmcnt(0)")
    stamp(a, 1, True, mode=1)
    if Cfg.stamp and opt("smode") == 5:
        a("s_memtime s[72:73]"); a("s_memrealtime s[74:75]"); a("s_waitcnt lgkmcnt(0)")
    a("s_nop 9")
    X = {u: [] for u in range(N)}; SIDE = {u: {} for u in range(N)}
    def at(u, f): X[u].append(f)
    U1 = opt("u1", 8)
    at(U1-3, lambda: a(pollF1b))
    at(U1, lambda: spin(pollF1b, 1))
    if opt("t1", 0): at(U1, lambda: a("s_barrier"))
    for k in range(8): at(U1+k, lambda k=k: copy(sWS, vL16, ("s19", 65536 + k*1024), ("s18", k*1024)))
    def marks():
        for i in range(4): a(f"v_mov_b32 v{PK[0]+i}, -1")
        a(f"buffer_store_dwordx4 {vr(PK[0],4)}, v{vL16}, {S(sWS)}, s15 offen {SC}")
        a(f"buffer_store_dwordx4 {vr(PK[0],4)}, v{vL16}, {S(sWS)}, s9 offen {SC}")
    at(opt("um", 16), marks)
    def st3():
        a(f"s_cmp_ge_u32 s{sW}, 4"); a("s_cbranch_scc1 L_nost3"); stores3(); a.lab("L_nost3")
    at(opt("um", 16)+1, st3)
    U2 = opt("u2", 24)
    def t2():
        a("s_waitcnt vmcnt(0)"); a("s_barrier")
        a(f"s_and_b32 s62, s{sW}, 3"); a("s_cbranch_scc0 L_t2x")
        a.lab("L_t2r")
    at(U2, t2)
    at(U2+1, lambda: (a(f"s_lshl_b32 s19, s{sW}, 12"), a(f"s_lshl_b32 s18, s{sW}, 15"), a(f"s_lshl_b32 s62, s{sJ}, 7"), a("s_add_u32 s18, s18, s62")))
    U3 = opt("u3", 42)
    at(U3-3, lambda: a(pollF1A))
    def win():
        spin(pollF1A, 2)
        a(f"s_lshl_b32 s12, s{sB}, 14"); a("s_add_u32 s12, s12, s19")
        a("s_cmp_lt_u32 s12, 16384"); a("s_cselect_b32 s62, 0, 16384")
        a("s_add_u32 s12, s12, s13"); a("s_sub_u32 s12, s12, s62")
        a(f"buffer_load_dwordx4 {vr(QA,4)}, v{vL16}, {S(sWS)}, s11 offen {LD}")
        a(f"v_and_b32 v{vFA2}, 7, v1"); a(f"v_lshlrev_b32 v{vFA2}, 10, v{vFA2}")
        a("s_add_u32 s10, s20, 32768")
    at(U3, win)
    for k in range(4): at(U3+1+k//2, lambda k=k: copy(sWS, vL16, ("s19", 131072 + k*1024), ("s12", k*1024)))
    for k in range(4): at(U2+11+k, lambda k=k: wo_copy(0, k))
    U4 = 48
    at(U4, lambda: (a("s_waitcnt vmcnt(0)"), a("s_barrier"),
                    a(f"ds_read_b128 v[24:27], v{vKa} offset:{8*2048}")))
    for k in range(8): at(U4+1+k, lambda k=k: wo_copy(32 + 32*(k >> 2), k & 3))
    SIDE[U4+1][12] = [f"v_mfma_f32_32x32x16_bf16 {vr(OA2,16)}, v[24:27], {vr(QA,4)}, {vr(CD,16)}"]
    at(U4+3, lambda: rowmax(OA2))
    pre = [f"v_sub_f32 v{CD+r}, v{CD+r}, v{vM}" for r in range(16)] + [f"v_sub_f32 v{CM2+r}, 0, v{vM}" for r in range(16)] \
        + [f"v_mov_b32 v{OA2+r}, 0" for r in range(9)] + [f"v_sub_f32 v{CF+r}, v{CF+r}, v{vM}" for r in range(16)]
    for k, x in enumerate(pre): at(U4+4+k//6, lambda x=x: a(x))
    UB = opt("ub", 63)
    at(UB, lambda: (a("s_waitcnt vmcnt(0)"), a("s_barrier")))
    for k in range(4): at(UB+k//2, lambda k=k: wo_copy(96, k))
    at(65, lambda: (check(OA, 1), emit(OA, "s9", 1)))
    UO = opt("uo", 71)
    at(UO-2, lambda: a(pollO[1]))
    def getB():
        a("s_waitcnt vmcnt(0)")
        a(f"v_cmp_ne_u32 vcc, -1, v{vPoll}")
        a(f"v_mov_b32 v{OF1}, -1")
        a("s_cmp_eq_u64 vcc, -1"); a("s_cbranch_scc0 L_noB")
        oloads(OF1, 10)
        a.lab("L_noB")
    at(UO, getB)
    PS_ = {0: [{0: 1, 14: 0}], 1: [{0: 3, 8: 2}, {0: 1, 8: 0}], 2: [{0: 3, 8: 2}, {0: 1, 14: 0}], 3: [{0: 3}, {0: 2}, {0: 1}, {0: 0}],
           4: [{0: 3, 4: 2, 9: 1, 14: 0}], 5: [{0: 3}, {0: 2}, {0: 1, 14: 0}], 6: [{0: 2}, {0: 1, 14: 0}], 7: [{0: 2, 8: 1, 14: 0}],
           8: [{0: 3, 14: 2}, {0: 1, 14: 0}], 9: [{0: 1, 12: 0}]}[opt("psch", 0)]
    for u in range(N):
        if u and u % 8 == 0 and u < 72: stamp(a, 1 + u//8, mode=1)
        STL = [int(x) for x in str(opt("stl", "0")).split(":")]
        if u in STL: stamp(a, 1 + STL.index(u), mode=10)
        cur, prev = SB[u & 1], SB[(u+1) & 1]
        def e(i):
            pat = PS_[u % len(PS_)]
            if i in pat: a(f"s_setprio {pat[i]}")
            a(f"v_exp_f32 v{cur+i}, v{cur+i}")
            for x in SIDE[u].get(i, []): a(x)
        e(0); e(1)
        if u: smf(T[u-1][2], VB[(u-1) & 1][1], prev+8)
        a("s_waitcnt lgkmcnt(0)")
        if u+2 < N: rdK(u & 1, T[u+2][3], T[u+2][5])
        if u+1 < N: rdV((u+1) & 1, T[u+1][4], T[u+1][5])
        for f in X[u]: f()
        e(2); e(3); e(4)
        if u+1 < N:
            if P <= u < P+7:
                a(f"s_cmp_eq_u32 s7, {u-P}"); a(f"s_cbranch_scc1 L_A_off{u-P}")
                a.lab(f"L_A_mid{u-P}")
            mfma(prev, KB[(u+1) & 1], T[u+1][0], vr(T[u+1][1], 16))
        for i in range(5, 10): e(i)
        smf(T[u][2], VB[u & 1][0], cur)
        for i in range(10, 16): e(i)
    stamp(a, 6)
    if Cfg.stamp and opt("smode") == 5:
        a("s_memtime s[76:77]"); a("s_memrealtime s[78:79]"); a("s_waitcnt lgkmcnt(0)")
    a("s_nop 1")
    smf(OA2, VB[(N-1) & 1][1], SB[(N-1) & 1]+8)
    WR = lambda i: 144 + 8*i
    for i in range(2, 5): wread(WR(i), i)
    check(OA2, 0)
    emit(OA2, "s15", 0)
    hold(2)
    stamp(a, 8)
    stamp(a, 1, mode=2)
    a("s_cmp_lg_u32 s8, 0"); a("s_cbranch_scc1 L_exact")
    for i in (0, 1, 5, 6, 7): wread(WR(i), i)
    a("s_waitcnt vmcnt(1)")
    a.lab("L_exact_done")
    for i in range(8):
        for c in range(2): a(chk(vT, OF1, i, c))
    a(f"v_cmp_ne_u32 vcc, -1, v{vT}")
    a("s_cmp_eq_u64 vcc, -1"); a("s_cbranch_scc0 L_OB_get")
    a.lab("L_OB_ok")
    stamp(a, 2, mode=2)
    for i in range(8):
        if i in (0, 5): a(f"s_waitcnt lgkmcnt({12 if i == 0 else 0})")
        for c in range(2): a(pmf(PF, WR(i), OF1, i, c))
        if i == opt("pp", 4): a(pollO[0])
    a(f"v_add_u32 v{vPW0}, 0x10000, v{vPW0}"); a(f"v_add_u32 v{vPW1}, 0x10000, v{vPW1}")
    stamp(a, 9)
    stamp(a, 4, mode=2)
    a("s_barrier")
    for i in range(8): wread(WR(i), i)
    stamp(a, 5, mode=2)
    spin(pollO[0], -1, cnt="s64", cmp="v_cmp_ne_u32")
    stamp(a, 6, mode=2)
    oloads(OF2, 20)
    a(f"v_sub_f32 v{vT}, 1.0, v{vG}")
    for c in range(2):
        for r in range(16): a(f"v_mul_f32 v{PF[c]+r}, v{vT}, v{PF[c]+r}")
    a(f"s_mov_b32 s64, {SPIN}")
    a("s_branch L_O_go")
    a.lab("L_O_retry")
    oloads(OF2, 20)
    a.lab("L_O_go")
    for i in range(8):
        a(f"s_waitcnt vmcnt({7-i}) lgkmcnt(0)")
        if i == 0: stamp(a, 7, mode=2)
        for c in range(2): a(pmf(PS, WR(i), OF2, i, c))
        for c in range(2): a(chk(vT, OF2, i, c))
    a(f"v_cmp_ne_u32 vcc, -1, v{vT}")
    a("s_sub_u32 s64, s64, 1"); a("s_cbranch_scc1 L_O_ok")
    a("s_cmp_eq_u64 vcc, -1"); a("s_cbranch_scc0 L_O_retry")
    a.lab("L_O_ok")
    stamp(a, 8, mode=2)
    a("s_nop 6")
    for c in range(2):
        for g in range(4):
            for r in range(4*g, 4*g+4): a(f"v_fmac_f32 v{PF[c]+r}, v{vG}, v{PS[c]+r}")
            a(f"ds_write_b128 v{vPWR}, {vr(PF[c]+4*g,4)} offset:{(c*4+g)*1088}")
    a(f"v_add_u32 v{vPWR}, {131072}, v{vPRD}")
    a("s_waitcnt lgkmcnt(0)"); a("s_barrier")
    stamp(a, 9, True, mode=2)
    for kq in range(4):
        for h in range(2):
            a(f"ds_read_b128 {vr(16+kq*8+h*4,4)}, v{vPRD if kq < 3 else vPWR} offset:{(kq*PW if kq < 3 else 0) + h*512}")
    a("s_waitcnt lgkmcnt(4)")
    for i in range(8): a(f"v_add_f32 v{16+i}, v{16+i}, v{24+i}")
    a("s_waitcnt lgkmcnt(0)")
    for i in range(8): a(f"v_add_f32 v{32+i}, v{32+i}, v{40+i}")
    for i in range(8): a(f"v_add_f32 v{16+i}, v{16+i}, v{32+i}")
    for i in range(4): a(f"v_cvt_pk_bf16_f32 v{48+i}, v{16+2*i}, v{16+2*i+1}")
    a(f"buffer_store_dwordx4 v[48:51], v{vOUT}, {S(sOUT)}, s33 offen {opt('ost', 'sc1')}")
    if HOLD >= 0:
        hold(3)
        a.lab("L_hold")
        a("s_memrealtime s[62:63]"); a("s_waitcnt lgkmcnt(0)")
        a("s_sub_u32 s62, s62, s72"); a("s_cmp_lt_u32 s62, 6000"); a("s_cbranch_scc1 L_hold")
    if Cfg.stamp:
        a("s_waitcnt vmcnt(0)")
        a("s_memtime s[96:97]"); a("s_waitcnt lgkmcnt(0)")
        stamp_out(a, 0, 10, sWS, sW, 8)
        a("s_nop 1"); a("v_mov_b32 v1, s96"); a(f"buffer_store_dword v1, v0, {S(sWS)}, s94 offen offset:40")
    a.lab("L_end")
    a("s_endpgm")

    a.lab("L_OB_get")
    a(pollO[1])
    spin(pollO[1], -1, cnt="s64", cmp="v_cmp_ne_u32")
    a(f"s_mov_b32 s65, {SPIN}")
    a.lab("L_OB_retry")
    oloads(OF1, 10)
    a("s_waitcnt vmcnt(0)")
    for i in range(8):
        for c in range(2): a(chk(vT, OF1, i, c))
    a(f"v_cmp_ne_u32 vcc, -1, v{vT}")
    a("s_sub_u32 s65, s65, 1"); a("s_cbranch_scc1 L_OB_ok")
    a("s_cmp_eq_u64 vcc, -1"); a("s_cbranch_scc0 L_OB_retry")
    a("s_branch L_OB_ok")
    a.lab("L_t2x")
    a(f"v_lshlrev_b32 v{vT2}, 10, v1")
    a(f"s_and_b32 s64, s{sRB}, 7"); a("s_lshl_b32 s64, s64, 16"); a(f"s_lshl_b32 s63, s{sJ}, 7"); a("s_add_u32 s64, s64, s63")
    a(f"s_cmp_eq_u32 s{sW}, 0"); a("s_cbranch_scc0 L_t2y")
    publishF1(2, vT)
    a(f"buffer_load_dword v243, v{vT2}, {S(sWOA)}, s64 offen")
    a("s_branch L_t2r")
    a.lab("L_t2y")
    a(f"buffer_load_dword v243, v{vT2}, {S(sWOB)}, s64 offen")
    a("s_branch L_t2r")
    for t in range(7):
        a.lab(f"L_A_off{t}")
        a("s_nop 7")
        for r in range(16): a(f"v_mov_b32 v{CM2+r}, s5")
        a("s_nop 1")
        a(f"s_branch L_A_mid{t}")
    a.lab("L_exact")
    a("s_waitcnt lgkmcnt(0)")
    a(f"s_sub_u32 s6, s{sQT}, 8"); a("s_max_i32 s6, s6, 0"); a(f"s_add_u32 s7, s{sQT}, 1")
    a("s_movk_i32 s11, 4096"); a("s_movk_i32 s12, 8192")
    a("s_bitcmp1_b32 s8, 0")
    a("s_cselect_b32 s4, s13, s14"); a("s_cselect_b32 s6, s6, 0"); a("s_cselect_b32 s7, s7, 64")
    a("s_cselect_b32 s11, 0, s11"); a("s_cselect_b32 s12, 0x100, s12"); a("s_cselect_b32 s16, s15, s9")
    a("s_cselect_b64 vcc, -1, 0"); a("s_cselect_b32 s62, 2, 0"); a("s_and_b32 s8, s8, s62")
    for i in range(4): a(f"v_cndmask_b32 v{24+i}, v{QB+i}, v{QA+i}, vcc")
    a(f"v_mov_b32 v{vM}, s5"); a(f"v_mov_b32 v{vKb}, s5")
    for r in range(16): a(f"v_mov_b32 v{CM+r}, 0"); a(f"v_mov_b32 v{OA+r}, 0")
    for ps in range(2):
        a("s_mov_b32 s17, s6")
        a.lab(f"L_exact{ps}")
        a("s_lshl_b32 s62, s17, 11"); a("s_add_u32 s62, s62, s4")
        a(f"buffer_load_dwordx4 {vr(KB[0],4)}, v{vL16}, {S(sWS)}, s62 offen {LD}")
        if ps:
            a("s_mov_b64 exec, s[22:23]")
            a(f"buffer_load_dwordx4 {vr(VB[0][0],4)}, v{vVb}, {S(sWS)}, s62 offen {LD}")
            a(f"buffer_load_dwordx4 {vr(VB[0][1],4)}, v{vVb}, {S(sWS)}, s62 offen offset:512 {LD}")
            a("s_mov_b64 exec, -1")
        a(f"s_sub_u32 s62, s{sQT}, s17"); a("s_lshl_b32 s62, s62, 5"); a("s_add_u32 s62, s62, s11")
        a(f"v_add_u32 v{vT2}, s62, v{vQH}")
        a("s_waitcnt vmcnt(0)")
        mfma(SB[0], KB[0], 24, vr(CM, 16))
        a("s_nop 11")
        for r in range(16):
            a(f"v_subrev_u32 v{vT}, {(r & 7) + 16*(r >> 3)}, v{vT2}")
            a(f"v_cmp_gt_u32 vcc, s12, v{vT}")
            a("s_nop 1")
            a(f"v_cndmask_b32 v{SB[0]+r}, v{vKb}, v{SB[0]+r}, vcc")
            a(f"v_exp_f32 v{SB[0]+r}, v{SB[0]+r}" if ps else f"v_max_f32 v{vM}, v{vM}, v{SB[0]+r}")
        if ps:
            a("s_nop 1")
            smf(OA, VB[0][0], SB[0]); smf(OA, VB[0][1], SB[0]+8)
        a("s_add_u32 s17, s17, 1"); a("s_cmp_lt_u32 s17, s7"); a(f"s_cbranch_scc1 L_exact{ps}")
        if not ps:
            halves_max()
            for r in range(16): a(f"v_sub_f32 v{CM+r}, 0, v{vM}")
    a("s_nop 11")
    emit(OA, "s16")
    a("s_cmp_lg_u32 s8, 0"); a("s_cbranch_scc1 L_exact")
    for i in range(8): wread(WR(i), i)
    a("s_waitcnt lgkmcnt(0)")
    a("s_branch L_exact_done")
    a.lab("L_code_end")
    d = desc(K, 256, 74, 256)
    if Cfg.stamp: d = d.replace("next_free_sgpr 96", "next_free_sgpr 100")
    return a.text(), d

def main(out):
    t, d = gen()
    hdr = f"""; gated_mix(sliding-window MHA, full MHA), one fused launch:
; @launch grid=(256,1,1) block=(512,1,1) lds=163840
.amdgcn_target "amdgcn-amd-amdhsa--gfx950"
"""
    open(out, "w").write(hdr + t + d)

if __name__ == "__main__":
    main(parse_args())
```

```python
import re
from common import *

WS_FL = 16 << 20
WS_F2 = WS_FL + 32768
SC = "sc1"
SPIN = 1 << 17
PW = 16*1088

sX, sWB, sWA, sWS, sWOA, sOUT, sDBG, sWOB = 24, 28, 32, 36, 40, 44, 48, 52
sW, sRB, sJ, sHD, sB, sQT, sR16, sI = 56, 57, 58, 59, 60, 61, 68, 69
S = lambda b: f"s[{b}:{b+3}]"
vXA = 2
vWA = 10
vL16, vGA = 14, 15
WF = [16, 48]
ACC = [80, 96]
GF = 112
XR = 128
vG, QB, QA = 112, 116, 120
vIDX, vKa, vVa, vKb, vVb, vT, vM, vMF, vT2, vQH, vFA, vWo, vFA2 = range(128, 141)
VB = [[144, 148], [152, 156]]
OA = 160
CD, CF = 176, 192
vPoll = 124
KB = [16, 20]
SB = [32, 48]
CM = 64
PK = [244, 248]
OF = [208, 16]
PACC = [[48, 64], [80, 96]]
vPW0, vPW1, vPWR, vPRD, vOUT = 8, 9, 2, 7, 6
QSTG = 152*1024

def gen():
    LD = "sc1"
    PP = opt("ppol", "sc1")
    PUB1 = opt("pub1", 13)
    HOLD = opt("x_hold", -1)
    def hold(k):
        if HOLD == k or (k == 0 and HOLD >= 10): a("s_memrealtime s[72:73]"); a("s_waitcnt lgkmcnt(0)")
    def wpos(c, sb):
        if c == 8: return 3*sb*32768 + 24576
        if c == 12: return (1+sb)*32768 + 24576
        n = 2*(c-9 if c < 12 else c-10) + sb
        return (n//3)*32768 + (n % 3)*8192
    a = A(); K = NAME + "_kernel"; head(a, K)
    a("s_cmp_ge_u32 s2, 256"); a("s_cbranch_scc1 L_end")
    stamp(a, 0)
    hold(0)
    a("s_load_dwordx2 s[4:5], s[0:1], 0")
    a("s_load_dwordx4 s[12:15], s[0:1], 32")
    a("s_load_dwordx4 s[8:11], s[0:1], 8")
    a("s_load_dwordx2 s[6:7], s[0:1], 48")
    a("s_load_dwordx4 s[16:19], s[0:1], 56")
    a("s_load_dwordx2 s[20:21], s[0:1], 72")
    a("v_lshrrev_b32 v2, 6, v0")
    a("v_and_b32 v1, 63, v0")
    a("s_bfe_u32 s62, s2, 0x20003")
    a(f"v_readfirstlane_b32 s{sW}, v2")
    a("s_and_b32 s63, s2, 3"); a("s_lshl_b32 s63, s63, 2"); a(f"s_add_u32 s{sR16}, s63, s62")
    a(f"s_lshr_b32 s{sI}, s2, 5")
    a(f"v_lshlrev_b32 v{vL16}, 4, v1")
    a(f"s_cmp_lt_u32 s{sW}, 4"); a("s_cbranch_scc1 L_compute")

    def ids():
        a(f"s_lshl_b32 s{sRB}, s{sR16}, 1"); a(f"s_and_b32 s62, s{sI}, 1"); a(f"s_add_u32 s{sRB}, s{sRB}, s62")
        a(f"s_and_b32 s{sJ}, s2, 4"); a(f"s_lshr_b32 s62, s{sI}, 1"); a(f"s_add_u32 s{sJ}, s{sJ}, s62")
        a(f"s_and_b32 s{sHD}, s2, 7"); a(f"s_lshl_b32 s{sHD}, s{sHD}, 2"); a("s_bfe_u32 s62, s2, 0x20003"); a(f"s_add_u32 s{sHD}, s{sHD}, s62")
        a(f"s_mov_b32 s{sB}, s{sI}")
        a(f"s_lshl_b32 s{sQT}, s{sB}, 3"); a(f"s_add_u32 s{sQT}, s{sQT}, s{sW}")
    def roles():
        a(f"s_lshr_b32 s64, s{sI}, 1"); a("s_xor_b32 s64, s64, s2"); a("s_and_b32 s64, s64, 1"); a("s_lshl_b32 s64, s64, 1")
        a(f"s_and_b32 s65, s{sI}, 1"); a("s_add_u32 s65, s65, s64"); a("s_xor_b32 s64, s65, 2")
        a(f"s_and_b32 s22, s{sI}, 3"); a(f"s_add_u32 s23, s{sI}, 1"); a("s_and_b32 s23, s23, 3")
        a(f"s_cmp_lt_u32 s{sI}, 4"); a("s_cselect_b32 s64, s64, s22"); a("s_cselect_b32 s65, s65, s23")
        a("s_and_b32 s22, s2, 4"); a("s_add_u32 s64, s64, s22"); a("s_add_u32 s65, s65, s22")
    def common_srds():
        srd(a, sWS, 20, 21, ws_size())
        srd(a, sOUT, 16, 17, 2048*512*2)
        srd(a, sDBG, 18, 19, 256)
        srd(a, sWOA, 10, 11, 512*512*2)
        srd(a, sWOB, 14, 15, 512*512*2)

    class Rec:
        def __init__(s): s.L = []
        def __call__(s, t): s.L.append(t)
    def late_setup():
        a = Rec()
        a(f"s_lshl_b32 s20, s{sRB}, 17"); a(f"s_and_b32 s4, s{sW}, 1"); a("s_lshl_b32 s4, s4, 16"); a("s_add_u32 s20, s20, s4")
        a(f"s_lshr_b32 s4, s{sW}, 1"); a("s_lshl_b32 s4, s4, 13"); a("s_add_u32 s20, s20, s4"); a(f"s_add_u32 s20, s20, {WS_O:#x}")
        a(f"v_lshrrev_b32 v116, 5, v1"); a(f"v_bfe_u32 v117, v1, 2, 2")
        a(f"v_lshl_add_u32 v{vPW0}, v116, 2, v117"); a(f"v_lshlrev_b32 v{vPW0}, 7, v{vPW0}")
        a(f"v_bfe_u32 v116, v1, 4, 1"); a(f"v_lshlrev_b32 v116, 1, v116")
        a(f"v_bfe_u32 v117, v1, 1, 1"); a(f"v_add_u32 v116, v116, v117")
        a(f"v_bfe_u32 v117, v1, 3, 1"); a(f"v_lshl_or_b32 v116, v117, 2, v116")
        a(f"v_lshl_add_u32 v{vPW0}, v116, 4, v{vPW0}")
        a(f"v_and_b32 v116, 1, v1"); a(f"v_lshl_add_u32 v{vPW0}, v116, 3, v{vPW0}")
        a(f"s_lshr_b32 s4, s{sW}, 1"); a("s_lshl_b32 s4, s4, 14"); a("s_add_u32 s4, s4, 65536")
        a(f"v_add_u32 v{vPW0}, s4, v{vPW0}")
        a(f"v_xor_b32 v{vPW1}, 64, v{vPW0}")
        a(f"s_lshr_b32 s4, s{sW}, 1"); a(f"s_mul_i32 s4, s4, {PW}"); a(f"s_and_b32 s5, s{sW}, 1"); a(f"s_mul_i32 s5, s5, {8*1088}")
        a("s_add_u32 s4, s4, s5"); a("s_add_u32 s4, s4, 65536")
        a(f"v_add_u32 v{vPWR}, s4, v{vL16}")
        a("v_and_b32 v116, 7, v1"); a("v_lshrrev_b32 v117, 3, v1")
        a(f"s_and_b32 s4, s{sW}, 3"); a("s_lshl_b32 s4, s4, 3"); a("v_add_u32 v117, s4, v117")
        a(f"v_mul_u32_u24 v{vPRD}, 1088, v116"); a(f"v_lshl_add_u32 v{vPRD}, v117, 4, v{vPRD}")
        a(f"s_lshr_b32 s4, s{sW}, 2"); a(f"s_mul_i32 s5, s4, {8*1088}"); a("s_add_u32 s5, s5, 65536")
        a(f"v_add_u32 v{vPRD}, s5, v{vPRD}")
        a(f"v_lshlrev_b32 v{vOUT}, 10, v117"); a(f"v_lshl_add_u32 v{vOUT}, v116, 4, v{vOUT}")
        a("s_lshl_b32 s4, s4, 15"); a(f"s_lshl_b32 s5, s{sRB}, 16"); a("s_add_u32 s4, s4, s5")
        a(f"s_lshl_b32 s5, s{sJ}, 7"); a("s_add_u32 s33, s4, s5")
        return a.L

    def attn_setup():
        L = []; e = L.append
        e(f"s_lshl_b32 s11, s{sHD}, 6"); e(f"s_add_u32 s11, s11, s{sQT}"); e("s_lshl_b32 s11, s11, 10")
        e(f"s_add_u32 s11, s11, {WS_Q:#x}")
        e(f"s_lshl_b32 s13, s{sHD}, 17")
        e(f"s_add_u32 s14, s13, {32*131072:#x}")
        e(f"s_mov_b32 s10, {WS_FL:#x}")
        e("s_and_b32 s4, s2, 3"); e("s_add_u32 s5, s4, 3"); e("s_and_b32 s5, s5, 3"); e("s_xor_b32 s6, s4, 2")
        e("s_and_b32 s7, s2, 1"); e("s_mul_i32 s7, s7, 0x1011"); e("s_lshl_b32 s9, s4, 8"); e("s_add_u32 s7, s7, s9"); e("s_add_u32 s7, s7, 0x420")
        e("s_mul_i32 s6, s6, 0x110"); e("s_add_u32 s5, s5, s6"); e("s_add_u32 s5, s5, 0x404")
        e(f"v_bfe_u32 v{vT}, v1, 2, 2"); e(f"v_and_b32 v{vT2}, 3, v1"); e(f"v_lshl_add_u32 v{vT}, v{vT2}, 3, v{vT}")
        e(f"v_lshlrev_b32 v{vT}, 7, v{vT}")
        e(f"v_lshrrev_b32 v{vT2}, 4, v1"); e(f"v_lshlrev_b32 v{vT2}, 2, v{vT2}")
        e(f"v_bfe_u32 v{vFA}, s7, v{vT2}, 4"); e(f"v_lshl_add_u32 v{vFA}, v{vFA}, 12, v{vT}")
        e(f"v_bfe_u32 v{vFA2}, s5, v{vT2}, 4"); e(f"v_lshl_add_u32 v{vFA2}, v{vFA2}, 12, v{vT}")
        e("s_and_b32 s4, s2, 4"); e("s_lshl_b32 s4, s4, 7")
        e(f"v_add_u32 v{vFA}, s4, v{vFA}"); e(f"v_add_u32 v{vFA2}, s4, v{vFA2}")
        e(f"v_and_b32 v{vT}, 0xc80, v{vT}")
        e(f"s_lshr_b32 s4, s{sW}, 1"); e("s_lshl_b32 s4, s4, 8"); e(f"s_lshr_b32 s5, s{sRB}, 2"); e("s_lshl_b32 s5, s5, 12"); e("s_add_u32 s4, s4, s5")
        e(f"v_add_u32 v{vT}, s4, v{vT}")
        e("v_cmp_lt_u32 vcc, 47, v1")
        e("s_bfe_u32 s4, s2, 0x10001"); e("s_lshl_b32 s4, s4, 15")
        e(f"v_cndmask_b32 v{vFA2}, v{vFA2}, v{vT}, vcc")
        e("s_add_u32 s16, s14, s4"); e("s_xor_b32 s4, s4, 0x8000"); e("s_add_u32 s21, s14, s4")
        e(f"v_lshrrev_b32 v{vT}, 3, v1"); e(f"v_bfe_u32 v{vT2}, v1, 4, 1"); e(f"v_lshlrev_b32 v{vT2}, 2, v{vT2}")
        e(f"v_and_b32 v{vWo}, 7, v1"); e(f"v_xor_b32 v{vWo}, v{vWo}, v{vT2}"); e(f"v_lshlrev_b32 v{vWo}, 4, v{vWo}")
        e(f"v_lshl_add_u32 v{vWo}, v{vT}, 10, v{vWo}")
        e(f"v_mov_b32 v{vIDX}, 0xdddddddd")
        e("s_mov_b32 s22, 0x0000ffff"); e("s_mov_b32 s23, 0x0000ffff")
        e(f"v_lshrrev_b32 v{vQH}, 5, v1")
        e(f"v_and_b32 v{vVb}, 15, v1"); e(f"v_lshlrev_b32 v{vVb}, 4, v{vVb}")
        e(f"v_lshl_add_u32 v{vVb}, v{vQH}, 8, v{vVb}"); e(f"v_add_u32 v{vVb}, 1024, v{vVb}")
        e(f"s_lshl_b32 s4, s{sW}, 11"); e("s_add_u32 s4, s4, 131072")
        e(f"v_add_u32 v{vKa}, s4, v{vL16}")
        e(f"v_add_u32 v{vVa}, s4, v{vVb}")
        e(f"s_lshl_b32 s4, s{sW}, 10"); e(f"s_add_u32 s4, s4, {QSTG}")
        e(f"v_add_u32 v{vKb}, s4, v{vL16}")
        e(f"v_and_b32 v{vM}, 31, v1")
        e(f"v_lshlrev_b32 v{vQH}, 3, v{vQH}"); e(f"v_sub_u32 v{vQH}, v{vM}, v{vQH}")
        e(f"v_and_b32 v{vT}, 0x1b, v{vM}")
        e(f"v_cmp_eq_u32 vcc, 16, v{vT}")
        e(f"v_mov_b32 v{vT2}, {0 if opt('x_noones') else 0x3f803f80:#x}")
        e(f"v_mov_b32 v{vT}, 0")
        for b in range(2):
            for j in range(2):
                for i in range(4): e(f"v_cndmask_b32 v{VB[b][j]+i}, v{vT}, v{vT2}, vcc")
        e(f"s_mov_b32 s5, {NEG_INF:#x}")
        e(f"s_cmp_eq_u32 s{sB}, 0\n    s_cselect_b32 s6, s5, 0\n    s_cselect_b32 s7, s{sW}, 64")
        e(f"v_mov_b32 v{vMF}, s5")
        e("s_mov_b32 s8, 0")
        e(f"s_lshl_b32 s15, s{sQT}, 6"); e(f"s_add_u32 s15, s15, s{sHD}"); e("s_lshl_b32 s15, s15, 10")
        e(f"s_add_u32 s15, s15, {WS_O:#x}")
        L += masks()
        return L
    def masks():
        L = []; e = L.append
        e(f"v_mov_b32 v{vT}, s5"); e(f"v_mov_b32 v{vT2}, s6")
        for r in range(16):
            e(f"v_cmp_le_i32 vcc, {(r & 7) + 16*(r >> 3)}, v{vQH}")
            e(f"v_mov_b32 v{OA+r}, 0")
            e("s_nop 0")
            e(f"v_cndmask_b32 v{CD+r}, v{vT}, v{OA+r}, vcc")
            e(f"v_cndmask_b32 v{CF+r}, v{vT2}, v{vT}, vcc")
        return L
    def gread(t):
        a(f"s_and_b32 s62, s{sI}, 1"); a("s_lshl_b32 s62, s62, 1"); a(f"s_and_b32 s63, s{sW}, 1"); a("s_add_u32 s62, s62, s63")
        a("s_lshl_b32 s62, s62, 7"); a("s_add_u32 s62, s62, 29696")
        a(f"v_and_b32 v{t}, 31, v1"); a(f"v_lshl_add_u32 v{t}, v{t}, 2, s62")
        a(f"ds_read_b32 v{vG}, v{t}")
    uid = [0]
    def spin(load, stage, cnt="s62", reg=vPoll, cmp="v_cmp_le_u32"):
        uid[0] += 1; n = uid[0]
        a(f"s_mov_b32 {cnt}, {SPIN}")
        a(f"s_branch L_chk{n}")
        a.lab(f"L_spin{n}")
        if opt("sleep", 4): a(f"s_sleep {opt('sleep', 4)}")
        a(load)
        a.lab(f"L_chk{n}")
        a("s_waitcnt vmcnt(0)")
        if "x4" in load:
            a(f"v_min3_u32 v{reg}, v{reg}, v{reg+1}, v{reg+2}"); a(f"v_min_u32 v{reg}, v{reg}, v{reg+3}")
        a(f"{cmp} vcc, {stage}, v{reg}")
        a(f"s_sub_u32 {cnt}, {cnt}, 1"); a(f"s_cbranch_scc1 L_ok{n}")
        a("s_cmp_eq_u64 vcc, -1"); a(f"s_cbranch_scc0 L_spin{n}")
        a.lab(f"L_ok{n}")
    pollF1 = f"buffer_load_dword v{vPoll}, v{vFA}, {S(sWS)}, s10 offen {PP}"
    pollF1b = f"buffer_load_dwordx4 {vr(vPoll,4)}, v{vFA}, {S(sWS)}, s3 offen {PP}"
    pollF1A = f"buffer_load_dword v{vPoll}, v{vFA2}, {S(sWS)}, s10 offen {PP}"

    a(f"s_sub_u32 s66, s{sW}, 4")
    a("v_lshrrev_b32 v2, 3, v1")
    a("v_and_b32 v3, 7, v1")
    a("v_lshrrev_b32 v4, 4, v1")
    a("v_xor_b32 v5, v3, v4")
    a("v_lshlrev_b32 v5, 4, v5")
    a("v_lshl_add_u32 v6, v2, 10, v5")
    a(f"s_lshl_b32 s63, s{sR16}, 17"); a("s_lshl_b32 s64, s66, 15"); a("s_add_u32 s63, s63, s64")
    a("v_add_u32 v16, s63, v6")
    a("v_xor_b32 v17, 64, v16"); a("v_add_u32 v17, 8192, v17")
    a("v_add_u32 v18, 16384, v16"); a("v_add_u32 v19, 16384, v17")
    a("v_and_b32 v5, 1, v4")
    a("v_lshlrev_b32 v5, 2, v5")
    a("v_xor_b32 v5, v3, v5")
    a("v_lshlrev_b32 v5, 4, v5")
    a("v_mul_u32_u24 v8, 3072, v2")
    a("s_mul_i32 s63, s66, 49152")
    a("v_add3_u32 v20, v8, v5, s63")
    a("v_add_u32 v21, 24576, v20")
    a("s_lshl_b32 s3, s62, 1"); a(f"s_add_u32 s3, s3, s{sI}"); a("s_and_b32 s3, s3, 7")
    R = opt("rot", 4)
    if R == 0: a("s_mov_b32 s3, 0")
    if R >= 16:
        a("s_and_b32 s3, s2, 3"); a("s_lshl_b32 s3, s3, 1"); a("s_and_b32 s63, s2, 4"); a("s_add_u32 s3, s3, s63")
        if R == 17: a(f"s_and_b32 s63, s{sI}, 1"); a("s_lshl_b32 s63, s63, 1"); a("s_add_u32 s3, s3, s63")
        if R == 18: a(f"s_add_u32 s63, s{sI}, s62"); a("s_and_b32 s63, s63, 1"); a("s_lshl_b32 s63, s63, 1"); a("s_add_u32 s3, s3, s63")
        if R == 19: a(f"s_add_u32 s63, s{sI}, s62"); a("s_and_b32 s63, s63, 3"); a("s_add_u32 s3, s3, s63")
        a("s_and_b32 s3, s3, 7")
    if R == 5:
        a(f"s_add_u32 s3, s62, s{sI}"); a("s_and_b32 s3, s3, 3"); a("s_lshl_b32 s3, s3, 1"); a("s_bfe_u32 s63, s2, 0x10002"); a("s_add_u32 s3, s3, s63")
    if R == 4: a(f"s_add_u32 s3, s62, s{sI}"); a("s_and_b32 s3, s3, 3"); a("s_lshl_b32 s3, s3, 1")
    roles()
    a("s_lshl_b32 s64, s64, 7"); a("s_lshl_b32 s65, s65, 7"); a("s_add_u32 s65, s65, 2048")
    a(f"s_cmp_lt_u32 s{sI}, 4"); a("s_cselect_b32 s22, 1024, 0"); a("s_add_u32 s64, s64, s22")
    a(f"s_cmp_lt_u32 s{sI}, 2"); a("s_cselect_b32 s22, s65, s64"); a("s_cselect_b32 s71, s64, s65")
    a("s_lshl_b32 s67, s66, 12"); a("s_add_u32 s67, s67, 32768")
    a("s_lshl_b32 s23, s66, 11"); a("s_add_u32 s23, s23, 32768")
    for d, sz in ((sX, 2048*512*2), (sWB, 512*1536*2)):
        a(f"s_mov_b32 s{d+2}, {sz:#x}"); a(f"s_mov_b32 s{d+3}, 0x20000")
    stamp(a, 1, mode=8)
    a("s_waitcnt lgkmcnt(0)")
    stamp(a, 2, mode=8)
    for d, lo in ((sX, 4), (sWB, 12)):
        a(f"s_mov_b32 s{d}, s{lo}"); a(f"s_and_b32 s{d+1}, s{lo+1}, 0xffff")
    RW = ["s22", "s23"]
    def wblock(srdw, col, ldsoff):
        a(f"s_mul_i32 s63, s3, {64*3072}"); a(f"s_add_u32 s63, s63, {col}")
        for e in range(2):
            a(f"s_add_u32 m0, {RW[1]}, {ldsoff + e*1024}")
            a("s_nop 0")
            a(f"buffer_load_dwordx4 v{20+e}, {S(srdw)}, s63 offen lds")
        a("s_add_u32 s3, s3, 1"); a("s_and_b32 s3, s3, 7")
    seq = []
    def issue(c):
        slot = c & 3
        a("s_lshl_b32 s62, s3, 7")
        for il in range(4):
            a(f"s_add_u32 m0, s67, {slot*32768 + il*1024}")
            a("s_nop 0")
            a(f"buffer_load_dwordx4 v{16+il}, {S(sX)}, s62 offen lds")
        wblock(sWB, RW[0], slot*32768 + 16384)
        seq.append((c, 6))
    def issue_w(c, sb):
        k = 2*((c-8) & 3) + sb
        a(f"s_add_u32 s3, s64, {k}"); a("s_and_b32 s3, s3, 7")
        wblock(sX if c < 12 else sWA, "s71" if c < 12 else "s65", wpos(c, sb))
        seq.append((c, 2))
    def wait_for(c):
        last = max(k for k, (cc, n) in enumerate(seq) if cc == c)
        a(f"s_waitcnt vmcnt({sum(n for cc, n in seq[last+1:])})")
    a("s_lshl_b32 s64, s66, 8"); a("s_lshl_b32 s65, s3, 7"); a("s_add_u32 s65, s65, s64")
    issue(0)
    stamp(a, 3, mode=8)
    a("v_lshlrev_b32 v24, 2, v1"); a("v_add_u32 v24, s65, v24"); a("v_and_b32 v24, 0x3ff, v24")
    srd(a, sWOB, 6, 7, 1024)
    a("s_add_u32 m0, s64, 28672"); a("s_nop 0")
    a(f"buffer_load_dword v24, {S(sWOB)}, 0 offen lds")
    issue(1)
    stamp(a, 4, mode=8)
    issue(2)
    stamp(a, 5, mode=8)
    srd(a, sWA, 8, 9, 512*1536*2)
    common_srds()
    a("s_mov_b32 s17, s22"); a("s_mov_b32 s18, s23"); RW[:] = ["s17", "s18"]
    ids()
    a(f"s_xor_b32 s65, s{sI}, 2"); a("s_and_b32 s65, s65, 3"); a("s_and_b32 s62, s2, 4"); a("s_add_u32 s65, s65, s62"); a("s_lshl_b32 s65, s65, 7")
    a(f"s_and_b32 s62, s{sI}, 4"); a("s_lshl_b32 s62, s62, 8"); a("s_add_u32 s65, s65, s62")
    SCH = {5: {4: [8], 5: [12], 7: [9], 8: [10, 11], 10: [13, 14], 11: [15]},
           2: {4: [8], 6: [12], 7: [9], 8: [10, 11], 10: [13, 14], 11: [15]},
           6: {4: [8], 5: [12], 7: [9], 8: [10], 9: [11], 10: [13, 14], 11: [15]},
           7: {4: [8, 12], 7: [9], 8: [10, 11], 10: [13, 14], 11: [15]}}[opt("sch", 5)]
    lset = late_setup() + attn_setup()
    LSPLIT = opt("lsplit", 110)
    def after(k):
        for cc in SCH.get(k, []):
            for sb in range(2): issue_w(cc, sb)
    for c in range(0, 9):
        stamp(a, c+1, mode=6)
        wait_for(c)
        stamp(a, c+1, mode=7)
        if c < 2: stamp(a, 6+2*c, mode=8)
        a("s_barrier")
        if c < 2: stamp(a, 7+2*c, mode=8)
        stamp(a, c+1, mode=4)
        if c == 0: hold(10)
        if c == 4: hold(16)
        if c == 8: hold(11)
        if c + 3 < 8: issue(c+3)
        if c == 4:
            a(f"s_cmp_lt_u32 s{sI}, 4")
            a(f"s_cselect_b32 s{sX}, s{sWB}, s{sWA}"); a(f"s_cselect_b32 s{sX+1}, s{sWB+1}, s{sWA+1}")
            a(f"s_mov_b32 s{sX+2}, {512*1536*2:#x}")
            a("s_mov_b32 s64, s3")
        after(c)
    wait_for(9); a("s_barrier")
    after(9)
    wait_for(11); a("s_barrier")
    after(10)
    gread(3)
    a("s_waitcnt lgkmcnt(0)")
    a("s_barrier")
    hold(12)
    after(11)
    for x in lset[:LSPLIT]: a(x)
    a("s_waitcnt vmcnt(0)"); a("s_barrier")
    hold(13)
    L2 = opt("lsplit2", 140)
    while L2 < len(lset) and not lset[L2].startswith("v_cmp"): L2 += 1
    for x in lset[LSPLIT:L2]: a(x)
    stamp(a, 1)
    NP = opt("npoll", 2)
    if NP < 4: a(f"s_cmp_ge_u32 s66, {NP}"); a("s_cbranch_scc1 L_nokv")
    a(pollF1)
    spin(pollF1, 1)
    hold(14)
    stamp(a, 2)
    qn = 8//NP
    a(f"s_mul_i32 s62, s66, {qn*1024}")
    a(f"s_lshl_b32 s63, s{sW}, 10"); a("s_sub_u32 s63, s11, s63"); a("s_add_u32 s63, s63, s62"); a(f"s_add_u32 s63, s63, {32*64*1024:#x}")
    for g in range((qn+3)//4):
        a(f"s_add_u32 m0, s62, {QSTG + g*4096}"); a(f"s_add_u32 s64, s63, {g*4096}")
        for i in range(min(qn, 4)): a(f"buffer_load_dwordx4 v{vL16}, {S(sWS)}, s64 offen offset:{i*1024} {LD} lds")
    a(f"s_mul_i32 s62, s66, {qn*4096}"); a("s_add_u32 s63, s62, s16")
    for q in range(2):
        if NP == 1 and q: a("s_waitcnt vmcnt(24)")
        for g in range(qn):
            a(f"s_add_u32 m0, s62, {q*32768 + g*4096}"); a(f"s_add_u32 s64, s63, {q*65536 + g*4096}")
            for i in range(4): a(f"buffer_load_dwordx4 v{vL16}, {S(sWS)}, s64 offen offset:{i*1024} {LD} lds")
    a.lab("L_nokv")
    for x in lset[L2:]: a(x)
    a(f"s_waitcnt vmcnt({4*qn if opt('t1', 0) else 0})"); a("s_barrier")
    stamp(a, 3)
    a("s_branch L_attn")

    a.lab("L_compute")
    CPF = opt("codepf", 2)
    if CPF:
        a("s_getpc_b64 s[62:63]")
        a.lab("L_pc")
        if CPF == 1:
            a("s_lshr_b32 s64, s2, 3"); a("s_cmp_eq_u32 s64, 1"); a("s_cbranch_scc0 L_nocpf")
            a("v_lshlrev_b32 v20, 7, v0")
        else:
            a(f"s_cmp_eq_u32 s{sW}, 2"); a("s_cbranch_scc0 L_nocpf")
            a("s_lshr_b32 s64, s2, 3"); a("s_lshl_b32 s64, s64, 7")
            a("v_and_b32 v20, 15, v1"); a("v_lshlrev_b32 v20, 12, v20"); a("v_add_u32 v20, s64, v20")
        a(f"s_sub_u32 s62, s62, L_pc-{K}"); a("s_subb_u32 s63, s63, 0")
        a(f"v_min_u32 v20, L_code_end-{K}-4, v20")
        a("v_mov_b32 v21, s63")
        a("v_add_co_u32 v20, vcc, s62, v20")
        a("s_nop 1")
        a("v_addc_co_u32 v21, vcc, 0, v21, vcc")
        a("global_load_dword v255, v[20:21], off")
        a.lab("L_nocpf")
    a("v_lshrrev_b32 v16, 5, v1")
    a("v_and_b32 v17, 31, v1")
    a("v_lshrrev_b32 v18, 1, v17"); a("v_and_b32 v18, 7, v18")
    a(f"s_lshl_b32 s62, s{sW}, 12"); a("s_add_u32 s62, s62, 32768")
    a("v_lshlrev_b32 v19, 7, v17"); a("v_add_u32 v19, s62, v19")
    for t in range(4):
        a(f"v_add_u32 v20, {2*t}, v16"); a("v_xor_b32 v20, v20, v18")
        a(f"v_lshl_add_u32 v{vXA+t}, v20, 4, v19")
        a(f"v_add_u32 v{vXA+4+t}, 0x10000, v{vXA+t}")
    a("v_bfe_u32 v18, v1, 2, 2")
    a("v_lshl_add_u32 v19, v16, 3, v18"); a("v_lshlrev_b32 v19, 7, v19")
    a("v_bfe_u32 v20, v1, 4, 1"); a("v_lshlrev_b32 v20, 1, v20")
    a("v_bfe_u32 v21, v1, 1, 1"); a("v_add_u32 v20, v20, v21")
    a("v_bfe_u32 v21, v1, 3, 1"); a("v_lshl_or_b32 v20, v21, 2, v20")
    a("v_lshl_add_u32 v19, v20, 4, v19")
    a("v_and_b32 v20, 1, v1"); a("v_lshl_add_u32 v19, v20, 3, v19")
    a(f"v_add_u32 v{vWA}, 32768, v19"); a(f"v_xor_b32 v{vWA+1}, 64, v{vWA}")
    a(f"v_add_u32 v{vWA+2}, 0x10000, v{vWA}"); a(f"v_add_u32 v{vWA+3}, 0x10000, v{vWA+1}")
    a(f"v_lshlrev_b32 v{vGA}, 4, v16"); a(f"v_add_u32 v{vGA}, 28672, v{vGA}")
    ids()
    roles()
    a(f"s_lshl_b32 s66, s{sR16}, 2"); a(f"s_add_u32 s66, s66, s{sW}")
    a("s_lshl_b32 s62, s64, 8"); a("s_add_u32 s62, s62, s66"); a("s_add_u32 s62, s62, 2048")
    a(f"s_xor_b32 s64, s{sI}, 2"); a("s_and_b32 s64, s64, 3"); a("s_add_u32 s64, s64, s22"); a("s_lshl_b32 s64, s64, 8"); a("s_add_u32 s64, s64, s66")
    a("s_lshl_b32 s24, s62, 11"); a("s_lshl_b32 s25, s62, 10"); a(f"s_add_u32 s25, s25, {WS_Q:#x}")
    a("s_lshl_b32 s26, s64, 11"); a("s_lshl_b32 s27, s64, 10"); a(f"s_add_u32 s27, s27, {WS_Q:#x}")
    a("s_mov_b32 s28, 0x10000"); a("s_mov_b32 s29, 0x20000")
    a(f"s_cmp_lt_u32 s{sI}, 4")
    a("s_cselect_b32 s24, s24, s25"); a("s_cselect_b32 s25, s29, s28")
    a("s_cselect_b32 s26, s27, s26"); a("s_cselect_b32 s27, s28, s29")
    a("s_cselect_b32 s64, 2048, 0")
    a("s_lshl_b32 s62, s65, 8"); a("s_add_u32 s62, s62, s66"); a("s_add_u32 s62, s62, s64")
    a("s_lshl_b32 s28, s62, 11"); a("s_add_u32 s29, s28, 0x40000")
    a(f"s_mov_b32 s32, {QSCALE:#x}")
    a("v_mov_b32 v0, 0")
    a("s_waitcnt lgkmcnt(0)")
    common_srds()
    for i in range(4): a(f"v_mov_b32 v{20+i}, 0")
    a("v_mov_b32 v24, 1")
    a(f"s_lshl_b32 s62, s{sW}, 8"); a("s_add_u32 s62, s62, s2"); a("s_sub_u32 s62, s62, 768")
    a("s_cmp_lt_u32 s62, 8"); a("s_cbranch_scc0 L_noinit")
    a("s_lshl_b32 s62, s2, 13"); a(f"s_add_u32 s62, s62, {WS_FL:#x}"); a("s_add_u32 s63, s62, 4096")
    for i in range(8): a(f"buffer_store_dwordx4 v[20:23], v{vL16}, {S(sWS)}, s{62+(i>>2)} offen offset:{(i&3)*1024} {SC}")
    a("s_lshl_b32 s62, s2, 5")
    a("s_waitcnt vmcnt(0)")
    a("s_mov_b64 exec, 1")
    a(f"buffer_store_dword v24, v20, {S(sDBG)}, s62 offen {SC}")
    a("s_mov_b64 exec, -1")
    a.lab("L_noinit")
    WPF = opt("wpf", 0)
    if WPF:
        srd(a, 4, 8, 9, 512*1536*2)
        a("v_min_u32 v254, 47, v1"); a("v_lshlrev_b32 v254, 7, v254"); a("s_mul_i32 s35, s2, 6144")
    def wtouch(tag):
        a(f"s_cmp_lg_u32 s{sW}, 1"); a(f"s_cbranch_scc1 L_nowpf{tag}")
        a("buffer_load_dword v253, v254, s[4:7], s35 offen")
        a.lab(f"L_nowpf{tag}")
    if WPF == 1: wtouch("")

    def chunk_of(m): return m if m < 8 else 8 + ((m - 8) >> 1)
    def reads(m):
        c = chunk_of(m); slot = c & 3; b = m & 1; L = []
        wp = slot*32768 + 16384 if m < 8 else wpos(c, (m - 8) & 1)
        for t in range(4):
            if m < 8:
                L.append(f"ds_read_b128 {vr(XR + 4*(4*m+t), 4)}, v{vXA + 4*(slot>>1) + t} offset:{(slot&1)*32768}")
            for cc in range(2):
                for u in range(2):
                    L.append(f"ds_read_b64_tr_b16 {vr(WF[b]+8*t+4*cc+2*u,2)}, v{vWA+2*(wp>>16)+cc} offset:{(wp & 0xffff) + (16*t+4*u)*128}")
        return L
    def greads(m): return [f"ds_read_b128 {vr(GF+4*t,4)}, v{vGA} offset:{(4*m+t)*32}" for t in range(4)]
    def dots(m): return [f"v_dot2_f32_bf16 v0, v{XR+16*m+i}, v{GF+i}, v0" for i in range(16)]
    def mfmas(m, vphase):
        b = m & 1; L = []
        for t in range(4):
            x = vr(XR + 4*(4*(m & 7)+t), 4)
            for cc in range(2):
                d = vr(ACC[cc], 16); c0 = "0" if (m & 7) == 0 and t == 0 else d
                w = vr(WF[b]+8*t+4*cc, 4)
                if opt("x_m16"):
                    x2 = vr(XR + 4*(4*(m & 7)+(t^1)), 4)
                    d1 = vr(ACC[cc]+8*(t&1), 4); d2 = vr(ACC[cc]+8*(t&1)+4, 4)
                    z = (m & 7) == 0 and t < 2
                    L.append(f"v_mfma_f32_16x16x32_bf16 {d1}, {w}, {x}, {0 if z else d1}\n    v_mfma_f32_16x16x32_bf16 {d2}, {w}, {x2}, {0 if z else d2}")
                    continue
                L.append(f"v_mfma_f32_32x32x16_bf16 {d}, {x}, {w}, {c0}" if (m >> 3) == vphase else f"v_mfma_f32_32x32x16_bf16 {d}, {w}, {x}, {c0}")
        return L
    ST = opt("st", "sc1")
    def stores3():
        for i in range(4):
            a(f"buffer_store_dwordx4 {vr(208+4*i,4)}, v5, {S(sWS)}, s26 offen {ST}")
            a("s_add_u32 s26, s26, s27")
    def epilogue(ph, pk, vphase):
        a("s_nop 6" if ph == 0 else "s_nop 10")
        if ph == 2 or (ph == 0 and vphase == 1):
            a(f"s_cmp_lt_u32 s{sI}, 4"); a(f"s_cbranch_scc{1 if ph == 0 else 0} L_noscale{ph}")
            for r in range(32): a(f"v_mul_f32 v{ACC[0]+r}, s32, v{ACC[0]+r}")
            a.lab(f"L_noscale{ph}")
        for cc in range(2):
            for p in range(2):
                for i in range(4): a(f"v_cvt_pk_bf16_f32 v{pk+i}, v{ACC[cc]+8*p+2*i}, v{ACC[cc]+8*p+2*i+1}")
                if ph == vphase: a(f"buffer_store_dwordx4 {vr(pk,4)}, v3, {S(sWS)}, s{28+cc} offen offset:{p*512} {ST}")
                elif ph < 2:
                    a(f"buffer_store_dwordx4 {vr(pk,4)}, v4, {S(sWS)}, s24 offen {ST}")
                    a("s_add_u32 s24, s24, s25")
                pk += 4
        a("s_nop 1")
    def publishF1(stage, t1):
        a(f"v_mov_b32 v{t1}, {stage}")
        a("s_lshl_b32 s62, s2, 7"); a(f"s_add_u32 s62, s62, {WS_FL:#x}")
        a("s_mov_b64 exec, 1")
        a(f"buffer_store_dword v{t1}, v{vL16}, {S(sWS)}, s62 offen {SC}")
        a("s_mov_b64 exec, -1")
    def first_step(x):
        regs = [int(r) for r in re.findall(r"\bv(\d+)", x)]
        hi = max([r for r in regs if r >= XR], default=0)
        return 16 + (hi - XR)//16 + 1 if hi else 16
    plan = {m: [[] for _ in range(8)] for m in range(24)}
    pos = 16*8
    for x in attn_setup():
        pos = max(pos, first_step(x)*8)
        while len(plan[pos >> 3][pos & 7]) >= (3 if pos < 21*8 else 4): pos += 1
        plan[pos >> 3][pos & 7].append(x)
    staddr = ["v_and_b32 v2, 0x33, v1", "v_bfe_u32 v3, v1, 2, 1", "v_lshl_or_b32 v2, v3, 3, v2", "v_bfe_u32 v3, v1, 3, 1",
              "v_lshl_or_b32 v2, v3, 2, v2", "v_lshlrev_b32 v2, 4, v2", f"v_mov_b32 v6, s{sI}", "v_cmp_gt_u32 vcc, 4, v6",
              "v_and_b32 v3, 15, v1", "v_lshlrev_b32 v3, 4, v3", f"v_cndmask_b32 v4, v{vL16}, v2, vcc", f"v_cndmask_b32 v5, v2, v{vL16}, vcc",
              "v_lshrrev_b32 v2, 5, v1", "v_lshl_add_u32 v3, v2, 8, v3", "v_bfe_u32 v2, v1, 4, 1", "v_lshl_add_u32 v3, v2, 17, v3", "v_add_u32 v3, 1024, v3"]
    for k, x in enumerate(staddr): plan[7][4 + k*4//len(staddr)].append(x)
    gate = ["v_mov_b32 v113, v0", "v_and_b32 v119, 31, v1", f"s_lshl_b32 s62, s{sW}, 7", "v_permlane32_swap_b32 v0, v113", "v_add_f32 v113, v0, v113",
            f"v_mul_f32 v113, {f2u(-1.4426950408889634):#x}, v113", "v_exp_f32 v113, v113", "s_add_u32 s62, s62, 29696", "v_add_f32 v113, 1.0, v113",
            "v_rcp_f32 v113, v113", "v_lshl_add_u32 v119, v119, 2, s62", "ds_write_b32 v119, v113"]
    for k, x in enumerate(gate): plan[8][k*6//len(gate)].append(x)
    ls = late_setup()
    for k, x in enumerate(ls):
        p = 9*8 + k*48//len(ls); plan[p >> 3][p & 7].append(x)
    pollI = f"buffer_load_dword v114, v115, {S(sDBG)}, 0 offen {PP}"
    def step(m, vphase):
        tag = "v" if vphase == 0 else "q"
        if m >= 8 and m % 2 == 0: stamp(a, 2 + (m-8)//2, mode=3)
        if m == 7: stamp(a, 1, mode=3)
        a("s_waitcnt lgkmcnt(0)" if m != 5 else "s_waitcnt vmcnt(0) lgkmcnt(0)")
        mm = mfmas(m, vphase)
        r = reads(m+1) if m < 23 else []
        fill = [[] for _ in range(8)]
        if m < 8:
            d = dots(m) if not opt("x_nodot") else []
            for g in range(4): fill[g] += d[4*g:4*g+4]
            if m < 7: fill[4] += greads(m+1)
        for g in range(8): fill[g] += plan[m][g]
        nr = (len(r) + 4) // 5
        for i in range(8):
            a(mm[i])
            if i == 0:
                if m == PUB1:
                    a("s_waitcnt vmcnt(0)")
                    a(f"s_cmp_lg_u32 s{sW}, 0"); a(f"s_cbranch_scc1 L_noinitchk{tag}")
                    spin(pollI, 1, cnt="s65", reg=114, cmp="v_cmp_eq_u32")
                    a.lab(f"L_noinitchk{tag}")
                if m <= 7: stamp(a, m+2, mode=7)
                if m <= 7 or m in (9, 11, 13, 17): a("s_barrier")
                if m == PUB1:
                    a(f"s_cmp_lg_u32 s{sW}, 0"); a(f"s_cbranch_scc1 L_nopub1{tag}")
                    publishF1(1, 114)
                    a.lab(f"L_nopub1{tag}")
                if m == 11: gread(118)
                if WPF >= 2 and m == WPF - 2: wtouch(tag)
            if i < 5:
                for x in r[i*nr:(i+1)*nr]: a(x)
            for x in fill[i]: a(x)
        if m == 7:
            stamp(a, 3)
            epilogue(0, WF[1], vphase)
            a("v_and_b32 v115, 7, v1"); a("v_lshlrev_b32 v115, 5, v115")
            a(f"s_cmp_lg_u32 s{sW}, 0"); a(f"s_cbranch_scc1 L_noip{tag}")
            a(pollI)
            a.lab(f"L_noip{tag}")
        if m == 15:
            epilogue(1, WF[1], vphase)
    stamp(a, 1)
    a(f"s_cmp_lt_u32 s{sI}, 2"); a("s_cbranch_scc0 L_p12q")
    for vphase in (0, 1):
        if vphase: a.lab("L_p12q")
        a("s_barrier")
        stamp(a, 2, True)
        for r in reads(0) + greads(0): a(r)
        for m in range(16): step(m, vphase)
        if vphase == 0: a("s_branch L_p3")
    a.lab("L_p3")
    for m in range(16, 24): step(m, -1)
    stamp(a, 4)
    a("s_waitcnt vmcnt(0)")
    a("s_lshl_b32 s62, s2, 7"); a(f"s_lshl_b32 s63, s{sW}, 2"); a("s_add_u32 s62, s62, s63"); a(f"s_add_u32 s62, s62, {WS_F2:#x}")
    a("v_mov_b32 v114, 1")
    a("s_mov_b64 exec, 1")
    a(f"buffer_store_dword v114, v{vL16}, {S(sWS)}, s62 offen {SC}")
    a("s_mov_b64 exec, -1")
    epilogue(2, 208, -1)
    hold(15)
    a("s_barrier")

    a.lab("L_attn")
    def rdK(buf, addr, off): a(f"ds_read_b128 {vr(KB[buf],4)}, v{addr} offset:{off}")
    def rdV(buf, addr, off):
        a("s_mov_b64 exec, s[22:23]")
        a(f"ds_read_b128 {vr(VB[buf][0],4)}, v{addr} offset:{off}")
        a(f"ds_read_b128 {vr(VB[buf][1],4)}, v{addr} offset:{off+512}")
        a("s_mov_b64 exec, -1")
    def mfma(dst, kbuf, q, c): a(f"v_mfma_f32_32x32x16_bf16 {vr(dst,16)}, {vr(KB[kbuf],4)}, {vr(q,4)}, {c}")
    def smf(vreg, sreg):
        if opt("x_nosmf"): return
        if opt("x_dense") == 1:
            for i in range(4): a(f"v_cvt_pk_bf16_f32 v{24+i}, v{sreg+2*i}, v{sreg+2*i+1}")
            a("s_nop 1")
            a(f"v_mfma_f32_32x32x16_bf16 {vr(OA,16)}, {vr(vreg,4)}, v[24:27], {vr(OA,16)}")
            return
        if opt("x_dense") == 2:
            a(f"v_mfma_f32_32x32x16_bf16 {vr(OA,16)}, {vr(vreg,4)}, {vr(QB,4)}, {vr(OA,16)}")
            return
        if opt("x_dense") == 3:
            a(f"v_smfmac_f32_16x16x64_bf16 {vr(OA,4)}, {vr(KB[0],4)}, {vr(sreg,8)}, v{vIDX}")
            return
        if opt("x_dense") == 4:
            a(f"v_smfmac_f32_32x32x16_bf16 {vr(OA,16)}, {vr(vreg,2)}, {vr(sreg,4)}, v{vIDX}")
            a(f"v_smfmac_f32_32x32x16_bf16 {vr(OA,16)}, {vr(vreg+2,2)}, {vr(sreg+4,4)}, v{vIDX}")
            return
        a(f"v_smfmac_f32_32x32x32_bf16 {vr(OA,16)}, {vr(vreg,4)}, {vr(sreg,8)}, v{vIDX}")
    def ex(s, i): a(f"v_exp_f32 v{s+i}, v{s+i}" if not opt("x_expc") else f"v_exp_f32 v{vT2}, v{vMF}")
    def halves_max():
        a(f"v_mov_b32 v{vT}, v{vM}")
        a("s_nop 1")
        a(f"v_permlane32_swap_b32 v{vM}, v{vT}")
        a(f"v_max_f32 v{vM}, v{vM}, v{vT}")
    def rowmax(s):
        a(f"v_max3_f32 v{vM}, v{s}, v{s+1}, v{vMF}")
        for i in range(2, 16, 2): a(f"v_max3_f32 v{vM}, v{s+i}, v{s+i+1}, v{vM}")
        halves_max()
    def tile(t, first, do_mfma, q, c, kread, vread, pre_mfma=None, extra=None, side=None):
        cur, prev = SB[t & 1], SB[(t+1) & 1]
        LO, HI = opt("lo", 14), opt("hi", 0)
        def e(i):
            if i == HI: a("s_setprio 1")
            if i == LO: a("s_setprio 0")
            ex(cur, i)
            if side and i in side:
                for x in side[i]: a(x)
        e(0); e(1)
        if not first and opt("adj", 0): smf(VB[(t-1) & 1][0], prev)
        if not first: smf(VB[(t-1) & 1][1], prev+8)
        a("s_waitcnt lgkmcnt(0)")
        if opt("x_half") and t & 2: kread = vread = None
        if opt("x_c0"): c = "0"
        if kread is not None: rdK(t & 1, *kread)
        if vread is not None: rdV((t+1) & 1, *vread)
        if extra: extra()
        e(2); e(3); e(4)
        if do_mfma:
            if pre_mfma: pre_mfma()
            if not (opt("x_noqk") and t > 2): mfma(prev, (t+1) & 1, q, c)
        for i in range(5, 10): e(i)
        if not opt("adj", 0): smf(VB[t & 1][0], cur)
        else: a("s_nop 0")
        for i in range(10, 16): e(i)
    def a_first():
        rdK(0, vKa, 8*2048); rdK(1, vKa, 7*2048); rdV(0, vVa, 8*2048)
        a("s_waitcnt lgkmcnt(3)")
        mfma(SB[0], 0, QA, vr(CD, 16))
    def finish(tlast, fb_label, done_label, br):
        a("s_nop 1")
        if opt("adj", 0): smf(VB[tlast & 1][0], SB[tlast & 1])
        smf(VB[tlast & 1][1], SB[tlast & 1]+8)
        if br:
            a.lab("L_B_fin"); a_first(); a("s_nop 4")
        else: a("s_nop 11")
        a(f"v_add_f32 v{vT}, abs(v{OA}), v{OA+8}")
        for i in range(1, 8): a(f"v_add_f32 v{vT}, abs(v{OA+i}), v{vT}")
        a(f"v_rcp_f32 v{vT2}, v{OA+8}")
        a(f"v_cmp_gt_f32 vcc, 0x71800000, v{vT}")
        a("s_cmp_lg_u32 s8, 0"); a(f"s_cbranch_scc1 {done_label}")
        if not opt("x_nofb"): a("s_cmp_eq_u64 vcc, -1"); a(f"s_cbranch_scc0 {fb_label}")
        a.lab(done_label)
        for i in range(8): a(f"v_mul_f32 v{OA+i}, v{vT2}, v{OA+i}")
        for i in range(4): a(f"v_cvt_pk_bf16_f32 v{PK[br]+i}, v{OA+2*i}, v{OA+2*i+1}")
        for i in range(4): a(f"v_min_u32 v{PK[br]+i}, -2, v{PK[br]+i}")
        a(f"s_add_u32 s62, s15, {br*32*1024}")
        a(f"buffer_store_dwordx4 {vr(PK[br],4)}, v{vL16}, {S(sWS)}, s62 offen {SC}")
    def copy(srdw, voff, lds, src):
        a(f"s_add_u32 m0, {lds[0]}, {lds[1]}"); a(f"s_add_u32 s63, {src[0]}, {src[1]}")
        a(f"buffer_load_dwordx4 v{voff}, {S(srdw)}, s63 offen {LD} lds")
    def wo_copy(n0, k):
        copy(sWOA if n0 < 64 else sWOB, vWo, ("s19", (n0+k)*1024), ("s18", ((n0 & 63)+k)*8192))
    stamp(a, 5, True)
    hold(1)
    for k in range(opt("x_idle", 0)): a("s_sleep 64")
    a(f"ds_read_b128 {vr(QB,4)}, v{vKb}")
    rdK(0, vL16, 0); rdK(1, vL16, 2048); rdV(0, vVb, 0)
    a(f"v_mov_b32 v{vKb}, v{vL16}")
    a("s_waitcnt lgkmcnt(3)")
    mfma(SB[0], 0, QB, "0")
    a(f"s_lshl_b32 s19, s{sW}, 13"); a("s_and_b32 s18, s19, 0x8000"); a("s_add_u32 s18, s18, s19"); a("s_add_u32 s18, s18, s21")
    a("s_mov_b32 s9, 0"); a(f"s_mov_b32 s3, {WS_F2:#x}")
    a("s_nop 5")
    rowmax(SB[0])
    for r in range(16): a(f"v_sub_f32 v{CM+r}, 0, v{vM}")
    a("s_nop 1")
    mfma(SB[0], 0, QB, vr(CM, 16))
    a("s_waitcnt lgkmcnt(0)")
    stamp(a, 1, True, mode=1)
    if Cfg.stamp and opt("smode") == 5:
        a("s_memtime s[72:73]"); a("s_memrealtime s[74:75]"); a("s_waitcnt lgkmcnt(0)")
    a("s_nop 9")
    X = {u: [] for u in range(64)}
    def at(u, f): X[u].append(f)
    U1 = opt("u1", 8)
    at(U1-3, lambda: a(pollF1b))
    at(U1, lambda: spin(pollF1b, 1))
    if opt("t1", 0): at(U1, lambda: a("s_barrier"))
    for k in range(8): at(U1+k, lambda k=k: copy(sWS, vL16, ("s19", 65536 + k*1024), ("s18", k*1024)))
    def marks():
        for i in range(4): a(f"v_mov_b32 v{PK[0]+i}, -1")
        a("s_add_u32 s62, s15, 32768")
        a(f"buffer_store_dwordx4 {vr(PK[0],4)}, v{vL16}, {S(sWS)}, s15 offen {SC}")
        a(f"buffer_store_dwordx4 {vr(PK[0],4)}, v{vL16}, {S(sWS)}, s62 offen {SC}")
    at(U1+8, marks)
    def st3():
        a(f"s_cmp_ge_u32 s{sW}, 4"); a("s_cbranch_scc1 L_nost3"); stores3(); a.lab("L_nost3")
    at(U1+9, st3)
    U2 = opt("u2", 24)
    def t2():
        a("s_waitcnt vmcnt(0)"); a("s_barrier")
        a(f"s_and_b32 s62, s{sW}, 3"); a("s_cbranch_scc0 L_t2x")
        a.lab("L_t2r")
    at(U2, t2)
    at(U2+1, lambda: (a(f"s_lshl_b32 s19, s{sW}, 12"), a(f"s_lshl_b32 s18, s{sW}, 15"), a(f"s_lshl_b32 s62, s{sJ}, 7"), a("s_add_u32 s18, s18, s62")))
    for k in range(4): at(U2+11+k, lambda k=k: wo_copy(0, k))
    U3 = opt("u3", 42)
    at(U3-3, lambda: a(pollF1A))
    def win():
        spin(pollF1A, 2)
        a(f"s_lshl_b32 s12, s{sB}, 14"); a("s_add_u32 s12, s12, s19")
        a("s_cmp_lt_u32 s12, 16384"); a("s_cselect_b32 s62, 0, 16384")
        a("s_add_u32 s12, s12, s13"); a("s_sub_u32 s12, s12, s62")
        a(f"buffer_load_dwordx4 {vr(QA,4)}, v{vL16}, {S(sWS)}, s11 offen {LD}")
        a(f"v_and_b32 v{vFA2}, 7, v1"); a(f"v_lshlrev_b32 v{vFA2}, 10, v{vFA2}")
        a("s_add_u32 s10, s20, 32768")
    at(U3, win)
    for k in range(4): at(U3+1+k, lambda k=k: copy(sWS, vL16, ("s19", 131072 + k*1024), ("s12", k*1024)))
    at(48, lambda: (a("s_waitcnt vmcnt(0)"), a("s_barrier")))
    for k in range(8): at(49+k, lambda k=k: wo_copy(32 + 32*(k >> 2), k & 3))
    for u in range(64):
        if u and u % 8 == 0: stamp(a, 1 + u//8, mode=1)
        if u == 30: a(f"v_add_u32 v{vKb}, 0x10000, v{vKb}")
        if u == 31: a(f"v_add_u32 v{vVb}, 0x10000, v{vVb}")
        tile(u, u == 0, u < 63, QB, vr(CM, 16), (vKb, ((u+2)*2048) & 0xffff) if u < 62 else None,
             (vVb, ((u+1)*2048) & 0xffff) if u < 63 else None, None, lambda u=u: [f() for f in X[u]])
    stamp(a, 6)
    stamp(a, 1, mode=9)
    stamp(a, 9, mode=1)
    if Cfg.stamp and opt("smode") == 5:
        a("s_memtime s[76:77]"); a("s_memrealtime s[78:79]"); a("s_waitcnt lgkmcnt(0)")
    finish(63, "L_B_fb", "L_B_done", 1)
    a("s_mov_b32 s8, 0")
    for r in range(9): a(f"v_mov_b32 v{OA+r}, 0")
    stamp(a, 7)
    stamp(a, 2, mode=9)
    hold(2)
    a.lab("L_A_max")
    rowmax(SB[0])
    for r in range(16): a(f"v_sub_f32 v{SB[0]+r}, v{SB[0]+r}, v{vM}")
    for r in range(16): a(f"v_sub_f32 v{CM+r}, 0, v{vM}")
    for r in range(16): a(f"v_sub_f32 v{CF+r}, v{CF+r}, v{vM}")
    def oloads(br):
        a(f"s_add_u32 s62, s20, {br*32768}"); a("s_add_u32 s63, s62, 4096")
        for i in range(8):
            a(f"buffer_load_dwordx4 {vr(OF[1-br]+4*i,4)}, v{vL16}, {S(sWS)}, s{62+(i>>2)} offen offset:{(i&3)*1024} {LD}")
    pollO = [f"buffer_load_dword v{vPoll}, v{vFA2}, {S(sWS)}, s20 offen {PP}", f"buffer_load_dword v{vPoll}, v{vFA2}, {S(sWS)}, s10 offen {PP}"]
    if opt("patom"):
        pollO = [f"v_mov_b32 v{vPoll}, 0\n    s_mov_b64 exec, 0xff\n    buffer_atomic_or v{vPoll}, v{vFA2}, {S(sWS)}, s{r} offen sc0\n    s_mov_b64 exec, -1" for r in (20, 10)]
    OBP = opt("obp", 4)
    OAP = -1
    for t in range(9):
        def pm(t=t):
            if t < 7:
                a(f"s_cmp_eq_u32 s7, {t}"); a(f"s_cbranch_scc1 L_A_off{t}")
                a.lab(f"L_A_mid{t}")
        def extra(t=t):
            if t not in (0, 1, OBP, OBP+2, OAP): return
            a("s_cmp_lg_u32 s8, 0"); a(f"s_cbranch_scc1 L_A_x{t}")
            if t == 0: a("s_barrier")
            if t < 2: wo_copy(96, 2*t); wo_copy(96, 2*t+1)
            if t == OBP:
                if opt("twe", 2) == 2: a("s_waitcnt vmcnt(0)"); a("s_barrier")
                a(pollO[1])
            if t == OBP+2:
                a("s_waitcnt vmcnt(0)")
                if opt("twe", 2) == 1: a("s_barrier")
                a(f"v_cmp_ne_u32 vcc, -1, v{vPoll}")
                a(f"v_mov_b32 v{OF[0]}, -1")
                a("s_cmp_eq_u64 vcc, -1"); a(f"s_cbranch_scc0 L_A_x{t}")
                oloads(1)
            if t == OAP: a(pollO[0])
            a.lab(f"L_A_x{t}")
        if t in (0, 1, 2, 4, 5, 7): stamp(a, {0:3, 1:4, 2:5, 4:6, 5:7, 7:8}[t], mode=9)
        tile(t, t == 0, t < 8, QA, vr(CM if t < 7 else CF, 16),
             (vKa, (8-(t+2))*2048) if t+2 <= 8 else None,
             (vVa, (8-(t+1))*2048) if t+1 <= 8 else None, pm, extra)
    finish(8, "L_A_fb", "L_A_done", 0)
    stamp(a, 8)
    stamp(a, 9, mode=9)
    stamp(a, 1, mode=2)
    WR = lambda i, c: 144 + 8*i + 4*c
    def wreads(i):
        for c in range(2):
            for u in range(2):
                a(f"ds_read_b64_tr_b16 {vr(WR(i,c)+2*u,2)}, v{vPW0+c} offset:{i*2048+u*1024}")
    def pm(br, i):
        for c in range(2):
            d = vr(PACC[br][c], 16)
            a(f"v_mfma_f32_32x32x16_bf16 {d}, {vr(WR(i,c),4)}, {vr(OF[1-br]+4*i,4)}, {'0' if i == 0 else d}")
    def chk(br, i):
        b = OF[1-br]+4*i
        a(f"v_max3_u32 v{vT}, v{b}, v{b+1}, {0 if i == 0 else 'v%d' % vT}")
        a(f"v_max3_u32 v{vT}, v{b+2}, v{b+3}, v{vT}")
    a("s_waitcnt vmcnt(1)")
    if not opt("twe", 2): a("s_barrier")
    stamp(a, 2, True, mode=2)
    for i in range(8): wreads(i)
    for i in range(8): chk(1, i)
    a(f"v_cmp_ne_u32 vcc, -1, v{vT}")
    a("s_cmp_eq_u64 vcc, -1"); a("s_cbranch_scc0 L_OB_get")
    a.lab("L_OB_ok")
    for i in range(8):
        a(f"s_waitcnt lgkmcnt({max(0, min(15, 4*(7-i)))})")
        pm(1, i)
        if i == opt('pp', 4): a(pollO[0])
    a(f"v_subrev_u32 v{vPW0}, 0x10000, v{vPW0}"); a(f"v_subrev_u32 v{vPW1}, 0x10000, v{vPW1}")
    stamp(a, 9)
    stamp(a, 4, mode=2)
    if not opt("tr1", 1): a("s_barrier")
    for i in range(8): wreads(i)
    stamp(a, 5, mode=2)
    spin(pollO[0], -1, cnt="s64", cmp="v_cmp_ne_u32")
    oloads(0)
    if opt("tr1", 1): a("s_barrier")
    stamp(a, 6, mode=2)
    a(f"v_sub_f32 v{vT}, 1.0, v{vG}")
    for c in range(2):
        for r in range(16): a(f"v_mul_f32 v{PACC[1][c]+r}, v{vT}, v{PACC[1][c]+r}")
    a(f"s_mov_b32 s64, {SPIN}")
    a("s_branch L_O_go")
    a.lab("L_O_retry")
    oloads(0)
    a.lab("L_O_go")
    for i in range(8):
        a(f"s_waitcnt vmcnt({7-i}) lgkmcnt(0)")
        if i == 0: stamp(a, 7, mode=2)
        pm(0, i)
        chk(0, i)
    a(f"v_cmp_ne_u32 vcc, -1, v{vT}")
    a("s_sub_u32 s64, s64, 1"); a("s_cbranch_scc1 L_O_ok")
    a("s_cmp_eq_u64 vcc, -1"); a("s_cbranch_scc0 L_O_retry")
    a.lab("L_O_ok")
    stamp(a, 8, mode=2)
    a("s_nop 6")
    for c in range(2):
        for g in range(4):
            for r in range(4*g, 4*g+4): a(f"v_fmac_f32 v{PACC[1][c]+r}, v{vG}, v{PACC[0][c]+r}")
            a(f"ds_write_b128 v{vPWR}, {vr(PACC[1][c]+4*g,4)} offset:{(c*4+g)*1088}")
    a("s_waitcnt lgkmcnt(0)"); a("s_barrier")
    stamp(a, 9, True, mode=2)
    for kq in range(4):
        for h in range(2):
            a(f"ds_read_b128 {vr(16+kq*8+h*4,4)}, v{vPRD} offset:{kq*PW + h*512}")
    a("s_waitcnt lgkmcnt(4)")
    for i in range(8): a(f"v_add_f32 v{16+i}, v{16+i}, v{24+i}")
    a("s_waitcnt lgkmcnt(0)")
    for i in range(8): a(f"v_add_f32 v{32+i}, v{32+i}, v{40+i}")
    for i in range(8): a(f"v_add_f32 v{16+i}, v{16+i}, v{32+i}")
    for i in range(4): a(f"v_cvt_pk_bf16_f32 v{48+i}, v{16+2*i}, v{16+2*i+1}")
    a(f"buffer_store_dwordx4 v[48:51], v{vOUT}, {S(sOUT)}, s33 offen {opt('ost', 'sc1')}")
    if HOLD >= 0:
        hold(3)
        if opt("x_who") is not None:
            a(f"s_cmp_lg_u32 s2, {opt('x_who')}"); a("s_cbranch_scc1 L_end")
        a.lab("L_hold")
        a("s_memrealtime s[62:63]"); a("s_waitcnt lgkmcnt(0)")
        a("s_sub_u32 s62, s62, s72"); a("s_cmp_lt_u32 s62, 6000"); a("s_cbranch_scc1 L_hold")
    if Cfg.stamp:
        a("s_waitcnt vmcnt(0)")
        a("s_memtime s[96:97]"); a("s_waitcnt lgkmcnt(0)")
        stamp_out(a, 0, 10, sWS, sW, 8)
        a("s_nop 1"); a("v_mov_b32 v1, s96"); a(f"buffer_store_dword v1, v0, {S(sWS)}, s94 offen offset:40")
    a.lab("L_end")
    a("s_endpgm")

    a.lab("L_OB_get")
    a(pollO[1])
    spin(pollO[1], -1, cnt="s64", cmp="v_cmp_ne_u32")
    a(f"s_mov_b32 s65, {SPIN}")
    a.lab("L_OB_retry")
    oloads(1)
    a("s_waitcnt vmcnt(0)")
    for i in range(8): chk(1, i)
    a(f"v_cmp_ne_u32 vcc, -1, v{vT}")
    a("s_sub_u32 s65, s65, 1"); a("s_cbranch_scc1 L_OB_ok")
    a("s_cmp_eq_u64 vcc, -1"); a("s_cbranch_scc0 L_OB_retry")
    a("s_branch L_OB_ok")
    a.lab("L_t2x")
    a(f"v_lshlrev_b32 v{vT2}, 10, v1")
    a(f"s_and_b32 s64, s{sRB}, 7"); a("s_lshl_b32 s64, s64, 16"); a(f"s_lshl_b32 s63, s{sJ}, 7"); a("s_add_u32 s64, s64, s63")
    a(f"s_cmp_eq_u32 s{sW}, 0"); a("s_cbranch_scc0 L_t2y")
    publishF1(2, vT)
    a(f"buffer_load_dword v243, v{vT2}, {S(sWOA)}, s64 offen")
    a("s_branch L_t2r")
    a.lab("L_t2y")
    a(f"buffer_load_dword v243, v{vT2}, {S(sWOB)}, s64 offen")
    a("s_branch L_t2r")
    for t in range(7):
        a.lab(f"L_A_off{t}")
        a("s_nop 7")
        for r in range(16): a(f"v_mov_b32 v{CM+r}, s5")
        a("s_nop 1")
        a(f"s_branch L_A_mid{t}")
    a.lab("L_A_fb")
    a("s_waitcnt lgkmcnt(0)")
    a("s_mov_b32 s8, 1")
    a(f"s_sub_u32 s17, 8, s{sW}"); a(f"s_cmp_eq_u32 s{sB}, 0"); a("s_cselect_b32 s17, s17, 0")
    a.lab("L_A_fb_loop")
    a("s_lshl_b32 s62, s17, 11")
    a(f"v_add_u32 v{vT}, s62, v{vKa}")
    rdK(0, vT, 0)
    a("s_sub_u32 s62, 8, s17"); a("s_lshl_b32 s62, s62, 5")
    a(f"v_add_u32 v{vT2}, s62, v{vQH}")
    a(f"v_mov_b32 v{vM}, s5")
    a("s_movk_i32 s62, 256")
    a("s_waitcnt lgkmcnt(0)")
    mfma(SB[0], 0, QA, "0")
    a("s_nop 15")
    for r in range(16):
        a(f"v_subrev_u32 v{vT}, {(r & 7) + 16*(r >> 3)}, v{vT2}")
        a(f"v_cmp_gt_u32 vcc, s62, v{vT}")
        a("s_nop 1")
        a(f"v_cndmask_b32 v{vT}, v{vM}, v{SB[0]+r}, vcc")
        a(f"v_max_f32 v{vMF}, v{vMF}, v{vT}")
    a("s_add_u32 s17, s17, 1"); a("s_cmp_lt_u32 s17, 9"); a("s_cbranch_scc1 L_A_fb_loop")
    for x in masks(): a(x)
    a_first()
    a("s_nop 15")
    a("s_branch L_A_max")
    a.lab("L_B_fb")
    a("s_waitcnt lgkmcnt(0)")
    a("s_mov_b32 s8, 1")
    a("s_mov_b32 s17, s14"); a("s_add_u32 s62, s14, 131072")
    a(f"v_mov_b32 v{vM}, s5")
    a(f"v_and_b32 v{vVb}, 0x7ff, v{vVb}")
    a.lab("L_B_fb_max")
    a(f"buffer_load_dwordx4 {vr(KB[0],4)}, v{vL16}, {S(sWS)}, s17 offen {LD}")
    a("s_add_u32 s17, s17, 2048")
    a("s_waitcnt vmcnt(0)")
    mfma(SB[0], 0, QB, "0")
    a("s_nop 15")
    for i in range(0, 16, 2): a(f"v_max3_f32 v{vM}, v{SB[0]+i}, v{SB[0]+i+1}, v{vM}")
    a("s_cmp_lt_u32 s17, s62"); a("s_cbranch_scc1 L_B_fb_max")
    halves_max()
    for r in range(16): a(f"v_sub_f32 v{CM+r}, 0, v{vM}")
    for r in range(16): a(f"v_mov_b32 v{OA+r}, 0")
    a("s_mov_b32 s17, s14")
    a.lab("L_B_fb_acc")
    a(f"buffer_load_dwordx4 {vr(KB[0],4)}, v{vL16}, {S(sWS)}, s17 offen {LD}")
    a("s_mov_b64 exec, s[22:23]")
    a(f"buffer_load_dwordx4 {vr(VB[0][0],4)}, v{vVb}, {S(sWS)}, s17 offen {LD}")
    a(f"buffer_load_dwordx4 {vr(VB[0][1],4)}, v{vVb}, {S(sWS)}, s17 offen offset:512 {LD}")
    a("s_mov_b64 exec, -1")
    a("s_add_u32 s17, s17, 2048")
    a("s_waitcnt vmcnt(0)")
    mfma(SB[0], 0, QB, vr(CM, 16))
    a("s_nop 15")
    for i in range(16): ex(SB[0], i)
    a("s_nop 1")
    smf(VB[0][0], SB[0]); smf(VB[0][1], SB[0]+8)
    a("s_cmp_lt_u32 s17, s62"); a("s_cbranch_scc1 L_B_fb_acc")
    a("s_branch L_B_fin")
    a.lab("L_code_end")
    d = desc(K, 256, 74, 256)
    if Cfg.stamp: d = d.replace("next_free_sgpr 96", "next_free_sgpr 100")
    return a.text(), d

def main(out):
    t, d = gen()
    hdr = f"""; gated_mix(sliding-window MHA, full MHA), one fused launch:
; @launch grid=(256,1,1) block=(512,1,1) lds=163840
.amdgcn_target "amdgcn-amd-amdhsa--gfx950"
"""
    open(out, "w").write(hdr + t + d)

if __name__ == "__main__":
    main(parse_args())
```

```python
import re
from common import *

WS_FL = 16 << 20
WS_F2 = WS_FL + 32768
SC = "sc1"
SPIN = 1 << 17
PW = 16*1088

sX, sWB, sWA, sWS, sWOA, sOUT, sDBG, sWOB = 24, 28, 32, 36, 40, 44, 48, 52
sW, sRB, sJ, sHD, sB, sQT, sR16, sI = 56, 57, 58, 59, 60, 61, 68, 69
S = lambda b: f"s[{b}:{b+3}]"
vXA = 2
vWA = 10
vL16, vGA = 14, 15
WF = [16, 48]
ACC = [80, 96]
GF = 112
XR = 128
vG, QB, QA = 112, 116, 120
vIDX, vKa, vVa, vKb, vVb, vT, vM, vMF, vT2, vQH, vFA, vWo, vFA2 = range(128, 141)
VB = [[144, 148], [152, 156]]
OA = 160
CD, CF = 176, 192
vPoll = 124
KB = [16, 20]
SB = [32, 48]
CM = 64
PK = [244, 248]
OF = [208, 16]
PACC = [[48, 64], [80, 96]]
vPW0, vPW1, vPWR, vPRD, vOUT = 8, 9, 2, 7, 6
QSTG = 152*1024

def gen():
    LD = "sc1"
    PP = opt("ppol", "sc1")
    PUB1 = opt("pub1", 13)
    HOLD = opt("x_hold", -1)
    def hold(k):
        if HOLD == k or (k == 0 and HOLD >= 10): a("s_memrealtime s[72:73]"); a("s_waitcnt lgkmcnt(0)")
    def wpos(c, sb):
        if c == 8: return 3*sb*32768 + 24576
        if c == 12: return (1+sb)*32768 + 24576
        n = 2*(c-9 if c < 12 else c-10) + sb
        return (n//3)*32768 + (n % 3)*8192
    a = A(); K = NAME + "_kernel"; head(a, K)
    a("s_cmp_ge_u32 s2, 256"); a("s_cbranch_scc1 L_end")
    stamp(a, 0)
    hold(0)
    a("s_load_dwordx2 s[4:5], s[0:1], 0")
    a("s_load_dwordx4 s[12:15], s[0:1], 32")
    a("s_load_dwordx4 s[8:11], s[0:1], 8")
    a("s_load_dwordx2 s[6:7], s[0:1], 48")
    a("s_load_dwordx4 s[16:19], s[0:1], 56")
    a("s_load_dwordx2 s[20:21], s[0:1], 72")
    a("v_lshrrev_b32 v2, 6, v0")
    a("v_and_b32 v1, 63, v0")
    a("s_bfe_u32 s62, s2, 0x20003")
    a(f"v_readfirstlane_b32 s{sW}, v2")
    a("s_and_b32 s63, s2, 3"); a("s_lshl_b32 s63, s63, 2"); a(f"s_add_u32 s{sR16}, s63, s62")
    a(f"s_lshr_b32 s{sI}, s2, 5")
    a(f"v_lshlrev_b32 v{vL16}, 4, v1")
    a(f"s_cmp_lt_u32 s{sW}, 4"); a("s_cbranch_scc1 L_compute")

    def ids():
        a(f"s_lshl_b32 s{sRB}, s{sR16}, 1"); a(f"s_and_b32 s62, s{sI}, 1"); a(f"s_add_u32 s{sRB}, s{sRB}, s62")
        a(f"s_and_b32 s{sJ}, s2, 4"); a(f"s_lshr_b32 s62, s{sI}, 1"); a(f"s_add_u32 s{sJ}, s{sJ}, s62")
        a(f"s_and_b32 s{sHD}, s2, 7"); a(f"s_lshl_b32 s{sHD}, s{sHD}, 2"); a("s_bfe_u32 s62, s2, 0x20003"); a(f"s_add_u32 s{sHD}, s{sHD}, s62")
        a(f"s_mov_b32 s{sB}, s{sI}")
        a(f"s_lshl_b32 s{sQT}, s{sB}, 3"); a(f"s_add_u32 s{sQT}, s{sQT}, s{sW}")
    def roles():
        a(f"s_lshr_b32 s64, s{sI}, 1"); a("s_xor_b32 s64, s64, s2"); a("s_and_b32 s64, s64, 1"); a("s_lshl_b32 s64, s64, 1")
        a(f"s_and_b32 s65, s{sI}, 1"); a("s_add_u32 s65, s65, s64"); a("s_xor_b32 s64, s65, 2")
        a(f"s_and_b32 s22, s{sI}, 3"); a(f"s_add_u32 s23, s{sI}, 1"); a("s_and_b32 s23, s23, 3")
        a(f"s_cmp_lt_u32 s{sI}, 4"); a("s_cselect_b32 s64, s64, s22"); a("s_cselect_b32 s65, s65, s23")
        a("s_and_b32 s22, s2, 4"); a("s_add_u32 s64, s64, s22"); a("s_add_u32 s65, s65, s22")
    def common_srds():
        srd(a, sWS, 20, 21, ws_size())
        srd(a, sOUT, 16, 17, 2048*512*2)
        srd(a, sDBG, 18, 19, 256)
        srd(a, sWOA, 10, 11, 512*512*2)
        srd(a, sWOB, 14, 15, 512*512*2)

    class Rec:
        def __init__(s): s.L = []
        def __call__(s, t): s.L.append(t)
    def late_setup():
        a = Rec()
        a(f"s_lshl_b32 s20, s{sRB}, 17"); a(f"s_and_b32 s4, s{sW}, 1"); a("s_lshl_b32 s4, s4, 16"); a("s_add_u32 s20, s20, s4")
        a(f"s_lshr_b32 s4, s{sW}, 1"); a("s_lshl_b32 s4, s4, 13"); a("s_add_u32 s20, s20, s4"); a(f"s_add_u32 s20, s20, {WS_O:#x}")
        a(f"v_lshrrev_b32 v116, 5, v1"); a(f"v_bfe_u32 v117, v1, 2, 2")
        a(f"v_lshl_add_u32 v{vPW0}, v116, 2, v117"); a(f"v_lshlrev_b32 v{vPW0}, 7, v{vPW0}")
        a(f"v_bfe_u32 v116, v1, 4, 1"); a(f"v_lshlrev_b32 v116, 1, v116")
        a(f"v_bfe_u32 v117, v1, 1, 1"); a(f"v_add_u32 v116, v116, v117")
        a(f"v_bfe_u32 v117, v1, 3, 1"); a(f"v_lshl_or_b32 v116, v117, 2, v116")
        a(f"v_lshl_add_u32 v{vPW0}, v116, 4, v{vPW0}")
        a(f"v_and_b32 v116, 1, v1"); a(f"v_lshl_add_u32 v{vPW0}, v116, 3, v{vPW0}")
        a(f"s_lshr_b32 s4, s{sW}, 1"); a("s_lshl_b32 s4, s4, 14"); a("s_add_u32 s4, s4, 65536")
        a(f"v_add_u32 v{vPW0}, s4, v{vPW0}")
        a(f"v_xor_b32 v{vPW1}, 64, v{vPW0}")
        a(f"s_lshr_b32 s4, s{sW}, 1"); a(f"s_mul_i32 s4, s4, {PW}"); a(f"s_and_b32 s5, s{sW}, 1"); a(f"s_mul_i32 s5, s5, {8*1088}")
        a("s_add_u32 s4, s4, s5"); a("s_add_u32 s4, s4, 65536")
        a(f"v_add_u32 v{vPWR}, s4, v{vL16}")
        a("v_and_b32 v116, 7, v1"); a("v_lshrrev_b32 v117, 3, v1")
        a(f"s_and_b32 s4, s{sW}, 3"); a("s_lshl_b32 s4, s4, 3"); a("v_add_u32 v117, s4, v117")
        a(f"v_mul_u32_u24 v{vPRD}, 1088, v116"); a(f"v_lshl_add_u32 v{vPRD}, v117, 4, v{vPRD}")
        a(f"s_lshr_b32 s4, s{sW}, 2"); a(f"s_mul_i32 s5, s4, {8*1088}"); a("s_add_u32 s5, s5, 65536")
        a(f"v_add_u32 v{vPRD}, s5, v{vPRD}")
        a(f"v_lshlrev_b32 v{vOUT}, 10, v117"); a(f"v_lshl_add_u32 v{vOUT}, v116, 4, v{vOUT}")
        a("s_lshl_b32 s4, s4, 15"); a(f"s_lshl_b32 s5, s{sRB}, 16"); a("s_add_u32 s4, s4, s5")
        a(f"s_lshl_b32 s5, s{sJ}, 7"); a("s_add_u32 s33, s4, s5")
        return a.L

    def attn_setup():
        L = []; e = L.append
        e(f"s_lshl_b32 s11, s{sHD}, 6"); e(f"s_add_u32 s11, s11, s{sQT}"); e("s_lshl_b32 s11, s11, 10")
        e(f"s_add_u32 s11, s11, {WS_Q:#x}")
        e(f"s_lshl_b32 s13, s{sHD}, 17")
        e(f"s_add_u32 s14, s13, {32*131072:#x}")
        e(f"s_mov_b32 s10, {WS_FL:#x}")
        e("s_and_b32 s4, s2, 3"); e("s_add_u32 s5, s4, 3"); e("s_and_b32 s5, s5, 3"); e("s_xor_b32 s6, s4, 2")
        e("s_and_b32 s7, s2, 1"); e("s_mul_i32 s7, s7, 0x1011"); e("s_lshl_b32 s9, s4, 8"); e("s_add_u32 s7, s7, s9"); e("s_add_u32 s7, s7, 0x420")
        e("s_mul_i32 s6, s6, 0x110"); e("s_add_u32 s5, s5, s6"); e("s_add_u32 s5, s5, 0x404")
        e(f"v_bfe_u32 v{vT}, v1, 2, 2"); e(f"v_and_b32 v{vT2}, 3, v1"); e(f"v_lshl_add_u32 v{vT}, v{vT2}, 3, v{vT}")
        e(f"v_lshlrev_b32 v{vT}, 7, v{vT}")
        e(f"v_lshrrev_b32 v{vT2}, 4, v1"); e(f"v_lshlrev_b32 v{vT2}, 2, v{vT2}")
        e(f"v_bfe_u32 v{vFA}, s7, v{vT2}, 4"); e(f"v_lshl_add_u32 v{vFA}, v{vFA}, 12, v{vT}")
        e(f"v_bfe_u32 v{vFA2}, s5, v{vT2}, 4"); e(f"v_lshl_add_u32 v{vFA2}, v{vFA2}, 12, v{vT}")
        e("s_and_b32 s4, s2, 4"); e("s_lshl_b32 s4, s4, 7")
        e(f"v_add_u32 v{vFA}, s4, v{vFA}"); e(f"v_add_u32 v{vFA2}, s4, v{vFA2}")
        e(f"v_and_b32 v{vT}, 0xc80, v{vT}")
        e(f"s_lshr_b32 s4, s{sW}, 1"); e("s_lshl_b32 s4, s4, 8"); e(f"s_lshr_b32 s5, s{sRB}, 2"); e("s_lshl_b32 s5, s5, 12"); e("s_add_u32 s4, s4, s5")
        e(f"v_add_u32 v{vT}, s4, v{vT}")
        e("v_cmp_lt_u32 vcc, 47, v1")
        e("s_bfe_u32 s4, s2, 0x10001"); e("s_lshl_b32 s4, s4, 15")
        e(f"v_cndmask_b32 v{vFA2}, v{vFA2}, v{vT}, vcc")
        e("s_add_u32 s16, s14, s4"); e("s_xor_b32 s4, s4, 0x8000"); e("s_add_u32 s21, s14, s4")
        e(f"v_lshrrev_b32 v{vT}, 3, v1"); e(f"v_bfe_u32 v{vT2}, v1, 4, 1"); e(f"v_lshlrev_b32 v{vT2}, 2, v{vT2}")
        e(f"v_and_b32 v{vWo}, 7, v1"); e(f"v_xor_b32 v{vWo}, v{vWo}, v{vT2}"); e(f"v_lshlrev_b32 v{vWo}, 4, v{vWo}")
        e(f"v_lshl_add_u32 v{vWo}, v{vT}, 10, v{vWo}")
        e(f"v_mov_b32 v{vIDX}, 0xdddddddd")
        e("s_mov_b32 s22, 0x0000ffff"); e("s_mov_b32 s23, 0x0000ffff")
        e(f"v_lshrrev_b32 v{vQH}, 5, v1")
        e(f"v_and_b32 v{vVb}, 15, v1"); e(f"v_lshlrev_b32 v{vVb}, 4, v{vVb}")
        e(f"v_lshl_add_u32 v{vVb}, v{vQH}, 8, v{vVb}"); e(f"v_add_u32 v{vVb}, 1024, v{vVb}")
        e(f"s_lshl_b32 s4, s{sW}, 11"); e("s_add_u32 s4, s4, 131072")
        e(f"v_add_u32 v{vKa}, s4, v{vL16}")
        e(f"v_add_u32 v{vVa}, s4, v{vVb}")
        e(f"s_lshl_b32 s4, s{sW}, 10"); e(f"s_add_u32 s4, s4, {QSTG}")
        e(f"v_add_u32 v{vKb}, s4, v{vL16}")
        e(f"v_and_b32 v{vM}, 31, v1")
        e(f"v_lshlrev_b32 v{vQH}, 3, v{vQH}"); e(f"v_sub_u32 v{vQH}, v{vM}, v{vQH}")
        e(f"v_and_b32 v{vT}, 0x1b, v{vM}")
        e(f"v_cmp_eq_u32 vcc, 16, v{vT}")
        e(f"v_mov_b32 v{vT2}, {0 if opt('x_noones') else 0x3f803f80:#x}")
        e(f"v_mov_b32 v{vT}, 0")
        for b in range(2):
            for j in range(2):
                for i in range(4): e(f"v_cndmask_b32 v{VB[b][j]+i}, v{vT}, v{vT2}, vcc")
        e(f"s_mov_b32 s5, {NEG_INF:#x}")
        e(f"s_cmp_eq_u32 s{sB}, 0\n    s_cselect_b32 s6, s5, 0\n    s_cselect_b32 s7, s{sW}, 64")
        e(f"v_mov_b32 v{vMF}, s5")
        e("s_mov_b32 s8, 0")
        e(f"s_lshl_b32 s15, s{sQT}, 6"); e(f"s_add_u32 s15, s15, s{sHD}"); e("s_lshl_b32 s15, s15, 10")
        e(f"s_add_u32 s15, s15, {WS_O:#x}")
        L += masks()
        return L
    def masks():
        L = []; e = L.append
        e(f"v_mov_b32 v{vT}, s5"); e(f"v_mov_b32 v{vT2}, s6")
        for r in range(16):
            e(f"v_cmp_le_i32 vcc, {(r & 7) + 16*(r >> 3)}, v{vQH}")
            e(f"v_mov_b32 v{OA+r}, 0")
            e("s_nop 0")
            e(f"v_cndmask_b32 v{CD+r}, v{vT}, v{OA+r}, vcc")
            e(f"v_cndmask_b32 v{CF+r}, v{vT2}, v{vT}, vcc")
        return L
    def gread(t):
        a(f"s_and_b32 s62, s{sI}, 1"); a("s_lshl_b32 s62, s62, 1"); a(f"s_and_b32 s63, s{sW}, 1"); a("s_add_u32 s62, s62, s63")
        a("s_lshl_b32 s62, s62, 7"); a("s_add_u32 s62, s62, 29696")
        a(f"v_and_b32 v{t}, 31, v1"); a(f"v_lshl_add_u32 v{t}, v{t}, 2, s62")
        a(f"ds_read_b32 v{vG}, v{t}")
    uid = [0]
    def spin(load, stage, cnt="s62", reg=vPoll, cmp="v_cmp_le_u32"):
        uid[0] += 1; n = uid[0]
        a(f"s_mov_b32 {cnt}, {SPIN}")
        a(f"s_branch L_chk{n}")
        a.lab(f"L_spin{n}")
        if opt("sleep", 0): a(f"s_sleep {opt('sleep', 0)}")
        a(load)
        a.lab(f"L_chk{n}")
        a("s_waitcnt vmcnt(0)")
        if "x4" in load:
            a(f"v_min3_u32 v{reg}, v{reg}, v{reg+1}, v{reg+2}"); a(f"v_min_u32 v{reg}, v{reg}, v{reg+3}")
        a(f"{cmp} vcc, {stage}, v{reg}")
        a(f"s_sub_u32 {cnt}, {cnt}, 1"); a(f"s_cbranch_scc1 L_ok{n}")
        a("s_cmp_eq_u64 vcc, -1"); a(f"s_cbranch_scc0 L_spin{n}")
        a.lab(f"L_ok{n}")
    pollF1 = f"buffer_load_dword v{vPoll}, v{vFA}, {S(sWS)}, s10 offen {PP}"
    pollF1b = f"buffer_load_dwordx4 {vr(vPoll,4)}, v{vFA}, {S(sWS)}, s3 offen {PP}"
    pollF1A = f"buffer_load_dword v{vPoll}, v{vFA2}, {S(sWS)}, s10 offen {PP}"

    a(f"s_sub_u32 s66, s{sW}, 4")
    a("v_lshrrev_b32 v2, 3, v1")
    a("v_and_b32 v3, 7, v1")
    a("v_lshrrev_b32 v4, 4, v1")
    a("v_xor_b32 v5, v3, v4")
    a("v_lshlrev_b32 v5, 4, v5")
    a("v_lshl_add_u32 v6, v2, 10, v5")
    a(f"s_lshl_b32 s63, s{sR16}, 17"); a("s_lshl_b32 s64, s66, 15"); a("s_add_u32 s63, s63, s64")
    a("v_add_u32 v16, s63, v6")
    a("v_xor_b32 v17, 64, v16"); a("v_add_u32 v17, 8192, v17")
    a("v_add_u32 v18, 16384, v16"); a("v_add_u32 v19, 16384, v17")
    a("v_and_b32 v5, 1, v4")
    a("v_lshlrev_b32 v5, 2, v5")
    a("v_xor_b32 v5, v3, v5")
    a("v_lshlrev_b32 v5, 4, v5")
    a("v_mul_u32_u24 v8, 3072, v2")
    a("s_mul_i32 s63, s66, 49152")
    a("v_add3_u32 v20, v8, v5, s63")
    a("v_add_u32 v21, 24576, v20")
    a("s_lshl_b32 s3, s62, 1"); a(f"s_add_u32 s3, s3, s{sI}"); a("s_and_b32 s3, s3, 7")
    R = opt("rot", 4)
    if R == 0: a("s_mov_b32 s3, 0")
    if R >= 16:
        a("s_and_b32 s3, s2, 3"); a("s_lshl_b32 s3, s3, 1"); a("s_and_b32 s63, s2, 4"); a("s_add_u32 s3, s3, s63")
        if R == 17: a(f"s_and_b32 s63, s{sI}, 1"); a("s_lshl_b32 s63, s63, 1"); a("s_add_u32 s3, s3, s63")
        if R == 18: a(f"s_add_u32 s63, s{sI}, s62"); a("s_and_b32 s63, s63, 1"); a("s_lshl_b32 s63, s63, 1"); a("s_add_u32 s3, s3, s63")
        if R == 19: a(f"s_add_u32 s63, s{sI}, s62"); a("s_and_b32 s63, s63, 3"); a("s_add_u32 s3, s3, s63")
        a("s_and_b32 s3, s3, 7")
    if R == 5:
        a(f"s_add_u32 s3, s62, s{sI}"); a("s_and_b32 s3, s3, 3"); a("s_lshl_b32 s3, s3, 1"); a("s_bfe_u32 s63, s2, 0x10002"); a("s_add_u32 s3, s3, s63")
    if R == 4: a(f"s_add_u32 s3, s62, s{sI}"); a("s_and_b32 s3, s3, 3"); a("s_lshl_b32 s3, s3, 1")
    roles()
    a("s_lshl_b32 s64, s64, 7"); a("s_lshl_b32 s65, s65, 7"); a("s_add_u32 s65, s65, 2048")
    a(f"s_cmp_lt_u32 s{sI}, 4"); a("s_cselect_b32 s22, 1024, 0"); a("s_add_u32 s64, s64, s22")
    a(f"s_cmp_lt_u32 s{sI}, 2"); a("s_cselect_b32 s22, s65, s64"); a("s_cselect_b32 s71, s64, s65")
    a("s_lshl_b32 s67, s66, 12"); a("s_add_u32 s67, s67, 32768")
    a("s_lshl_b32 s23, s66, 11"); a("s_add_u32 s23, s23, 32768")
    for d, sz in ((sX, 2048*512*2), (sWB, 512*1536*2)):
        a(f"s_mov_b32 s{d+2}, {sz:#x}"); a(f"s_mov_b32 s{d+3}, 0x20000")
    stamp(a, 1, mode=8)
    a("s_waitcnt lgkmcnt(0)")
    stamp(a, 2, mode=8)
    for d, lo in ((sX, 4), (sWB, 12)):
        a(f"s_mov_b32 s{d}, s{lo}"); a(f"s_and_b32 s{d+1}, s{lo+1}, 0xffff")
    RW = ["s22", "s23"]
    def wblock(srdw, col, ldsoff):
        a(f"s_mul_i32 s63, s3, {64*3072}"); a(f"s_add_u32 s63, s63, {col}")
        for e in range(2):
            a(f"s_add_u32 m0, {RW[1]}, {ldsoff + e*1024}")
            a("s_nop 0")
            a(f"buffer_load_dwordx4 v{20+e}, {S(srdw)}, s63 offen lds")
        a("s_add_u32 s3, s3, 1"); a("s_and_b32 s3, s3, 7")
    seq = []
    def issue(c):
        slot = c & 3
        a("s_lshl_b32 s62, s3, 7")
        for il in range(4):
            a(f"s_add_u32 m0, s67, {slot*32768 + il*1024}")
            a("s_nop 0")
            a(f"buffer_load_dwordx4 v{16+il}, {S(sX)}, s62 offen lds")
        wblock(sWB, RW[0], slot*32768 + 16384)
        seq.append((c, 6))
    def issue_w(c, sb):
        k = 2*((c-8) & 3) + sb
        a(f"s_add_u32 s3, s64, {k}"); a("s_and_b32 s3, s3, 7")
        wblock(sX if c < 12 else sWA, "s71" if c < 12 else "s65", wpos(c, sb))
        seq.append((c, 2))
    def wait_for(c):
        last = max(k for k, (cc, n) in enumerate(seq) if cc == c)
        a(f"s_waitcnt vmcnt({sum(n for cc, n in seq[last+1:])})")
    a("s_lshl_b32 s64, s66, 8"); a("s_lshl_b32 s65, s3, 7"); a("s_add_u32 s65, s65, s64")
    issue(0)
    stamp(a, 3, mode=8)
    a("v_lshlrev_b32 v24, 2, v1"); a("v_add_u32 v24, s65, v24"); a("v_and_b32 v24, 0x3ff, v24")
    srd(a, sWOB, 6, 7, 1024)
    a("s_add_u32 m0, s64, 28672"); a("s_nop 0")
    a(f"buffer_load_dword v24, {S(sWOB)}, 0 offen lds")
    issue(1)
    stamp(a, 4, mode=8)
    issue(2)
    stamp(a, 5, mode=8)
    srd(a, sWA, 8, 9, 512*1536*2)
    common_srds()
    a("s_mov_b32 s17, s22"); a("s_mov_b32 s18, s23"); RW[:] = ["s17", "s18"]
    ids()
    a(f"s_xor_b32 s65, s{sI}, 2"); a("s_and_b32 s65, s65, 3"); a("s_and_b32 s62, s2, 4"); a("s_add_u32 s65, s65, s62"); a("s_lshl_b32 s65, s65, 7")
    a(f"s_and_b32 s62, s{sI}, 4"); a("s_lshl_b32 s62, s62, 8"); a("s_add_u32 s65, s65, s62")
    SCH = {5: {4: [8], 5: [12], 7: [9], 8: [10, 11], 10: [13, 14], 11: [15]},
           2: {4: [8], 6: [12], 7: [9], 8: [10, 11], 10: [13, 14], 11: [15]},
           6: {4: [8], 5: [12], 7: [9], 8: [10], 9: [11], 10: [13, 14], 11: [15]},
           7: {4: [8, 12], 7: [9], 8: [10, 11], 10: [13, 14], 11: [15]}}[opt("sch", 5)]
    lset = late_setup() + attn_setup()
    LSPLIT = opt("lsplit", 110)
    def after(k):
        for cc in SCH.get(k, []):
            for sb in range(2): issue_w(cc, sb)
    for c in range(0, 9):
        stamp(a, c+1, mode=6)
        wait_for(c)
        stamp(a, c+1, mode=7)
        if c < 2: stamp(a, 6+2*c, mode=8)
        a("s_barrier")
        if c < 2: stamp(a, 7+2*c, mode=8)
        stamp(a, c+1, mode=4)
        if c == 0: hold(10)
        if c == 4: hold(16)
        if c == 8: hold(11)
        if c + 3 < 8: issue(c+3)
        if c == 4:
            a(f"s_cmp_lt_u32 s{sI}, 4")
            a(f"s_cselect_b32 s{sX}, s{sWB}, s{sWA}"); a(f"s_cselect_b32 s{sX+1}, s{sWB+1}, s{sWA+1}")
            a(f"s_mov_b32 s{sX+2}, {512*1536*2:#x}")
            a("s_mov_b32 s64, s3")
        after(c)
    wait_for(9); a("s_barrier")
    after(9)
    wait_for(11); a("s_barrier")
    after(10)
    gread(3)
    a("s_waitcnt lgkmcnt(0)")
    a("s_barrier")
    hold(12)
    after(11)
    for x in lset[:LSPLIT]: a(x)
    a("s_waitcnt vmcnt(0)"); a("s_barrier")
    hold(13)
    L2 = opt("lsplit2", 140)
    while L2 < len(lset) and not lset[L2].startswith("v_cmp"): L2 += 1
    for x in lset[LSPLIT:L2]: a(x)
    stamp(a, 1)
    NP = opt("npoll", 2)
    if NP < 4: a(f"s_cmp_ge_u32 s66, {NP}"); a("s_cbranch_scc1 L_nokv")
    a(pollF1)
    spin(pollF1, 1)
    hold(14)
    stamp(a, 2)
    qn = 8//NP
    a(f"s_mul_i32 s62, s66, {qn*1024}")
    a(f"s_lshl_b32 s63, s{sW}, 10"); a("s_sub_u32 s63, s11, s63"); a("s_add_u32 s63, s63, s62"); a(f"s_add_u32 s63, s63, {32*64*1024:#x}")
    for g in range((qn+3)//4):
        a(f"s_add_u32 m0, s62, {QSTG + g*4096}"); a(f"s_add_u32 s64, s63, {g*4096}")
        for i in range(min(qn, 4)): a(f"buffer_load_dwordx4 v{vL16}, {S(sWS)}, s64 offen offset:{i*1024} {LD} lds")
    a(f"s_mul_i32 s62, s66, {qn*4096}"); a("s_add_u32 s63, s62, s16")
    for q in range(2):
        if NP == 1 and q: a("s_waitcnt vmcnt(24)")
        for g in range(qn):
            a(f"s_add_u32 m0, s62, {q*32768 + g*4096}"); a(f"s_add_u32 s64, s63, {q*65536 + g*4096}")
            for i in range(4): a(f"buffer_load_dwordx4 v{vL16}, {S(sWS)}, s64 offen offset:{i*1024} {LD} lds")
    a.lab("L_nokv")
    for x in lset[L2:]: a(x)
    a(f"s_waitcnt vmcnt({4*qn if opt('t1', 0) else 0})"); a("s_barrier")
    stamp(a, 3)
    a("s_branch L_attn")

    a.lab("L_compute")
    CPF = opt("codepf", 2)
    if CPF:
        a("s_getpc_b64 s[62:63]")
        a.lab("L_pc")
        if CPF == 1:
            a("s_lshr_b32 s64, s2, 3"); a("s_cmp_eq_u32 s64, 1"); a("s_cbranch_scc0 L_nocpf")
            a("v_lshlrev_b32 v20, 7, v0")
        else:
            a(f"s_cmp_eq_u32 s{sW}, 2"); a("s_cbranch_scc0 L_nocpf")
            a("s_lshr_b32 s64, s2, 3"); a("s_lshl_b32 s64, s64, 7")
            a("v_and_b32 v20, 15, v1"); a("v_lshlrev_b32 v20, 12, v20"); a("v_add_u32 v20, s64, v20")
        a(f"s_sub_u32 s62, s62, L_pc-{K}"); a("s_subb_u32 s63, s63, 0")
        a(f"v_min_u32 v20, L_code_end-{K}-4, v20")
        a("v_mov_b32 v21, s63")
        a("v_add_co_u32 v20, vcc, s62, v20")
        a("s_nop 1")
        a("v_addc_co_u32 v21, vcc, 0, v21, vcc")
        a("global_load_dword v255, v[20:21], off")
        a.lab("L_nocpf")
    a("v_lshrrev_b32 v16, 5, v1")
    a("v_and_b32 v17, 31, v1")
    a("v_lshrrev_b32 v18, 1, v17"); a("v_and_b32 v18, 7, v18")
    a(f"s_lshl_b32 s62, s{sW}, 12"); a("s_add_u32 s62, s62, 32768")
    a("v_lshlrev_b32 v19, 7, v17"); a("v_add_u32 v19, s62, v19")
    for t in range(4):
        a(f"v_add_u32 v20, {2*t}, v16"); a("v_xor_b32 v20, v20, v18")
        a(f"v_lshl_add_u32 v{vXA+t}, v20, 4, v19")
        a(f"v_add_u32 v{vXA+4+t}, 0x10000, v{vXA+t}")
    a("v_bfe_u32 v18, v1, 2, 2")
    a("v_lshl_add_u32 v19, v16, 3, v18"); a("v_lshlrev_b32 v19, 7, v19")
    a("v_bfe_u32 v20, v1, 4, 1"); a("v_lshlrev_b32 v20, 1, v20")
    a("v_bfe_u32 v21, v1, 1, 1"); a("v_add_u32 v20, v20, v21")
    a("v_bfe_u32 v21, v1, 3, 1"); a("v_lshl_or_b32 v20, v21, 2, v20")
    a("v_lshl_add_u32 v19, v20, 4, v19")
    a("v_and_b32 v20, 1, v1"); a("v_lshl_add_u32 v19, v20, 3, v19")
    a(f"v_add_u32 v{vWA}, 32768, v19"); a(f"v_xor_b32 v{vWA+1}, 64, v{vWA}")
    a(f"v_add_u32 v{vWA+2}, 0x10000, v{vWA}"); a(f"v_add_u32 v{vWA+3}, 0x10000, v{vWA+1}")
    a(f"v_lshlrev_b32 v{vGA}, 4, v16"); a(f"v_add_u32 v{vGA}, 28672, v{vGA}")
    ids()
    roles()
    a(f"s_lshl_b32 s66, s{sR16}, 2"); a(f"s_add_u32 s66, s66, s{sW}")
    a("s_lshl_b32 s62, s64, 8"); a("s_add_u32 s62, s62, s66"); a("s_add_u32 s62, s62, 2048")
    a(f"s_xor_b32 s64, s{sI}, 2"); a("s_and_b32 s64, s64, 3"); a("s_add_u32 s64, s64, s22"); a("s_lshl_b32 s64, s64, 8"); a("s_add_u32 s64, s64, s66")
    a("s_lshl_b32 s24, s62, 11"); a("s_lshl_b32 s25, s62, 10"); a(f"s_add_u32 s25, s25, {WS_Q:#x}")
    a("s_lshl_b32 s26, s64, 11"); a("s_lshl_b32 s27, s64, 10"); a(f"s_add_u32 s27, s27, {WS_Q:#x}")
    a("s_mov_b32 s28, 0x10000"); a("s_mov_b32 s29, 0x20000")
    a(f"s_cmp_lt_u32 s{sI}, 4")
    a("s_cselect_b32 s24, s24, s25"); a("s_cselect_b32 s25, s29, s28")
    a("s_cselect_b32 s26, s27, s26"); a("s_cselect_b32 s27, s28, s29")
    a("s_cselect_b32 s64, 2048, 0")
    a("s_lshl_b32 s62, s65, 8"); a("s_add_u32 s62, s62, s66"); a("s_add_u32 s62, s62, s64")
    a("s_lshl_b32 s28, s62, 11"); a("s_add_u32 s29, s28, 0x40000")
    a(f"s_mov_b32 s32, {QSCALE:#x}")
    a("v_mov_b32 v0, 0")
    a("s_waitcnt lgkmcnt(0)")
    common_srds()
    NI = opt("ni", 16); KBI = 64//NI
    for i in range(4): a(f"v_mov_b32 v{20+i}, 0")
    a("v_mov_b32 v254, 1")
    a(f"s_lshl_b32 s35, s{sW}, 8"); a("s_add_u32 s35, s35, s2"); a("s_sub_u32 s35, s35, 768")
    a(f"s_cmp_lt_u32 s35, {NI}"); a("s_cbranch_scc0 L_noinit")
    a(f"s_mul_i32 s62, s2, {KBI*1024}"); a(f"s_add_u32 s62, s62, {WS_FL:#x}"); a("s_add_u32 s63, s62, 4096")
    for i in range(KBI): a(f"buffer_store_dwordx4 v[20:23], v{vL16}, {S(sWS)}, s{62+(i>>2)} offen offset:{(i&3)*1024} {SC}")
    a.lab("L_noinit")
    def raise_init(tag):
        a(f"s_cmp_lt_u32 s35, {NI}"); a(f"s_cbranch_scc0 L_noinit2{tag}")
        a(f"s_mul_i32 s62, s2, {256//NI}")
        a("s_waitcnt vmcnt(0)")
        a("s_mov_b64 exec, 1")
        a(f"buffer_store_dword v254, v{vL16}, {S(sDBG)}, s62 offen {SC}")
        a("s_mov_b64 exec, -1")
        a.lab(f"L_noinit2{tag}")

    def chunk_of(m): return m if m < 8 else 8 + ((m - 8) >> 1)
    def reads(m):
        c = chunk_of(m); slot = c & 3; b = m & 1; L = []
        wp = slot*32768 + 16384 if m < 8 else wpos(c, (m - 8) & 1)
        for t in range(4):
            if m < 8:
                L.append(f"ds_read_b128 {vr(XR + 4*(4*m+t), 4)}, v{vXA + 4*(slot>>1) + t} offset:{(slot&1)*32768}")
            for cc in range(2):
                for u in range(2):
                    L.append(f"ds_read_b64_tr_b16 {vr(WF[b]+8*t+4*cc+2*u,2)}, v{vWA+2*(wp>>16)+cc} offset:{(wp & 0xffff) + (16*t+4*u)*128}")
        return L
    def greads(m): return [f"ds_read_b128 {vr(GF+4*t,4)}, v{vGA} offset:{(4*m+t)*32}" for t in range(4)]
    def dots(m): return [f"v_dot2_f32_bf16 v0, v{XR+16*m+i}, v{GF+i}, v0" for i in range(16)]
    def mfmas(m, vphase):
        b = m & 1; L = []
        for t in range(4):
            x = vr(XR + 4*(4*(m & 7)+t), 4)
            for cc in range(2):
                d = vr(ACC[cc], 16); c0 = "0" if (m & 7) == 0 and t == 0 else d
                w = vr(WF[b]+8*t+4*cc, 4)
                if opt("x_m16"):
                    x2 = vr(XR + 4*(4*(m & 7)+(t^1)), 4)
                    d1 = vr(ACC[cc]+8*(t&1), 4); d2 = vr(ACC[cc]+8*(t&1)+4, 4)
                    z = (m & 7) == 0 and t < 2
                    L.append(f"v_mfma_f32_16x16x32_bf16 {d1}, {w}, {x}, {0 if z else d1}\n    v_mfma_f32_16x16x32_bf16 {d2}, {w}, {x2}, {0 if z else d2}")
                    continue
                L.append(f"v_mfma_f32_32x32x16_bf16 {d}, {x}, {w}, {c0}" if (m >> 3) == vphase else f"v_mfma_f32_32x32x16_bf16 {d}, {w}, {x}, {c0}")
        return L
    ST = opt("st", "sc1")
    def stores3():
        for i in range(4):
            a(f"buffer_store_dwordx4 {vr(208+4*i,4)}, v5, {S(sWS)}, s26 offen {ST}")
            a("s_add_u32 s26, s26, s27")
    def epilogue(ph, pk, vphase):
        a("s_nop 6" if ph == 0 else "s_nop 10")
        if ph == 2 or (ph == 0 and vphase == 1):
            a(f"s_cmp_lt_u32 s{sI}, 4"); a(f"s_cbranch_scc{1 if ph == 0 else 0} L_noscale{ph}")
            for r in range(32): a(f"v_mul_f32 v{ACC[0]+r}, s32, v{ACC[0]+r}")
            a.lab(f"L_noscale{ph}")
        for cc in range(2):
            for p in range(2):
                for i in range(4): a(f"v_cvt_pk_bf16_f32 v{pk+i}, v{ACC[cc]+8*p+2*i}, v{ACC[cc]+8*p+2*i+1}")
                if ph == vphase: a(f"buffer_store_dwordx4 {vr(pk,4)}, v3, {S(sWS)}, s{28+cc} offen offset:{p*512} {ST}")
                elif ph < 2:
                    a(f"buffer_store_dwordx4 {vr(pk,4)}, v4, {S(sWS)}, s24 offen {ST}")
                    a("s_add_u32 s24, s24, s25")
                pk += 4
        a("s_nop 1")
    def publishF1(stage, t1):
        a(f"v_mov_b32 v{t1}, {stage}")
        a("s_lshl_b32 s62, s2, 7"); a(f"s_add_u32 s62, s62, {WS_FL:#x}")
        a("s_mov_b64 exec, 1")
        a(f"buffer_store_dword v{t1}, v{vL16}, {S(sWS)}, s62 offen {SC}")
        a("s_mov_b64 exec, -1")
    def first_step(x):
        regs = [int(r) for r in re.findall(r"\bv(\d+)", x)]
        hi = max([r for r in regs if r >= XR], default=0)
        return 16 + (hi - XR)//16 + 1 if hi else 16
    plan = {m: [[] for _ in range(8)] for m in range(24)}
    pos = 16*8
    for x in attn_setup():
        pos = max(pos, first_step(x)*8)
        while len(plan[pos >> 3][pos & 7]) >= (3 if pos < 21*8 else 4): pos += 1
        plan[pos >> 3][pos & 7].append(x)
    staddr = ["v_and_b32 v2, 0x33, v1", "v_bfe_u32 v3, v1, 2, 1", "v_lshl_or_b32 v2, v3, 3, v2", "v_bfe_u32 v3, v1, 3, 1",
              "v_lshl_or_b32 v2, v3, 2, v2", "v_lshlrev_b32 v2, 4, v2", f"v_mov_b32 v6, s{sI}", "v_cmp_gt_u32 vcc, 4, v6",
              "v_and_b32 v3, 15, v1", "v_lshlrev_b32 v3, 4, v3", f"v_cndmask_b32 v4, v{vL16}, v2, vcc", f"v_cndmask_b32 v5, v2, v{vL16}, vcc",
              "v_lshrrev_b32 v2, 5, v1", "v_lshl_add_u32 v3, v2, 8, v3", "v_bfe_u32 v2, v1, 4, 1", "v_lshl_add_u32 v3, v2, 17, v3", "v_add_u32 v3, 1024, v3"]
    for k, x in enumerate(staddr): plan[7][4 + k*4//len(staddr)].append(x)
    gate = ["v_mov_b32 v113, v0", "v_and_b32 v119, 31, v1", f"s_lshl_b32 s62, s{sW}, 7", "v_permlane32_swap_b32 v0, v113", "v_add_f32 v113, v0, v113",
            f"v_mul_f32 v113, {f2u(-1.4426950408889634):#x}, v113", "v_exp_f32 v113, v113", "s_add_u32 s62, s62, 29696", "v_add_f32 v113, 1.0, v113",
            "v_rcp_f32 v113, v113", "v_lshl_add_u32 v119, v119, 2, s62", "ds_write_b32 v119, v113"]
    for k, x in enumerate(gate): plan[8][k*6//len(gate)].append(x)
    ls = late_setup()
    for k, x in enumerate(ls):
        p = 9*8 + k*48//len(ls); plan[p >> 3][p & 7].append(x)
    pollI = f"buffer_load_dword v114, v115, {S(sDBG)}, 0 offen {PP}"
    def step(m, vphase):
        tag = "v" if vphase == 0 else "q"
        if m >= 8 and m % 2 == 0: stamp(a, 2 + (m-8)//2, mode=3)
        if m == 7: stamp(a, 1, mode=3)
        a("s_waitcnt lgkmcnt(0)" if m != 5 else "s_waitcnt vmcnt(0) lgkmcnt(0)")
        mm = mfmas(m, vphase)
        r = reads(m+1) if m < 23 else []
        fill = [[] for _ in range(8)]
        if m < 8:
            d = dots(m) if not opt("x_nodot") else []
            for g in range(4): fill[g] += d[4*g:4*g+4]
            if m < 7: fill[4] += greads(m+1)
        for g in range(8): fill[g] += plan[m][g]
        nr = (len(r) + 4) // 5
        for i in range(8):
            a(mm[i])
            if i == 0:
                if m == PUB1:
                    a("s_waitcnt vmcnt(0)")
                    a(f"s_cmp_lg_u32 s{sW}, 0"); a(f"s_cbranch_scc1 L_noinitchk{tag}")
                    spin(pollI, 1, cnt="s65", reg=114, cmp="v_cmp_eq_u32")
                    a.lab(f"L_noinitchk{tag}")
                if m <= 7: stamp(a, m+2, mode=7)
                if m <= 7 or m in (9, 11, 13, 17): a("s_barrier")
                if m == PUB1:
                    a(f"s_cmp_lg_u32 s{sW}, 0"); a(f"s_cbranch_scc1 L_nopub1{tag}")
                    publishF1(1, 114)
                    a.lab(f"L_nopub1{tag}")
                if m == 11: gread(118)
                if m == 1: raise_init(tag)
            if i < 5:
                for x in r[i*nr:(i+1)*nr]: a(x)
            for x in fill[i]: a(x)
        if m == 7:
            stamp(a, 3)
            epilogue(0, WF[1], vphase)
            a(f"v_and_b32 v115, {NI-1}, v1"); a(f"v_mul_u32_u24 v115, {256//NI}, v115")
            a(f"s_cmp_lg_u32 s{sW}, 0"); a(f"s_cbranch_scc1 L_noip{tag}")
            a(pollI)
            a.lab(f"L_noip{tag}")
        if m == 15:
            epilogue(1, WF[1], vphase)
    stamp(a, 1)
    a(f"s_cmp_lt_u32 s{sI}, 2"); a("s_cbranch_scc0 L_p12q")
    for vphase in (0, 1):
        if vphase: a.lab("L_p12q")
        a("s_barrier")
        stamp(a, 2, True)
        for r in reads(0) + greads(0): a(r)
        for m in range(16): step(m, vphase)
        if vphase == 0: a("s_branch L_p3")
    a.lab("L_p3")
    for m in range(16, 24): step(m, -1)
    stamp(a, 4)
    a("s_waitcnt vmcnt(0)")
    a("s_lshl_b32 s62, s2, 7"); a(f"s_lshl_b32 s63, s{sW}, 2"); a("s_add_u32 s62, s62, s63"); a(f"s_add_u32 s62, s62, {WS_F2:#x}")
    a("v_mov_b32 v114, 1")
    a("s_mov_b64 exec, 1")
    a(f"buffer_store_dword v114, v{vL16}, {S(sWS)}, s62 offen {SC}")
    a("s_mov_b64 exec, -1")
    epilogue(2, 208, -1)
    hold(15)
    a("s_barrier")

    a.lab("L_attn")
    def rdK(buf, addr, off): a(f"ds_read_b128 {vr(KB[buf],4)}, v{addr} offset:{off}")
    def rdV(buf, addr, off):
        a("s_mov_b64 exec, s[22:23]")
        a(f"ds_read_b128 {vr(VB[buf][0],4)}, v{addr} offset:{off}")
        a(f"ds_read_b128 {vr(VB[buf][1],4)}, v{addr} offset:{off+512}")
        a("s_mov_b64 exec, -1")
    def mfma(dst, kbuf, q, c): a(f"v_mfma_f32_32x32x16_bf16 {vr(dst,16)}, {vr(KB[kbuf],4)}, {vr(q,4)}, {c}")
    def smf(vreg, sreg):
        if opt("x_nosmf"): return
        if opt("x_dense") == 1:
            for i in range(4): a(f"v_cvt_pk_bf16_f32 v{24+i}, v{sreg+2*i}, v{sreg+2*i+1}")
            a("s_nop 1")
            a(f"v_mfma_f32_32x32x16_bf16 {vr(OA,16)}, {vr(vreg,4)}, v[24:27], {vr(OA,16)}")
            return
        if opt("x_dense") == 2:
            a(f"v_mfma_f32_32x32x16_bf16 {vr(OA,16)}, {vr(vreg,4)}, {vr(QB,4)}, {vr(OA,16)}")
            return
        if opt("x_dense") == 3:
            a(f"v_smfmac_f32_16x16x64_bf16 {vr(OA,4)}, {vr(KB[0],4)}, {vr(sreg,8)}, v{vIDX}")
            return
        if opt("x_dense") == 4:
            a(f"v_smfmac_f32_32x32x16_bf16 {vr(OA,16)}, {vr(vreg,2)}, {vr(sreg,4)}, v{vIDX}")
            a(f"v_smfmac_f32_32x32x16_bf16 {vr(OA,16)}, {vr(vreg+2,2)}, {vr(sreg+4,4)}, v{vIDX}")
            return
        a(f"v_smfmac_f32_32x32x32_bf16 {vr(OA,16)}, {vr(vreg,4)}, {vr(sreg,8)}, v{vIDX}")
    def ex(s, i): a(f"v_exp_f32 v{s+i}, v{s+i}" if not opt("x_expc") else f"v_exp_f32 v{vT2}, v{vMF}")
    def halves_max():
        a(f"v_mov_b32 v{vT}, v{vM}")
        a("s_nop 1")
        a(f"v_permlane32_swap_b32 v{vM}, v{vT}")
        a(f"v_max_f32 v{vM}, v{vM}, v{vT}")
    def rowmax(s):
        a(f"v_max3_f32 v{vM}, v{s}, v{s+1}, v{vMF}")
        for i in range(2, 16, 2): a(f"v_max3_f32 v{vM}, v{s+i}, v{s+i+1}, v{vM}")
        halves_max()
    def tile(t, first, do_mfma, q, c, kread, vread, pre_mfma=None, extra=None, side=None, base=0):
        cur, prev = SB[t & 1], SB[(t+1) & 1]
        LO, HI = opt("lo", 14), opt("hi", 0)
        def e(i):
            if i == HI: a(f"s_setprio {base+1}")
            if i == LO: a(f"s_setprio {base}")
            ex(cur, i)
            if side and i in side:
                for x in side[i]: a(x)
        e(0); e(1)
        if not first and opt("adj", 0): smf(VB[(t-1) & 1][0], prev)
        if not first: smf(VB[(t-1) & 1][1], prev+8)
        a("s_waitcnt lgkmcnt(0)")
        if opt("x_half") and t & 2: kread = vread = None
        if opt("x_c0"): c = "0"
        if kread is not None: rdK(t & 1, *kread)
        if vread is not None: rdV((t+1) & 1, *vread)
        if extra: extra()
        e(2); e(3); e(4)
        if do_mfma:
            if pre_mfma: pre_mfma()
            if not (opt("x_noqk") and t > 2): mfma(prev, (t+1) & 1, q, c)
        for i in range(5, 10): e(i)
        if not opt("adj", 0): smf(VB[t & 1][0], cur)
        else: a("s_nop 0")
        for i in range(10, 16): e(i)
    def a_first():
        rdK(0, vKa, 8*2048); rdK(1, vKa, 7*2048); rdV(0, vVa, 8*2048)
        a("s_waitcnt lgkmcnt(3)")
        mfma(SB[0], 0, QA, vr(CD, 16))
    def finish(tlast, fb_label, done_label, br):
        a("s_nop 1")
        if opt("adj", 0): smf(VB[tlast & 1][0], SB[tlast & 1])
        smf(VB[tlast & 1][1], SB[tlast & 1]+8)
        if br:
            a.lab("L_B_fin"); a_first(); a("s_nop 4")
        else: a("s_nop 11")
        a(f"v_add_f32 v{vT}, abs(v{OA}), v{OA+8}")
        for i in range(1, 8): a(f"v_add_f32 v{vT}, abs(v{OA+i}), v{vT}")
        a(f"v_rcp_f32 v{vT2}, v{OA+8}")
        a(f"v_cmp_gt_f32 vcc, 0x71800000, v{vT}")
        a("s_cmp_lg_u32 s8, 0"); a(f"s_cbranch_scc1 {done_label}")
        if not opt("x_nofb"): a("s_cmp_eq_u64 vcc, -1"); a(f"s_cbranch_scc0 {fb_label}")
        a.lab(done_label)
        for i in range(8): a(f"v_mul_f32 v{OA+i}, v{vT2}, v{OA+i}")
        for i in range(4): a(f"v_cvt_pk_bf16_f32 v{PK[br]+i}, v{OA+2*i}, v{OA+2*i+1}")
        for i in range(4): a(f"v_min_u32 v{PK[br]+i}, -2, v{PK[br]+i}")
        a(f"s_add_u32 s62, s15, {br*32*1024}")
        a(f"buffer_store_dwordx4 {vr(PK[br],4)}, v{vL16}, {S(sWS)}, s62 offen {SC}")
    def copy(srdw, voff, lds, src):
        a(f"s_add_u32 m0, {lds[0]}, {lds[1]}"); a(f"s_add_u32 s63, {src[0]}, {src[1]}")
        a(f"buffer_load_dwordx4 v{voff}, {S(srdw)}, s63 offen {LD} lds")
    def wo_copy(n0, k):
        copy(sWOA if n0 < 64 else sWOB, vWo, ("s19", (n0+k)*1024), ("s18", ((n0 & 63)+k)*8192))
    stamp(a, 5, True)
    hold(1)
    for k in range(opt("x_idle", 0)): a("s_sleep 64")
    a(f"ds_read_b128 {vr(QB,4)}, v{vKb}")
    rdK(0, vL16, 0); rdK(1, vL16, 2048); rdV(0, vVb, 0)
    a(f"v_mov_b32 v{vKb}, v{vL16}")
    a("s_waitcnt lgkmcnt(3)")
    mfma(SB[0], 0, QB, "0")
    a(f"s_lshl_b32 s19, s{sW}, 13"); a("s_and_b32 s18, s19, 0x8000"); a("s_add_u32 s18, s18, s19"); a("s_add_u32 s18, s18, s21")
    a("s_mov_b32 s9, 0"); a(f"s_mov_b32 s3, {WS_F2:#x}")
    a("s_nop 5")
    rowmax(SB[0])
    for r in range(16): a(f"v_sub_f32 v{CM+r}, 0, v{vM}")
    a("s_nop 1")
    mfma(SB[0], 0, QB, vr(CM, 16))
    a("s_waitcnt lgkmcnt(0)")
    stamp(a, 1, True, mode=1)
    if Cfg.stamp and opt("smode") == 5:
        a("s_memtime s[72:73]"); a("s_memrealtime s[74:75]"); a("s_waitcnt lgkmcnt(0)")
    a("s_nop 9")
    X = {u: [] for u in range(64)}
    def at(u, f): X[u].append(f)
    U1 = opt("u1", 8)
    at(U1-3, lambda: a(pollF1b))
    at(U1, lambda: spin(pollF1b, 1))
    if opt("t1", 0): at(U1, lambda: a("s_barrier"))
    for k in range(8): at(U1+k, lambda k=k: copy(sWS, vL16, ("s19", 65536 + k*1024), ("s18", k*1024)))
    def marks():
        for i in range(4): a(f"v_mov_b32 v{PK[0]+i}, -1")
        a("s_add_u32 s62, s15, 32768")
        a(f"buffer_store_dwordx4 {vr(PK[0],4)}, v{vL16}, {S(sWS)}, s15 offen {SC}")
        a(f"buffer_store_dwordx4 {vr(PK[0],4)}, v{vL16}, {S(sWS)}, s62 offen {SC}")
    at(U1+8, marks)
    def st3():
        a(f"s_cmp_ge_u32 s{sW}, 4"); a("s_cbranch_scc1 L_nost3"); stores3(); a.lab("L_nost3")
    at(U1+9, st3)
    U2 = opt("u2", 24)
    def t2():
        a("s_waitcnt vmcnt(0)"); a("s_barrier")
        a(f"s_and_b32 s62, s{sW}, 3"); a("s_cbranch_scc0 L_t2x")
        a.lab("L_t2r")
    at(U2, t2)
    at(U2+1, lambda: (a(f"s_lshl_b32 s19, s{sW}, 12"), a(f"s_lshl_b32 s18, s{sW}, 15"), a(f"s_lshl_b32 s62, s{sJ}, 7"), a("s_add_u32 s18, s18, s62")))
    for k in range(4): at(U2+11+k, lambda k=k: wo_copy(0, k))
    U3 = opt("u3", 42)
    at(U3-3, lambda: a(pollF1A))
    def win():
        spin(pollF1A, 2)
        a(f"s_lshl_b32 s12, s{sB}, 14"); a("s_add_u32 s12, s12, s19")
        a("s_cmp_lt_u32 s12, 16384"); a("s_cselect_b32 s62, 0, 16384")
        a("s_add_u32 s12, s12, s13"); a("s_sub_u32 s12, s12, s62")
        a(f"buffer_load_dwordx4 {vr(QA,4)}, v{vL16}, {S(sWS)}, s11 offen {LD}")
        a(f"v_and_b32 v{vFA2}, 7, v1"); a(f"v_lshlrev_b32 v{vFA2}, 10, v{vFA2}")
        a("s_add_u32 s10, s20, 32768")
    at(U3, win)
    for k in range(4): at(U3+1+k, lambda k=k: copy(sWS, vL16, ("s19", 131072 + k*1024), ("s12", k*1024)))
    at(48, lambda: (a("s_waitcnt vmcnt(0)"), a("s_barrier")))
    for k in range(8): at(49+k, lambda k=k: wo_copy(32 + 32*(k >> 2), k & 3))
    for u in range(64):
        if u and u % 8 == 0: stamp(a, 1 + u//8, mode=1)
        if u == 30: a(f"v_add_u32 v{vKb}, 0x10000, v{vKb}")
        if u == 31: a(f"v_add_u32 v{vVb}, 0x10000, v{vVb}")
        tile(u, u == 0, u < 63, QB, vr(CM, 16), (vKb, ((u+2)*2048) & 0xffff) if u < 62 else None,
             (vVb, ((u+1)*2048) & 0xffff) if u < 63 else None, None, lambda u=u: [f() for f in X[u]])
    stamp(a, 6)
    stamp(a, 1, mode=9)
    stamp(a, 9, mode=1)
    if Cfg.stamp and opt("smode") == 5:
        a("s_memtime s[76:77]"); a("s_memrealtime s[78:79]"); a("s_waitcnt lgkmcnt(0)")
    finish(63, "L_B_fb", "L_B_done", 1)
    a("s_mov_b32 s8, 0")
    for r in range(9): a(f"v_mov_b32 v{OA+r}, 0")
    stamp(a, 7)
    stamp(a, 2, mode=9)
    hold(2)
    a.lab("L_A_max")
    rowmax(SB[0])
    for r in range(16): a(f"v_sub_f32 v{SB[0]+r}, v{SB[0]+r}, v{vM}")
    for r in range(16): a(f"v_sub_f32 v{CM+r}, 0, v{vM}")
    for r in range(16): a(f"v_sub_f32 v{CF+r}, v{CF+r}, v{vM}")
    def oloads(br):
        a(f"s_add_u32 s62, s20, {br*32768}"); a("s_add_u32 s63, s62, 4096")
        for i in range(8):
            a(f"buffer_load_dwordx4 {vr(OF[1-br]+4*i,4)}, v{vL16}, {S(sWS)}, s{62+(i>>2)} offen offset:{(i&3)*1024} {LD}")
    pollO = [f"buffer_load_dword v{vPoll}, v{vFA2}, {S(sWS)}, s20 offen {PP}", f"buffer_load_dword v{vPoll}, v{vFA2}, {S(sWS)}, s10 offen {PP}"]
    if opt("patom"):
        pollO = [f"v_mov_b32 v{vPoll}, 0\n    s_mov_b64 exec, 0xff\n    buffer_atomic_or v{vPoll}, v{vFA2}, {S(sWS)}, s{r} offen sc0\n    s_mov_b64 exec, -1" for r in (20, 10)]
    OBP = opt("obp", 4)
    OAP = -1
    for t in range(9):
        def pm(t=t):
            if t < 7:
                a(f"s_cmp_eq_u32 s7, {t}"); a(f"s_cbranch_scc1 L_A_off{t}")
                a.lab(f"L_A_mid{t}")
        def extra(t=t):
            if t not in (0, 1, OBP, OBP+2, OAP): return
            a("s_cmp_lg_u32 s8, 0"); a(f"s_cbranch_scc1 L_A_x{t}")
            if t == 0: a("s_barrier")
            if t < 2: wo_copy(96, 2*t); wo_copy(96, 2*t+1)
            if t == OBP:
                if opt("twe", 2) == 2: a("s_waitcnt vmcnt(0)"); a("s_barrier")
                a(pollO[1])
            if t == OBP+2:
                a("s_waitcnt vmcnt(0)")
                if opt("twe", 2) == 1: a("s_barrier")
                a(f"v_cmp_ne_u32 vcc, -1, v{vPoll}")
                a(f"v_mov_b32 v{OF[0]}, -1")
                a("s_cmp_eq_u64 vcc, -1"); a(f"s_cbranch_scc0 L_A_x{t}")
                oloads(1)
            if t == OAP: a(pollO[0])
            a.lab(f"L_A_x{t}")
        if t in (0, 1, 2, 4, 5, 7): stamp(a, {0:3, 1:4, 2:5, 4:6, 5:7, 7:8}[t], mode=9)
        tile(t, t == 0, t < 8, QA, vr(CM if t < 7 else CF, 16),
             (vKa, (8-(t+2))*2048) if t+2 <= 8 else None,
             (vVa, (8-(t+1))*2048) if t+1 <= 8 else None, pm, extra, None, (2 - t//3) if opt("ramp", 1) else 0)
    finish(8, "L_A_fb", "L_A_done", 0)
    stamp(a, 8)
    stamp(a, 9, mode=9)
    stamp(a, 1, mode=2)
    WR = lambda i, c: 144 + 8*i + 4*c
    def wreads(i):
        for c in range(2):
            for u in range(2):
                a(f"ds_read_b64_tr_b16 {vr(WR(i,c)+2*u,2)}, v{vPW0+c} offset:{i*2048+u*1024}")
    def pm(br, i):
        for c in range(2):
            d = vr(PACC[br][c], 16)
            a(f"v_mfma_f32_32x32x16_bf16 {d}, {vr(WR(i,c),4)}, {vr(OF[1-br]+4*i,4)}, {'0' if i == 0 else d}")
    def chk(br, i):
        b = OF[1-br]+4*i
        a(f"v_max3_u32 v{vT}, v{b}, v{b+1}, {0 if i == 0 else 'v%d' % vT}")
        a(f"v_max3_u32 v{vT}, v{b+2}, v{b+3}, v{vT}")
    a("s_waitcnt vmcnt(1)")
    if not opt("twe", 2): a("s_barrier")
    stamp(a, 2, True, mode=2)
    for i in range(8): wreads(i)
    for i in range(8): chk(1, i)
    a(f"v_cmp_ne_u32 vcc, -1, v{vT}")
    a("s_cmp_eq_u64 vcc, -1"); a("s_cbranch_scc0 L_OB_get")
    a.lab("L_OB_ok")
    for i in range(8):
        a(f"s_waitcnt lgkmcnt({max(0, min(15, 4*(7-i)))})")
        pm(1, i)
        if i == opt('pp', 4): a(pollO[0])
    a(f"v_subrev_u32 v{vPW0}, 0x10000, v{vPW0}"); a(f"v_subrev_u32 v{vPW1}, 0x10000, v{vPW1}")
    stamp(a, 9)
    stamp(a, 4, mode=2)
    if not opt("tr1", 1): a("s_barrier")
    for i in range(8): wreads(i)
    stamp(a, 5, mode=2)
    spin(pollO[0], -1, cnt="s64", cmp="v_cmp_ne_u32")
    oloads(0)
    if opt("tr1", 1): a("s_barrier")
    stamp(a, 6, mode=2)
    a(f"v_sub_f32 v{vT}, 1.0, v{vG}")
    for c in range(2):
        for r in range(16): a(f"v_mul_f32 v{PACC[1][c]+r}, v{vT}, v{PACC[1][c]+r}")
    a(f"s_mov_b32 s64, {SPIN}")
    a("s_branch L_O_go")
    a.lab("L_O_retry")
    oloads(0)
    a.lab("L_O_go")
    for i in range(8):
        a(f"s_waitcnt vmcnt({7-i}) lgkmcnt(0)")
        if i == 0: stamp(a, 7, mode=2)
        pm(0, i)
        chk(0, i)
    a(f"v_cmp_ne_u32 vcc, -1, v{vT}")
    a("s_sub_u32 s64, s64, 1"); a("s_cbranch_scc1 L_O_ok")
    a("s_cmp_eq_u64 vcc, -1"); a("s_cbranch_scc0 L_O_retry")
    a.lab("L_O_ok")
    stamp(a, 8, mode=2)
    a("s_nop 6")
    for c in range(2):
        for g in range(4):
            for r in range(4*g, 4*g+4): a(f"v_fmac_f32 v{PACC[1][c]+r}, v{vG}, v{PACC[0][c]+r}")
            a(f"ds_write_b128 v{vPWR}, {vr(PACC[1][c]+4*g,4)} offset:{(c*4+g)*1088}")
    a("s_waitcnt lgkmcnt(0)"); a("s_barrier")
    stamp(a, 9, True, mode=2)
    for kq in range(4):
        for h in range(2):
            a(f"ds_read_b128 {vr(16+kq*8+h*4,4)}, v{vPRD} offset:{kq*PW + h*512}")
    a("s_waitcnt lgkmcnt(4)")
    for i in range(8): a(f"v_add_f32 v{16+i}, v{16+i}, v{24+i}")
    a("s_waitcnt lgkmcnt(0)")
    for i in range(8): a(f"v_add_f32 v{32+i}, v{32+i}, v{40+i}")
    for i in range(8): a(f"v_add_f32 v{16+i}, v{16+i}, v{32+i}")
    for i in range(4): a(f"v_cvt_pk_bf16_f32 v{48+i}, v{16+2*i}, v{16+2*i+1}")
    a(f"buffer_store_dwordx4 v[48:51], v{vOUT}, {S(sOUT)}, s33 offen {opt('ost', 'sc1')}")
    if HOLD >= 0:
        hold(3)
        if opt("x_who") is not None:
            a(f"s_cmp_lg_u32 s2, {opt('x_who')}"); a("s_cbranch_scc1 L_end")
        a.lab("L_hold")
        a("s_memrealtime s[62:63]"); a("s_waitcnt lgkmcnt(0)")
        a("s_sub_u32 s62, s62, s72"); a("s_cmp_lt_u32 s62, 6000"); a("s_cbranch_scc1 L_hold")
    if Cfg.stamp:
        a("s_waitcnt vmcnt(0)")
        a("s_memtime s[96:97]"); a("s_waitcnt lgkmcnt(0)")
        stamp_out(a, 0, 10, sWS, sW, 8)
        a("s_nop 1"); a("v_mov_b32 v1, s96"); a(f"buffer_store_dword v1, v0, {S(sWS)}, s94 offen offset:40")
    a.lab("L_end")
    a("s_endpgm")

    a.lab("L_OB_get")
    a(pollO[1])
    spin(pollO[1], -1, cnt="s64", cmp="v_cmp_ne_u32")
    a(f"s_mov_b32 s65, {SPIN}")
    a.lab("L_OB_retry")
    oloads(1)
    a("s_waitcnt vmcnt(0)")
    for i in range(8): chk(1, i)
    a(f"v_cmp_ne_u32 vcc, -1, v{vT}")
    a("s_sub_u32 s65, s65, 1"); a("s_cbranch_scc1 L_OB_ok")
    a("s_cmp_eq_u64 vcc, -1"); a("s_cbranch_scc0 L_OB_retry")
    a("s_branch L_OB_ok")
    a.lab("L_t2x")
    a(f"v_lshlrev_b32 v{vT2}, 10, v1")
    a(f"s_and_b32 s64, s{sRB}, 7"); a("s_lshl_b32 s64, s64, 16"); a(f"s_lshl_b32 s63, s{sJ}, 7"); a("s_add_u32 s64, s64, s63")
    a(f"s_cmp_eq_u32 s{sW}, 0"); a("s_cbranch_scc0 L_t2y")
    publishF1(2, vT)
    a(f"buffer_load_dword v243, v{vT2}, {S(sWOA)}, s64 offen")
    a("s_branch L_t2r")
    a.lab("L_t2y")
    a(f"buffer_load_dword v243, v{vT2}, {S(sWOB)}, s64 offen")
    a("s_branch L_t2r")
    for t in range(7):
        a.lab(f"L_A_off{t}")
        a("s_nop 7")
        for r in range(16): a(f"v_mov_b32 v{CM+r}, s5")
        a("s_nop 1")
        a(f"s_branch L_A_mid{t}")
    a.lab("L_A_fb")
    a("s_waitcnt lgkmcnt(0)")
    a("s_mov_b32 s8, 1")
    a(f"s_sub_u32 s17, 8, s{sW}"); a(f"s_cmp_eq_u32 s{sB}, 0"); a("s_cselect_b32 s17, s17, 0")
    a.lab("L_A_fb_loop")
    a("s_lshl_b32 s62, s17, 11")
    a(f"v_add_u32 v{vT}, s62, v{vKa}")
    rdK(0, vT, 0)
    a("s_sub_u32 s62, 8, s17"); a("s_lshl_b32 s62, s62, 5")
    a(f"v_add_u32 v{vT2}, s62, v{vQH}")
    a(f"v_mov_b32 v{vM}, s5")
    a("s_movk_i32 s62, 256")
    a("s_waitcnt lgkmcnt(0)")
    mfma(SB[0], 0, QA, "0")
    a("s_nop 15")
    for r in range(16):
        a(f"v_subrev_u32 v{vT}, {(r & 7) + 16*(r >> 3)}, v{vT2}")
        a(f"v_cmp_gt_u32 vcc, s62, v{vT}")
        a("s_nop 1")
        a(f"v_cndmask_b32 v{vT}, v{vM}, v{SB[0]+r}, vcc")
        a(f"v_max_f32 v{vMF}, v{vMF}, v{vT}")
    a("s_add_u32 s17, s17, 1"); a("s_cmp_lt_u32 s17, 9"); a("s_cbranch_scc1 L_A_fb_loop")
    for x in masks(): a(x)
    a_first()
    a("s_nop 15")
    a("s_branch L_A_max")
    a.lab("L_B_fb")
    a("s_waitcnt lgkmcnt(0)")
    a("s_mov_b32 s8, 1")
    a("s_mov_b32 s17, s14"); a("s_add_u32 s62, s14, 131072")
    a(f"v_mov_b32 v{vM}, s5")
    a(f"v_and_b32 v{vVb}, 0x7ff, v{vVb}")
    a.lab("L_B_fb_max")
    a(f"buffer_load_dwordx4 {vr(KB[0],4)}, v{vL16}, {S(sWS)}, s17 offen {LD}")
    a("s_add_u32 s17, s17, 2048")
    a("s_waitcnt vmcnt(0)")
    mfma(SB[0], 0, QB, "0")
    a("s_nop 15")
    for i in range(0, 16, 2): a(f"v_max3_f32 v{vM}, v{SB[0]+i}, v{SB[0]+i+1}, v{vM}")
    a("s_cmp_lt_u32 s17, s62"); a("s_cbranch_scc1 L_B_fb_max")
    halves_max()
    for r in range(16): a(f"v_sub_f32 v{CM+r}, 0, v{vM}")
    for r in range(16): a(f"v_mov_b32 v{OA+r}, 0")
    a("s_mov_b32 s17, s14")
    a.lab("L_B_fb_acc")
    a(f"buffer_load_dwordx4 {vr(KB[0],4)}, v{vL16}, {S(sWS)}, s17 offen {LD}")
    a("s_mov_b64 exec, s[22:23]")
    a(f"buffer_load_dwordx4 {vr(VB[0][0],4)}, v{vVb}, {S(sWS)}, s17 offen {LD}")
    a(f"buffer_load_dwordx4 {vr(VB[0][1],4)}, v{vVb}, {S(sWS)}, s17 offen offset:512 {LD}")
    a("s_mov_b64 exec, -1")
    a("s_add_u32 s17, s17, 2048")
    a("s_waitcnt vmcnt(0)")
    mfma(SB[0], 0, QB, vr(CM, 16))
    a("s_nop 15")
    for i in range(16): ex(SB[0], i)
    a("s_nop 1")
    smf(VB[0][0], SB[0]); smf(VB[0][1], SB[0]+8)
    a("s_cmp_lt_u32 s17, s62"); a("s_cbranch_scc1 L_B_fb_acc")
    a("s_branch L_B_fin")
    a.lab("L_code_end")
    d = desc(K, 256, 74, 256)
    if Cfg.stamp: d = d.replace("next_free_sgpr 96", "next_free_sgpr 100")
    return a.text(), d

def main(out):
    t, d = gen()
    hdr = f"""; gated_mix(sliding-window MHA, full MHA), one fused launch:
; @launch grid=(256,1,1) block=(512,1,1) lds=163840
.amdgcn_target "amdgcn-amd-amdhsa--gfx950"
"""
    open(out, "w").write(hdr + t + d)

if __name__ == "__main__":
    main(parse_args())
```

```python
import re
from common import *

WS_FL = 16 << 20
WS_F2 = WS_FL + 32768
SC = "sc1"
SPIN = 1 << 17
PW = 16*1088

sX, sWB, sWA, sWS, sWOA, sOUT, sDBG, sWOB = 24, 28, 32, 36, 40, 44, 48, 52
sW, sRB, sJ, sHD, sB, sQT, sR16, sI = 56, 57, 58, 59, 60, 61, 68, 69
S = lambda b: f"s[{b}:{b+3}]"
vXA = 2
vWA = 10
vL16, vGA = 14, 15
WF = [16, 48]
ACC = [80, 96]
GF = 112
XR = 128
vG, QB, QA = 112, 116, 120
vIDX, vKa, vVa, vKb, vVb, vT, vM, vMF, vT2, vQH, vFA, vWo, vFA2 = range(128, 141)
VB = [[144, 148], [152, 156]]
OA = 160
CD, CF = 176, 192
vPoll = 124
KB = [16, 20]
SB = [32, 48]
CM = 64
PK = [244, 248]
OF = [208, 16]
PACC = [[48, 64], [80, 96]]
vPW0, vPW1, vPWR, vPRD, vOUT = 8, 9, 2, 7, 6
QSTG = 152*1024

def gen():
    LD = "sc1"
    PP = opt("ppol", "sc1")
    PUB1 = opt("pub1", 13)
    HOLD = opt("x_hold", -1)
    def hold(k):
        if HOLD == k or (k == 0 and HOLD >= 10): a("s_memrealtime s[72:73]"); a("s_waitcnt lgkmcnt(0)")
    def wpos(c, sb):
        if c == 8: return 3*sb*32768 + 24576
        if c == 12: return (1+sb)*32768 + 24576
        n = 2*(c-9 if c < 12 else c-10) + sb
        return (n//3)*32768 + (n % 3)*8192
    a = A(); K = NAME + "_kernel"; head(a, K)
    a("s_cmp_ge_u32 s2, 256"); a("s_cbranch_scc1 L_end")
    stamp(a, 0)
    hold(0)
    a("s_load_dwordx2 s[4:5], s[0:1], 0")
    a("s_load_dwordx4 s[12:15], s[0:1], 32")
    a("s_load_dwordx4 s[8:11], s[0:1], 8")
    a("s_load_dwordx2 s[6:7], s[0:1], 48")
    a("s_load_dwordx4 s[16:19], s[0:1], 56")
    a("s_load_dwordx2 s[20:21], s[0:1], 72")
    a("v_lshrrev_b32 v2, 6, v0")
    a("v_and_b32 v1, 63, v0")
    a("s_bfe_u32 s62, s2, 0x20003")
    a(f"v_readfirstlane_b32 s{sW}, v2")
    a("s_and_b32 s63, s2, 3"); a("s_lshl_b32 s63, s63, 2"); a(f"s_add_u32 s{sR16}, s63, s62")
    a(f"s_lshr_b32 s{sI}, s2, 5")
    a(f"v_lshlrev_b32 v{vL16}, 4, v1")
    a(f"s_cmp_lt_u32 s{sW}, 4"); a("s_cbranch_scc1 L_compute")

    def ids():
        a(f"s_lshl_b32 s{sRB}, s{sR16}, 1"); a(f"s_and_b32 s62, s{sI}, 1"); a(f"s_add_u32 s{sRB}, s{sRB}, s62")
        a(f"s_and_b32 s{sJ}, s2, 4"); a(f"s_lshr_b32 s62, s{sI}, 1"); a(f"s_add_u32 s{sJ}, s{sJ}, s62")
        a(f"s_and_b32 s{sHD}, s2, 7"); a(f"s_lshl_b32 s{sHD}, s{sHD}, 2"); a("s_bfe_u32 s62, s2, 0x20003"); a(f"s_add_u32 s{sHD}, s{sHD}, s62")
        a(f"s_mov_b32 s{sB}, s{sI}")
        a(f"s_lshl_b32 s{sQT}, s{sB}, 3"); a(f"s_add_u32 s{sQT}, s{sQT}, s{sW}")
    def roles():
        a(f"s_lshr_b32 s64, s{sI}, 1"); a("s_xor_b32 s64, s64, s2"); a("s_and_b32 s64, s64, 1"); a("s_lshl_b32 s64, s64, 1")
        a(f"s_and_b32 s65, s{sI}, 1"); a("s_add_u32 s65, s65, s64"); a("s_xor_b32 s64, s65, 2")
        a(f"s_and_b32 s22, s{sI}, 3"); a(f"s_add_u32 s23, s{sI}, 1"); a("s_and_b32 s23, s23, 3")
        a(f"s_cmp_lt_u32 s{sI}, 4"); a("s_cselect_b32 s64, s64, s22"); a("s_cselect_b32 s65, s65, s23")
        a("s_and_b32 s22, s2, 4"); a("s_add_u32 s64, s64, s22"); a("s_add_u32 s65, s65, s22")
    def common_srds():
        srd(a, sWS, 20, 21, ws_size())
        srd(a, sOUT, 16, 17, 2048*512*2)
        srd(a, sDBG, 18, 19, 256)
        srd(a, sWOA, 10, 11, 512*512*2)
        srd(a, sWOB, 14, 15, 512*512*2)

    class Rec:
        def __init__(s): s.L = []
        def __call__(s, t): s.L.append(t)
    def late_setup():
        a = Rec()
        a(f"s_lshl_b32 s20, s{sRB}, 17"); a(f"s_and_b32 s4, s{sW}, 1"); a("s_lshl_b32 s4, s4, 16"); a("s_add_u32 s20, s20, s4")
        a(f"s_lshr_b32 s4, s{sW}, 1"); a("s_lshl_b32 s4, s4, 13"); a("s_add_u32 s20, s20, s4"); a(f"s_add_u32 s20, s20, {WS_O:#x}")
        a(f"v_lshrrev_b32 v116, 5, v1"); a(f"v_bfe_u32 v117, v1, 2, 2")
        a(f"v_lshl_add_u32 v{vPW0}, v116, 2, v117"); a(f"v_lshlrev_b32 v{vPW0}, 7, v{vPW0}")
        a(f"v_bfe_u32 v116, v1, 4, 1"); a(f"v_lshlrev_b32 v116, 1, v116")
        a(f"v_bfe_u32 v117, v1, 1, 1"); a(f"v_add_u32 v116, v116, v117")
        a(f"v_bfe_u32 v117, v1, 3, 1"); a(f"v_lshl_or_b32 v116, v117, 2, v116")
        a(f"v_lshl_add_u32 v{vPW0}, v116, 4, v{vPW0}")
        a(f"v_and_b32 v116, 1, v1"); a(f"v_lshl_add_u32 v{vPW0}, v116, 3, v{vPW0}")
        a(f"s_lshr_b32 s4, s{sW}, 1"); a("s_lshl_b32 s4, s4, 14"); a("s_add_u32 s4, s4, 65536")
        a(f"v_add_u32 v{vPW0}, s4, v{vPW0}")
        a(f"v_xor_b32 v{vPW1}, 64, v{vPW0}")
        a(f"s_lshr_b32 s4, s{sW}, 1"); a(f"s_mul_i32 s4, s4, {PW}"); a(f"s_and_b32 s5, s{sW}, 1"); a(f"s_mul_i32 s5, s5, {8*1088}")
        a("s_add_u32 s4, s4, s5"); a("s_add_u32 s4, s4, 65536")
        a(f"v_add_u32 v{vPWR}, s4, v{vL16}")
        a("v_and_b32 v116, 7, v1"); a("v_lshrrev_b32 v117, 3, v1")
        a(f"s_and_b32 s4, s{sW}, 3"); a("s_lshl_b32 s4, s4, 3"); a("v_add_u32 v117, s4, v117")
        a(f"v_mul_u32_u24 v{vPRD}, 1088, v116"); a(f"v_lshl_add_u32 v{vPRD}, v117, 4, v{vPRD}")
        a(f"s_lshr_b32 s4, s{sW}, 2"); a(f"s_mul_i32 s5, s4, {8*1088}"); a("s_add_u32 s5, s5, 65536")
        a(f"v_add_u32 v{vPRD}, s5, v{vPRD}")
        a(f"v_lshlrev_b32 v{vOUT}, 10, v117"); a(f"v_lshl_add_u32 v{vOUT}, v116, 4, v{vOUT}")
        a("s_lshl_b32 s4, s4, 15"); a(f"s_lshl_b32 s5, s{sRB}, 16"); a("s_add_u32 s4, s4, s5")
        a(f"s_lshl_b32 s5, s{sJ}, 7"); a("s_add_u32 s33, s4, s5")
        return a.L

    def attn_setup():
        L = []; e = L.append
        e(f"s_lshl_b32 s11, s{sHD}, 6"); e(f"s_add_u32 s11, s11, s{sQT}"); e("s_lshl_b32 s11, s11, 10")
        e(f"s_add_u32 s11, s11, {WS_Q:#x}")
        e(f"s_lshl_b32 s13, s{sHD}, 17")
        e(f"s_add_u32 s14, s13, {32*131072:#x}")
        e(f"s_mov_b32 s10, {WS_FL:#x}")
        e("s_and_b32 s4, s2, 3"); e("s_add_u32 s5, s4, 3"); e("s_and_b32 s5, s5, 3"); e("s_xor_b32 s6, s4, 2")
        e("s_and_b32 s7, s2, 1"); e("s_mul_i32 s7, s7, 0x1011"); e("s_lshl_b32 s9, s4, 8"); e("s_add_u32 s7, s7, s9"); e("s_add_u32 s7, s7, 0x420")
        e("s_mul_i32 s6, s6, 0x110"); e("s_add_u32 s5, s5, s6"); e("s_add_u32 s5, s5, 0x404")
        e(f"v_bfe_u32 v{vT}, v1, 2, 2"); e(f"v_and_b32 v{vT2}, 3, v1"); e(f"v_lshl_add_u32 v{vT}, v{vT2}, 3, v{vT}")
        e(f"v_lshlrev_b32 v{vT}, 7, v{vT}")
        e(f"v_lshrrev_b32 v{vT2}, 4, v1"); e(f"v_lshlrev_b32 v{vT2}, 2, v{vT2}")
        e(f"v_bfe_u32 v{vFA}, s7, v{vT2}, 4"); e(f"v_lshl_add_u32 v{vFA}, v{vFA}, 12, v{vT}")
        e(f"v_bfe_u32 v{vFA2}, s5, v{vT2}, 4"); e(f"v_lshl_add_u32 v{vFA2}, v{vFA2}, 12, v{vT}")
        e("s_and_b32 s4, s2, 4"); e("s_lshl_b32 s4, s4, 7")
        e(f"v_add_u32 v{vFA}, s4, v{vFA}"); e(f"v_add_u32 v{vFA2}, s4, v{vFA2}")
        e(f"v_and_b32 v{vT}, 0xc80, v{vT}")
        e(f"s_lshr_b32 s4, s{sW}, 1"); e("s_lshl_b32 s4, s4, 8"); e(f"s_lshr_b32 s5, s{sRB}, 2"); e("s_lshl_b32 s5, s5, 12"); e("s_add_u32 s4, s4, s5")
        e(f"v_add_u32 v{vT}, s4, v{vT}")
        e("v_cmp_lt_u32 vcc, 47, v1")
        e("s_bfe_u32 s4, s2, 0x10001"); e("s_lshl_b32 s4, s4, 15")
        e(f"v_cndmask_b32 v{vFA2}, v{vFA2}, v{vT}, vcc")
        e("s_add_u32 s16, s14, s4"); e("s_xor_b32 s4, s4, 0x8000"); e("s_add_u32 s21, s14, s4")
        e(f"v_lshrrev_b32 v{vT}, 3, v1"); e(f"v_bfe_u32 v{vT2}, v1, 4, 1"); e(f"v_lshlrev_b32 v{vT2}, 2, v{vT2}")
        e(f"v_and_b32 v{vWo}, 7, v1"); e(f"v_xor_b32 v{vWo}, v{vWo}, v{vT2}"); e(f"v_lshlrev_b32 v{vWo}, 4, v{vWo}")
        e(f"v_lshl_add_u32 v{vWo}, v{vT}, 10, v{vWo}")
        e(f"v_mov_b32 v{vIDX}, 0xdddddddd")
        e("s_mov_b32 s22, 0x0000ffff"); e("s_mov_b32 s23, 0x0000ffff")
        e(f"v_lshrrev_b32 v{vQH}, 5, v1")
        e(f"v_and_b32 v{vVb}, 15, v1"); e(f"v_lshlrev_b32 v{vVb}, 4, v{vVb}")
        e(f"v_lshl_add_u32 v{vVb}, v{vQH}, 8, v{vVb}"); e(f"v_add_u32 v{vVb}, 1024, v{vVb}")
        e(f"s_lshl_b32 s4, s{sW}, 11"); e("s_add_u32 s4, s4, 131072")
        e(f"v_add_u32 v{vKa}, s4, v{vL16}")
        e(f"v_add_u32 v{vVa}, s4, v{vVb}")
        e(f"s_lshl_b32 s4, s{sW}, 10"); e(f"s_add_u32 s4, s4, {QSTG}")
        e(f"v_add_u32 v{vKb}, s4, v{vL16}")
        e(f"v_and_b32 v{vM}, 31, v1")
        e(f"v_lshlrev_b32 v{vQH}, 3, v{vQH}"); e(f"v_sub_u32 v{vQH}, v{vM}, v{vQH}")
        e(f"v_and_b32 v{vT}, 0x1b, v{vM}")
        e(f"v_cmp_eq_u32 vcc, 16, v{vT}")
        e(f"v_mov_b32 v{vT2}, {0 if opt('x_noones') else 0x3f803f80:#x}")
        e(f"v_mov_b32 v{vT}, 0")
        for b in range(2):
            for j in range(2):
                for i in range(4): e(f"v_cndmask_b32 v{VB[b][j]+i}, v{vT}, v{vT2}, vcc")
        e(f"s_mov_b32 s5, {NEG_INF:#x}")
        e(f"s_cmp_eq_u32 s{sB}, 0\n    s_cselect_b32 s6, s5, 0\n    s_cselect_b32 s7, s{sW}, 64")
        e(f"v_mov_b32 v{vMF}, s5")
        e("s_mov_b32 s8, 0")
        e(f"s_lshl_b32 s15, s{sQT}, 6"); e(f"s_add_u32 s15, s15, s{sHD}"); e("s_lshl_b32 s15, s15, 10")
        e(f"s_add_u32 s15, s15, {WS_O:#x}")
        L += masks()
        return L
    def masks():
        L = []; e = L.append
        e(f"v_mov_b32 v{vT}, s5"); e(f"v_mov_b32 v{vT2}, s6")
        for r in range(16):
            e(f"v_cmp_le_i32 vcc, {(r & 7) + 16*(r >> 3)}, v{vQH}")
            e(f"v_mov_b32 v{OA+r}, 0")
            e("s_nop 0")
            e(f"v_cndmask_b32 v{CD+r}, v{vT}, v{OA+r}, vcc")
            e(f"v_cndmask_b32 v{CF+r}, v{vT2}, v{vT}, vcc")
        return L
    def gread(t):
        a(f"s_and_b32 s62, s{sI}, 1"); a("s_lshl_b32 s62, s62, 1"); a(f"s_and_b32 s63, s{sW}, 1"); a("s_add_u32 s62, s62, s63")
        a("s_lshl_b32 s62, s62, 7"); a("s_add_u32 s62, s62, 29696")
        a(f"v_and_b32 v{t}, 31, v1"); a(f"v_lshl_add_u32 v{t}, v{t}, 2, s62")
        a(f"ds_read_b32 v{vG}, v{t}")
    uid = [0]
    def spin(load, stage, cnt="s62", reg=vPoll, cmp="v_cmp_le_u32"):
        uid[0] += 1; n = uid[0]
        a(f"s_mov_b32 {cnt}, {SPIN}")
        a(f"s_branch L_chk{n}")
        a.lab(f"L_spin{n}")
        if opt("sleep", 0): a(f"s_sleep {opt('sleep', 0)}")
        a(load)
        a.lab(f"L_chk{n}")
        a("s_waitcnt vmcnt(0)")
        if "x4" in load:
            a(f"v_min3_u32 v{reg}, v{reg}, v{reg+1}, v{reg+2}"); a(f"v_min_u32 v{reg}, v{reg}, v{reg+3}")
        a(f"{cmp} vcc, {stage}, v{reg}")
        a(f"s_sub_u32 {cnt}, {cnt}, 1"); a(f"s_cbranch_scc1 L_ok{n}")
        a("s_cmp_eq_u64 vcc, -1"); a(f"s_cbranch_scc0 L_spin{n}")
        a.lab(f"L_ok{n}")
    GP = opt("gp", 0)
    pollF1 = f"buffer_load_dwordx4 {vr(vPoll,4)}, v{vFA}, {S(sWS)}, s10 offen offset:16 {PP}" if GP else f"buffer_load_dword v{vPoll}, v{vFA}, {S(sWS)}, s10 offen {PP}"
    pollF1b = f"buffer_load_dwordx4 {vr(vPoll,4)}, v{vFA}, {S(sWS)}, s3 offen {PP}"
    pollF1A = f"buffer_load_dword v{vPoll}, v{vFA2}, {S(sWS)}, s10 offen {PP}"

    a(f"s_sub_u32 s66, s{sW}, 4")
    a("v_lshrrev_b32 v2, 3, v1")
    a("v_and_b32 v3, 7, v1")
    a("v_lshrrev_b32 v4, 4, v1")
    a("v_xor_b32 v5, v3, v4")
    a("v_lshlrev_b32 v5, 4, v5")
    a("v_lshl_add_u32 v6, v2, 10, v5")
    a(f"s_lshl_b32 s63, s{sR16}, 17"); a("s_lshl_b32 s64, s66, 15"); a("s_add_u32 s63, s63, s64")
    a("v_add_u32 v16, s63, v6")
    a("v_xor_b32 v17, 64, v16"); a("v_add_u32 v17, 8192, v17")
    a("v_add_u32 v18, 16384, v16"); a("v_add_u32 v19, 16384, v17")
    a(f"s_add_u32 s3, s62, s{sI}"); a("s_and_b32 s3, s3, 3"); a("s_lshl_b32 s3, s3, 1")
    a("s_lshl_b32 s67, s66, 12"); a("s_add_u32 s67, s67, 32768")
    a(f"s_mov_b32 s{sX+2}, {2048*512*2:#x}"); a(f"s_mov_b32 s{sX+3}, 0x20000")
    a("s_lshl_b32 s62, s3, 7")
    def wsetup():
        a("v_and_b32 v5, 1, v4")
        a("v_lshlrev_b32 v5, 2, v5")
        a("v_xor_b32 v5, v3, v5")
        a("v_lshlrev_b32 v5, 4, v5")
        a("v_mul_u32_u24 v8, 3072, v2")
        a("s_mul_i32 s63, s66, 49152")
        a("v_add3_u32 v20, v8, v5, s63")
        a("v_add_u32 v21, 24576, v20")
        roles()
        a("s_lshl_b32 s64, s64, 7"); a("s_lshl_b32 s65, s65, 7"); a("s_add_u32 s65, s65, 2048")
        a(f"s_cmp_lt_u32 s{sI}, 4"); a("s_cselect_b32 s22, 1024, 0"); a("s_add_u32 s64, s64, s22")
        a(f"s_cmp_lt_u32 s{sI}, 2"); a("s_cselect_b32 s22, s65, s64"); a("s_cselect_b32 s71, s64, s65")
        a("s_lshl_b32 s23, s66, 11"); a("s_add_u32 s23, s23, 32768")
        srd(a, sWB, 12, 13, 512*1536*2)
        a("s_lshl_b32 s64, s66, 8"); a("s_lshl_b32 s65, s3, 7"); a("s_add_u32 s65, s65, s64")
    stamp(a, 1, mode=8)
    a("s_waitcnt lgkmcnt(0)")
    stamp(a, 2, mode=8)
    a(f"s_mov_b32 s{sX}, s4"); a(f"s_and_b32 s{sX+1}, s5, 0xffff")
    RW = ["s22", "s23"]
    sP2 = sWOA
    def wblock(srdw, col, ldsoff, k):
        a(f"s_add_u32 s63, s3, {k}"); a("s_and_b32 s63, s63, 7")
        a(f"s_mul_i32 s63, s63, {64*3072}"); a(f"s_add_u32 s63, s63, {col}")
        for e in range(2):
            a(f"s_add_u32 m0, {RW[1]}, {ldsoff + e*1024}")
            a("s_nop 0")
            a(f"buffer_load_dwordx4 v{20+e}, {S(srdw)}, s63 offen lds")
    seq = []
    def issue(c):
        if c >= 8:
            for sb in range(2):
                wblock(sP2 if c < 12 else sWA, "s71" if c < 12 else "s65", wpos(c, sb), 2*((c-8) & 3) + sb)
            seq.append((c, 4)); return
        slot = c & 3
        if c: a(f"s_add_u32 s62, s3, {c}"); a("s_and_b32 s62, s62, 7"); a("s_lshl_b32 s62, s62, 7")
        for il in range(4):
            a(f"s_add_u32 m0, s67, {slot*32768 + il*1024}")
            a("s_nop 0")
            a(f"buffer_load_dwordx4 v{16+il}, {S(sX)}, s62 offen lds")
        if c == 0: wsetup()
        wblock(sWB, RW[0], slot*32768 + 16384, c)
        seq.append((c, 6))
    def wait_for(c):
        last = max(k for k, (cc, n) in enumerate(seq) if cc == c)
        a(f"s_waitcnt vmcnt({sum(n for cc, n in seq[last+1:])})")
    issue(0)
    stamp(a, 3, mode=8)
    a("v_lshlrev_b32 v24, 2, v1"); a("v_add_u32 v24, s65, v24"); a("v_and_b32 v24, 0x3ff, v24")
    srd(a, sWOB, 6, 7, 1024)
    a("s_add_u32 m0, s64, 28672"); a("s_nop 0")
    a(f"buffer_load_dword v24, {S(sWOB)}, 0 offen lds")
    issue(1)
    stamp(a, 4, mode=8)
    srd(a, sWA, 8, 9, 512*1536*2)
    a(f"s_xor_b32 s65, s{sI}, 2"); a("s_and_b32 s65, s65, 3"); a("s_and_b32 s62, s2, 4"); a("s_add_u32 s65, s65, s62"); a("s_lshl_b32 s65, s65, 7")
    a(f"s_and_b32 s62, s{sI}, 4"); a("s_lshl_b32 s62, s62, 8"); a("s_add_u32 s65, s65, s62")
    a(f"s_cmp_lt_u32 s{sI}, 4")
    a(f"s_cselect_b32 s{sP2}, s{sWB}, s{sWA}"); a(f"s_cselect_b32 s{sP2+1}, s{sWB+1}, s{sWA+1}")
    a(f"s_mov_b32 s{sP2+2}, {512*1536*2:#x}"); a(f"s_mov_b32 s{sP2+3}, 0x20000")
    SCH = {5: {-1: [2], 0: [3], 1: [4], 2: [5], 3: [6], 4: [7, 8], 5: [12], 7: [9], 8: [10, 11], 10: [13, 14], 11: [15]},
           8: {-1: [8], 0: [2, 3], 1: [4], 2: [5], 3: [6], 4: [7], 5: [9], 6: [10, 11], 7: [12], 10: [13, 14], 11: [15]},
           9: {-1: [8, 12], 0: [2, 3], 1: [4], 2: [5], 3: [6], 4: [7], 5: [9], 6: [10], 7: [11], 9: [13], 10: [14], 11: [15]},
           10: {-1: [8], 0: [12, 2], 1: [3, 4], 2: [5], 3: [6], 4: [7], 5: [9], 6: [10], 7: [11], 9: [13], 10: [14], 11: [15]},
           11: {-1: [8], 0: [2, 3], 1: [4], 2: [5], 3: [6], 4: [7], 5: [9], 6: [10], 7: [11], 9: [12], 10: [13, 14], 11: [15]},
           12: {-1: [2], 0: [3], 1: [4], 2: [5], 3: [6], 4: [7, 8], 7: [9], 8: [10, 11], 9: [12], 11: [13, 14, 15]},
           13: {-1: [8, 12], 0: [2, 3], 1: [4], 2: [5], 3: [6], 4: [7], 5: [9], 6: [10], 7: [11, 13], 9: [14, 15]},
           14: {-1: [8], 0: [2, 3], 1: [4], 2: [5], 3: [6], 4: [7], 5: [9, 12], 6: [10], 7: [11], 9: [13, 14], 10: [15]},
           15: {-1: [2], 0: [3], 1: [4], 2: [5], 3: [6], 4: [7, 8], 5: [12], 7: [9], 8: [10, 11], 9: [13], 10: [14, 15]},
           }[opt("sch", 8)]
    for cc in SCH[-1]: issue(cc)
    stamp(a, 5, mode=8)
    srd(a, sWS, 20, 21, ws_size()); srd(a, sOUT, 16, 17, 2048*512*2); srd(a, sDBG, 18, 19, 256); srd(a, sWOB, 14, 15, 512*512*2)
    a("s_mov_b32 s17, s22"); a("s_mov_b32 s18, s23"); RW[:] = ["s17", "s18"]
    ids()
    lset = late_setup() + attn_setup()
    LSPLIT = opt("lsplit", 110)
    def after(k):
        for cc in SCH.get(k, []): issue(cc)
    for c in range(0, 9):
        stamp(a, c+1, mode=6)
        wait_for(c)
        stamp(a, c+1, mode=7)
        if c < 2: stamp(a, 6+2*c, mode=8)
        a("s_barrier")
        if c < 2: stamp(a, 7+2*c, mode=8)
        stamp(a, c+1, mode=4)
        if c == 0: hold(10)
        if c == 4: hold(16)
        if c == 8: hold(11)
        after(c)
    wait_for(9); a("s_barrier")
    after(9)
    wait_for(11); a("s_barrier")
    after(10)
    gread(3)
    B4 = opt("b4", 17)
    if not B4: srd(a, sWOA, 10, 11, 512*512*2); [a(x) for x in lset[:LSPLIT]]
    a("s_waitcnt lgkmcnt(0)")
    wait_for(12 if B4 else 15)
    a("s_barrier")
    hold(12)
    if B4:
        after(11)
        srd(a, sWOA, 10, 11, 512*512*2)
        for x in lset[:LSPLIT]: a(x)
        a("s_waitcnt vmcnt(0)"); a("s_barrier")
    hold(13)
    L2 = opt("lsplit2", 140)
    while L2 < len(lset) and not lset[L2].startswith("v_cmp"): L2 += 1
    for x in lset[LSPLIT:L2]: a(x)
    stamp(a, 1)
    NP = opt("npoll", 1)
    if NP < 4: a(f"s_cmp_ge_u32 s66, {NP}"); a("s_cbranch_scc1 L_nokv")
    a(pollF1)
    spin(pollF1, 1)
    hold(14)
    stamp(a, 2)
    qn = 8//NP
    a(f"s_mul_i32 s62, s66, {qn*1024}")
    a(f"s_lshl_b32 s63, s{sW}, 10"); a("s_sub_u32 s63, s11, s63"); a("s_add_u32 s63, s63, s62"); a(f"s_add_u32 s63, s63, {32*64*1024:#x}")
    for g in range((qn+3)//4):
        a(f"s_add_u32 m0, s62, {QSTG + g*4096}"); a(f"s_add_u32 s64, s63, {g*4096}")
        for i in range(min(qn, 4)): a(f"buffer_load_dwordx4 v{vL16}, {S(sWS)}, s64 offen offset:{i*1024} {LD} lds")
    a(f"s_mul_i32 s62, s66, {qn*4096}"); a("s_add_u32 s63, s62, s16")
    for q in range(2):
        if NP == 1 and q: a("s_waitcnt vmcnt(24)")
        for g in range(qn):
            a(f"s_add_u32 m0, s62, {q*32768 + g*4096}"); a(f"s_add_u32 s64, s63, {q*65536 + g*4096}")
            for i in range(4): a(f"buffer_load_dwordx4 v{vL16}, {S(sWS)}, s64 offen offset:{i*1024} {LD} lds")
    a.lab("L_nokv")
    for x in lset[L2:]: a(x)
    a(f"s_waitcnt vmcnt({4*qn if opt('t1', 0) else 0})"); a("s_barrier")
    stamp(a, 3)
    a("s_branch L_attn")

    a.lab("L_compute")
    CPF = opt("codepf", 2)
    if CPF:
        a("s_getpc_b64 s[62:63]")
        a.lab("L_pc")
        if CPF == 1:
            a("s_lshr_b32 s64, s2, 3"); a("s_cmp_eq_u32 s64, 1"); a("s_cbranch_scc0 L_nocpf")
            a("v_lshlrev_b32 v20, 7, v0")
        else:
            a(f"s_cmp_eq_u32 s{sW}, 2"); a("s_cbranch_scc0 L_nocpf")
            a("s_lshr_b32 s64, s2, 3"); a("s_lshl_b32 s64, s64, 7")
            a("v_and_b32 v20, 15, v1"); a("v_lshlrev_b32 v20, 12, v20"); a("v_add_u32 v20, s64, v20")
        a(f"s_sub_u32 s62, s62, L_pc-{K}"); a("s_subb_u32 s63, s63, 0")
        a(f"v_min_u32 v20, L_code_end-{K}-4, v20")
        a("v_mov_b32 v21, s63")
        a("v_add_co_u32 v20, vcc, s62, v20")
        a("s_nop 1")
        a("v_addc_co_u32 v21, vcc, 0, v21, vcc")
        a("global_load_dword v255, v[20:21], off")
        a.lab("L_nocpf")
    a("v_lshrrev_b32 v16, 5, v1")
    a("v_and_b32 v17, 31, v1")
    a("v_lshrrev_b32 v18, 1, v17"); a("v_and_b32 v18, 7, v18")
    a(f"s_lshl_b32 s62, s{sW}, 12"); a("s_add_u32 s62, s62, 32768")
    a("v_lshlrev_b32 v19, 7, v17"); a("v_add_u32 v19, s62, v19")
    for t in range(4):
        a(f"v_add_u32 v20, {2*t}, v16"); a("v_xor_b32 v20, v20, v18")
        a(f"v_lshl_add_u32 v{vXA+t}, v20, 4, v19")
        a(f"v_add_u32 v{vXA+4+t}, 0x10000, v{vXA+t}")
    a("v_bfe_u32 v18, v1, 2, 2")
    a("v_lshl_add_u32 v19, v16, 3, v18"); a("v_lshlrev_b32 v19, 7, v19")
    a("v_bfe_u32 v20, v1, 4, 1"); a("v_lshlrev_b32 v20, 1, v20")
    a("v_bfe_u32 v21, v1, 1, 1"); a("v_add_u32 v20, v20, v21")
    a("v_bfe_u32 v21, v1, 3, 1"); a("v_lshl_or_b32 v20, v21, 2, v20")
    a("v_lshl_add_u32 v19, v20, 4, v19")
    a("v_and_b32 v20, 1, v1"); a("v_lshl_add_u32 v19, v20, 3, v19")
    a(f"v_add_u32 v{vWA}, 32768, v19"); a(f"v_xor_b32 v{vWA+1}, 64, v{vWA}")
    a(f"v_add_u32 v{vWA+2}, 0x10000, v{vWA}"); a(f"v_add_u32 v{vWA+3}, 0x10000, v{vWA+1}")
    a(f"v_lshlrev_b32 v{vGA}, 4, v16"); a(f"v_add_u32 v{vGA}, 28672, v{vGA}")
    ids()
    roles()
    a(f"s_lshl_b32 s66, s{sR16}, 2"); a(f"s_add_u32 s66, s66, s{sW}")
    a("s_lshl_b32 s62, s64, 8"); a("s_add_u32 s62, s62, s66"); a("s_add_u32 s62, s62, 2048")
    a(f"s_xor_b32 s64, s{sI}, 2"); a("s_and_b32 s64, s64, 3"); a("s_add_u32 s64, s64, s22"); a("s_lshl_b32 s64, s64, 8"); a("s_add_u32 s64, s64, s66")
    a("s_lshl_b32 s24, s62, 11"); a("s_lshl_b32 s25, s62, 10"); a(f"s_add_u32 s25, s25, {WS_Q:#x}")
    a("s_lshl_b32 s26, s64, 11"); a("s_lshl_b32 s27, s64, 10"); a(f"s_add_u32 s27, s27, {WS_Q:#x}")
    a("s_mov_b32 s28, 0x10000"); a("s_mov_b32 s29, 0x20000")
    a(f"s_cmp_lt_u32 s{sI}, 4")
    a("s_cselect_b32 s24, s24, s25"); a("s_cselect_b32 s25, s29, s28")
    a("s_cselect_b32 s26, s27, s26"); a("s_cselect_b32 s27, s28, s29")
    a("s_cselect_b32 s64, 2048, 0")
    a("s_lshl_b32 s62, s65, 8"); a("s_add_u32 s62, s62, s66"); a("s_add_u32 s62, s62, s64")
    a("s_lshl_b32 s28, s62, 11"); a("s_add_u32 s29, s28, 0x40000")
    a(f"s_mov_b32 s32, {QSCALE:#x}")
    a("v_mov_b32 v0, 0")
    a("s_waitcnt lgkmcnt(0)")
    common_srds()
    NI = opt("ni", 16); KBI = 64//NI
    for i in range(4): a(f"v_mov_b32 v{20+i}, 0")
    a("v_mov_b32 v254, 1")
    a(f"s_lshl_b32 s35, s{sW}, 8"); a("s_add_u32 s35, s35, s2"); a("s_sub_u32 s35, s35, 768")
    a(f"s_cmp_lt_u32 s35, {NI}"); a("s_cbranch_scc0 L_noinit")
    a(f"s_mul_i32 s62, s2, {KBI*1024}"); a(f"s_add_u32 s62, s62, {WS_FL:#x}"); a("s_add_u32 s63, s62, 4096")
    for i in range(KBI): a(f"buffer_store_dwordx4 v[20:23], v{vL16}, {S(sWS)}, s{62+(i>>2)} offen offset:{(i&3)*1024} {SC}")
    a.lab("L_noinit")
    def raise_init(tag):
        a(f"s_cmp_lt_u32 s35, {NI}"); a(f"s_cbranch_scc0 L_noinit2{tag}")
        a(f"s_mul_i32 s62, s2, {256//NI}")
        a("s_waitcnt vmcnt(0)")
        a("s_mov_b64 exec, 1")
        a(f"buffer_store_dword v254, v{vL16}, {S(sDBG)}, s62 offen {SC}")
        a("s_mov_b64 exec, -1")
        a.lab(f"L_noinit2{tag}")

    def chunk_of(m): return m if m < 8 else 8 + ((m - 8) >> 1)
    def reads(m):
        c = chunk_of(m); slot = c & 3; b = m & 1; L = []
        wp = slot*32768 + 16384 if m < 8 else wpos(c, (m - 8) & 1)
        for t in range(4):
            if m < 8:
                L.append(f"ds_read_b128 {vr(XR + 4*(4*m+t), 4)}, v{vXA + 4*(slot>>1) + t} offset:{(slot&1)*32768}")
            for cc in range(2):
                for u in range(2):
                    L.append(f"ds_read_b64_tr_b16 {vr(WF[b]+8*t+4*cc+2*u,2)}, v{vWA+2*(wp>>16)+cc} offset:{(wp & 0xffff) + (16*t+4*u)*128}")
        return L
    def greads(m): return [f"ds_read_b128 {vr(GF+4*t,4)}, v{vGA} offset:{(4*m+t)*32}" for t in range(4)]
    def dots(m): return [f"v_dot2_f32_bf16 v0, v{XR+16*m+i}, v{GF+i}, v0" for i in range(16)]
    def mfmas(m, vphase):
        b = m & 1; L = []
        for t in range(4):
            x = vr(XR + 4*(4*(m & 7)+t), 4)
            for cc in range(2):
                d = vr(ACC[cc], 16); c0 = "0" if (m & 7) == 0 and t == 0 else d
                w = vr(WF[b]+8*t+4*cc, 4)
                if opt("x_m16"):
                    x2 = vr(XR + 4*(4*(m & 7)+(t^1)), 4)
                    d1 = vr(ACC[cc]+8*(t&1), 4); d2 = vr(ACC[cc]+8*(t&1)+4, 4)
                    z = (m & 7) == 0 and t < 2
                    L.append(f"v_mfma_f32_16x16x32_bf16 {d1}, {w}, {x}, {0 if z else d1}\n    v_mfma_f32_16x16x32_bf16 {d2}, {w}, {x2}, {0 if z else d2}")
                    continue
                L.append(f"v_mfma_f32_32x32x16_bf16 {d}, {x}, {w}, {c0}" if (m >> 3) == vphase else f"v_mfma_f32_32x32x16_bf16 {d}, {w}, {x}, {c0}")
        return L
    ST = opt("st", "sc1")
    def stores3():
        for i in range(4):
            a(f"buffer_store_dwordx4 {vr(208+4*i,4)}, v5, {S(sWS)}, s26 offen {ST}")
            a("s_add_u32 s26, s26, s27")
    def epilogue(ph, pk, vphase):
        a("s_nop 6" if ph == 0 else "s_nop 10")
        if ph == 2 or (ph == 0 and vphase == 1):
            a(f"s_cmp_lt_u32 s{sI}, 4"); a(f"s_cbranch_scc{1 if ph == 0 else 0} L_noscale{ph}")
            for r in range(32): a(f"v_mul_f32 v{ACC[0]+r}, s32, v{ACC[0]+r}")
            a.lab(f"L_noscale{ph}")
        for cc in range(2):
            for p in range(2):
                for i in range(4): a(f"v_cvt_pk_bf16_f32 v{pk+i}, v{ACC[cc]+8*p+2*i}, v{ACC[cc]+8*p+2*i+1}")
                if ph == vphase: a(f"buffer_store_dwordx4 {vr(pk,4)}, v3, {S(sWS)}, s{28+cc} offen offset:{p*512} {ST}")
                elif ph < 2:
                    a(f"buffer_store_dwordx4 {vr(pk,4)}, v4, {S(sWS)}, s24 offen {ST}")
                    a("s_add_u32 s24, s24, s25")
                pk += 4
        a("s_nop 1")
    def publishF1(stage, t1):
        a(f"v_mov_b32 v{t1}, {stage}")
        a("s_lshl_b32 s62, s2, 7"); a(f"s_add_u32 s62, s62, {WS_FL:#x}")
        a("s_mov_b64 exec, 1")
        a(f"buffer_store_dword v{t1}, v{vL16}, {S(sWS)}, s62 offen {SC}")
        a("s_mov_b64 exec, -1")
    def first_step(x):
        regs = [int(r) for r in re.findall(r"\bv(\d+)", x)]
        hi = max([r for r in regs if r >= XR], default=0)
        return 16 + (hi - XR)//16 + 1 if hi else 16
    plan = {m: [[] for _ in range(8)] for m in range(24)}
    pos = 16*8
    for x in attn_setup():
        pos = max(pos, first_step(x)*8)
        while len(plan[pos >> 3][pos & 7]) >= (3 if pos < 21*8 else 4): pos += 1
        plan[pos >> 3][pos & 7].append(x)
    staddr = ["v_and_b32 v2, 0x33, v1", "v_bfe_u32 v3, v1, 2, 1", "v_lshl_or_b32 v2, v3, 3, v2", "v_bfe_u32 v3, v1, 3, 1",
              "v_lshl_or_b32 v2, v3, 2, v2", "v_lshlrev_b32 v2, 4, v2", f"v_mov_b32 v6, s{sI}", "v_cmp_gt_u32 vcc, 4, v6",
              "v_and_b32 v3, 15, v1", "v_lshlrev_b32 v3, 4, v3", f"v_cndmask_b32 v4, v{vL16}, v2, vcc", f"v_cndmask_b32 v5, v2, v{vL16}, vcc",
              "v_lshrrev_b32 v2, 5, v1", "v_lshl_add_u32 v3, v2, 8, v3", "v_bfe_u32 v2, v1, 4, 1", "v_lshl_add_u32 v3, v2, 17, v3", "v_add_u32 v3, 1024, v3"]
    for k, x in enumerate(staddr): plan[7][4 + k*4//len(staddr)].append(x)
    gate = ["v_mov_b32 v113, v0", "v_and_b32 v119, 31, v1", f"s_lshl_b32 s62, s{sW}, 7", "v_permlane32_swap_b32 v0, v113", "v_add_f32 v113, v0, v113",
            f"v_mul_f32 v113, {f2u(-1.4426950408889634):#x}, v113", "v_exp_f32 v113, v113", "s_add_u32 s62, s62, 29696", "v_add_f32 v113, 1.0, v113",
            "v_rcp_f32 v113, v113", "v_lshl_add_u32 v119, v119, 2, s62", "ds_write_b32 v119, v113"]
    for k, x in enumerate(gate): plan[8][k*6//len(gate)].append(x)
    ls = late_setup()
    for k, x in enumerate(ls):
        p = 9*8 + k*48//len(ls); plan[p >> 3][p & 7].append(x)
    pollI = f"buffer_load_dword v114, v115, {S(sDBG)}, 0 offen {PP}"
    pubs = []
    def step(m, vphase):
        tag = "v" if vphase == 0 else "q"
        if m >= 8 and m % 2 == 0: stamp(a, 2 + (m-8)//2, mode=3)
        if m == 7: stamp(a, 1, mode=3)
        a("s_waitcnt lgkmcnt(0)" if m != 5 else "s_waitcnt vmcnt(0) lgkmcnt(0)")
        mm = mfmas(m, vphase)
        r = reads(m+1) if m < 23 else []
        fill = [[] for _ in range(8)]
        if m < 8:
            d = dots(m) if not opt("x_nodot") else []
            for g in range(4): fill[g] += d[4*g:4*g+4]
            if m < 7: fill[4] += greads(m+1)
        for g in range(8): fill[g] += plan[m][g]
        nr = (len(r) + 4) // 5
        for i in range(8):
            a(mm[i])
            if i == 0:
                if m == PUB1 and not GP:
                    a("s_waitcnt vmcnt(0)")
                    a(f"s_cmp_lg_u32 s{sW}, 0"); a(f"s_cbranch_scc1 L_noinitchk{tag}")
                    spin(pollI, 1, cnt="s65", reg=114, cmp="v_cmp_eq_u32")
                    a.lab(f"L_noinitchk{tag}")
                if m <= 7: stamp(a, m+2, mode=7)
                if m <= 7 or m in (9, 11, opt('b3', 13), opt('b4', 17) or 9): a("s_barrier")
                if m == PUB1 and not GP:
                    a(f"s_cmp_lg_u32 s{sW}, 0"); a(f"s_cbranch_scc1 L_nopub1{tag}")
                    publishF1(1, 114)
                    a.lab(f"L_nopub1{tag}")
                if m == 11: gread(118)
                if m == 1: raise_init(tag)
            if i < 5:
                for x in r[i*nr:(i+1)*nr]: a(x)
            for x in fill[i]: a(x)
            LASTP = opt("b3", 13) - 1 if not opt("b4", 17) else 15
            if GP and 9 <= m <= LASTP and i in (2, 6):
                if (m, i) == (LASTP, 6): a("s_cmp_lg_u32 s34, 0")
                else: a("s_getreg_b32 s62, hwreg(HW_REG_IB_STS, 0, 4)"); a("s_or_b32 s62, s62, s34")
                a(f"s_cbranch_scc0 L_pub_{tag}{m}_{i}")
                a.lab(f"L_pubr_{tag}{m}_{i}")
                pubs.append(f"{tag}{m}_{i}")
        if m == 7:
            stamp(a, 3)
            epilogue(0, WF[1], vphase)
            a(f"v_and_b32 v115, {NI-1}, v1"); a(f"v_mul_u32_u24 v115, {256//NI}, v115")
            if not GP: a(f"s_cmp_lg_u32 s{sW}, 0"); a(f"s_cbranch_scc1 L_noip{tag}")
            a(pollI)
            a.lab(f"L_noip{tag}")
            a("s_mov_b32 s34, 0")
        if m == 15:
            epilogue(1, WF[1], vphase)
    stamp(a, 1)
    a(f"s_cmp_lt_u32 s{sI}, 2"); a("s_cbranch_scc0 L_p12q")
    for vphase in (0, 1):
        if vphase: a.lab("L_p12q")
        a("s_barrier")
        stamp(a, 2, True)
        for r in reads(0) + greads(0): a(r)
        for m in range(16): step(m, vphase)
        if vphase == 0: a("s_branch L_p3")
    a.lab("L_p3")
    for m in range(16, 24): step(m, -1)
    stamp(a, 4)
    a("s_waitcnt vmcnt(0)")
    a("s_lshl_b32 s62, s2, 7"); a(f"s_lshl_b32 s63, s{sW}, 2"); a("s_add_u32 s62, s62, s63"); a(f"s_add_u32 s62, s62, {WS_F2:#x}")
    a("v_mov_b32 v114, 1")
    a("s_mov_b64 exec, 1")
    a(f"buffer_store_dword v114, v{vL16}, {S(sWS)}, s62 offen {SC}")
    a("s_mov_b64 exec, -1")
    epilogue(2, 208, -1)
    hold(15)
    a("s_barrier")

    a.lab("L_attn")
    def rdK(buf, addr, off): a(f"ds_read_b128 {vr(KB[buf],4)}, v{addr} offset:{off}")
    def rdV(buf, addr, off):
        a("s_mov_b64 exec, s[22:23]")
        a(f"ds_read_b128 {vr(VB[buf][0],4)}, v{addr} offset:{off}")
        a(f"ds_read_b128 {vr(VB[buf][1],4)}, v{addr} offset:{off+512}")
        a("s_mov_b64 exec, -1")
    def mfma(dst, kbuf, q, c): a(f"v_mfma_f32_32x32x16_bf16 {vr(dst,16)}, {vr(KB[kbuf],4)}, {vr(q,4)}, {c}")
    def smf(vreg, sreg):
        if opt("x_nosmf"): return
        if opt("x_dense") == 1:
            for i in range(4): a(f"v_cvt_pk_bf16_f32 v{24+i}, v{sreg+2*i}, v{sreg+2*i+1}")
            a("s_nop 1")
            a(f"v_mfma_f32_32x32x16_bf16 {vr(OA,16)}, {vr(vreg,4)}, v[24:27], {vr(OA,16)}")
            return
        if opt("x_dense") == 2:
            a(f"v_mfma_f32_32x32x16_bf16 {vr(OA,16)}, {vr(vreg,4)}, {vr(QB,4)}, {vr(OA,16)}")
            return
        if opt("x_dense") == 3:
            a(f"v_smfmac_f32_16x16x64_bf16 {vr(OA,4)}, {vr(KB[0],4)}, {vr(sreg,8)}, v{vIDX}")
            return
        if opt("x_dense") == 4:
            a(f"v_smfmac_f32_32x32x16_bf16 {vr(OA,16)}, {vr(vreg,2)}, {vr(sreg,4)}, v{vIDX}")
            a(f"v_smfmac_f32_32x32x16_bf16 {vr(OA,16)}, {vr(vreg+2,2)}, {vr(sreg+4,4)}, v{vIDX}")
            return
        a(f"v_smfmac_f32_32x32x32_bf16 {vr(OA,16)}, {vr(vreg,4)}, {vr(sreg,8)}, v{vIDX}")
    def ex(s, i): a(f"v_exp_f32 v{s+i}, v{s+i}" if not opt("x_expc") else f"v_exp_f32 v{vT2}, v{vMF}")
    def halves_max():
        a(f"v_mov_b32 v{vT}, v{vM}")
        a("s_nop 1")
        a(f"v_permlane32_swap_b32 v{vM}, v{vT}")
        a(f"v_max_f32 v{vM}, v{vM}, v{vT}")
    def rowmax(s):
        a(f"v_max3_f32 v{vM}, v{s}, v{s+1}, v{vMF}")
        for i in range(2, 16, 2): a(f"v_max3_f32 v{vM}, v{s+i}, v{s+i+1}, v{vM}")
        halves_max()
    def tile(t, first, do_mfma, q, c, kread, vread, pre_mfma=None, extra=None, side=None, base=0):
        cur, prev = SB[t & 1], SB[(t+1) & 1]
        LO, HI = opt("lo", 14), opt("hi", 0)
        def e(i):
            if i == HI: a(f"s_setprio {base+1}")
            if i == LO: a(f"s_setprio {base}")
            ex(cur, i)
            if side and i in side:
                for x in side[i]: a(x)
        e(0); e(1)
        if not first and opt("adj", 0): smf(VB[(t-1) & 1][0], prev)
        if not first: smf(VB[(t-1) & 1][1], prev+8)
        a("s_waitcnt lgkmcnt(0)")
        if opt("x_half") and t & 2: kread = vread = None
        if opt("x_c0"): c = "0"
        if kread is not None: rdK(t & 1, *kread)
        if vread is not None: rdV((t+1) & 1, *vread)
        if extra: extra()
        e(2); e(3); e(4)
        if do_mfma:
            if pre_mfma: pre_mfma()
            if not (opt("x_noqk") and t > 2): mfma(prev, (t+1) & 1, q, c)
        for i in range(5, 10): e(i)
        if not opt("adj", 0): smf(VB[t & 1][0], cur)
        else: a("s_nop 0")
        for i in range(10, 16): e(i)
    def a_first():
        rdK(0, vKa, 8*2048); rdK(1, vKa, 7*2048); rdV(0, vVa, 8*2048)
        a("s_waitcnt lgkmcnt(3)")
        mfma(SB[0], 0, QA, vr(CD, 16))
    def finish(tlast, fb_label, done_label, br):
        a("s_nop 1")
        if opt("adj", 0): smf(VB[tlast & 1][0], SB[tlast & 1])
        smf(VB[tlast & 1][1], SB[tlast & 1]+8)
        if br:
            a.lab("L_B_fin"); a_first(); a("s_nop 4")
        else:
            a.lab("L_A_fin"); a("s_nop 11")
        a(f"v_rcp_f32 v{vT2}, v{OA+8}")
        a(f"v_add_f32 v{vT}, abs(v{OA}), v{OA+8}")
        for i in range(1, 8): a(f"v_add_f32 v{vT}, abs(v{OA+i}), v{vT}")
        a(f"v_add_f32 v{vT}, v{vT2}, v{vT}")
        a(f"v_cmp_gt_f32 vcc, 0x71800000, v{vT}")
        a("s_cmp_lg_u32 s8, 0"); a(f"s_cbranch_scc1 {done_label}")
        if not opt("x_nofb"): a("s_cmp_eq_u64 vcc, -1"); a(f"s_cbranch_scc0 {fb_label}")
        a.lab(done_label)
        for i in range(8): a(f"v_mul_f32 v{OA+i}, v{vT2}, v{OA+i}")
        for i in range(4): a(f"v_cvt_pk_bf16_f32 v{PK[br]+i}, v{OA+2*i}, v{OA+2*i+1}")
        for i in range(4): a(f"v_min_u32 v{PK[br]+i}, -2, v{PK[br]+i}")
        a(f"s_add_u32 s62, s15, {br*32*1024}")
        a(f"buffer_store_dwordx4 {vr(PK[br],4)}, v{vL16}, {S(sWS)}, s62 offen {SC}")
    def copy(srdw, voff, lds, src):
        a(f"s_add_u32 m0, {lds[0]}, {lds[1]}"); a(f"s_add_u32 s63, {src[0]}, {src[1]}")
        a(f"buffer_load_dwordx4 v{voff}, {S(srdw)}, s63 offen {LD} lds")
    def wo_copy(n0, k):
        copy(sWOA if n0 < 64 else sWOB, vWo, ("s19", (n0+k)*1024), ("s18", ((n0 & 63)+k)*8192))
    stamp(a, 5, True)
    hold(1)
    for k in range(opt("x_idle", 0)): a("s_sleep 64")
    a(f"ds_read_b128 {vr(QB,4)}, v{vKb}")
    rdK(0, vL16, 0); rdK(1, vL16, 2048); rdV(0, vVb, 0)
    a(f"v_mov_b32 v{vKb}, v{vL16}")
    a("s_waitcnt lgkmcnt(3)")
    mfma(SB[0], 0, QB, "0")
    a(f"s_lshl_b32 s19, s{sW}, 13"); a("s_and_b32 s18, s19, 0x8000"); a("s_add_u32 s18, s18, s19"); a("s_add_u32 s18, s18, s21")
    a("s_mov_b32 s9, 0"); a(f"s_mov_b32 s3, {WS_F2:#x}")
    a("s_nop 5")
    rowmax(SB[0])
    for r in range(16): a(f"v_sub_f32 v{CM+r}, 0, v{vM}")
    a("s_nop 1")
    mfma(SB[0], 0, QB, vr(CM, 16))
    a("s_waitcnt lgkmcnt(0)")
    stamp(a, 1, True, mode=1)
    if Cfg.stamp and opt("smode") == 5:
        a("s_memtime s[72:73]"); a("s_memrealtime s[74:75]"); a("s_waitcnt lgkmcnt(0)")
    a("s_nop 9")
    X = {u: [] for u in range(64)}
    def at(u, f): X[u].append(f)
    U1 = opt("u1", 8)
    at(U1-3, lambda: a(pollF1b))
    at(U1, lambda: spin(pollF1b, 1))
    if opt("t1", 0): at(U1, lambda: a("s_barrier"))
    for k in range(8): at(U1+k, lambda k=k: copy(sWS, vL16, ("s19", 65536 + k*1024), ("s18", k*1024)))
    def marks():
        for i in range(4): a(f"v_mov_b32 v{PK[0]+i}, -1")
        a("s_add_u32 s62, s15, 32768")
        a(f"buffer_store_dwordx4 {vr(PK[0],4)}, v{vL16}, {S(sWS)}, s15 offen {SC}")
        a(f"buffer_store_dwordx4 {vr(PK[0],4)}, v{vL16}, {S(sWS)}, s62 offen {SC}")
    at(U1+8, marks)
    def st3():
        a(f"s_cmp_ge_u32 s{sW}, 4"); a("s_cbranch_scc1 L_nost3"); stores3(); a.lab("L_nost3")
    at(U1+9, st3)
    U2 = opt("u2", 24)
    def t2():
        a("s_waitcnt vmcnt(0)"); a("s_barrier")
        a(f"s_and_b32 s62, s{sW}, 3"); a("s_cbranch_scc0 L_t2x")
        a.lab("L_t2r")
    at(U2, t2)
    at(U2+1, lambda: (a(f"s_lshl_b32 s19, s{sW}, 12"), a(f"s_lshl_b32 s18, s{sW}, 15"), a(f"s_lshl_b32 s62, s{sJ}, 7"), a("s_add_u32 s18, s18, s62")))
    for k in range(4): at(U2+11+k, lambda k=k: wo_copy(0, k))
    U3 = opt("u3", 42)
    at(U3-3, lambda: a(pollF1A))
    def win():
        spin(pollF1A, 2)
        a(f"s_lshl_b32 s12, s{sB}, 14"); a("s_add_u32 s12, s12, s19")
        a("s_cmp_lt_u32 s12, 16384"); a("s_cselect_b32 s62, 0, 16384")
        a("s_add_u32 s12, s12, s13"); a("s_sub_u32 s12, s12, s62")
        a(f"buffer_load_dwordx4 {vr(QA,4)}, v{vL16}, {S(sWS)}, s11 offen {LD}")
        a(f"v_and_b32 v{vFA2}, 7, v1"); a(f"v_lshlrev_b32 v{vFA2}, 10, v{vFA2}")
        a("s_add_u32 s10, s20, 32768")
    at(U3, win)
    for k in range(4): at(U3+1+k, lambda k=k: copy(sWS, vL16, ("s19", 131072 + k*1024), ("s12", k*1024)))
    at(48, lambda: (a("s_waitcnt vmcnt(0)"), a("s_barrier")))
    for k in range(8): at(49+k, lambda k=k: wo_copy(32 + 32*(k >> 2), k & 3))
    for u in range(64):
        if u and u % 8 == 0: stamp(a, 1 + u//8, mode=1)
        if u == 30: a(f"v_add_u32 v{vKb}, 0x10000, v{vKb}")
        if u == 31: a(f"v_add_u32 v{vVb}, 0x10000, v{vVb}")
        tile(u, u == 0, u < 63, QB, vr(CM, 16), (vKb, ((u+2)*2048) & 0xffff) if u < 62 else None,
             (vVb, ((u+1)*2048) & 0xffff) if u < 63 else None, None, lambda u=u: [f() for f in X[u]])
    stamp(a, 6)
    stamp(a, 1, mode=9)
    stamp(a, 9, mode=1)
    if Cfg.stamp and opt("smode") == 5:
        a("s_memtime s[76:77]"); a("s_memrealtime s[78:79]"); a("s_waitcnt lgkmcnt(0)")
    finish(63, "L_B_fb", "L_B_done", 1)
    a("s_mov_b32 s8, 0")
    for r in range(9): a(f"v_mov_b32 v{OA+r}, 0")
    stamp(a, 7)
    stamp(a, 2, mode=9)
    hold(2)
    a.lab("L_A_max")
    rowmax(SB[0])
    for r in range(16): a(f"v_sub_f32 v{SB[0]+r}, v{SB[0]+r}, v{vM}")
    for r in range(16): a(f"v_sub_f32 v{CM+r}, 0, v{vM}")
    for r in range(16): a(f"v_sub_f32 v{CF+r}, v{CF+r}, v{vM}")
    def oloads(br):
        a(f"s_add_u32 s62, s20, {br*32768}"); a("s_add_u32 s63, s62, 4096")
        for i in range(8):
            a(f"buffer_load_dwordx4 {vr(OF[1-br]+4*i,4)}, v{vL16}, {S(sWS)}, s{62+(i>>2)} offen offset:{(i&3)*1024} {LD}")
    pollO = [f"buffer_load_dword v{vPoll}, v{vFA2}, {S(sWS)}, s20 offen {PP}", f"buffer_load_dword v{vPoll}, v{vFA2}, {S(sWS)}, s10 offen {PP}"]
    if opt("patom"):
        pollO = [f"v_mov_b32 v{vPoll}, 0\n    s_mov_b64 exec, 0xff\n    buffer_atomic_or v{vPoll}, v{vFA2}, {S(sWS)}, s{r} offen sc0\n    s_mov_b64 exec, -1" for r in (20, 10)]
    OBP = opt("obp", 4)
    OAP = -1
    for t in range(9):
        def pm(t=t):
            if t < 7:
                a(f"s_cmp_eq_u32 s7, {t}"); a(f"s_cbranch_scc1 L_A_off{t}")
                a.lab(f"L_A_mid{t}")
        def extra(t=t):
            if t not in (0, 1, OBP, OBP+2, OAP): return
            if t == 0: a("s_barrier")
            if t < 2: wo_copy(96, 2*t); wo_copy(96, 2*t+1)
            if t == OBP:
                if opt("twe", 2) == 2: a("s_waitcnt vmcnt(0)"); a("s_barrier")
                a(pollO[1])
            if t == OBP+2:
                a("s_waitcnt vmcnt(0)")
                if opt("twe", 2) == 1: a("s_barrier")
                a(f"v_cmp_ne_u32 vcc, -1, v{vPoll}")
                a(f"v_mov_b32 v{OF[0]}, -1")
                a("s_cmp_eq_u64 vcc, -1"); a(f"s_cbranch_scc0 L_A_x{t}")
                oloads(1)
            if t == OAP: a(pollO[0])
            a.lab(f"L_A_x{t}")
        if t in (0, 1, 2, 4, 5, 7): stamp(a, {0:3, 1:4, 2:5, 4:6, 5:7, 7:8}[t], mode=9)
        tile(t, t == 0, t < 8, QA, vr(CM if t < 7 else CF, 16),
             (vKa, (8-(t+2))*2048) if t+2 <= 8 else None,
             (vVa, (8-(t+1))*2048) if t+1 <= 8 else None, pm, extra, None, (2 - t//3) if opt("ramp", 1) else 0)
    finish(8, "L_A_fb", "L_A_done", 0)
    stamp(a, 8)
    stamp(a, 9, mode=9)
    stamp(a, 1, mode=2)
    WR = lambda i, c: 144 + 8*i + 4*c
    def wreads(i):
        for c in range(2):
            for u in range(2):
                a(f"ds_read_b64_tr_b16 {vr(WR(i,c)+2*u,2)}, v{vPW0+c} offset:{i*2048+u*1024}")
    def pm(br, i):
        for c in range(2):
            d = vr(PACC[br][c], 16)
            a(f"v_mfma_f32_32x32x16_bf16 {d}, {vr(WR(i,c),4)}, {vr(OF[1-br]+4*i,4)}, {'0' if i == 0 else d}")
    def chk(br, i):
        b = OF[1-br]+4*i
        a(f"v_max3_u32 v{vT}, v{b}, v{b+1}, {0 if i == 0 else 'v%d' % vT}")
        a(f"v_max3_u32 v{vT}, v{b+2}, v{b+3}, v{vT}")
    a("s_waitcnt vmcnt(1)")
    if not opt("twe", 2): a("s_barrier")
    stamp(a, 2, True, mode=2)
    for i in range(8): wreads(i)
    for i in range(8): chk(1, i)
    a(f"v_cmp_ne_u32 vcc, -1, v{vT}")
    a("s_cmp_eq_u64 vcc, -1"); a("s_cbranch_scc0 L_OB_get")
    a.lab("L_OB_ok")
    for i in range(8):
        a(f"s_waitcnt lgkmcnt({max(0, min(15, 4*(7-i)))})")
        pm(1, i)
        if i == opt('pp', 7): a(pollO[0])
    a(f"v_subrev_u32 v{vPW0}, 0x10000, v{vPW0}"); a(f"v_subrev_u32 v{vPW1}, 0x10000, v{vPW1}")
    stamp(a, 9)
    stamp(a, 4, mode=2)
    if not opt("tr1", 0): a("s_barrier")
    for i in range(8): wreads(i)
    stamp(a, 5, mode=2)
    spin(pollO[0], -1, cnt="s64", cmp="v_cmp_ne_u32")
    oloads(0)
    if opt("tr1", 0): a("s_barrier")
    stamp(a, 6, mode=2)
    a(f"v_sub_f32 v{vT}, 1.0, v{vG}")
    for c in range(2):
        for r in range(16): a(f"v_mul_f32 v{PACC[1][c]+r}, v{vT}, v{PACC[1][c]+r}")
    a(f"s_mov_b32 s64, {SPIN}")
    a("s_branch L_O_go")
    a.lab("L_O_retry")
    oloads(0)
    a.lab("L_O_go")
    for i in range(8):
        a(f"s_waitcnt vmcnt({7-i}) lgkmcnt(0)")
        if i == 0: stamp(a, 7, mode=2)
        pm(0, i)
        chk(0, i)
    a(f"v_cmp_ne_u32 vcc, -1, v{vT}")
    a("s_sub_u32 s64, s64, 1"); a("s_cbranch_scc1 L_O_ok")
    a("s_cmp_eq_u64 vcc, -1"); a("s_cbranch_scc0 L_O_retry")
    a.lab("L_O_ok")
    stamp(a, 8, mode=2)
    a("s_nop 6")
    for c in range(2):
        for g in range(4):
            for r in range(4*g, 4*g+4): a(f"v_fmac_f32 v{PACC[1][c]+r}, v{vG}, v{PACC[0][c]+r}")
            a(f"ds_write_b128 v{vPWR}, {vr(PACC[1][c]+4*g,4)} offset:{(c*4+g)*1088}")
    a("s_waitcnt lgkmcnt(0)"); a("s_barrier")
    stamp(a, 9, True, mode=2)
    for kq in range(4):
        for h in range(2):
            a(f"ds_read_b128 {vr(16+kq*8+h*4,4)}, v{vPRD} offset:{kq*PW + h*512}")
    a("s_waitcnt lgkmcnt(4)")
    for i in range(8): a(f"v_add_f32 v{16+i}, v{16+i}, v{24+i}")
    a("s_waitcnt lgkmcnt(0)")
    for i in range(8): a(f"v_add_f32 v{32+i}, v{32+i}, v{40+i}")
    for i in range(8): a(f"v_add_f32 v{16+i}, v{16+i}, v{32+i}")
    for i in range(4): a(f"v_cvt_pk_bf16_f32 v{48+i}, v{16+2*i}, v{16+2*i+1}")
    a(f"buffer_store_dwordx4 v[48:51], v{vOUT}, {S(sOUT)}, s33 offen {opt('ost', 'sc1')}")
    if HOLD >= 0:
        hold(3)
        if opt("x_who") is not None:
            a(f"s_cmp_lg_u32 s2, {opt('x_who')}"); a("s_cbranch_scc1 L_end")
        a.lab("L_hold")
        a("s_memrealtime s[62:63]"); a("s_waitcnt lgkmcnt(0)")
        a("s_sub_u32 s62, s62, s72"); a("s_cmp_lt_u32 s62, 6000"); a("s_cbranch_scc1 L_hold")
    if Cfg.stamp:
        a("s_waitcnt vmcnt(0)")
        a("s_memtime s[96:97]"); a("s_waitcnt lgkmcnt(0)")
        stamp_out(a, 0, 10, sWS, sW, 8)
        a("s_nop 1"); a("v_mov_b32 v1, s96"); a(f"buffer_store_dword v1, v0, {S(sWS)}, s94 offen offset:40")
    a.lab("L_end")
    a("s_endpgm")

    for nm in pubs:
        a.lab(f"L_pub_{nm}"); a("s_call_b64 s[30:31], L_pub"); a(f"s_branch L_pubr_{nm}")
    if pubs:
        a.lab("L_pub")
        spin(pollI, 1, cnt="s65", reg=114, cmp="v_cmp_eq_u32")
        a("s_lshl_b32 s62, s2, 7"); a(f"s_lshl_b32 s63, s{sW}, 2"); a("s_add_u32 s62, s62, s63"); a(f"s_add_u32 s62, s62, {WS_FL+16:#x}")
        a("v_mov_b32 v114, 1")
        a("s_mov_b64 exec, 1")
        a(f"buffer_store_dword v114, v{vL16}, {S(sWS)}, s62 offen {SC}")
        a("s_mov_b64 exec, -1")
        a("s_mov_b32 s34, 1")
        a("s_setpc_b64 s[30:31]")
    a.lab("L_OB_get")
    a(pollO[1])
    spin(pollO[1], -1, cnt="s64", cmp="v_cmp_ne_u32")
    a(f"s_mov_b32 s65, {SPIN}")
    a.lab("L_OB_retry")
    oloads(1)
    a("s_waitcnt vmcnt(0)")
    for i in range(8): chk(1, i)
    a(f"v_cmp_ne_u32 vcc, -1, v{vT}")
    a("s_sub_u32 s65, s65, 1"); a("s_cbranch_scc1 L_OB_ok")
    a("s_cmp_eq_u64 vcc, -1"); a("s_cbranch_scc0 L_OB_retry")
    a("s_branch L_OB_ok")
    a.lab("L_t2x")
    a(f"v_lshlrev_b32 v{vT2}, 10, v1")
    a(f"s_and_b32 s64, s{sRB}, 7"); a("s_lshl_b32 s64, s64, 16"); a(f"s_lshl_b32 s63, s{sJ}, 7"); a("s_add_u32 s64, s64, s63")
    a(f"s_cmp_eq_u32 s{sW}, 0"); a("s_cbranch_scc0 L_t2y")
    publishF1(2, vT)
    a(f"buffer_load_dword v243, v{vT2}, {S(sWOA)}, s64 offen")
    a("s_branch L_t2r")
    a.lab("L_t2y")
    a(f"buffer_load_dword v243, v{vT2}, {S(sWOB)}, s64 offen")
    a("s_branch L_t2r")
    for t in range(7):
        a.lab(f"L_A_off{t}")
        a("s_nop 7")
        for r in range(16): a(f"v_mov_b32 v{CM+r}, s5")
        a("s_nop 1")
        a(f"s_branch L_A_mid{t}")
    a.lab("L_A_fb")
    a("s_waitcnt lgkmcnt(0)")
    a("s_mov_b32 s8, 1")
    a(f"v_mov_b32 v{vM}, s5")
    for r in range(16): a(f"v_mov_b32 v{OA+r}, 0")
    for ps in range(2):
        a(f"s_sub_u32 s17, 8, s{sW}"); a(f"s_cmp_eq_u32 s{sB}, 0"); a("s_cselect_b32 s17, s17, 0")
        a.lab(f"L_A_fb{ps}")
        a("s_lshl_b32 s62, s17, 11")
        a(f"v_add_u32 v{vT}, s62, v{vKa}")
        rdK(0, vT, 0)
        if ps:
            a(f"v_add_u32 v{vT}, s62, v{vVa}")
            rdV(0, vT, 0)
        a("s_sub_u32 s62, 8, s17"); a("s_lshl_b32 s62, s62, 5")
        a(f"v_add_u32 v{vT2}, s62, v{vQH}")
        a("s_movk_i32 s62, 256")
        a("s_waitcnt lgkmcnt(0)")
        mfma(SB[0], 0, QA, "0")
        a("s_nop 15")
        for r in range(16):
            a(f"v_subrev_u32 v{vT}, {(r & 7) + 16*(r >> 3)}, v{vT2}")
            a(f"v_cmp_gt_u32 vcc, s62, v{vT}")
            if ps: a(f"v_sub_f32 v{SB[0]+r}, v{SB[0]+r}, v{vM}")
            a("s_nop 1")
            a(f"v_cndmask_b32 v{SB[0]+r}, v{vMF}, v{SB[0]+r}, vcc")
            a(f"v_exp_f32 v{SB[0]+r}, v{SB[0]+r}" if ps else f"v_max_f32 v{vM}, v{vM}, v{SB[0]+r}")
        if ps:
            a("s_nop 1")
            smf(VB[0][0], SB[0]); smf(VB[0][1], SB[0]+8)
        a("s_add_u32 s17, s17, 1"); a("s_cmp_lt_u32 s17, 9"); a(f"s_cbranch_scc1 L_A_fb{ps}")
        if not ps: halves_max()
    a("s_branch L_A_fin")
    a.lab("L_B_fb")
    a("s_waitcnt lgkmcnt(0)")
    a("s_mov_b32 s8, 1")
    a("s_mov_b32 s17, s14"); a("s_add_u32 s62, s14, 131072")
    a(f"v_mov_b32 v{vM}, s5")
    a(f"v_and_b32 v{vVb}, 0x7ff, v{vVb}")
    a.lab("L_B_fb_max")
    a(f"buffer_load_dwordx4 {vr(KB[0],4)}, v{vL16}, {S(sWS)}, s17 offen {LD}")
    a("s_add_u32 s17, s17, 2048")
    a("s_waitcnt vmcnt(0)")
    mfma(SB[0], 0, QB, "0")
    a("s_nop 15")
    for i in range(0, 16, 2): a(f"v_max3_f32 v{vM}, v{SB[0]+i}, v{SB[0]+i+1}, v{vM}")
    a("s_cmp_lt_u32 s17, s62"); a("s_cbranch_scc1 L_B_fb_max")
    halves_max()
    for r in range(16): a(f"v_mov_b32 v{OA+r}, 0")
    a("s_mov_b32 s17, s14")
    a.lab("L_B_fb_acc")
    a(f"buffer_load_dwordx4 {vr(KB[0],4)}, v{vL16}, {S(sWS)}, s17 offen {LD}")
    a("s_mov_b64 exec, s[22:23]")
    a(f"buffer_load_dwordx4 {vr(VB[0][0],4)}, v{vVb}, {S(sWS)}, s17 offen {LD}")
    a(f"buffer_load_dwordx4 {vr(VB[0][1],4)}, v{vVb}, {S(sWS)}, s17 offen offset:512 {LD}")
    a("s_mov_b64 exec, -1")
    a("s_add_u32 s17, s17, 2048")
    a("s_waitcnt vmcnt(0)")
    mfma(SB[0], 0, QB, "0")
    a("s_nop 15")
    for i in range(16): a(f"v_sub_f32 v{SB[0]+i}, v{SB[0]+i}, v{vM}")
    for i in range(16): ex(SB[0], i)
    a("s_nop 1")
    smf(VB[0][0], SB[0]); smf(VB[0][1], SB[0]+8)
    a("s_cmp_lt_u32 s17, s62"); a("s_cbranch_scc1 L_B_fb_acc")
    a("s_branch L_B_fin")
    a.lab("L_code_end")
    d = desc(K, 256, 74, 256)
    if Cfg.stamp: d = d.replace("next_free_sgpr 96", "next_free_sgpr 100")
    return a.text(), d

def main(out):
    t, d = gen()
    hdr = f"""; gated_mix(sliding-window MHA, full MHA) as one fused launch, one workgroup per CU (generated by a script of my own).
; Hand-offs between workgroups: sc1 stores, flags in d_ws that this launch clears itself (announced through d_debug), sc1 loads;
; @launch grid=(256,1,1) block=(512,1,1) lds=163840
.amdgcn_target "amdgcn-amd-amdhsa--gfx950"
"""
    open(out, "w").write(hdr + t + d)

if __name__ == "__main__":
    main(parse_args())
```
